```python
import torch

def _softmax(x, axis=-1):
    return torch.softmax(x, dim=axis)
def _gelu(x):
    return torch.nn.functional.gelu(x, approximate="tanh")
def _silu(x):
    return torch.nn.functional.silu(x)
def _sigmoid(x):
    return torch.sigmoid(x)
def _layernorm(x, axis=-1, eps=1e-5):
    m = x.mean(dim=axis, keepdim=True)
    v = x.var(dim=axis, keepdim=True, unbiased=False)
    return (x - m) / torch.sqrt(v + eps)
def _scatter_add(tgt, idx, src, axis=0):
    return tgt.clone().index_add_(axis, idx, src)
def _segment_sum(src, seg, n):
    out = torch.zeros((n,) + src.shape[1:], dtype=src.dtype)
    return out.index_add_(0, seg, src)
def _pad(x, pw):
    flat = tuple(v for pair in reversed(pw) for v in pair)
    return torch.nn.functional.pad(x, flat)

kernel_name = 'standalone__mha_block_cached__decode'

def setup_inputs():

    _w = (lambda a: (lambda t: t.to(torch.bfloat16) if t.is_floating_point() else t)(torch.as_tensor(a)))
    B, Sq, D = 2, 1, 448
    H, Sk, Dh = 16, 8192, 256
    return {
        "x": _w((lambda *s: torch.randn(*s, dtype=torch.bfloat16) * 0.8)(B, Sq, D)),
        "k_cache": _w((lambda *s: torch.randn(*s, dtype=torch.bfloat16) * 0.8)(B, H, Sk, Dh)),
        "v_cache": _w((lambda *s: torch.randn(*s, dtype=torch.bfloat16) * 0.05)(B, H, Sk, Dh)),
        "wq": _w((lambda *s: torch.randn(*s, dtype=torch.bfloat16) * 0.8)(D, H * Dh) * (D ** -0.5)),
        "wo": _w((lambda *s: torch.randn(*s, dtype=torch.bfloat16) * 0.05)(H * Dh, D) * ((H * Dh) ** -0.5)),
    }

def reference(x, k_cache, v_cache, wq, wo):
    B, Sq, D = x.shape
    H, Dh = 16, 256
    q = (lambda x, *d: x.permute(*d))((x @ wq).reshape(B, Sq, H, Dh), 0, 2, 1, 3)
    scores = torch.einsum("bhqd,bhkd->bhqk", q, k_cache) * (Dh ** -0.5)
    p = _softmax(scores, axis=-1)
    o = torch.einsum("bhqk,bhkd->bhqd", p, v_cache)
    return (lambda x, *d: x.permute(*d))(o, 0, 2, 1, 3).reshape(B, Sq, H * Dh) @ wo
```

```python
import sys, math

KN = "standalone__mha_block_cached__decode_kernel"

HEADER = """; Kernarg layout for this problem (64 bytes, ptrs only, base s[0:1]):
"""

WS_EPOCH = 0
WS_Q = 0x1000
WS_STAT = 0x40000
WS_O1 = 0x80000
WS_Y = 0x100000
WS_USED = 0x200000
STAMP_BASE = 0x10000000

L_Q = 0
L_TAG = 512
L_STAT = 576
L_O = 1024


def gen(NW=4, D=6, LZ=32, mapping="lin", inter=0, stamps=0, spin=1 << 16, kflags="nt", wflags="nt",
        slp1=0, slp2=0, qslp=0):
    L = []
    def A(s): L.append("  " + s)
    def LB(s): L.append(s + ":")
    def C(s): L.append("  ; " + s)
    NH = 4
    N = 512 // NW
    NB = N // 16
    assert LZ % 16 == 0 and LZ >= 16 and D < 16
    lds = L_O + NW * 1024
    L.append(HEADER.rstrip("\n"))
    L.append("; @launch grid=(256,1,1) block=(%d,1,1) lds=%d" % ((NW + NH) * 64, lds))
    L.append('.amdgcn_target "amdgcn-amd-amdhsa--gfx950"')
    L.append(".text")
    L.append(".globl " + KN)
    L.append(".p2align 8")
    L.append(".type %s,@function" % KN)
    LB(KN)

    sX, sK, sV, sWQ, sWO, sOUT, sDBG, sWS = 4, 6, 8, 10, 12, 14, 16, 18
    SRD = 20
    WSR = 24
    SR2 = 28
    sGRP, sC, sB, sH = 32, 33, 34, 35
    sBASE, sOFF, sIT = 36, 37, 38
    sT = 40
    sSEL = 44
    sM2, sM1 = 48, 50
    sF = 52
    sTMP = 60
    sSPIN = 68
    sCS = 69
    sST = 70
    sTAG = 86
    sEX = 88
    nstamp = [0]

    def stamp(k):
        if stamps:
            A("s_memrealtime s[%d:%d]" % (sST + 2 * k, sST + 2 * k + 1))

    def stamp_store():
        if not stamps:
            return
        A("s_memrealtime s[%d:%d]" % (sST + 14, sST + 15))
        A("s_mul_i32 s%d, s2, %d" % (sTMP, NW + NH))
        A("s_add_u32 s%d, s%d, s3" % (sTMP, sTMP))
        A("s_lshl_b32 s%d, s%d, 6" % (sTMP, sTMP))
        A("s_add_u32 s%d, s%d, %d" % (sTMP, sTMP, STAMP_BASE))
        A("s_mov_b32 s%d, 0x20000000" % (WSR + 2))
        A("s_waitcnt lgkmcnt(0)")
        A("s_mov_b64 exec, 1")
        A("v_mov_b32 v1, 0")
        for q in range(4):
            for r in range(4):
                A("v_mov_b32 v%d, s%d" % (4 + 4 * q + r, sST + 4 * q + r))
        for q in range(4):
            A("buffer_store_dwordx4 v[%d:%d], v1, s[%d:%d], s%d offen offset:%d" % (4 + 4 * q, 7 + 4 * q, WSR, WSR + 3, sTMP, 16 * q))

    if stamps:
        for k in range(1, 8):
            A("s_mov_b64 s[%d:%d], 0" % (sST + 2 * k, sST + 2 * k + 1))
    stamp(0)
    A("s_cmp_ge_u32 s2, 256")
    A("s_cbranch_scc1 L_end")
    A("s_load_dwordx16 s[4:19], s[0:1], 0")
    A("v_lshrrev_b32 v1, 6, v0")
    A("v_and_b32 v0, 63, v0")
    A("v_readfirstlane_b32 s3, v1")
    if mapping == "lin":
        A("s_lshr_b32 s%d, s2, 3" % sGRP)
        A("s_and_b32 s%d, s2, 7" % sC)
    else:
        A("s_lshr_b32 s%d, s2, 3" % sTMP)
        A("s_and_b32 s%d, s%d, 7" % (sC, sTMP))
        A("s_and_b32 s%d, s%d, 24" % (sTMP, sTMP))
        A("s_and_b32 s%d, s2, 7" % sGRP)
        A("s_or_b32 s%d, s%d, s%d" % (sGRP, sGRP, sTMP))
    A("s_mov_b32 s%d, 0x20000" % (SRD + 3))
    A("s_mov_b32 s%d, 0x20000" % (WSR + 3))
    A("s_mov_b32 s%d, 0x20000" % (SR2 + 3))
    A("s_mov_b32 s%d, %d" % (WSR + 2, WS_USED))
    A("s_cmp_ge_u32 s3, %d" % NW)
    A("s_cbranch_scc1 L_helper")

    vOFF = 0
    vQ = 4
    vMK = 8
    vA = 12
    vO = 16
    vT = 20
    vS = 36
    vU = 44
    vLANE = 52
    vSL = 64
    def slot(i): return vSL + 4 * i
    A("v_mov_b32 v%d, v0" % vLANE)
    A("v_lshlrev_b32 v%d, 4, v0" % vOFF)
    A("s_lshl_b32 s%d, s%d, 22" % (sBASE, sGRP))
    if inter:
        A("s_mul_i32 s%d, s%d, %d" % (sTMP, sC, NW * 4096))
        stride = 8 * NW * 4096
    else:
        A("s_lshl_b32 s%d, s%d, 19" % (sTMP, sC))
        stride = NW * 4096
    A("s_add_u32 s%d, s%d, s%d" % (sBASE, sBASE, sTMP))
    A("s_lshl_b32 s%d, s3, 12" % sTMP)
    A("s_add_u32 s%d, s%d, s%d" % (sBASE, sBASE, sTMP))
    A("s_mov_b32 s%d, s%d" % (sOFF, sBASE))
    A("s_mov_b32 s%d, 0x8000000" % (SRD + 2))
    A("s_waitcnt lgkmcnt(0)")
    A("s_mov_b32 s%d, s%d" % (SRD, sK))
    A("s_mov_b32 s%d, s%d" % (SRD + 1, sK + 1))

    def issue(idx, sl, adv=True):
        if adv and idx % 4 == 0:
            A("s_add_u32 s%d, s%d, %d" % (sOFF, sOFF, stride))
        A("buffer_load_dwordx4 v[%d:%d], v%d, s[%d:%d], s%d offen offset:%d %s" %
          (slot(sl), slot(sl) + 3, vOFF, SRD, SRD + 3, sOFF, (idx % 4) * 1024, kflags))

    C("phase P: paced fill of the landing zone")
    for i in range(D):
        issue(i, i, adv=(i > 0))
    A("s_mov_b32 s%d, s%d" % (WSR, sWS))
    A("s_mov_b32 s%d, s%d" % (WSR + 1, sWS + 1))
    A("s_mov_b32 s%d, 0xcccccccc" % sM2)
    A("s_mov_b32 s%d, 0xcccccccc" % (sM2 + 1))
    A("s_mov_b32 s%d, 0xaaaaaaaa" % sM1)
    A("s_mov_b32 s%d, 0xaaaaaaaa" % (sM1 + 1))
    A("s_mov_b32 s%d, 0x3db8aa3b" % sCS)
    A("v_lshrrev_b32 v%d, 3, v%d" % (vU, vLANE))
    A("v_lshrrev_b32 v%d, 4, v%d" % (vU + 1, vLANE))
    A("v_xor_b32 v%d, v%d, v%d" % (vU, vU, vU + 1))
    A("v_and_b32 v%d, 1, v%d" % (vU, vU))
    A("v_lshlrev_b32 v%d, 2, v%d" % (vU, vU))
    A("v_bfe_u32 v%d, v%d, 1, 2" % (vU + 1, vLANE))
    A("v_or_b32 v%d, v%d, v%d" % (vU, vU, vU + 1))
    A("v_and_b32 v%d, 1, v%d" % (vU + 1, vLANE))
    A("v_lshlrev_b32 v%d, 4, v%d" % (vU + 1, vU + 1))
    A("v_mov_b32 v%d, 0xffff" % (vU + 2))
    A("v_lshlrev_b32 v%d, v%d, v%d" % (vU + 2, vU + 1, vU + 2))
    for r in range(4):
        A("v_cmp_eq_u32 vcc, %d, v%d" % (r, vU))
        A("v_mov_b32 v%d, 0" % (vO + r))
        A("s_nop 0")
        A("v_cndmask_b32 v%d, 0, v%d, vcc" % (vMK + r, vU + 2))
    A("v_and_b32 v%d, 31, v%d" % (vU + 3, vLANE))
    A("v_lshlrev_b32 v%d, 4, v%d" % (vU + 3, vU + 3))
    A("v_mov_b32 v%d, 0" % (vU + 4))
    for i in range(D, LZ):
        A("s_waitcnt vmcnt(%d)" % (D - 1))
        issue(i, i)
    stamp(1)
    A("s_barrier")
    A("ds_read_b128 v[%d:%d], v%d offset:%d" % (vQ, vQ + 3, vU + 3, L_Q))
    A("ds_read_b32 v%d, v%d offset:%d" % (vU + 5, vU + 4, L_TAG))
    A("s_waitcnt lgkmcnt(0)")
    A("v_readfirstlane_b32 s%d, v%d" % (sTAG, vU + 5))
    stamp(2)

    def kdot(sl, n):
        b = slot(sl)
        A("v_dot2_f32_bf16 v%d, v%d, v%d, 0" % (vT + n, b, vQ))
        for r in range(1, 4):
            A("v_dot2_f32_bf16 v%d, v%d, v%d, v%d" % (vT + n, b + r, vQ + r, vT + n))

    def kreduce():
        t = lambda n: vT + n
        for k in range(NB - 1):
            A("v_mov_b32 v%d, v%d" % (vS + k, vS + k + 1))
        for n in range(8):
            A("v_add_f32_dpp v%d, v%d, v%d row_ror:8 row_mask:0xf bank_mask:0x3" % (t(n), t(n), t(n)))
        for n in range(8):
            A("v_add_f32_dpp v%d, v%d, v%d row_ror:8 row_mask:0xf bank_mask:0xc" % (t(n), t(n + 8), t(n + 8)))
        for n in range(4):
            A("v_add_f32_dpp v%d, v%d, v%d row_half_mirror row_mask:0xf bank_mask:0x5" % (t(n), t(n), t(n)))
        for n in range(4):
            A("v_add_f32_dpp v%d, v%d, v%d row_half_mirror row_mask:0xf bank_mask:0xa" % (t(n), t(n + 4), t(n + 4)))
        A("v_cndmask_b32 v%d, v%d, v%d, s[%d:%d]" % (t(9), t(2), t(0), sM2, sM2 + 1))
        A("v_cndmask_b32 v%d, v%d, v%d, s[%d:%d]" % (t(11), t(3), t(1), sM2, sM2 + 1))
        A("v_cndmask_b32 v%d, v%d, v%d, s[%d:%d]" % (t(8), t(0), t(2), sM2, sM2 + 1))
        A("v_cndmask_b32 v%d, v%d, v%d, s[%d:%d]" % (t(10), t(1), t(3), sM2, sM2 + 1))
        A("s_nop 0")
        A("v_add_f32_dpp v%d, v%d, v%d quad_perm:[2,3,0,1] row_mask:0xf bank_mask:0xf" % (t(0), t(9), t(8)))
        A("v_add_f32_dpp v%d, v%d, v%d quad_perm:[2,3,0,1] row_mask:0xf bank_mask:0xf" % (t(1), t(11), t(10)))
        A("v_cndmask_b32 v%d, v%d, v%d, s[%d:%d]" % (t(9), t(1), t(0), sM1, sM1 + 1))
        A("v_cndmask_b32 v%d, v%d, v%d, s[%d:%d]" % (t(8), t(0), t(1), sM1, sM1 + 1))
        A("s_nop 1")
        A("v_add_f32_dpp v%d, v%d, v%d quad_perm:[1,0,3,2] row_mask:0xf bank_mask:0xf" % (t(0), t(9), t(8)))
        A("v_mov_b32 v%d, v%d" % (t(1), t(0)))
        A("s_nop 1")
        A("v_permlane16_swap_b32 v%d, v%d" % (t(0), t(1)))
        A("v_add_f32 v%d, v%d, v%d" % (t(0), t(0), t(1)))
        A("v_cvt_pk_bf16_f32 v%d, v%d, v%d" % (t(0), t(0), t(0)))
        A("v_and_b32 v%d, 0xffff0000, v%d" % (vS + NB - 1, t(0)))

    C("catch-up: consume the landing zone, keep D loads in flight")
    free = LZ - D
    pts = []
    for e in range(D):
        p = max(e, int(round((e + 0.5) * free / D)) - 1)
        p = min(p, free - 1 + e)
        pts.append(p)
    assert LZ + D <= N
    for j in range(LZ):
        kdot(j, j % 16)
        for e in range(D):
            if pts[e] == j:
                A("s_waitcnt vmcnt(%d)" % (D - 1))
                issue(LZ + e, e)
        if j % 16 == 15:
            kreduce()
    for e in range(D):
        assert pts[e] < free + e, (pts, free)

    C("steady K loop")
    nit = (N - LZ) // 16
    A("s_mov_b32 s%d, %d" % (sIT, nit))
    LB("L_kloop")
    for j in range(16):
        A("s_waitcnt vmcnt(%d)" % (D - 1))
        if (j + D) % 16 == 0:
            A("s_add_u32 s%d, s%d, %d" % (sOFF, sOFF, stride))
            A("s_cmp_eq_u32 s%d, 1" % sIT)
            A("s_cselect_b32 s%d, s%d, s%d" % (SRD, sV, SRD))
            A("s_cselect_b32 s%d, s%d, s%d" % (SRD + 1, sV + 1, SRD + 1))
            A("s_cselect_b32 s%d, s%d, s%d" % (sOFF, sBASE, sOFF))
            issue(j + D, (j + D) % 16, adv=False)
        else:
            issue(j + D, (j + D) % 16)
        kdot(j, j)
    kreduce()
    A("s_sub_u32 s%d, s%d, 1" % (sIT, sIT))
    A("s_cmp_lg_u32 s%d, 0" % sIT)
    A("s_cbranch_scc1 L_kloop")

    C("softmax over this wave's keys")
    stamp(3)
    m = vU
    A("v_max3_f32 v%d, v%d, v%d, v%d" % (m, vS, vS + 1, vS + 2))
    k = 3
    while k + 1 < NB:
        A("v_max3_f32 v%d, v%d, v%d, v%d" % (m, m, vS + k, vS + k + 1))
        k += 2
    if k < NB:
        A("v_max_f32 v%d, v%d, v%d" % (m, m, vS + k))
    def allreduce(op, r, tmp, half=True):
        for ctl in ("quad_perm:[1,0,3,2]", "quad_perm:[2,3,0,1]", "row_half_mirror", "row_mirror"):
            A("s_nop 1")
            A("%s_dpp v%d, v%d, v%d %s row_mask:0xf bank_mask:0xf" % (op, r, r, r, ctl))
        if half:
            A("v_mov_b32 v%d, v%d" % (tmp, r))
            A("s_nop 1")
            A("v_permlane32_swap_b32 v%d, v%d" % (r, tmp))
            A("%s v%d, v%d, v%d" % (op, r, r, tmp))
    allreduce("v_max_f32", m, vU + 1)
    A("v_mul_f32 v%d, s%d, v%d" % (vU + 4, sCS, m))
    for k in range(NB):
        A("v_fma_f32 v%d, v%d, s%d, -v%d" % (vS + k, vS + k, sCS, vU + 4))
    for k in range(NB):
        A("v_exp_f32 v%d, v%d" % (vS + k, vS + k))
    l = vU + 5
    A("v_add_f32 v%d, v%d, v%d" % (l, vS, vS + 1))
    for k in range(2, NB):
        A("v_add_f32 v%d, v%d, v%d" % (l, l, vS + k))
    for k in range(NB):
        A("v_cvt_pk_bf16_f32 v%d, v%d, v%d" % (vS + k, vS + k, vS + k))
    allreduce("v_add_f32", l, vU + 1)
    A("v_mov_b32 v%d, 1" % (vU + 6))
    A("v_mov_b32 v%d, 1" % (vU + 7))
    A("s_lshl_b32 s%d, s3, 4" % sTMP)
    A("v_mov_b32 v%d, s%d" % (vU + 1, sTMP))
    A("ds_write_b128 v%d, v[%d:%d] offset:%d" % (vU + 1, vU + 4, vU + 7, L_STAT))

    C("V loop")
    A("s_mov_b32 s%d, %d" % (sIT, NB))
    LB("L_vloop")
    for j in range(16):
        for r in range(4):
            A("v_and_b32_dpp v%d, v%d, v%d row_newbcast:%d row_mask:0xf bank_mask:0xf" % (vA + r, vS, vMK + r, j))
        A("s_waitcnt vmcnt(%d)" % (D - 1))
        if (j + D) % 16 == 0:
            A("s_add_u32 s%d, s%d, %d" % (sOFF, sOFF, stride))
            A("s_cmp_eq_u32 s%d, 1" % sIT)
            A("s_cselect_b32 s%d, 0x10000000, s%d" % (sOFF, sOFF))
            issue(j + D, (j + D) % 16, adv=False)
        else:
            issue(j + D, (j + D) % 16)
        A("v_mfma_f32_16x16x32_bf16 v[%d:%d], v[%d:%d], v[%d:%d], v[%d:%d]" %
          (vO, vO + 3, vA, vA + 3, slot(j), slot(j) + 3, vO, vO + 3))
    for k in range(NB - 1):
        A("v_mov_b32 v%d, v%d" % (vS + k, vS + k + 1))
    A("s_sub_u32 s%d, s%d, 1" % (sIT, sIT))
    A("s_cmp_lg_u32 s%d, 0" % sIT)
    A("s_cbranch_scc1 L_vloop")
    A("s_lshl_b32 s%d, s3, 10" % sTMP)
    A("v_add_u32 v%d, s%d, v%d" % (vU, sTMP, vOFF))
    pad = 8 - (NB - 1) - 3 - 2
    if pad > 0:
        A("s_nop %d" % (pad - 1))
    A("ds_write_b128 v%d, v[%d:%d] offset:%d" % (vU, vO, vO + 3, L_O))
    A("s_waitcnt lgkmcnt(0)")
    stamp(4)
    A("s_barrier")
    A("s_cmp_lg_u32 s3, 0")
    A("s_cbranch_scc1 L_fin")

    C("final reducer (wave 0): unit u = (wg&7) + 8*(wg>>6), sub = (wg>>3)&7")
    sU, sSUB, sKQ, sHW, sRB = sTMP, sTMP + 1, sTMP + 2, sTMP + 3, sTMP + 4
    A("s_lshr_b32 s%d, s2, 6" % sU)
    A("s_lshl_b32 s%d, s%d, 3" % (sU, sU))
    A("s_and_b32 s%d, s2, 7" % sSUB)
    A("s_or_b32 s%d, s%d, s%d" % (sU, sU, sSUB))
    A("s_bfe_u32 s%d, s2, 0x30003" % sSUB)
    A("s_and_b32 s%d, s%d, 3" % (sKQ, sU))
    A("s_lshl_b32 s%d, s%d, 3" % (sKQ, sKQ))
    A("s_or_b32 s%d, s%d, s%d" % (sKQ, sKQ, sSUB))
    A("s_cmp_ge_u32 s%d, 28" % sKQ)
    A("s_cbranch_scc1 L_fin")
    A("s_bfe_u32 s%d, s%d, 0x20002" % (sHW, sU))
    A("s_lshr_b32 s%d, s%d, 4" % (sRB, sU))
    A("s_lshl_b32 s%d, s%d, 18" % (sOFF, sRB))
    A("s_lshl_b32 s%d, s%d, 9" % (sIT, sHW))
    A("s_add_u32 s%d, s%d, s%d" % (sOFF, sOFF, sIT))
    A("s_lshl_b32 s%d, s%d, 4" % (sIT, sKQ))
    A("s_add_u32 s%d, s%d, s%d" % (sOFF, sOFF, sIT))
    A("s_add_u32 s%d, s%d, %d" % (sOFF, sOFF, WS_Y))
    A("s_add_u32 s%d, s%d, %d" % (sBASE, sOFF, 64 * 2048))
    A("v_lshlrev_b32 v%d, 11, v%d" % (vU, vLANE))
    for r in range(4):
        A("s_bfe_u32 s%d, s%d, 0x%x" % (sT + r, sTAG, 0x80000 | (8 * r)))
    A("s_mul_i32 s%d, s%d, 896" % (sRB, sRB))
    A("s_mul_i32 s%d, s%d, 224" % (sHW, sHW))
    A("s_add_u32 s%d, s%d, s%d" % (sRB, sRB, sHW))
    A("s_lshl_b32 s%d, s%d, 3" % (sKQ, sKQ))
    A("s_add_u32 s%d, s%d, s%d" % (sRB, sRB, sKQ))
    A("s_mov_b32 s%d, s%d" % (SR2, sOUT))
    A("s_mov_b32 s%d, s%d" % (SR2 + 1, sOUT + 1))
    A("s_mov_b32 s%d, 1792" % (SR2 + 2))
    A("v_lshrrev_b32 v%d, 5, v%d" % (vU + 1, vLANE))
    A("v_bfe_u32 v%d, v%d, 4, 1" % (vU + 2, vLANE))
    A("v_lshl_add_u32 v%d, v%d, 1, v%d" % (vU + 1, vU + 2, vU + 1))
    A("v_lshlrev_b32 v%d, 1, v%d" % (vU + 1, vU + 1))
    A("s_mov_b32 s%d, %d" % (sSPIN, spin))
    ya, yb = vT, vT + 4
    LB("L_rpoll")
    A("buffer_load_dwordx4 v[%d:%d], v%d, s[%d:%d], s%d offen sc1" % (ya, ya + 3, vU, WSR, WSR + 3, sOFF))
    A("buffer_load_dwordx4 v[%d:%d], v%d, s[%d:%d], s%d offen sc1" % (yb, yb + 3, vU, WSR, WSR + 3, sBASE))
    A("s_sub_u32 s%d, s%d, 1" % (sSPIN, sSPIN))
    A("s_cmp_eq_u32 s%d, 0" % sSPIN)
    A("s_cbranch_scc1 L_fin")
    A("s_waitcnt vmcnt(0)")
    for r in range(4):
        A("v_xor_b32 v%d, s%d, v%d" % (ya + r, sT + r, ya + r))
        A("v_xor_b32 v%d, s%d, v%d" % (yb + r, sT + r, yb + r))
    A("v_or3_b32 v%d, v%d, v%d, v%d" % (vU + 3, ya, ya + 1, ya + 2))
    A("v_or3_b32 v%d, v%d, v%d, v%d" % (vU + 3, vU + 3, ya + 3, yb))
    A("v_or3_b32 v%d, v%d, v%d, v%d" % (vU + 3, vU + 3, yb + 1, yb + 2))
    A("v_or_b32 v%d, v%d, v%d" % (vU + 3, vU + 3, yb + 3))
    A("v_and_b32 v%d, 0xff, v%d" % (vU + 3, vU + 3))
    A("v_cmp_ne_u32 vcc, 0, v%d" % (vU + 3))
    for r in range(4):
        A("v_add_f32 v%d, v%d, v%d" % (ya + r, ya + r, yb + r))
    if slp2:
        A("s_cbranch_vccz L_rgo")
        A("s_sleep %d" % slp2)
        A("s_branch L_rpoll")
        LB("L_rgo")
    else:
        A("s_cbranch_vccnz L_rpoll")
    stamp(5)
    A("s_nop 0")
    A("v_permlane32_swap_b32 v%d, v%d" % (ya, ya + 1))
    A("v_permlane32_swap_b32 v%d, v%d" % (ya + 2, ya + 3))
    A("v_add_f32 v%d, v%d, v%d" % (ya, ya, ya + 1))
    A("v_add_f32 v%d, v%d, v%d" % (ya + 2, ya + 2, ya + 3))
    A("s_nop 1")
    A("v_permlane16_swap_b32 v%d, v%d" % (ya, ya + 2))
    A("v_add_f32 v%d, v%d, v%d" % (ya, ya, ya + 2))
    allreduce("v_add_f32", ya, None, half=False)
    A("v_cvt_pk_bf16_f32 v%d, v%d, v%d" % (ya, ya, ya))
    A("s_mov_b32 exec_lo, 0x00010001")
    A("s_mov_b32 exec_hi, 0x00010001")
    A("buffer_store_short v%d, v%d, s[%d:%d], s%d offen" % (ya, vU + 1, SR2, SR2 + 3, sRB))
    A("s_cmp_lg_u32 s2, 0")
    A("s_cbranch_scc1 L_fin")
    C("workgroup 0 advances the hand-off epoch for the next launch")
    A("s_mov_b64 exec, 1")
    A("v_mov_b32 v%d, s%d" % (vU + 2, sTAG))
    A("v_mov_b32 v%d, 0" % (vU + 3))
    A("buffer_store_dword v%d, v%d, s[%d:%d], 0 offen" % (vU + 2, vU + 3, WSR, WSR + 3))
    A("s_branch L_fin")

    LB("L_helper")
    hL = 0
    hG, hJ = 1, 2
    hU = 4
    hX = 16
    hSEL = 32
    hA = 36
    hD = 40
    hMK = 44
    hP = 48
    hW = 64
    sHW = 39
    A("s_sub_u32 s%d, s3, %d" % (sHW, NW))
    A("v_lshrrev_b32 v%d, 4, v%d" % (hG, hL))
    A("v_and_b32 v%d, 15, v%d" % (hJ, hL))
    A("s_lshr_b32 s%d, s%d, 4" % (sB, sGRP))
    A("s_and_b32 s%d, s%d, 15" % (sH, sGRP))
    A("s_mov_b32 s%d, %d" % (SRD + 2, 448 * 8192))
    for r in range(4):
        A("s_mov_b32 s%d, 0x%08x" % (sSEL + r, 0x07060500 | r))
    A("s_cmp_lg_u32 s%d, 0" % sHW)
    A("s_cbranch_scc1 L_h_other")

    C("helper 0: q tile  (h'=wg>>4, rq=(wg>>2)&3, cs=wg&3)")
    sHP, sRQ, sCSL = sTMP, sTMP + 1, sTMP + 2
    A("s_lshr_b32 s%d, s2, 4" % sHP)
    A("s_bfe_u32 s%d, s2, 0x20002" % sRQ)
    A("s_and_b32 s%d, s2, 3" % sCSL)
    A("v_mul_u32_u24 v%d, %d, v%d" % (hU, 28 * 8192, hG))
    A("v_lshl_add_u32 v%d, v%d, 3, v%d" % (hU, hJ, hU))
    A("s_mul_i32 s%d, s%d, %d" % (sOFF, sRQ, 112 * 8192))
    A("s_lshl_b32 s%d, s%d, 9" % (sIT, sHP))
    A("s_add_u32 s%d, s%d, s%d" % (sOFF, sOFF, sIT))
    A("s_lshl_b32 s%d, s%d, 7" % (sIT, sCSL))
    A("s_add_u32 s%d, s%d, s%d" % (sOFF, sOFF, sIT))
    A("v_bfe_u32 v%d, v%d, 2, 1" % (hU + 1, hL))
    A("v_mul_u32_u24 v%d, 896, v%d" % (hU + 1, hU + 1))
    A("v_mul_u32_u24 v%d, 56, v%d" % (hU + 2, hG))
    A("v_add_u32 v%d, v%d, v%d" % (hU + 1, hU + 1, hU + 2))
    A("s_mul_i32 s%d, s%d, 224" % (sBASE, sRQ))
    A("s_mov_b32 s%d, 1792" % (SR2 + 2))
    A("s_waitcnt lgkmcnt(0)")
    A("s_load_dword s%d, s[%d:%d], %d" % (sTAG, sWS, sWS + 1, WS_EPOCH))
    A("s_mov_b32 s%d, s%d" % (SR2, sX))
    A("s_mov_b32 s%d, s%d" % (SR2 + 1, sX + 1))
    A("s_mov_b32 s%d, s%d" % (SRD, sWQ))
    A("s_mov_b32 s%d, s%d" % (SRD + 1, sWQ + 1))
    A("s_mov_b32 s%d, s%d" % (WSR, sWS))
    A("s_mov_b32 s%d, s%d" % (WSR + 1, sWS + 1))
    for q in range(3):
        A("buffer_load_dwordx4 v[%d:%d], v%d, s[%d:%d], s%d offen offset:%d" % (hX + 4 * q, hX + 4 * q + 3, hU + 1, SR2, SR2 + 3, sBASE, 16 * q))
    A("buffer_load_dwordx2 v[%d:%d], v%d, s[%d:%d], s%d offen offset:48" % (hX + 12, hX + 13, hU + 1, SR2, SR2 + 3, sBASE))
    for n in range(28):
        A("buffer_load_dwordx2 v[%d:%d], v%d, s[%d:%d], s%d offen %s" % (hW + 2 * n, hW + 2 * n + 1, hU, SRD, SRD + 3, sOFF, wflags))
        if n < 27:
            A("s_add_u32 s%d, s%d, 8192" % (sOFF, sOFF))
    A("v_and_b32 v%d, 1, v%d" % (hU + 2, hL))
    A("v_lshlrev_b32 v%d, 4, v%d" % (hU + 2, hU + 2))
    A("v_bfe_u32 v%d, v%d, 1, 1" % (hU + 3, hL))
    A("v_bfe_u32 v%d, v%d, 3, 1" % (hU + 4, hL))
    A("v_lshl_add_u32 v%d, v%d, 1, v%d" % (hU + 3, hU + 4, hU + 3))
    A("v_mov_b32 v%d, 0x0c0c0c0c" % (hU + 6))
    for par, src in ((0, 0x0100), (1, 0x0302)):
        A("v_mov_b32 v%d, 0x%x" % (hU + 4, src ^ 0x0c0c))
        A("v_lshlrev_b32 v%d, v%d, v%d" % (hU + 4, hU + 2, hU + 4))
        A("v_xor_b32 v%d, v%d, v%d" % (hU + 4, hU + 6, hU + 4))
        for r in range(2):
            A("v_cmp_eq_u32 vcc, %d, v%d" % (r, hU + 3))
            A("s_nop 1")
            A("v_cndmask_b32 v%d, v%d, v%d, vcc" % (hSEL + 2 * par + r, hU + 6, hU + 4))
    for r in range(4):
        A("v_mov_b32 v%d, 0" % (hD + r))
    A("v_lshlrev_b32 v%d, 2, v%d" % (hU + 5, hL))
    A("ds_write_b32 v%d, v%d offset:%d" % (hU + 5, hD, L_STAT))
    A("s_lshl_b32 s%d, s%d, 13" % (sOFF, sHP))
    A("s_lshl_b32 s%d, s%d, 10" % (sIT, sRQ))
    A("s_add_u32 s%d, s%d, s%d" % (sOFF, sOFF, sIT))
    A("s_lshl_b32 s%d, s%d, 8" % (sIT, sCSL))
    A("s_add_u32 s%d, s%d, s%d" % (sOFF, sOFF, sIT))
    A("s_add_u32 s%d, s%d, %d" % (sOFF, sOFF, WS_Q))
    A("v_lshlrev_b32 v%d, 12, v%d" % (hU + 7, hG))
    A("v_lshl_add_u32 v%d, v%d, 4, v%d" % (hU + 7, hJ, hU + 7))
    A("s_lshl_b32 s%d, s%d, 1" % (sBASE, sH))
    A("s_add_u32 s%d, s%d, s%d" % (sBASE, sBASE, sB))
    A("s_lshl_b32 s%d, s%d, 12" % (sBASE, sBASE))
    A("s_add_u32 s%d, s%d, %d" % (sBASE, sBASE, WS_Q))
    A("v_lshlrev_b32 v%d, 4, v%d" % (hU + 8, hL))
    A("s_waitcnt lgkmcnt(0)")
    A("s_add_u32 s%d, s%d, 0x01010101" % (sTAG, sTAG))
    A("v_mov_b32 v%d, s%d" % (hU + 9, sTAG))
    A("v_mov_b32 v%d, 0" % (hU + 10))
    A("ds_write_b32 v%d, v%d offset:%d" % (hU + 10, hU + 9, L_TAG))
    for r in range(4):
        A("s_bfe_u32 s%d, s%d, 0x%x" % (sT + r, sTAG, 0x80000 | (8 * r)))
    A("s_waitcnt vmcnt(28)")
    for n in range(28):
        a = hA + 2 * (n & 1)
        for r in range(2):
            A("v_perm_b32 v%d, v%d, v%d, v%d" % (a + r, hX + (n >> 1), hX + (n >> 1), hSEL + 2 * (n & 1) + r))
        A("s_waitcnt vmcnt(%d)" % (27 - n))
        A("s_nop 0")
        A("v_mfma_f32_16x16x16_bf16 v[%d:%d], v[%d:%d], v[%d:%d], v[%d:%d]" %
          (hD, hD + 3, a, a + 1, hW + 2 * n, hW + 2 * n + 1, hD, hD + 3))
    A("s_nop 7")
    for r in range(4):
        A("v_perm_b32 v%d, v%d, v%d, s%d" % (hD + r, hD + r, hU + 9, sSEL + r))
    A("s_mov_b32 exec_hi, 0")
    A("buffer_store_dwordx4 v[%d:%d], v%d, s[%d:%d], s%d offen sc1" % (hD, hD + 3, hU + 7, WSR, WSR + 3, sOFF))
    A("s_mov_b32 exec_hi, -1")
    stamp(1)
    A("s_mov_b32 s%d, %d" % (sSPIN, spin))
    LB("L_qpoll")
    if qslp:
        A("s_sleep %d" % qslp)
    for q in range(4):
        A("buffer_load_dwordx4 v[%d:%d], v%d, s[%d:%d], s%d offen offset:%d sc1" % (hP + 4 * q, hP + 4 * q + 3, hU + 8, WSR, WSR + 3, sBASE, 1024 * q))
    A("s_sub_u32 s%d, s%d, 1" % (sSPIN, sSPIN))
    A("s_cmp_eq_u32 s%d, 0" % sSPIN)
    A("s_cbranch_scc1 L_qgo")
    A("s_waitcnt vmcnt(0)")
    for q in range(4):
        for r in range(4):
            A("v_xor_b32 v%d, s%d, v%d" % (hP + 4 * q + r, sT + r, hP + 4 * q + r))
    A("v_or3_b32 v%d, v%d, v%d, v%d" % (hU + 11, hP, hP + 1, hP + 2))
    for k in range(3, 15, 2):
        A("v_or3_b32 v%d, v%d, v%d, v%d" % (hU + 11, hU + 11, hP + k, hP + k + 1))
    A("v_or_b32 v%d, v%d, v%d" % (hU + 11, hU + 11, hP + 15))
    A("v_and_b32 v%d, 0xff, v%d" % (hU + 11, hU + 11))
    A("v_cmp_ne_u32 vcc, 0, v%d" % (hU + 11))
    A("s_cbranch_vccnz L_qpoll")
    LB("L_qgo")
    for r in range(4):
        A("v_add_f32 v%d, v%d, v%d" % (hP + r, hP + r, hP + 4 + r))
        A("v_add_f32 v%d, v%d, v%d" % (hP + 8 + r, hP + 8 + r, hP + 12 + r))
    for r in range(4):
        A("v_add_f32 v%d, v%d, v%d" % (hP + r, hP + r, hP + 8 + r))
    A("v_cvt_pk_bf16_f32 v%d, v%d, v%d" % (hP, hP, hP + 1))
    A("v_cvt_pk_bf16_f32 v%d, v%d, v%d" % (hP + 1, hP + 2, hP + 3))
    A("v_lshlrev_b32 v%d, 3, v%d" % (hU + 11, hL))
    A("ds_write_b64 v%d, v[%d:%d] offset:%d" % (hU + 11, hP, hP + 1, L_Q))
    A("s_waitcnt lgkmcnt(0)")
    stamp(2)
    A("s_barrier")
    A("s_branch L_h_common")

    LB("L_h_other")
    A("v_mov_b32 v%d, 0" % (hU + 10))
    A("s_waitcnt lgkmcnt(0)")
    A("s_mov_b32 s%d, s%d" % (WSR, sWS))
    A("s_mov_b32 s%d, s%d" % (WSR + 1, sWS + 1))
    A("s_barrier")
    A("ds_read_b32 v%d, v%d offset:%d" % (hU + 9, hU + 10, L_TAG))
    A("s_waitcnt lgkmcnt(0)")
    A("v_readfirstlane_b32 s%d, v%d" % (sTAG, hU + 9))
    A("s_nop 0")
    for r in range(4):
        A("s_bfe_u32 s%d, s%d, 0x%x" % (sT + r, sTAG, 0x80000 | (8 * r)))

    LB("L_h_common")
    C("prefetch this wave's wo fragment: rows h*256+32c+8g+4hi+r, cols 112*hw + 8*min(j,13)")
    A("s_mov_b32 s%d, s%d" % (SRD, sWO))
    A("s_mov_b32 s%d, s%d" % (SRD + 1, sWO + 1))
    A("v_min_u32 v%d, 13, v%d" % (hU, hJ))
    A("v_lshlrev_b32 v%d, 4, v%d" % (hU, hU))
    A("v_mul_u32_u24 v%d, %d, v%d" % (hU + 1, 8 * 896, hG))
    A("v_add_u32 v%d, v%d, v%d" % (hU, hU, hU + 1))
    A("s_lshl_b32 s%d, s%d, 3" % (sOFF, sH))
    A("s_add_u32 s%d, s%d, s%d" % (sOFF, sOFF, sC))
    A("s_mul_i32 s%d, s%d, %d" % (sOFF, sOFF, 32 * 896))
    A("s_mul_i32 s%d, s%d, 224" % (sIT, sHW))
    A("s_add_u32 s%d, s%d, s%d" % (sOFF, sOFF, sIT))
    A("s_add_u32 s%d, s%d, %d" % (sIT, sOFF, 4 * 896))
    for n in range(8):
        A("buffer_load_dwordx4 v[%d:%d], v%d, s[%d:%d], s%d offen offset:%d %s" %
          (hW + 4 * n, hW + 4 * n + 3, hU, SRD, SRD + 3, sOFF if n < 4 else sIT, (n & 3) * 896, wflags))
        A("s_waitcnt vmcnt(0)")
    A("v_lshrrev_b32 v%d, 1, v%d" % (hU + 1, hJ))
    A("v_and_b32 v%d, 1, v%d" % (hU + 2, hL))
    A("v_lshlrev_b32 v%d, 4, v%d" % (hU + 2, hU + 2))
    A("v_mov_b32 v%d, 0xffff" % (hU + 3))
    A("v_lshlrev_b32 v%d, v%d, v%d" % (hU + 3, hU + 2, hU + 3))
    for r in range(4):
        A("v_cmp_eq_u32 vcc, %d, v%d" % (r, hU + 1))
        A("s_nop 1")
        A("v_cndmask_b32 v%d, 0, v%d, vcc" % (hMK + r, hU + 3))
    A("v_and_b32 v%d, 7, v%d" % (hU + 1, hL))
    A("v_lshlrev_b32 v%d, 10, v%d" % (hU + 1, hU + 1))
    A("v_lshrrev_b32 v%d, 3, v%d" % (hU + 2, hL))
    A("v_lshl_add_u32 v%d, v%d, 4, v%d" % (hU + 1, hU + 2, hU + 1))
    sO1R, sO1W, sYW = sTMP + 4, sTMP + 5, sTMP + 6
    A("s_lshl_b32 s%d, s%d, 13" % (sO1R, sGRP))
    A("s_add_u32 s%d, s%d, %d" % (sO1R, sO1R, WS_O1))
    A("s_lshl_b32 s%d, s%d, 10" % (sIT, sC))
    A("s_add_u32 s%d, s%d, s%d" % (sO1W, sO1R, sIT))
    A("s_lshl_b32 s%d, s%d, 7" % (sIT, sC))
    A("s_add_u32 s%d, s%d, s%d" % (sO1R, sO1R, sIT))
    A("s_lshl_b32 s%d, s%d, 3" % (sYW, sGRP))
    A("s_add_u32 s%d, s%d, s%d" % (sYW, sYW, sC))
    A("s_lshl_b32 s%d, s%d, 11" % (sYW, sYW))
    A("s_lshl_b32 s%d, s%d, 9" % (sIT, sHW))
    A("s_add_u32 s%d, s%d, s%d" % (sYW, sYW, sIT))
    A("s_add_u32 s%d, s%d, %d" % (sYW, sYW, WS_Y))
    A("v_lshlrev_b32 v%d, 5, v%d" % (hU + 2, hJ))
    A("v_lshl_add_u32 v%d, v%d, 4, v%d" % (hU + 2, hG, hU + 2))
    A("s_cmp_lg_u32 s%d, 0" % sHW)
    A("s_cbranch_scc1 L_h_b2")

    C("helper 0: softmax statistics exchange inside the (b,h) group")
    A("v_and_b32 v%d, %d, v%d" % (hU + 3, NW - 1, hL))
    A("v_lshlrev_b32 v%d, 4, v%d" % (hU + 3, hU + 3))
    A("s_mov_b32 s%d, %d" % (sSPIN, spin * 4))
    LB("L_lpoll")
    A("s_sleep 4")
    A("ds_read_b128 v[%d:%d], v%d offset:%d" % (hP, hP + 3, hU + 3, L_STAT))
    A("s_sub_u32 s%d, s%d, 1" % (sSPIN, sSPIN))
    A("s_cmp_eq_u32 s%d, 0" % sSPIN)
    A("s_cbranch_scc1 L_lgo")
    A("s_waitcnt lgkmcnt(0)")
    A("v_cmp_eq_u32 vcc, 0, v%d" % (hP + 2))
    A("s_cbranch_vccnz L_lpoll")
    LB("L_lgo")
    A("s_waitcnt lgkmcnt(0)")
    A("v_mov_b32 v%d, v%d" % (hP + 2, hU + 9))
    A("v_mov_b32 v%d, v%d" % (hP + 3, hU + 9))
    sSR, sSW = sTMP, sTMP + 1
    A("s_mul_i32 s%d, s%d, %d" % (sSR, sGRP, 8 * NW * 16))
    A("s_add_u32 s%d, s%d, %d" % (sSR, sSR, WS_STAT))
    A("s_mul_i32 s%d, s%d, %d" % (sSW, sC, NW * 16))
    A("s_add_u32 s%d, s%d, s%d" % (sSW, sSW, sSR))
    A("s_mov_b64 exec, %d" % ((1 << NW) - 1) if NW <= 4 else "s_mov_b64 exec, 0xff")
    A("buffer_store_dwordx4 v[%d:%d], v%d, s[%d:%d], s%d offen sc1" % (hP, hP + 3, hU + 3, WSR, WSR + 3, sSW))
    A("s_mov_b64 exec, -1")
    A("v_and_b32 v%d, %d, v%d" % (hU + 4, 8 * NW - 1, hL))
    A("v_lshlrev_b32 v%d, 4, v%d" % (hU + 4, hU + 4))
    A("s_mov_b32 s%d, %d" % (sSPIN, spin))
    LB("L_spoll")
    A("s_sleep 8")
    A("buffer_load_dwordx4 v[%d:%d], v%d, s[%d:%d], s%d offen sc1" % (hP + 4, hP + 7, hU + 4, WSR, WSR + 3, sSR))
    A("s_sub_u32 s%d, s%d, 1" % (sSPIN, sSPIN))
    A("s_cmp_eq_u32 s%d, 0" % sSPIN)
    A("s_cbranch_scc1 L_sgo")
    A("s_waitcnt vmcnt(0)")
    A("v_xor_b32 v%d, v%d, v%d" % (hP + 8, hP + 6, hU + 9))
    A("v_xor_b32 v%d, v%d, v%d" % (hP + 9, hP + 7, hU + 9))
    A("v_or_b32 v%d, v%d, v%d" % (hP + 8, hP + 8, hP + 9))
    A("v_cmp_ne_u32 vcc, 0, v%d" % (hP + 8))
    A("s_cbranch_vccnz L_spoll")
    LB("L_sgo")
    A("s_waitcnt vmcnt(0)")
    stamp(3)
    def allreduce_full(op, r, tmp):
        for ctl in ("quad_perm:[1,0,3,2]", "quad_perm:[2,3,0,1]", "row_half_mirror", "row_mirror"):
            A("s_nop 1")
            A("%s_dpp v%d, v%d, v%d %s row_mask:0xf bank_mask:0xf" % (op, r, r, r, ctl))
        sw = ["v_permlane16_swap_b32"] + (["v_permlane32_swap_b32"] if NW == 8 else [])
        for s_ in sw:
            A("v_mov_b32 v%d, v%d" % (tmp, r))
            A("s_nop 1")
            A("%s v%d, v%d" % (s_, r, tmp))
            A("%s v%d, v%d, v%d" % (op, r, r, tmp))
    A("v_mov_b32 v%d, v%d" % (hP + 8, hP + 4))
    allreduce_full("v_max_f32", hP + 8, hP + 9)
    A("v_sub_f32 v%d, v%d, v%d" % (hP + 8, hP + 4, hP + 8))
    A("v_exp_f32 v%d, v%d" % (hP + 8, hP + 8))
    A("s_nop 0")
    A("v_mul_f32 v%d, v%d, v%d" % (hP + 10, hP + 8, hP + 5))
    allreduce_full("v_add_f32", hP + 10, hP + 9)
    A("v_rcp_f32 v%d, v%d" % (hP + 10, hP + 10))
    A("s_mul_i32 s%d, s%d, %d" % (sIT, sC, NW))
    A("v_mul_f32 v%d, v%d, v%d" % (hP + 8, hP + 8, hP + 10))
    for w in range(NW):
        A("s_nop 0")
        A("v_readlane_b32 s%d, v%d, s%d" % (sF + w, hP + 8, sIT))
        A("s_add_u32 s%d, s%d, 1" % (sIT, sIT))
    A("v_lshrrev_b32 v%d, 1, v%d" % (hU + 3, hG))
    A("v_lshlrev_b32 v%d, 9, v%d" % (hU + 3, hU + 3))
    A("v_lshl_add_u32 v%d, v%d, 5, v%d" % (hU + 3, hJ, hU + 3))
    A("v_and_b32 v%d, 1, v%d" % (hU + 4, hG))
    A("v_lshl_add_u32 v%d, v%d, 4, v%d" % (hU + 3, hU + 4, hU + 3))
    A("v_lshlrev_b32 v%d, 4, v%d" % (hU + 4, hL))
    A("s_barrier")
    OR = 96
    for w in range(NW):
        A("ds_read_b128 v[%d:%d], v%d offset:%d" % (OR + 4 * w, OR + 4 * w + 3, hU + 4, L_O + 1024 * w))
    for w in range(NW):
        A("s_waitcnt lgkmcnt(%d)" % (NW - 1 - w))
        for r in range(4):
            if w == 0:
                A("v_mul_f32 v%d, s%d, v%d" % (hD + r, sF, OR + r))
            else:
                A("v_fmac_f32 v%d, s%d, v%d" % (hD + r, sF + w, OR + 4 * w + r))
    for r in range(4):
        A("v_perm_b32 v%d, v%d, v%d, s%d" % (hX + r, hD + r, hU + 9, sSEL + r))
    A("buffer_store_dwordx4 v[%d:%d], v%d, s[%d:%d], s%d offen sc1" % (hX, hX + 3, hU + 3, WSR, WSR + 3, sO1W))
    A("s_branch L_h_hop1")
    LB("L_h_b2")
    A("s_barrier")
    LB("L_h_hop1")
    stamp(4)
    A("s_mov_b32 s%d, %d" % (sSPIN, spin))
    LB("L_opoll")
    A("buffer_load_dwordx4 v[%d:%d], v%d, s[%d:%d], s%d offen sc1" % (hP, hP + 3, hU + 1, WSR, WSR + 3, sO1R))
    A("s_sub_u32 s%d, s%d, 1" % (sSPIN, sSPIN))
    A("s_cmp_eq_u32 s%d, 0" % sSPIN)
    A("s_cbranch_scc1 L_fin")
    A("s_waitcnt vmcnt(0)")
    for r in range(4):
        A("v_xor_b32 v%d, s%d, v%d" % (hP + r, sT + r, hP + r))
    A("v_or3_b32 v%d, v%d, v%d, v%d" % (hP + 4, hP, hP + 1, hP + 2))
    A("v_or_b32 v%d, v%d, v%d" % (hP + 4, hP + 4, hP + 3))
    A("v_and_b32 v%d, 0xff, v%d" % (hP + 4, hP + 4))
    A("v_cmp_ne_u32 vcc, 0, v%d" % (hP + 4))
    if slp1:
        A("s_cbranch_vccz L_ogo")
        A("s_sleep %d" % slp1)
        A("s_branch L_opoll")
        LB("L_ogo")
    else:
        A("s_cbranch_vccnz L_opoll")
    stamp(5)
    for ctl in ("quad_perm:[1,0,3,2]", "quad_perm:[2,3,0,1]", "row_half_mirror"):
        for r in range(4):
            A("v_add_f32_dpp v%d, v%d, v%d %s row_mask:0xf bank_mask:0xf" % (hP + r, hP + r, hP + r, ctl))
    for r in range(4):
        A("v_cvt_pk_bf16_f32 v%d, v%d, v%d" % (hP + r, hP + r, hP + r))
    A2 = [hA, hSEL]
    def buildA(n):
        hi, r0 = n >> 2, n & 3
        for r in range(4):
            A("v_and_b32_dpp v%d, v%d, v%d row_newbcast:%d row_mask:0xf bank_mask:0xf" % (A2[n & 1] + r, hP + r0, hMK + r, 8 * hi))
    buildA(0)
    for n in range(8):
        if n + 1 < 8:
            buildA(n + 1)
        else:
            A("s_nop 1")
        A("v_mfma_f32_16x16x32_bf16 v[%d:%d], v[%d:%d], v[%d:%d], %s" %
          (hD, hD + 3, A2[n & 1], A2[n & 1] + 3, hW + 4 * n, hW + 4 * n + 3, "0" if n == 0 else "v[%d:%d]" % (hD, hD + 3)))
    A("s_mov_b32 exec_hi, 0")
    A("s_nop 6")
    for r in range(4):
        A("v_perm_b32 v%d, v%d, v%d, s%d" % (hD + r, hD + r, hU + 9, sSEL + r))
    A("buffer_store_dwordx4 v[%d:%d], v%d, s[%d:%d], s%d offen sc1" % (hD, hD + 3, hU + 2, WSR, WSR + 3, sYW))

    LB("L_fin")
    stamp_store()
    LB("L_end")
    A("s_endpgm")
    nv = max(vSL + 4 * LZ, 96 + 4 * NW, 136)
    nv = (nv + 7) // 8 * 8
    L.append('.section .rodata,"a"')
    L.append(".p2align 6")
    L.append(".amdhsa_kernel " + KN)
    L.append("  .amdhsa_next_free_vgpr %d" % nv)
    L.append("  .amdhsa_next_free_sgpr 96")
    L.append("  .amdhsa_accum_offset %d" % nv)
    L.append("  .amdhsa_group_segment_fixed_size 0")
    L.append("  .amdhsa_kernarg_size 64")
    L.append("  .amdhsa_user_sgpr_count 2")
    L.append("  .amdhsa_user_sgpr_kernarg_segment_ptr 1")
    L.append("  .amdhsa_system_sgpr_workgroup_id_x 1")
    L.append("  .amdhsa_float_denorm_mode_32 3")
    L.append(".end_amdhsa_kernel")
    return "\n".join(L) + "\n"


def parse(spec):
    kw = {}
    for x in spec.split(","):
        if not x:
            continue
        k, v = x.split("=")
        if k in ("mapping", "kflags", "wflags"):
            kw[k] = v.replace("+", " ").replace("def", "")
        else:
            kw[k] = int(v, 0)
    return kw


if __name__ == "__main__":
    names = []
    for spec in sys.argv[1:]:
        name = "k_" + spec.replace(",", "_").replace("=", "") + ".s"
        open(name, "w").write(gen(**parse(spec)))
        names.append(name)
    print(" ".join(names))
```

```python
import sys, math

KN = "standalone__mha_block_cached__decode_kernel"

HEADER = """; Kernarg layout for this problem (64 bytes, ptrs only, base s[0:1]):
"""

WS_EPOCH = 0
WS_Q = 0x1000
WS_STAT = 0x40000
WS_O1 = 0x80000
WS_Y = 0x100000
WS_USED = 0x200000
STAMP_BASE = 0x10000000

L_Q = 0
L_TAG = 512
L_STAT = 576
L_O = 1024


def gen(NW=4, D=6, LZ=32, mapping="lin", inter=0, stamps=0, spin=1 << 16, kflags="nt", wflags="nt",
        slp1=0, slp2=0, qslp=0, diag=-1, dk=1):
    L = []
    def A(s): L.append("  " + s)
    def LB(s): L.append(s + ":")
    def C(s): L.append("  ; " + s)
    NH = 4
    N = 512 // NW
    NB = N // 16
    assert LZ % 16 == 0 and LZ >= 16 and D < 16
    lds = L_O + NW * 1024
    L.append(HEADER.rstrip("\n"))
    L.append("; @launch grid=(256,1,1) block=(%d,1,1) lds=%d" % ((NW + NH) * 64, lds))
    L.append('.amdgcn_target "amdgcn-amd-amdhsa--gfx950"')
    L.append(".text")
    L.append(".globl " + KN)
    L.append(".p2align 8")
    L.append(".type %s,@function" % KN)
    LB(KN)

    sX, sK, sV, sWQ, sWO, sOUT, sDBG, sWS = 4, 6, 8, 10, 12, 14, 16, 18
    SRD = 20
    WSR = 24
    SR2 = 28
    sGRP, sC, sB, sH = 32, 33, 34, 35
    sBASE, sOFF, sIT = 36, 37, 38
    sT = 40
    sSEL = 44
    sM2, sM1 = 48, 50
    sF = 52
    sTMP = 60
    sSPIN = 68
    sCS = 69
    sST = 70
    sTAG = 86
    sEX = 88
    nstamp = [0]

    def stamp(k):
        if stamps or (diag >= 0 and k in (0, diag)):
            A("s_memrealtime s[%d:%d]" % (sST + 2 * k, sST + 2 * k + 1))

    def stamp_store():
        if not stamps:
            return
        A("s_memrealtime s[%d:%d]" % (sST + 14, sST + 15))
        A("s_mul_i32 s%d, s2, %d" % (sTMP, NW + NH))
        A("s_add_u32 s%d, s%d, s3" % (sTMP, sTMP))
        A("s_lshl_b32 s%d, s%d, 6" % (sTMP, sTMP))
        A("s_add_u32 s%d, s%d, %d" % (sTMP, sTMP, STAMP_BASE))
        A("s_mov_b32 s%d, 0x20000000" % (WSR + 2))
        A("s_waitcnt lgkmcnt(0)")
        A("s_mov_b64 exec, 1")
        A("v_mov_b32 v1, 0")
        for q in range(4):
            for r in range(4):
                A("v_mov_b32 v%d, s%d" % (4 + 4 * q + r, sST + 4 * q + r))
        for q in range(4):
            A("buffer_store_dwordx4 v[%d:%d], v1, s[%d:%d], s%d offen offset:%d" % (4 + 4 * q, 7 + 4 * q, WSR, WSR + 3, sTMP, 16 * q))

    if stamps:
        for k in range(1, 8):
            A("s_mov_b64 s[%d:%d], 0" % (sST + 2 * k, sST + 2 * k + 1))
    stamp(0)
    A("s_cmp_ge_u32 s2, 256")
    A("s_cbranch_scc1 L_end")
    A("s_load_dwordx16 s[4:19], s[0:1], 0")
    A("v_lshrrev_b32 v1, 6, v0")
    A("v_and_b32 v0, 63, v0")
    A("v_readfirstlane_b32 s3, v1")
    if mapping == "lin":
        A("s_lshr_b32 s%d, s2, 3" % sGRP)
        A("s_and_b32 s%d, s2, 7" % sC)
    else:
        A("s_lshr_b32 s%d, s2, 3" % sTMP)
        A("s_and_b32 s%d, s%d, 7" % (sC, sTMP))
        A("s_and_b32 s%d, s%d, 24" % (sTMP, sTMP))
        A("s_and_b32 s%d, s2, 7" % sGRP)
        A("s_or_b32 s%d, s%d, s%d" % (sGRP, sGRP, sTMP))
    A("s_mov_b32 s%d, 0x20000" % (SRD + 3))
    A("s_mov_b32 s%d, 0x20000" % (WSR + 3))
    A("s_mov_b32 s%d, 0x20000" % (SR2 + 3))
    A("s_mov_b32 s%d, %d" % (WSR + 2, WS_USED))
    A("s_cmp_ge_u32 s3, %d" % NW)
    A("s_cbranch_scc1 L_helper")

    vOFF = 0
    vQ = 4
    vMK = 8
    vA = 12
    vO = 16
    vT = 20
    vS = 36
    vU = 44
    vLANE = 52
    vSL = 64
    def slot(i): return vSL + 4 * i
    A("v_mov_b32 v%d, v0" % vLANE)
    A("v_lshlrev_b32 v%d, 4, v0" % vOFF)
    A("s_lshl_b32 s%d, s%d, 22" % (sBASE, sGRP))
    if inter:
        A("s_mul_i32 s%d, s%d, %d" % (sTMP, sC, NW * 4096))
        stride = 8 * NW * 4096
    else:
        A("s_lshl_b32 s%d, s%d, 19" % (sTMP, sC))
        stride = NW * 4096
    A("s_add_u32 s%d, s%d, s%d" % (sBASE, sBASE, sTMP))
    A("s_lshl_b32 s%d, s3, 12" % sTMP)
    A("s_add_u32 s%d, s%d, s%d" % (sBASE, sBASE, sTMP))
    A("s_mov_b32 s%d, s%d" % (sOFF, sBASE))
    A("s_mov_b32 s%d, 0x8000000" % (SRD + 2))
    A("s_waitcnt lgkmcnt(0)")
    A("s_mov_b32 s%d, s%d" % (SRD, sK))
    A("s_mov_b32 s%d, s%d" % (SRD + 1, sK + 1))

    def issue(idx, sl, adv=True):
        if adv and idx % 4 == 0:
            A("s_add_u32 s%d, s%d, %d" % (sOFF, sOFF, stride))
        A("buffer_load_dwordx4 v[%d:%d], v%d, s[%d:%d], s%d offen offset:%d %s" %
          (slot(sl), slot(sl) + 3, vOFF, SRD, SRD + 3, sOFF, (idx % 4) * 1024, kflags))

    C("phase P: paced fill of the landing zone")
    for i in range(D):
        issue(i, i, adv=(i > 0))
    A("s_mov_b32 s%d, s%d" % (WSR, sWS))
    A("s_mov_b32 s%d, s%d" % (WSR + 1, sWS + 1))
    A("s_mov_b32 s%d, 0xcccccccc" % sM2)
    A("s_mov_b32 s%d, 0xcccccccc" % (sM2 + 1))
    A("s_mov_b32 s%d, 0xaaaaaaaa" % sM1)
    A("s_mov_b32 s%d, 0xaaaaaaaa" % (sM1 + 1))
    A("s_mov_b32 s%d, 0x3db8aa3b" % sCS)
    A("v_lshrrev_b32 v%d, 3, v%d" % (vU, vLANE))
    A("v_lshrrev_b32 v%d, 4, v%d" % (vU + 1, vLANE))
    A("v_xor_b32 v%d, v%d, v%d" % (vU, vU, vU + 1))
    A("v_and_b32 v%d, 1, v%d" % (vU, vU))
    A("v_lshlrev_b32 v%d, 2, v%d" % (vU, vU))
    A("v_bfe_u32 v%d, v%d, 1, 2" % (vU + 1, vLANE))
    A("v_or_b32 v%d, v%d, v%d" % (vU, vU, vU + 1))
    A("v_and_b32 v%d, 1, v%d" % (vU + 1, vLANE))
    A("v_lshlrev_b32 v%d, 4, v%d" % (vU + 1, vU + 1))
    A("v_mov_b32 v%d, 0xffff" % (vU + 2))
    A("v_lshlrev_b32 v%d, v%d, v%d" % (vU + 2, vU + 1, vU + 2))
    for r in range(4):
        A("v_cmp_eq_u32 vcc, %d, v%d" % (r, vU))
        A("v_mov_b32 v%d, 0" % (vO + r))
        A("s_nop 0")
        A("v_cndmask_b32 v%d, 0, v%d, vcc" % (vMK + r, vU + 2))
    A("v_and_b32 v%d, 31, v%d" % (vU + 3, vLANE))
    A("v_lshlrev_b32 v%d, 4, v%d" % (vU + 3, vU + 3))
    A("v_mov_b32 v%d, 0" % (vU + 4))
    for i in range(D, LZ):
        A("s_waitcnt vmcnt(%d)" % (D - 1))
        issue(i, i)
    stamp(1)
    A("s_barrier")
    A("ds_read_b128 v[%d:%d], v%d offset:%d" % (vQ, vQ + 3, vU + 3, L_Q))
    A("ds_read_b32 v%d, v%d offset:%d" % (vU + 5, vU + 4, L_TAG))
    A("s_waitcnt lgkmcnt(0)")
    A("v_readfirstlane_b32 s%d, v%d" % (sTAG, vU + 5))
    stamp(2)

    def kdot(sl, n):
        b = slot(sl)
        A("v_dot2_f32_bf16 v%d, v%d, v%d, 0" % (vT + n, b, vQ))
        for r in range(1, 4):
            A("v_dot2_f32_bf16 v%d, v%d, v%d, v%d" % (vT + n, b + r, vQ + r, vT + n))

    def kreduce():
        t = lambda n: vT + n
        for k in range(NB - 1):
            A("v_mov_b32 v%d, v%d" % (vS + k, vS + k + 1))
        for n in range(8):
            A("v_add_f32_dpp v%d, v%d, v%d row_ror:8 row_mask:0xf bank_mask:0x3" % (t(n), t(n), t(n)))
        for n in range(8):
            A("v_add_f32_dpp v%d, v%d, v%d row_ror:8 row_mask:0xf bank_mask:0xc" % (t(n), t(n + 8), t(n + 8)))
        for n in range(4):
            A("v_add_f32_dpp v%d, v%d, v%d row_half_mirror row_mask:0xf bank_mask:0x5" % (t(n), t(n), t(n)))
        for n in range(4):
            A("v_add_f32_dpp v%d, v%d, v%d row_half_mirror row_mask:0xf bank_mask:0xa" % (t(n), t(n + 4), t(n + 4)))
        A("v_cndmask_b32 v%d, v%d, v%d, s[%d:%d]" % (t(9), t(2), t(0), sM2, sM2 + 1))
        A("v_cndmask_b32 v%d, v%d, v%d, s[%d:%d]" % (t(11), t(3), t(1), sM2, sM2 + 1))
        A("v_cndmask_b32 v%d, v%d, v%d, s[%d:%d]" % (t(8), t(0), t(2), sM2, sM2 + 1))
        A("v_cndmask_b32 v%d, v%d, v%d, s[%d:%d]" % (t(10), t(1), t(3), sM2, sM2 + 1))
        A("s_nop 0")
        A("v_add_f32_dpp v%d, v%d, v%d quad_perm:[2,3,0,1] row_mask:0xf bank_mask:0xf" % (t(0), t(9), t(8)))
        A("v_add_f32_dpp v%d, v%d, v%d quad_perm:[2,3,0,1] row_mask:0xf bank_mask:0xf" % (t(1), t(11), t(10)))
        A("v_cndmask_b32 v%d, v%d, v%d, s[%d:%d]" % (t(9), t(1), t(0), sM1, sM1 + 1))
        A("v_cndmask_b32 v%d, v%d, v%d, s[%d:%d]" % (t(8), t(0), t(1), sM1, sM1 + 1))
        A("s_nop 1")
        A("v_add_f32_dpp v%d, v%d, v%d quad_perm:[1,0,3,2] row_mask:0xf bank_mask:0xf" % (t(0), t(9), t(8)))
        A("v_mov_b32 v%d, v%d" % (t(1), t(0)))
        A("s_nop 1")
        A("v_permlane16_swap_b32 v%d, v%d" % (t(0), t(1)))
        A("v_add_f32 v%d, v%d, v%d" % (t(0), t(0), t(1)))
        A("v_cvt_pk_bf16_f32 v%d, v%d, v%d" % (t(0), t(0), t(0)))
        A("v_and_b32 v%d, 0xffff0000, v%d" % (vS + NB - 1, t(0)))

    C("catch-up: consume the landing zone, keep D loads in flight")
    free = LZ - D
    pts = []
    for e in range(D):
        p = max(e, int(round((e + 0.5) * free / D)) - 1)
        p = min(p, free - 1 + e)
        pts.append(p)
    assert LZ + D <= N
    for j in range(LZ):
        kdot(j, j % 16)
        for e in range(D):
            if pts[e] == j:
                A("s_waitcnt vmcnt(%d)" % (D - 1))
                issue(LZ + e, e)
        if j % 16 == 15:
            kreduce()
    for e in range(D):
        assert pts[e] < free + e, (pts, free)

    C("steady K loop")
    nit = (N - LZ) // 16
    A("s_mov_b32 s%d, %d" % (sIT, nit))
    LB("L_kloop")
    for j in range(16):
        A("s_waitcnt vmcnt(%d)" % (D - 1))
        if (j + D) % 16 == 0:
            A("s_add_u32 s%d, s%d, %d" % (sOFF, sOFF, stride))
            A("s_cmp_eq_u32 s%d, 1" % sIT)
            A("s_cselect_b32 s%d, s%d, s%d" % (SRD, sV, SRD))
            A("s_cselect_b32 s%d, s%d, s%d" % (SRD + 1, sV + 1, SRD + 1))
            A("s_cselect_b32 s%d, s%d, s%d" % (sOFF, sBASE, sOFF))
            issue(j + D, (j + D) % 16, adv=False)
        else:
            issue(j + D, (j + D) % 16)
        kdot(j, j)
    kreduce()
    A("s_sub_u32 s%d, s%d, 1" % (sIT, sIT))
    A("s_cmp_lg_u32 s%d, 0" % sIT)
    A("s_cbranch_scc1 L_kloop")

    C("softmax over this wave's keys")
    stamp(3)
    m = vU
    A("v_max3_f32 v%d, v%d, v%d, v%d" % (m, vS, vS + 1, vS + 2))
    k = 3
    while k + 1 < NB:
        A("v_max3_f32 v%d, v%d, v%d, v%d" % (m, m, vS + k, vS + k + 1))
        k += 2
    if k < NB:
        A("v_max_f32 v%d, v%d, v%d" % (m, m, vS + k))
    def allreduce(op, r, tmp, half=True):
        for ctl in ("quad_perm:[1,0,3,2]", "quad_perm:[2,3,0,1]", "row_half_mirror", "row_mirror"):
            A("s_nop 1")
            A("%s_dpp v%d, v%d, v%d %s row_mask:0xf bank_mask:0xf" % (op, r, r, r, ctl))
        if half:
            A("v_mov_b32 v%d, v%d" % (tmp, r))
            A("s_nop 1")
            A("v_permlane32_swap_b32 v%d, v%d" % (r, tmp))
            A("%s v%d, v%d, v%d" % (op, r, r, tmp))
    allreduce("v_max_f32", m, vU + 1)
    A("v_mul_f32 v%d, s%d, v%d" % (vU + 4, sCS, m))
    for k in range(NB):
        A("v_fma_f32 v%d, v%d, s%d, -v%d" % (vS + k, vS + k, sCS, vU + 4))
    for k in range(NB):
        A("v_exp_f32 v%d, v%d" % (vS + k, vS + k))
    l = vU + 5
    A("v_add_f32 v%d, v%d, v%d" % (l, vS, vS + 1))
    for k in range(2, NB):
        A("v_add_f32 v%d, v%d, v%d" % (l, l, vS + k))
    for k in range(NB):
        A("v_cvt_pk_bf16_f32 v%d, v%d, v%d" % (vS + k, vS + k, vS + k))
    allreduce("v_add_f32", l, vU + 1)
    A("v_mov_b32 v%d, 1" % (vU + 6))
    A("v_mov_b32 v%d, 1" % (vU + 7))
    A("s_lshl_b32 s%d, s3, 4" % sTMP)
    A("v_mov_b32 v%d, s%d" % (vU + 1, sTMP))
    A("ds_write_b128 v%d, v[%d:%d] offset:%d" % (vU + 1, vU + 4, vU + 7, L_STAT))

    C("V loop")
    A("s_mov_b32 s%d, %d" % (sIT, NB))
    LB("L_vloop")
    for j in range(16):
        for r in range(4):
            A("v_and_b32_dpp v%d, v%d, v%d row_newbcast:%d row_mask:0xf bank_mask:0xf" % (vA + r, vS, vMK + r, j))
        A("s_waitcnt vmcnt(%d)" % (D - 1))
        if (j + D) % 16 == 0:
            A("s_add_u32 s%d, s%d, %d" % (sOFF, sOFF, stride))
            A("s_cmp_eq_u32 s%d, 1" % sIT)
            A("s_cselect_b32 s%d, 0x10000000, s%d" % (sOFF, sOFF))
            issue(j + D, (j + D) % 16, adv=False)
        else:
            issue(j + D, (j + D) % 16)
        A("v_mfma_f32_16x16x32_bf16 v[%d:%d], v[%d:%d], v[%d:%d], v[%d:%d]" %
          (vO, vO + 3, vA, vA + 3, slot(j), slot(j) + 3, vO, vO + 3))
    for k in range(NB - 1):
        A("v_mov_b32 v%d, v%d" % (vS + k, vS + k + 1))
    A("s_sub_u32 s%d, s%d, 1" % (sIT, sIT))
    A("s_cmp_lg_u32 s%d, 0" % sIT)
    A("s_cbranch_scc1 L_vloop")
    A("s_lshl_b32 s%d, s3, 10" % sTMP)
    A("v_add_u32 v%d, s%d, v%d" % (vU, sTMP, vOFF))
    pad = 8 - (NB - 1) - 3 - 2
    if pad > 0:
        A("s_nop %d" % (pad - 1))
    A("ds_write_b128 v%d, v[%d:%d] offset:%d" % (vU, vO, vO + 3, L_O))
    A("s_waitcnt lgkmcnt(0)")
    stamp(4)
    A("s_barrier")
    A("s_cmp_lg_u32 s3, 0")
    A("s_cbranch_scc1 L_fin")

    C("final reducer (wave 0): unit u = (wg&7) + 8*(wg>>6), sub = (wg>>3)&7")
    sU, sSUB, sKQ, sHW, sRB = sTMP, sTMP + 1, sTMP + 2, sTMP + 3, sTMP + 4
    A("s_lshr_b32 s%d, s2, 6" % sU)
    A("s_lshl_b32 s%d, s%d, 3" % (sU, sU))
    A("s_and_b32 s%d, s2, 7" % sSUB)
    A("s_or_b32 s%d, s%d, s%d" % (sU, sU, sSUB))
    A("s_bfe_u32 s%d, s2, 0x30003" % sSUB)
    A("s_and_b32 s%d, s%d, 3" % (sKQ, sU))
    A("s_lshl_b32 s%d, s%d, 3" % (sKQ, sKQ))
    A("s_or_b32 s%d, s%d, s%d" % (sKQ, sKQ, sSUB))
    A("s_cmp_ge_u32 s%d, 28" % sKQ)
    A("s_cbranch_scc1 L_fin")
    A("s_bfe_u32 s%d, s%d, 0x20002" % (sHW, sU))
    A("s_lshr_b32 s%d, s%d, 4" % (sRB, sU))
    A("s_lshl_b32 s%d, s%d, 18" % (sOFF, sRB))
    A("s_lshl_b32 s%d, s%d, 9" % (sIT, sHW))
    A("s_add_u32 s%d, s%d, s%d" % (sOFF, sOFF, sIT))
    A("s_lshl_b32 s%d, s%d, 4" % (sIT, sKQ))
    A("s_add_u32 s%d, s%d, s%d" % (sOFF, sOFF, sIT))
    A("s_add_u32 s%d, s%d, %d" % (sOFF, sOFF, WS_Y))
    A("s_add_u32 s%d, s%d, %d" % (sBASE, sOFF, 64 * 2048))
    A("v_lshlrev_b32 v%d, 11, v%d" % (vU, vLANE))
    for r in range(4):
        A("s_bfe_u32 s%d, s%d, 0x%x" % (sT + r, sTAG, 0x80000 | (8 * r)))
    A("s_mul_i32 s%d, s%d, 896" % (sRB, sRB))
    A("s_mul_i32 s%d, s%d, 224" % (sHW, sHW))
    A("s_add_u32 s%d, s%d, s%d" % (sRB, sRB, sHW))
    A("s_lshl_b32 s%d, s%d, 3" % (sKQ, sKQ))
    A("s_add_u32 s%d, s%d, s%d" % (sRB, sRB, sKQ))
    A("s_mov_b32 s%d, s%d" % (SR2, sOUT))
    A("s_mov_b32 s%d, s%d" % (SR2 + 1, sOUT + 1))
    A("s_mov_b32 s%d, 1792" % (SR2 + 2))
    A("v_lshrrev_b32 v%d, 5, v%d" % (vU + 1, vLANE))
    A("v_bfe_u32 v%d, v%d, 4, 1" % (vU + 2, vLANE))
    A("v_lshl_add_u32 v%d, v%d, 1, v%d" % (vU + 1, vU + 2, vU + 1))
    A("v_lshlrev_b32 v%d, 1, v%d" % (vU + 1, vU + 1))
    A("s_mov_b32 s%d, %d" % (sSPIN, spin))
    ya, yb = vT, vT + 4
    LB("L_rpoll")
    A("buffer_load_dwordx4 v[%d:%d], v%d, s[%d:%d], s%d offen sc1" % (ya, ya + 3, vU, WSR, WSR + 3, sOFF))
    A("buffer_load_dwordx4 v[%d:%d], v%d, s[%d:%d], s%d offen sc1" % (yb, yb + 3, vU, WSR, WSR + 3, sBASE))
    A("s_sub_u32 s%d, s%d, 1" % (sSPIN, sSPIN))
    A("s_cmp_eq_u32 s%d, 0" % sSPIN)
    A("s_cbranch_scc1 L_fin")
    A("s_waitcnt vmcnt(0)")
    for r in range(4):
        A("v_xor_b32 v%d, s%d, v%d" % (ya + r, sT + r, ya + r))
        A("v_xor_b32 v%d, s%d, v%d" % (yb + r, sT + r, yb + r))
    A("v_or3_b32 v%d, v%d, v%d, v%d" % (vU + 3, ya, ya + 1, ya + 2))
    A("v_or3_b32 v%d, v%d, v%d, v%d" % (vU + 3, vU + 3, ya + 3, yb))
    A("v_or3_b32 v%d, v%d, v%d, v%d" % (vU + 3, vU + 3, yb + 1, yb + 2))
    A("v_or_b32 v%d, v%d, v%d" % (vU + 3, vU + 3, yb + 3))
    A("v_and_b32 v%d, 0xff, v%d" % (vU + 3, vU + 3))
    A("v_cmp_ne_u32 vcc, 0, v%d" % (vU + 3))
    for r in range(4):
        A("v_add_f32 v%d, v%d, v%d" % (ya + r, ya + r, yb + r))
    if slp2:
        A("s_cbranch_vccz L_rgo")
        A("s_sleep %d" % slp2)
        A("s_branch L_rpoll")
        LB("L_rgo")
    else:
        A("s_cbranch_vccnz L_rpoll")
    stamp(5)
    A("s_nop 0")
    A("v_permlane32_swap_b32 v%d, v%d" % (ya, ya + 1))
    A("v_permlane32_swap_b32 v%d, v%d" % (ya + 2, ya + 3))
    A("v_add_f32 v%d, v%d, v%d" % (ya, ya, ya + 1))
    A("v_add_f32 v%d, v%d, v%d" % (ya + 2, ya + 2, ya + 3))
    A("s_nop 1")
    A("v_permlane16_swap_b32 v%d, v%d" % (ya, ya + 2))
    A("v_add_f32 v%d, v%d, v%d" % (ya, ya, ya + 2))
    allreduce("v_add_f32", ya, None, half=False)
    A("v_cvt_pk_bf16_f32 v%d, v%d, v%d" % (ya, ya, ya))
    A("s_mov_b32 exec_lo, 0x00010001")
    A("s_mov_b32 exec_hi, 0x00010001")
    A("buffer_store_short v%d, v%d, s[%d:%d], s%d offen" % (ya, vU + 1, SR2, SR2 + 3, sRB))
    A("s_cmp_lg_u32 s2, 0")
    A("s_cbranch_scc1 L_fin")
    C("workgroup 0 advances the hand-off epoch for the next launch")
    A("s_mov_b64 exec, 1")
    A("v_mov_b32 v%d, s%d" % (vU + 2, sTAG))
    A("v_mov_b32 v%d, 0" % (vU + 3))
    A("buffer_store_dword v%d, v%d, s[%d:%d], 0 offen" % (vU + 2, vU + 3, WSR, WSR + 3))
    if diag >= 0:
        C("DIAGNOSTIC ONLY")
        A("s_memrealtime s[%d:%d]" % (sST + 14, sST + 15))
        A("s_waitcnt lgkmcnt(0)")
        A("s_sub_u32 s%d, s%d, s%d" % (sTMP, sST + 2 * diag, sST))
        A("s_min_u32 s%d, s%d, 20000" % (sTMP, sTMP))
        A("s_mul_i32 s%d, s%d, %d" % (sTMP, sTMP, dk))
        LB("L_diag")
        A("s_memrealtime s[%d:%d]" % (sST + 12, sST + 13))
        A("s_waitcnt lgkmcnt(0)")
        A("s_sub_u32 s%d, s%d, s%d" % (sTMP + 1, sST + 12, sST + 14))
        A("s_cmp_lt_u32 s%d, s%d" % (sTMP + 1, sTMP))
        A("s_cbranch_scc1 L_diag")
    A("s_branch L_fin")

    LB("L_helper")
    hL = 0
    hG, hJ = 1, 2
    hU = 4
    hX = 16
    hSEL = 32
    hA = 36
    hD = 40
    hMK = 44
    hP = 48
    hW = 64
    sHW = 39
    A("s_sub_u32 s%d, s3, %d" % (sHW, NW))
    A("v_lshrrev_b32 v%d, 4, v%d" % (hG, hL))
    A("v_and_b32 v%d, 15, v%d" % (hJ, hL))
    A("s_lshr_b32 s%d, s%d, 4" % (sB, sGRP))
    A("s_and_b32 s%d, s%d, 15" % (sH, sGRP))
    A("s_mov_b32 s%d, %d" % (SRD + 2, 448 * 8192))
    for r in range(4):
        A("s_mov_b32 s%d, 0x%08x" % (sSEL + r, 0x07060500 | r))
    A("s_cmp_lg_u32 s%d, 0" % sHW)
    A("s_cbranch_scc1 L_h_other")

    C("helper 0: q tile  (h'=wg>>4, rq=(wg>>2)&3, cs=wg&3)")
    sHP, sRQ, sCSL = sTMP, sTMP + 1, sTMP + 2
    A("s_lshr_b32 s%d, s2, 4" % sHP)
    A("s_bfe_u32 s%d, s2, 0x20002" % sRQ)
    A("s_and_b32 s%d, s2, 3" % sCSL)
    A("v_mul_u32_u24 v%d, %d, v%d" % (hU, 28 * 8192, hG))
    A("v_lshl_add_u32 v%d, v%d, 3, v%d" % (hU, hJ, hU))
    A("s_mul_i32 s%d, s%d, %d" % (sOFF, sRQ, 112 * 8192))
    A("s_lshl_b32 s%d, s%d, 9" % (sIT, sHP))
    A("s_add_u32 s%d, s%d, s%d" % (sOFF, sOFF, sIT))
    A("s_lshl_b32 s%d, s%d, 7" % (sIT, sCSL))
    A("s_add_u32 s%d, s%d, s%d" % (sOFF, sOFF, sIT))
    A("v_bfe_u32 v%d, v%d, 2, 1" % (hU + 1, hL))
    A("v_mul_u32_u24 v%d, 896, v%d" % (hU + 1, hU + 1))
    A("v_mul_u32_u24 v%d, 56, v%d" % (hU + 2, hG))
    A("v_add_u32 v%d, v%d, v%d" % (hU + 1, hU + 1, hU + 2))
    A("s_mul_i32 s%d, s%d, 224" % (sBASE, sRQ))
    A("s_mov_b32 s%d, 1792" % (SR2 + 2))
    A("s_waitcnt lgkmcnt(0)")
    A("s_load_dword s%d, s[%d:%d], %d" % (sTAG, sWS, sWS + 1, WS_EPOCH))
    A("s_mov_b32 s%d, s%d" % (SR2, sX))
    A("s_mov_b32 s%d, s%d" % (SR2 + 1, sX + 1))
    A("s_mov_b32 s%d, s%d" % (SRD, sWQ))
    A("s_mov_b32 s%d, s%d" % (SRD + 1, sWQ + 1))
    A("s_mov_b32 s%d, s%d" % (WSR, sWS))
    A("s_mov_b32 s%d, s%d" % (WSR + 1, sWS + 1))
    for q in range(3):
        A("buffer_load_dwordx4 v[%d:%d], v%d, s[%d:%d], s%d offen offset:%d" % (hX + 4 * q, hX + 4 * q + 3, hU + 1, SR2, SR2 + 3, sBASE, 16 * q))
    A("buffer_load_dwordx2 v[%d:%d], v%d, s[%d:%d], s%d offen offset:48" % (hX + 12, hX + 13, hU + 1, SR2, SR2 + 3, sBASE))
    for n in range(28):
        A("buffer_load_dwordx2 v[%d:%d], v%d, s[%d:%d], s%d offen %s" % (hW + 2 * n, hW + 2 * n + 1, hU, SRD, SRD + 3, sOFF, wflags))
        if n < 27:
            A("s_add_u32 s%d, s%d, 8192" % (sOFF, sOFF))
    A("v_and_b32 v%d, 1, v%d" % (hU + 2, hL))
    A("v_lshlrev_b32 v%d, 4, v%d" % (hU + 2, hU + 2))
    A("v_bfe_u32 v%d, v%d, 1, 1" % (hU + 3, hL))
    A("v_bfe_u32 v%d, v%d, 3, 1" % (hU + 4, hL))
    A("v_lshl_add_u32 v%d, v%d, 1, v%d" % (hU + 3, hU + 4, hU + 3))
    A("v_mov_b32 v%d, 0x0c0c0c0c" % (hU + 6))
    for par, src in ((0, 0x0100), (1, 0x0302)):
        A("v_mov_b32 v%d, 0x%x" % (hU + 4, src ^ 0x0c0c))
        A("v_lshlrev_b32 v%d, v%d, v%d" % (hU + 4, hU + 2, hU + 4))
        A("v_xor_b32 v%d, v%d, v%d" % (hU + 4, hU + 6, hU + 4))
        for r in range(2):
            A("v_cmp_eq_u32 vcc, %d, v%d" % (r, hU + 3))
            A("s_nop 1")
            A("v_cndmask_b32 v%d, v%d, v%d, vcc" % (hSEL + 2 * par + r, hU + 6, hU + 4))
    for r in range(4):
        A("v_mov_b32 v%d, 0" % (hD + r))
    A("v_lshlrev_b32 v%d, 2, v%d" % (hU + 5, hL))
    A("ds_write_b32 v%d, v%d offset:%d" % (hU + 5, hD, L_STAT))
    A("s_lshl_b32 s%d, s%d, 13" % (sOFF, sHP))
    A("s_lshl_b32 s%d, s%d, 10" % (sIT, sRQ))
    A("s_add_u32 s%d, s%d, s%d" % (sOFF, sOFF, sIT))
    A("s_lshl_b32 s%d, s%d, 8" % (sIT, sCSL))
    A("s_add_u32 s%d, s%d, s%d" % (sOFF, sOFF, sIT))
    A("s_add_u32 s%d, s%d, %d" % (sOFF, sOFF, WS_Q))
    A("v_lshlrev_b32 v%d, 12, v%d" % (hU + 7, hG))
    A("v_lshl_add_u32 v%d, v%d, 4, v%d" % (hU + 7, hJ, hU + 7))
    A("s_lshl_b32 s%d, s%d, 1" % (sBASE, sH))
    A("s_add_u32 s%d, s%d, s%d" % (sBASE, sBASE, sB))
    A("s_lshl_b32 s%d, s%d, 12" % (sBASE, sBASE))
    A("s_add_u32 s%d, s%d, %d" % (sBASE, sBASE, WS_Q))
    A("v_lshlrev_b32 v%d, 4, v%d" % (hU + 8, hL))
    A("s_waitcnt lgkmcnt(0)")
    A("s_add_u32 s%d, s%d, 0x01010101" % (sTAG, sTAG))
    A("v_mov_b32 v%d, s%d" % (hU + 9, sTAG))
    A("v_mov_b32 v%d, 0" % (hU + 10))
    A("ds_write_b32 v%d, v%d offset:%d" % (hU + 10, hU + 9, L_TAG))
    for r in range(4):
        A("s_bfe_u32 s%d, s%d, 0x%x" % (sT + r, sTAG, 0x80000 | (8 * r)))
    A("s_waitcnt vmcnt(28)")
    for n in range(28):
        a = hA + 2 * (n & 1)
        for r in range(2):
            A("v_perm_b32 v%d, v%d, v%d, v%d" % (a + r, hX + (n >> 1), hX + (n >> 1), hSEL + 2 * (n & 1) + r))
        A("s_waitcnt vmcnt(%d)" % (27 - n))
        A("s_nop 0")
        A("v_mfma_f32_16x16x16_bf16 v[%d:%d], v[%d:%d], v[%d:%d], v[%d:%d]" %
          (hD, hD + 3, a, a + 1, hW + 2 * n, hW + 2 * n + 1, hD, hD + 3))
    A("s_nop 7")
    for r in range(4):
        A("v_perm_b32 v%d, v%d, v%d, s%d" % (hD + r, hD + r, hU + 9, sSEL + r))
    A("s_mov_b32 exec_hi, 0")
    A("buffer_store_dwordx4 v[%d:%d], v%d, s[%d:%d], s%d offen sc1" % (hD, hD + 3, hU + 7, WSR, WSR + 3, sOFF))
    A("s_mov_b32 exec_hi, -1")
    stamp(1)
    A("s_mov_b32 s%d, %d" % (sSPIN, spin))
    LB("L_qpoll")
    if qslp:
        A("s_sleep %d" % qslp)
    for q in range(4):
        A("buffer_load_dwordx4 v[%d:%d], v%d, s[%d:%d], s%d offen offset:%d sc1" % (hP + 4 * q, hP + 4 * q + 3, hU + 8, WSR, WSR + 3, sBASE, 1024 * q))
    A("s_sub_u32 s%d, s%d, 1" % (sSPIN, sSPIN))
    A("s_cmp_eq_u32 s%d, 0" % sSPIN)
    A("s_cbranch_scc1 L_qgo")
    A("s_waitcnt vmcnt(0)")
    for q in range(4):
        for r in range(4):
            A("v_xor_b32 v%d, s%d, v%d" % (hP + 4 * q + r, sT + r, hP + 4 * q + r))
    A("v_or3_b32 v%d, v%d, v%d, v%d" % (hU + 11, hP, hP + 1, hP + 2))
    for k in range(3, 15, 2):
        A("v_or3_b32 v%d, v%d, v%d, v%d" % (hU + 11, hU + 11, hP + k, hP + k + 1))
    A("v_or_b32 v%d, v%d, v%d" % (hU + 11, hU + 11, hP + 15))
    A("v_and_b32 v%d, 0xff, v%d" % (hU + 11, hU + 11))
    A("v_cmp_ne_u32 vcc, 0, v%d" % (hU + 11))
    A("s_cbranch_vccnz L_qpoll")
    LB("L_qgo")
    for r in range(4):
        A("v_add_f32 v%d, v%d, v%d" % (hP + r, hP + r, hP + 4 + r))
        A("v_add_f32 v%d, v%d, v%d" % (hP + 8 + r, hP + 8 + r, hP + 12 + r))
    for r in range(4):
        A("v_add_f32 v%d, v%d, v%d" % (hP + r, hP + r, hP + 8 + r))
    A("v_cvt_pk_bf16_f32 v%d, v%d, v%d" % (hP, hP, hP + 1))
    A("v_cvt_pk_bf16_f32 v%d, v%d, v%d" % (hP + 1, hP + 2, hP + 3))
    A("v_lshlrev_b32 v%d, 3, v%d" % (hU + 11, hL))
    A("ds_write_b64 v%d, v[%d:%d] offset:%d" % (hU + 11, hP, hP + 1, L_Q))
    A("s_waitcnt lgkmcnt(0)")
    stamp(2)
    A("s_barrier")
    A("s_branch L_h_common")

    LB("L_h_other")
    A("v_mov_b32 v%d, 0" % (hU + 10))
    A("s_waitcnt lgkmcnt(0)")
    A("s_mov_b32 s%d, s%d" % (WSR, sWS))
    A("s_mov_b32 s%d, s%d" % (WSR + 1, sWS + 1))
    A("s_barrier")
    A("ds_read_b32 v%d, v%d offset:%d" % (hU + 9, hU + 10, L_TAG))
    A("s_waitcnt lgkmcnt(0)")
    A("v_readfirstlane_b32 s%d, v%d" % (sTAG, hU + 9))
    A("s_nop 0")
    for r in range(4):
        A("s_bfe_u32 s%d, s%d, 0x%x" % (sT + r, sTAG, 0x80000 | (8 * r)))

    LB("L_h_common")
    C("prefetch this wave's wo fragment: rows h*256+32c+8g+4hi+r, cols 112*hw + 8*min(j,13)")
    A("s_mov_b32 s%d, s%d" % (SRD, sWO))
    A("s_mov_b32 s%d, s%d" % (SRD + 1, sWO + 1))
    A("v_min_u32 v%d, 13, v%d" % (hU, hJ))
    A("v_lshlrev_b32 v%d, 4, v%d" % (hU, hU))
    A("v_mul_u32_u24 v%d, %d, v%d" % (hU + 1, 8 * 896, hG))
    A("v_add_u32 v%d, v%d, v%d" % (hU, hU, hU + 1))
    A("s_lshl_b32 s%d, s%d, 3" % (sOFF, sH))
    A("s_add_u32 s%d, s%d, s%d" % (sOFF, sOFF, sC))
    A("s_mul_i32 s%d, s%d, %d" % (sOFF, sOFF, 32 * 896))
    A("s_mul_i32 s%d, s%d, 224" % (sIT, sHW))
    A("s_add_u32 s%d, s%d, s%d" % (sOFF, sOFF, sIT))
    A("s_add_u32 s%d, s%d, %d" % (sIT, sOFF, 4 * 896))
    for n in range(8):
        A("buffer_load_dwordx4 v[%d:%d], v%d, s[%d:%d], s%d offen offset:%d %s" %
          (hW + 4 * n, hW + 4 * n + 3, hU, SRD, SRD + 3, sOFF if n < 4 else sIT, (n & 3) * 896, wflags))
        A("s_waitcnt vmcnt(0)")
    A("v_lshrrev_b32 v%d, 1, v%d" % (hU + 1, hJ))
    A("v_and_b32 v%d, 1, v%d" % (hU + 2, hL))
    A("v_lshlrev_b32 v%d, 4, v%d" % (hU + 2, hU + 2))
    A("v_mov_b32 v%d, 0xffff" % (hU + 3))
    A("v_lshlrev_b32 v%d, v%d, v%d" % (hU + 3, hU + 2, hU + 3))
    for r in range(4):
        A("v_cmp_eq_u32 vcc, %d, v%d" % (r, hU + 1))
        A("s_nop 1")
        A("v_cndmask_b32 v%d, 0, v%d, vcc" % (hMK + r, hU + 3))
    A("v_and_b32 v%d, 7, v%d" % (hU + 1, hL))
    A("v_lshlrev_b32 v%d, 10, v%d" % (hU + 1, hU + 1))
    A("v_lshrrev_b32 v%d, 3, v%d" % (hU + 2, hL))
    A("v_lshl_add_u32 v%d, v%d, 4, v%d" % (hU + 1, hU + 2, hU + 1))
    sO1R, sO1W, sYW = sTMP + 4, sTMP + 5, sTMP + 6
    A("s_lshl_b32 s%d, s%d, 13" % (sO1R, sGRP))
    A("s_add_u32 s%d, s%d, %d" % (sO1R, sO1R, WS_O1))
    A("s_lshl_b32 s%d, s%d, 10" % (sIT, sC))
    A("s_add_u32 s%d, s%d, s%d" % (sO1W, sO1R, sIT))
    A("s_lshl_b32 s%d, s%d, 7" % (sIT, sC))
    A("s_add_u32 s%d, s%d, s%d" % (sO1R, sO1R, sIT))
    A("s_lshl_b32 s%d, s%d, 3" % (sYW, sGRP))
    A("s_add_u32 s%d, s%d, s%d" % (sYW, sYW, sC))
    A("s_lshl_b32 s%d, s%d, 11" % (sYW, sYW))
    A("s_lshl_b32 s%d, s%d, 9" % (sIT, sHW))
    A("s_add_u32 s%d, s%d, s%d" % (sYW, sYW, sIT))
    A("s_add_u32 s%d, s%d, %d" % (sYW, sYW, WS_Y))
    A("v_lshlrev_b32 v%d, 5, v%d" % (hU + 2, hJ))
    A("v_lshl_add_u32 v%d, v%d, 4, v%d" % (hU + 2, hG, hU + 2))
    A("s_cmp_lg_u32 s%d, 0" % sHW)
    A("s_cbranch_scc1 L_h_b2")

    C("helper 0: softmax statistics exchange inside the (b,h) group")
    A("v_and_b32 v%d, %d, v%d" % (hU + 3, NW - 1, hL))
    A("v_lshlrev_b32 v%d, 4, v%d" % (hU + 3, hU + 3))
    A("s_mov_b32 s%d, %d" % (sSPIN, spin * 4))
    LB("L_lpoll")
    A("s_sleep 4")
    A("ds_read_b128 v[%d:%d], v%d offset:%d" % (hP, hP + 3, hU + 3, L_STAT))
    A("s_sub_u32 s%d, s%d, 1" % (sSPIN, sSPIN))
    A("s_cmp_eq_u32 s%d, 0" % sSPIN)
    A("s_cbranch_scc1 L_lgo")
    A("s_waitcnt lgkmcnt(0)")
    A("v_cmp_eq_u32 vcc, 0, v%d" % (hP + 2))
    A("s_cbranch_vccnz L_lpoll")
    LB("L_lgo")
    A("s_waitcnt lgkmcnt(0)")
    A("v_mov_b32 v%d, v%d" % (hP + 2, hU + 9))
    A("v_mov_b32 v%d, v%d" % (hP + 3, hU + 9))
    sSR, sSW = sTMP, sTMP + 1
    A("s_mul_i32 s%d, s%d, %d" % (sSR, sGRP, 8 * NW * 16))
    A("s_add_u32 s%d, s%d, %d" % (sSR, sSR, WS_STAT))
    A("s_mul_i32 s%d, s%d, %d" % (sSW, sC, NW * 16))
    A("s_add_u32 s%d, s%d, s%d" % (sSW, sSW, sSR))
    A("s_mov_b64 exec, %d" % ((1 << NW) - 1) if NW <= 4 else "s_mov_b64 exec, 0xff")
    A("buffer_store_dwordx4 v[%d:%d], v%d, s[%d:%d], s%d offen sc1" % (hP, hP + 3, hU + 3, WSR, WSR + 3, sSW))
    A("s_mov_b64 exec, -1")
    A("v_and_b32 v%d, %d, v%d" % (hU + 4, 8 * NW - 1, hL))
    A("v_lshlrev_b32 v%d, 4, v%d" % (hU + 4, hU + 4))
    A("s_mov_b32 s%d, %d" % (sSPIN, spin))
    LB("L_spoll")
    A("s_sleep 8")
    A("buffer_load_dwordx4 v[%d:%d], v%d, s[%d:%d], s%d offen sc1" % (hP + 4, hP + 7, hU + 4, WSR, WSR + 3, sSR))
    A("s_sub_u32 s%d, s%d, 1" % (sSPIN, sSPIN))
    A("s_cmp_eq_u32 s%d, 0" % sSPIN)
    A("s_cbranch_scc1 L_sgo")
    A("s_waitcnt vmcnt(0)")
    A("v_xor_b32 v%d, v%d, v%d" % (hP + 8, hP + 6, hU + 9))
    A("v_xor_b32 v%d, v%d, v%d" % (hP + 9, hP + 7, hU + 9))
    A("v_or_b32 v%d, v%d, v%d" % (hP + 8, hP + 8, hP + 9))
    A("v_cmp_ne_u32 vcc, 0, v%d" % (hP + 8))
    A("s_cbranch_vccnz L_spoll")
    LB("L_sgo")
    A("s_waitcnt vmcnt(0)")
    stamp(3)
    def allreduce_full(op, r, tmp):
        for ctl in ("quad_perm:[1,0,3,2]", "quad_perm:[2,3,0,1]", "row_half_mirror", "row_mirror"):
            A("s_nop 1")
            A("%s_dpp v%d, v%d, v%d %s row_mask:0xf bank_mask:0xf" % (op, r, r, r, ctl))
        sw = ["v_permlane16_swap_b32"] + (["v_permlane32_swap_b32"] if NW == 8 else [])
        for s_ in sw:
            A("v_mov_b32 v%d, v%d" % (tmp, r))
            A("s_nop 1")
            A("%s v%d, v%d" % (s_, r, tmp))
            A("%s v%d, v%d, v%d" % (op, r, r, tmp))
    A("v_mov_b32 v%d, v%d" % (hP + 8, hP + 4))
    allreduce_full("v_max_f32", hP + 8, hP + 9)
    A("v_sub_f32 v%d, v%d, v%d" % (hP + 8, hP + 4, hP + 8))
    A("v_exp_f32 v%d, v%d" % (hP + 8, hP + 8))
    A("s_nop 0")
    A("v_mul_f32 v%d, v%d, v%d" % (hP + 10, hP + 8, hP + 5))
    allreduce_full("v_add_f32", hP + 10, hP + 9)
    A("v_rcp_f32 v%d, v%d" % (hP + 10, hP + 10))
    A("s_mul_i32 s%d, s%d, %d" % (sIT, sC, NW))
    A("v_mul_f32 v%d, v%d, v%d" % (hP + 8, hP + 8, hP + 10))
    for w in range(NW):
        A("s_nop 0")
        A("v_readlane_b32 s%d, v%d, s%d" % (sF + w, hP + 8, sIT))
        A("s_add_u32 s%d, s%d, 1" % (sIT, sIT))
    A("v_lshrrev_b32 v%d, 1, v%d" % (hU + 3, hG))
    A("v_lshlrev_b32 v%d, 9, v%d" % (hU + 3, hU + 3))
    A("v_lshl_add_u32 v%d, v%d, 5, v%d" % (hU + 3, hJ, hU + 3))
    A("v_and_b32 v%d, 1, v%d" % (hU + 4, hG))
    A("v_lshl_add_u32 v%d, v%d, 4, v%d" % (hU + 3, hU + 4, hU + 3))
    A("v_lshlrev_b32 v%d, 4, v%d" % (hU + 4, hL))
    A("s_barrier")
    OR = 96
    for w in range(NW):
        A("ds_read_b128 v[%d:%d], v%d offset:%d" % (OR + 4 * w, OR + 4 * w + 3, hU + 4, L_O + 1024 * w))
    for w in range(NW):
        A("s_waitcnt lgkmcnt(%d)" % (NW - 1 - w))
        for r in range(4):
            if w == 0:
                A("v_mul_f32 v%d, s%d, v%d" % (hD + r, sF, OR + r))
            else:
                A("v_fmac_f32 v%d, s%d, v%d" % (hD + r, sF + w, OR + 4 * w + r))
    for r in range(4):
        A("v_perm_b32 v%d, v%d, v%d, s%d" % (hX + r, hD + r, hU + 9, sSEL + r))
    A("buffer_store_dwordx4 v[%d:%d], v%d, s[%d:%d], s%d offen sc1" % (hX, hX + 3, hU + 3, WSR, WSR + 3, sO1W))
    A("s_branch L_h_hop1")
    LB("L_h_b2")
    A("s_barrier")
    LB("L_h_hop1")
    stamp(4)
    A("s_mov_b32 s%d, %d" % (sSPIN, spin))
    LB("L_opoll")
    A("buffer_load_dwordx4 v[%d:%d], v%d, s[%d:%d], s%d offen sc1" % (hP, hP + 3, hU + 1, WSR, WSR + 3, sO1R))
    A("s_sub_u32 s%d, s%d, 1" % (sSPIN, sSPIN))
    A("s_cmp_eq_u32 s%d, 0" % sSPIN)
    A("s_cbranch_scc1 L_fin")
    A("s_waitcnt vmcnt(0)")
    for r in range(4):
        A("v_xor_b32 v%d, s%d, v%d" % (hP + r, sT + r, hP + r))
    A("v_or3_b32 v%d, v%d, v%d, v%d" % (hP + 4, hP, hP + 1, hP + 2))
    A("v_or_b32 v%d, v%d, v%d" % (hP + 4, hP + 4, hP + 3))
    A("v_and_b32 v%d, 0xff, v%d" % (hP + 4, hP + 4))
    A("v_cmp_ne_u32 vcc, 0, v%d" % (hP + 4))
    if slp1:
        A("s_cbranch_vccz L_ogo")
        A("s_sleep %d" % slp1)
        A("s_branch L_opoll")
        LB("L_ogo")
    else:
        A("s_cbranch_vccnz L_opoll")
    stamp(5)
    for ctl in ("quad_perm:[1,0,3,2]", "quad_perm:[2,3,0,1]", "row_half_mirror"):
        for r in range(4):
            A("v_add_f32_dpp v%d, v%d, v%d %s row_mask:0xf bank_mask:0xf" % (hP + r, hP + r, hP + r, ctl))
    for r in range(4):
        A("v_cvt_pk_bf16_f32 v%d, v%d, v%d" % (hP + r, hP + r, hP + r))
    A2 = [hA, hSEL]
    def buildA(n):
        hi, r0 = n >> 2, n & 3
        for r in range(4):
            A("v_and_b32_dpp v%d, v%d, v%d row_newbcast:%d row_mask:0xf bank_mask:0xf" % (A2[n & 1] + r, hP + r0, hMK + r, 8 * hi))
    buildA(0)
    for n in range(8):
        if n + 1 < 8:
            buildA(n + 1)
        else:
            A("s_nop 1")
        A("v_mfma_f32_16x16x32_bf16 v[%d:%d], v[%d:%d], v[%d:%d], %s" %
          (hD, hD + 3, A2[n & 1], A2[n & 1] + 3, hW + 4 * n, hW + 4 * n + 3, "0" if n == 0 else "v[%d:%d]" % (hD, hD + 3)))
    A("s_mov_b32 exec_hi, 0")
    A("s_nop 6")
    for r in range(4):
        A("v_perm_b32 v%d, v%d, v%d, s%d" % (hD + r, hD + r, hU + 9, sSEL + r))
    A("buffer_store_dwordx4 v[%d:%d], v%d, s[%d:%d], s%d offen sc1" % (hD, hD + 3, hU + 2, WSR, WSR + 3, sYW))

    LB("L_fin")
    stamp_store()
    LB("L_end")
    A("s_endpgm")
    nv = max(vSL + 4 * LZ, 96 + 4 * NW, 136)
    nv = (nv + 7) // 8 * 8
    L.append('.section .rodata,"a"')
    L.append(".p2align 6")
    L.append(".amdhsa_kernel " + KN)
    L.append("  .amdhsa_next_free_vgpr %d" % nv)
    L.append("  .amdhsa_next_free_sgpr 96")
    L.append("  .amdhsa_accum_offset %d" % nv)
    L.append("  .amdhsa_group_segment_fixed_size 0")
    L.append("  .amdhsa_kernarg_size 64")
    L.append("  .amdhsa_user_sgpr_count 2")
    L.append("  .amdhsa_user_sgpr_kernarg_segment_ptr 1")
    L.append("  .amdhsa_system_sgpr_workgroup_id_x 1")
    L.append("  .amdhsa_float_denorm_mode_32 3")
    L.append(".end_amdhsa_kernel")
    return "\n".join(L) + "\n"


def parse(spec):
    kw = {}
    for x in spec.split(","):
        if not x:
            continue
        k, v = x.split("=")
        if k in ("mapping", "kflags", "wflags"):
            kw[k] = v.replace("+", " ").replace("def", "")
        else:
            kw[k] = int(v, 0)
    return kw


if __name__ == "__main__":
    names = []
    for spec in sys.argv[1:]:
        name = "k_" + spec.replace(",", "_").replace("=", "") + ".s"
        open(name, "w").write(gen(**parse(spec)))
        names.append(name)
    print(" ".join(names))
```

```python
import sys, math

KN = "standalone__mha_block_cached__decode_kernel"

HEADER = """; Kernarg layout for this problem (64 bytes, ptrs only, base s[0:1]):
"""

WS_EPOCH = 0
WS_Q = 0x1000
WS_STAT = 0x40000
WS_O1 = 0x80000
WS_Y = 0x100000
WS_QP = 0x200000
WS_USED = 0x400000
STAMP_BASE = 0x10000000
EPOCH_WG = 35

L_Q = 0
L_TAG = 512
L_STAT = 576
L_FLAG = 768
L_O = 1024


def gen(NW=4, D=5, LZ=32, mapping="xg", inter=4, stamps=0, spin=1 << 16, kflags="nt", wflags="nt",
        slp1=0, slp2=0, qslp=0, diag=-1, dk=1, abl=0, rotc=0, rotg=0, gmap=0, roth=0, qtry=24, force_slow=0, pre=7, rk=1, rpad=0, ok=1, opad=0):
    L = []
    def A(s): L.append("  " + s)
    def LB(s): L.append(s + ":")
    def C(s): L.append("  ; " + s)
    NH = 4
    N = 512 // NW
    NB = N // 16
    assert LZ % 16 == 0 and LZ >= 16 and D < 16
    LAG = D
    lab = [0]
    L_Y = L_O + NW * 1024
    lds = L_Y + 2048
    L.append(HEADER.rstrip("\n"))
    L.append("; @launch grid=(256,1,1) block=(%d,1,1) lds=%d" % ((NW + NH) * 64, lds))
    L.append('.amdgcn_target "amdgcn-amd-amdhsa--gfx950"')
    L.append(".text")
    L.append(".globl " + KN)
    L.append(".p2align 8")
    L.append(".type %s,@function" % KN)
    LB(KN)

    sX, sK, sV, sWQ, sWO, sOUT, sDBG, sWS = 4, 6, 8, 10, 12, 14, 16, 18
    SRD = 20
    WSR = 24
    SR2 = 28
    sGRP, sC, sB, sH = 32, 33, 34, 35
    sBASE, sOFF, sIT = 36, 37, 38
    sT = 40
    sSEL = 44
    sM2, sM1 = 48, 50
    sF = 52
    sTMP = 60
    sSPIN = 68
    sCS = 69
    sST = 70
    sTAG = 86
    sEX = 88
    nstamp = [0]

    def stamp(k):
        if stamps or (diag >= 0 and k in (0, diag)):
            A("s_memrealtime s[%d:%d]" % (sST + 2 * k, sST + 2 * k + 1))

    def stamp_store():
        if not stamps:
            return
        A("s_memrealtime s[%d:%d]" % (sST + 14, sST + 15))
        A("s_mul_i32 s%d, s2, %d" % (sTMP, NW + NH))
        A("s_add_u32 s%d, s%d, s3" % (sTMP, sTMP))
        A("s_lshl_b32 s%d, s%d, 6" % (sTMP, sTMP))
        A("s_add_u32 s%d, s%d, %d" % (sTMP, sTMP, STAMP_BASE))
        A("s_mov_b32 s%d, 0x20000000" % (WSR + 2))
        A("s_waitcnt lgkmcnt(0)")
        A("s_mov_b64 exec, 1")
        A("v_mov_b32 v1, 0")
        for q in range(4):
            for r in range(4):
                A("v_mov_b32 v%d, s%d" % (4 + 4 * q + r, sST + 4 * q + r))
        for q in range(4):
            A("buffer_store_dwordx4 v[%d:%d], v1, s[%d:%d], s%d offen offset:%d" % (4 + 4 * q, 7 + 4 * q, WSR, WSR + 3, sTMP, 16 * q))

    if stamps:
        for k in range(1, 8):
            A("s_mov_b64 s[%d:%d], 0" % (sST + 2 * k, sST + 2 * k + 1))
    stamp(0)
    A("s_cmp_ge_u32 s2, 256")
    A("s_cbranch_scc1 L_end")
    A("s_load_dwordx16 s[4:19], s[0:1], 0")
    A("v_lshrrev_b32 v1, 6, v0")
    A("v_and_b32 v0, 63, v0")
    A("v_readfirstlane_b32 s3, v1")
    if mapping == "lin":
        A("s_lshr_b32 s%d, s2, 3" % sGRP)
        A("s_and_b32 s%d, s2, 7" % sC)
    elif gmap == 0:
        A("s_lshr_b32 s%d, s2, 3" % sTMP)
        A("s_and_b32 s%d, s%d, 7" % (sC, sTMP))
        A("s_and_b32 s%d, s%d, 24" % (sTMP, sTMP))
        A("s_and_b32 s%d, s2, 7" % sGRP)
        A("s_or_b32 s%d, s%d, s%d" % (sGRP, sGRP, sTMP))
    else:
        A("s_and_b32 s%d, s2, 31" % sGRP)
        A("s_lshr_b32 s%d, s2, 5" % sC)
    A("s_mov_b32 s%d, 0x20000" % (SRD + 3))
    A("s_mov_b32 s%d, 0x20000" % (WSR + 3))
    A("s_mov_b32 s%d, 0x20000" % (SR2 + 3))
    A("s_mov_b32 s%d, %d" % (WSR + 2, WS_USED))
    A("s_cmp_ge_u32 s3, %d" % NW)
    A("s_cbranch_scc1 L_helper")

    vOFF = 0
    vQ = 4
    vMK = 8
    vA = 12
    vO = 16
    vT = 20
    vS = 36
    vU = 44
    vLANE = 52
    vSL = 64
    def slot(i): return vSL + 4 * i
    A("v_mov_b32 v%d, v0" % vLANE)
    A("v_lshlrev_b32 v%d, 4, v0" % vOFF)
    GI = 8 if inter == 1 else max(inter, 1)
    if inter == -1: GI = 1
    lgi = int(math.log2(GI))
    span = GI * 512 * 1024
    stride = GI * NW * 4096
    sREG, sPH = 87, 39
    A("s_lshl_b32 s%d, s%d, 22" % (sREG, sGRP))
    A("s_lshr_b32 s%d, s%d, %d" % (sTMP, sC, lgi))
    A("s_mul_i32 s%d, s%d, %d" % (sTMP, sTMP, span))
    A("s_add_u32 s%d, s%d, s%d" % (sREG, sREG, sTMP))
    A("s_and_b32 s%d, s%d, %d" % (sTMP, sC, GI - 1))
    A("s_mul_i32 s%d, s%d, %d" % (sBASE, sTMP, NW * 4096))
    A("s_lshl_b32 s%d, s3, 12" % sTMP)
    A("s_add_u32 s%d, s%d, s%d" % (sBASE, sBASE, sTMP))
    ROT = rotc or rotg or roth
    if ROT:
        A("s_mul_i32 s%d, s%d, %d" % (sTMP, sC, rotc * stride))
        A("s_add_u32 s%d, s%d, s%d" % (sBASE, sBASE, sTMP))
        A("s_mul_i32 s%d, s%d, %d" % (sTMP, sGRP, rotg * stride))
        A("s_add_u32 s%d, s%d, s%d" % (sBASE, sBASE, sTMP))
        if roth:
            A("s_lshr_b32 s%d, s%d, %d" % (sTMP, sC, lgi))
            A("s_mul_i32 s%d, s%d, %d" % (sTMP, sTMP, roth * stride))
            A("s_add_u32 s%d, s%d, s%d" % (sBASE, sBASE, sTMP))
        A("s_and_b32 s%d, s%d, %d" % (sBASE, sBASE, span - 1))
        A("s_mov_b32 s%d, s%d" % (sPH, sBASE))
    A("s_add_u32 s%d, s%d, s%d" % (sBASE, sBASE, sREG))
    A("s_mov_b32 s%d, s%d" % (sOFF, sBASE))
    def advance():
        if ROT:
            A("s_add_u32 s%d, s%d, %d" % (sPH, sPH, stride))
            A("s_and_b32 s%d, s%d, %d" % (sPH, sPH, span - 1))
            A("s_add_u32 s%d, s%d, s%d" % (sOFF, sPH, sREG))
        else:
            A("s_add_u32 s%d, s%d, %d" % (sOFF, sOFF, stride))
    A("s_mov_b32 s%d, 0x8000000" % (SRD + 2))
    A("s_waitcnt lgkmcnt(0)")
    A("s_mov_b32 s%d, s%d" % (SRD, sK))
    A("s_mov_b32 s%d, s%d" % (SRD + 1, sK + 1))

    def issue(idx, sl, adv=True):
        if adv and idx % 4 == 0:
            advance()
        A("buffer_load_dwordx4 v[%d:%d], v%d, s[%d:%d], s%d offen offset:%d %s" %
          (slot(sl), slot(sl) + 3, vOFF, SRD, SRD + 3, sOFF, (idx % 4) * 1024, kflags))

    C("phase P: paced fill of the landing zone")
    for i in range(D):
        issue(i, i, adv=(i > 0))
    A("s_barrier")
    A("s_mov_b32 s%d, s%d" % (WSR, sWS))
    A("s_mov_b32 s%d, s%d" % (WSR + 1, sWS + 1))
    A("s_mov_b32 s%d, 0xcccccccc" % sM2)
    A("s_mov_b32 s%d, 0xcccccccc" % (sM2 + 1))
    A("s_mov_b32 s%d, 0xaaaaaaaa" % sM1)
    A("s_mov_b32 s%d, 0xaaaaaaaa" % (sM1 + 1))
    A("s_mov_b32 s%d, 0x3db8aa3b" % sCS)
    A("v_lshrrev_b32 v%d, 3, v%d" % (vU, vLANE))
    A("v_lshrrev_b32 v%d, 4, v%d" % (vU + 1, vLANE))
    A("v_xor_b32 v%d, v%d, v%d" % (vU, vU, vU + 1))
    A("v_and_b32 v%d, 1, v%d" % (vU, vU))
    A("v_lshlrev_b32 v%d, 2, v%d" % (vU, vU))
    A("v_bfe_u32 v%d, v%d, 1, 2" % (vU + 1, vLANE))
    A("v_or_b32 v%d, v%d, v%d" % (vU, vU, vU + 1))
    A("v_and_b32 v%d, 1, v%d" % (vU + 1, vLANE))
    A("v_lshlrev_b32 v%d, 4, v%d" % (vU + 1, vU + 1))
    A("v_mov_b32 v%d, 0xffff" % (vU + 2))
    A("v_lshlrev_b32 v%d, v%d, v%d" % (vU + 2, vU + 1, vU + 2))
    for r in range(4):
        A("v_cmp_eq_u32 vcc, %d, v%d" % (r, vU))
        A("v_mov_b32 v%d, 0" % (vO + r))
        A("s_nop 0")
        A("v_cndmask_b32 v%d, 0, v%d, vcc" % (vMK + r, vU + 2))
    A("v_and_b32 v%d, 31, v%d" % (vU + 3, vLANE))
    A("v_lshlrev_b32 v%d, 4, v%d" % (vU + 3, vU + 3))
    A("v_mov_b32 v%d, 0" % (vU + 4))
    for i in range(D, LZ):
        A("s_waitcnt vmcnt(%d)" % (D - 1))
        issue(i, i)
    stamp(1)
    A("s_mov_b32 s%d, %d" % (sSPIN, spin * 16))
    LB("L_qwait")
    A("ds_read_b32 v%d, v%d offset:%d" % (vU + 5, vU + 4, L_FLAG))
    A("ds_read_b128 v[%d:%d], v%d offset:%d" % (vQ, vQ + 3, vU + 3, L_Q))
    A("s_sub_u32 s%d, s%d, 1" % (sSPIN, sSPIN))
    A("s_cmp_eq_u32 s%d, 0" % sSPIN)
    A("s_waitcnt lgkmcnt(0)")
    A("s_cbranch_scc1 L_qok")
    A("v_cmp_eq_u32 vcc, 0, v%d" % (vU + 5))
    A("s_cbranch_vccnz L_qwait")
    LB("L_qok")
    stamp(2)

    def kdot(sl, n):
        b = slot(sl)
        A("v_dot2_f32_bf16 v%d, v%d, v%d, 0" % (vT + n, b, vQ))
        for r in range(1, 4):
            A("v_dot2_f32_bf16 v%d, v%d, v%d, v%d" % (vT + n, b + r, vQ + r, vT + n))

    def kreduce():
        t = lambda n: vT + n
        for k in range(NB - 1):
            A("v_mov_b32 v%d, v%d" % (vS + k, vS + k + 1))
        for n in range(8):
            A("v_add_f32_dpp v%d, v%d, v%d row_ror:8 row_mask:0xf bank_mask:0x3" % (t(n), t(n), t(n)))
        for n in range(8):
            A("v_add_f32_dpp v%d, v%d, v%d row_ror:8 row_mask:0xf bank_mask:0xc" % (t(n), t(n + 8), t(n + 8)))
        for n in range(4):
            A("v_add_f32_dpp v%d, v%d, v%d row_half_mirror row_mask:0xf bank_mask:0x5" % (t(n), t(n), t(n)))
        for n in range(4):
            A("v_add_f32_dpp v%d, v%d, v%d row_half_mirror row_mask:0xf bank_mask:0xa" % (t(n), t(n + 4), t(n + 4)))
        A("v_cndmask_b32 v%d, v%d, v%d, s[%d:%d]" % (t(9), t(2), t(0), sM2, sM2 + 1))
        A("v_cndmask_b32 v%d, v%d, v%d, s[%d:%d]" % (t(11), t(3), t(1), sM2, sM2 + 1))
        A("v_cndmask_b32 v%d, v%d, v%d, s[%d:%d]" % (t(8), t(0), t(2), sM2, sM2 + 1))
        A("v_cndmask_b32 v%d, v%d, v%d, s[%d:%d]" % (t(10), t(1), t(3), sM2, sM2 + 1))
        A("s_nop 0")
        A("v_add_f32_dpp v%d, v%d, v%d quad_perm:[2,3,0,1] row_mask:0xf bank_mask:0xf" % (t(0), t(9), t(8)))
        A("v_add_f32_dpp v%d, v%d, v%d quad_perm:[2,3,0,1] row_mask:0xf bank_mask:0xf" % (t(1), t(11), t(10)))
        A("v_cndmask_b32 v%d, v%d, v%d, s[%d:%d]" % (t(9), t(1), t(0), sM1, sM1 + 1))
        A("v_cndmask_b32 v%d, v%d, v%d, s[%d:%d]" % (t(8), t(0), t(1), sM1, sM1 + 1))
        A("s_nop 1")
        A("v_add_f32_dpp v%d, v%d, v%d quad_perm:[1,0,3,2] row_mask:0xf bank_mask:0xf" % (t(0), t(9), t(8)))
        A("v_mov_b32 v%d, v%d" % (t(1), t(0)))
        A("s_nop 1")
        A("v_permlane16_swap_b32 v%d, v%d" % (t(0), t(1)))
        A("v_add_f32 v%d, v%d, v%d" % (t(0), t(0), t(1)))
        A("v_cvt_pk_bf16_f32 v%d, v%d, v%d" % (t(0), t(0), t(0)))
        A("v_and_b32 v%d, 0xffff0000, v%d" % (vS + NB - 1, t(0)))

    def pace():
        A("s_waitcnt vmcnt(%d)" % (LAG - 1))

    C("catch-up: consume the landing zone, keep D loads in flight")
    free = LZ - D
    pts = []
    for e in range(LAG):
        p = max(e, int(round((e + 0.5) * free / LAG)) - 1)
        p = min(p, free - 1 + e, LZ - 1)
        pts.append(p)
    assert LZ + LAG <= N
    for j in range(LZ):
        kdot(j, j % 16)
        for e in range(LAG):
            if pts[e] == j:
                A("s_waitcnt vmcnt(%d)" % (D - 1))
                issue(LZ + e, e)
        if j % 16 == 15:
            kreduce()
    for e in range(LAG):
        assert e <= pts[e] < free + e, (pts, free)

    C("steady K loop")
    nit = (N - LZ) // 16
    A("s_mov_b32 s%d, %d" % (sIT, nit))
    LB("L_kloop")
    for j in range(16):
        pace()
        if (j + LAG) % 16 == 0:
            advance()
            A("s_cmp_eq_u32 s%d, 1" % sIT)
            A("s_cselect_b32 s%d, s%d, s%d" % (SRD, sV, SRD))
            A("s_cselect_b32 s%d, s%d, s%d" % (SRD + 1, sV + 1, SRD + 1))
            A("s_cselect_b32 s%d, s%d, s%d" % (sOFF, sBASE, sOFF))
            issue(j + LAG, (j + LAG) % 16, adv=False)
        else:
            issue(j + LAG, (j + LAG) % 16)
        kdot(j, j)
    kreduce()
    A("s_sub_u32 s%d, s%d, 1" % (sIT, sIT))
    A("s_cmp_lg_u32 s%d, 0" % sIT)
    A("s_cbranch_scc1 L_kloop")

    C("softmax over this wave's keys")
    stamp(3)
    m = vU
    A("v_max3_f32 v%d, v%d, v%d, v%d" % (m, vS, vS + 1, vS + 2))
    k = 3
    while k + 1 < NB:
        A("v_max3_f32 v%d, v%d, v%d, v%d" % (m, m, vS + k, vS + k + 1))
        k += 2
    if k < NB:
        A("v_max_f32 v%d, v%d, v%d" % (m, m, vS + k))
    def allreduce(op, r, tmp, half=True):
        for c_ in ("quad_perm:[1,0,3,2]", "quad_perm:[2,3,0,1]", "row_half_mirror", "row_mirror"):
            A("s_nop 1")
            A("%s_dpp v%d, v%d, v%d %s row_mask:0xf bank_mask:0xf" % (op, r, r, r, c_))
        if half:
            A("v_mov_b32 v%d, v%d" % (tmp, r))
            A("s_nop 1")
            A("v_permlane32_swap_b32 v%d, v%d" % (r, tmp))
            A("%s v%d, v%d, v%d" % (op, r, r, tmp))
    allreduce("v_max_f32", m, vU + 1)
    A("v_mul_f32 v%d, s%d, v%d" % (vU + 4, sCS, m))
    for k in range(NB):
        A("v_fma_f32 v%d, v%d, s%d, -v%d" % (vS + k, vS + k, sCS, vU + 4))
    for k in range(NB):
        A("v_exp_f32 v%d, v%d" % (vS + k, vS + k))
    l = vU + 5
    A("v_add_f32 v%d, v%d, v%d" % (l, vS, vS + 1))
    for k in range(2, NB):
        A("v_add_f32 v%d, v%d, v%d" % (l, l, vS + k))
    for k in range(NB):
        A("v_cvt_pk_bf16_f32 v%d, v%d, v%d" % (vS + k, vS + k, vS + k))
    allreduce("v_add_f32", l, vU + 1)
    A("v_mov_b32 v%d, 1" % (vU + 6))
    A("v_mov_b32 v%d, 1" % (vU + 7))
    A("s_lshl_b32 s%d, s3, 4" % sTMP)
    A("v_mov_b32 v%d, s%d" % (vU + 1, sTMP))
    A("ds_write_b128 v%d, v[%d:%d] offset:%d" % (vU + 1, vU + 4, vU + 7, L_STAT))

    C("V loop")
    A("s_mov_b32 s%d, %d" % (sIT, NB))
    LB("L_vloop")
    for j in range(16):
        for r in range(4):
            A("v_and_b32_dpp v%d, v%d, v%d row_newbcast:%d row_mask:0xf bank_mask:0xf" % (vA + r, vS, vMK + r, j))
        pace()
        if (j + LAG) % 16 == 0:
            advance()
            A("s_cmp_eq_u32 s%d, 1" % sIT)
            A("s_cselect_b32 s%d, 0x10000000, s%d" % (sOFF, sOFF))
            if ROT:
                A("s_cselect_b32 s%d, 0x10000000, s%d" % (sREG, sREG))
            issue(j + LAG, (j + LAG) % 16, adv=False)
        else:
            issue(j + LAG, (j + LAG) % 16)
        A("v_mfma_f32_16x16x32_bf16 v[%d:%d], v[%d:%d], v[%d:%d], v[%d:%d]" %
          (vO, vO + 3, vA, vA + 3, slot(j), slot(j) + 3, vO, vO + 3))
    for k in range(NB - 1):
        A("v_mov_b32 v%d, v%d" % (vS + k, vS + k + 1))
    A("s_sub_u32 s%d, s%d, 1" % (sIT, sIT))
    A("s_cmp_lg_u32 s%d, 0" % sIT)
    A("s_cbranch_scc1 L_vloop")
    A("s_lshl_b32 s%d, s3, 10" % sTMP)
    A("v_add_u32 v%d, s%d, v%d" % (vU, sTMP, vOFF))
    pad = 8 - (NB - 1) - 3 - 2
    if pad > 0:
        A("s_nop %d" % (pad - 1))
    A("ds_write_b128 v%d, v[%d:%d] offset:%d" % (vU, vO, vO + 3, L_O))
    A("s_waitcnt lgkmcnt(0)")
    stamp(4)
    A("s_barrier")
    A("s_branch L_fin")

    LB("L_helper")
    hL = 0
    hG, hJ = 1, 2
    hU = 4
    hX = 16
    hSEL = 32
    hA = 36
    hD = 40
    hMK = 44
    hP = 48
    hW = 64
    sHW = 39
    A("s_sub_u32 s%d, s3, %d" % (sHW, NW))
    A("v_lshrrev_b32 v%d, 4, v%d" % (hG, hL))
    A("v_and_b32 v%d, 15, v%d" % (hJ, hL))
    A("s_lshr_b32 s%d, s%d, 4" % (sB, sGRP))
    A("s_and_b32 s%d, s%d, 15" % (sH, sGRP))
    A("s_mov_b32 s%d, %d" % (SRD + 2, 448 * 8192))
    for r in range(4):
        A("s_mov_b32 s%d, 0x%08x" % (sSEL + r, 0x07060500 | r))
    A("s_cmp_lg_u32 s%d, 0" % sHW)
    A("s_cbranch_scc1 L_h_other")

    C("helper 0: one 112-row x 64-column tile of q = x @ wq for this head, both batches")
    sTILE, sRQ, sCSL, sQW, sQR, sSAME, sQT = 87, sTMP + 1, sTMP + 2, 94, 95, 89, sF
    A("v_mov_b32 v%d, 0" % (hU + 10))
    A("v_lshlrev_b32 v%d, 2, v%d" % (hU + 5, hL))
    A("ds_write_b32 v%d, v%d offset:%d" % (hU + 5, hU + 10, L_STAT))
    A("v_mul_u32_u24 v%d, %d, v%d" % (hU, 28 * 8192, hG))
    A("v_lshl_add_u32 v%d, v%d, 3, v%d" % (hU, hJ, hU))
    A("v_bfe_u32 v%d, v%d, 2, 1" % (hU + 1, hL))
    A("v_mul_u32_u24 v%d, 896, v%d" % (hU + 1, hU + 1))
    A("v_mul_u32_u24 v%d, 56, v%d" % (hU + 2, hG))
    A("v_add_u32 v%d, v%d, v%d" % (hU + 1, hU + 1, hU + 2))
    A("s_lshl_b32 s%d, s%d, 3" % (sTILE, sB))
    A("s_add_u32 s%d, s%d, s%d" % (sTILE, sTILE, sC))
    A("s_lshl_b32 s%d, s%d, 13" % (sQW, sH))
    A("s_add_u32 s%d, s%d, %d" % (sQW, sQW, WS_Q))
    A("s_mov_b32 s%d, 1" % sSAME)
    A("s_mov_b32 s%d, 1792" % (SR2 + 2))
    A("s_getreg_b32 s%d, hwreg(HW_REG_XCC_ID, 0, 4)" % (sTMP + 3))
    A("s_waitcnt lgkmcnt(0)")
    A("s_load_dword s%d, s[%d:%d], %d" % (sTAG, sWS, sWS + 1, WS_EPOCH))
    A("s_mov_b32 s%d, s%d" % (SR2, sX))
    A("s_mov_b32 s%d, s%d" % (SR2 + 1, sX + 1))
    A("s_mov_b32 s%d, s%d" % (SRD, sWQ))
    A("s_mov_b32 s%d, s%d" % (SRD + 1, sWQ + 1))
    A("s_mov_b32 s%d, s%d" % (WSR, sWS))
    A("s_mov_b32 s%d, s%d" % (WSR + 1, sWS + 1))
    LB("L_tile")
    A("s_lshr_b32 s%d, s%d, 2" % (sRQ, sTILE))
    A("s_and_b32 s%d, s%d, 3" % (sCSL, sTILE))
    A("s_mul_i32 s%d, s%d, %d" % (sOFF, sRQ, 112 * 8192))
    A("s_lshl_b32 s%d, s%d, 9" % (sIT, sH))
    A("s_add_u32 s%d, s%d, s%d" % (sOFF, sOFF, sIT))
    A("s_lshl_b32 s%d, s%d, 7" % (sIT, sCSL))
    A("s_add_u32 s%d, s%d, s%d" % (sOFF, sOFF, sIT))
    A("s_mul_i32 s%d, s%d, 224" % (sBASE, sRQ))
    for q in range(3):
        A("buffer_load_dwordx4 v[%d:%d], v%d, s[%d:%d], s%d offen offset:%d" % (hX + 4 * q, hX + 4 * q + 3, hU + 1, SR2, SR2 + 3, sBASE, 16 * q))
    A("buffer_load_dwordx2 v[%d:%d], v%d, s[%d:%d], s%d offen offset:48" % (hX + 12, hX + 13, hU + 1, SR2, SR2 + 3, sBASE))
    for n in range(28 if not abl & 16 else 0):
        A("buffer_load_dwordx2 v[%d:%d], v%d, s[%d:%d], s%d offen %s" % (hW + 2 * n, hW + 2 * n + 1, hU, SRD, SRD + 3, sOFF, wflags))
        if n < 27:
            A("s_add_u32 s%d, s%d, 8192" % (sOFF, sOFF))
    A("s_cmp_eq_u32 s%d, 0" % sSAME)
    A("s_cbranch_scc1 L_tile_go")
    C("first pass only: B0 and one-time set-up")
    A("s_barrier")
    A("v_and_b32 v%d, 1, v%d" % (hU + 2, hL))
    A("v_lshlrev_b32 v%d, 4, v%d" % (hU + 2, hU + 2))
    A("v_bfe_u32 v%d, v%d, 1, 1" % (hU + 3, hL))
    A("v_bfe_u32 v%d, v%d, 3, 1" % (hU + 4, hL))
    A("v_lshl_add_u32 v%d, v%d, 1, v%d" % (hU + 3, hU + 4, hU + 3))
    A("v_mov_b32 v%d, 0x0c0c0c0c" % (hU + 6))
    for par, src in ((0, 0x0100), (1, 0x0302)):
        A("v_mov_b32 v%d, 0x%x" % (hU + 4, src ^ 0x0c0c))
        A("v_lshlrev_b32 v%d, v%d, v%d" % (hU + 4, hU + 2, hU + 4))
        A("v_xor_b32 v%d, v%d, v%d" % (hU + 4, hU + 6, hU + 4))
        for r in range(2):
            A("v_cmp_eq_u32 vcc, %d, v%d" % (r, hU + 3))
            A("s_nop 1")
            A("v_cndmask_b32 v%d, v%d, v%d, vcc" % (hSEL + 2 * par + r, hU + 6, hU + 4))
    A("s_waitcnt lgkmcnt(0)")
    A("s_add_u32 s%d, s%d, 0x01011001" % (sTAG, sTAG))
    A("v_mov_b32 v%d, s%d" % (hU + 9, sTAG))
    A("ds_write_b32 v%d, v%d offset:%d" % (hU + 10, hU + 9, L_TAG))
    for r in range(4):
        A("s_bfe_u32 s%d, s%d, 0x%x" % (sT + r, sTAG, 0x80000 | (8 * r)))
    C("q tiles carry the producer's XCC id in their tag: accepting one proves a shared L2")
    A("s_lshl_b32 s%d, s%d, 8" % (sIT, sTMP + 3))
    A("s_xor_b32 s%d, s%d, s%d" % (sIT, sIT, sTAG))
    A("v_mov_b32 v%d, s%d" % (hU + 6, sIT))
    for r in range(4):
        A("s_bfe_u32 s%d, s%d, 0x%x" % (sQT + r, sIT, 0x80000 | (8 * r)))
    LB("L_tile_go")
    for r in range(4):
        A("v_mov_b32 v%d, 0" % (hD + r))
    A("s_lshl_b32 s%d, s%d, 8" % (sOFF, sTILE))
    A("s_add_u32 s%d, s%d, s%d" % (sOFF, sOFF, sQW))
    A("v_lshlrev_b32 v%d, 12, v%d" % (hU + 7, hG))
    A("v_lshl_add_u32 v%d, v%d, 4, v%d" % (hU + 7, hJ, hU + 7))
    A("s_lshl_b32 s%d, s%d, 12" % (sQR, sB))
    A("s_add_u32 s%d, s%d, s%d" % (sQR, sQR, sQW))
    A("v_lshlrev_b32 v%d, 4, v%d" % (hU + 8, hL))
    PW = 1 if pre & 1 else 0
    if PW:
        C("allocate the tile's lines in L2 with a not-yet-valid tag so early polls do not miss to memory")
        A("v_not_b32 v%d, v%d" % (hP + 4, hU + 6))
        for r in range(4):
            A("v_perm_b32 v%d, v%d, v%d, s%d" % (hP + r, hP + 4, hP + 4, sSEL + r))
        A("s_mov_b32 exec_hi, 0")
        A("buffer_store_dwordx4 v[%d:%d], v%d, s[%d:%d], s%d offen" % (hP, hP + 3, hU + 7, WSR, WSR + 3, sOFF))
        A("s_mov_b32 exec_hi, -1")
    A("s_waitcnt vmcnt(%d)" % (28 + PW))
    for n in range(28):
        a = hA + 2 * (n & 1)
        for r in range(2):
            A("v_perm_b32 v%d, v%d, v%d, v%d" % (a + r, hX + (n >> 1), hX + (n >> 1), hSEL + 2 * (n & 1) + r))
        A("s_waitcnt vmcnt(%d)" % (27 - n + PW))
        A("s_nop 0")
        A("v_mfma_f32_16x16x16_bf16 v[%d:%d], v[%d:%d], v[%d:%d], v[%d:%d]" %
          (hD, hD + 3, a, a + 1, hW + 2 * n, hW + 2 * n + 1, hD, hD + 3))
    A("s_nop 7")
    for r in range(4):
        A("v_perm_b32 v%d, v%d, v%d, s%d" % (hMK + r, hD + r, hU + 6, sSEL + r))
    A("s_mov_b32 exec_hi, 0")
    if not abl & 2:
        A("buffer_store_dwordx4 v[%d:%d], v%d, s[%d:%d], s%d offen" % (hMK, hMK + 3, hU + 7, WSR, WSR + 3, sOFF))
    A("s_mov_b32 exec_hi, -1")
    stamp(1)
    A("s_mov_b32 s%d, %d" % (sSPIN, qtry))
    A("s_cmp_lg_u32 s%d, 0" % sSAME)
    A("s_cbranch_scc1 L_qpoll0")
    A("s_waitcnt vmcnt(0)")
    A("s_add_u32 s%d, s%d, 1" % (sTILE, sTILE))
    A("s_cmp_lt_u32 s%d, 16" % sTILE)
    A("s_cbranch_scc1 L_tile")
    A("s_mov_b32 s%d, %d" % (sSPIN, spin))
    LB("L_qpoll0")
    if abl & 1:
        A("s_branch L_qgo")
    if force_slow:
        A("s_cmp_lg_u32 s%d, 0" % sSAME)
        A("s_cbranch_scc1 L_qfail")
    LB("L_qpoll")
    if qslp:
        A("s_sleep %d" % qslp)
    for q in range(4):
        A("buffer_load_dwordx4 v[%d:%d], v%d, s[%d:%d], s%d offen offset:%d sc1" % (hP + 4 * q, hP + 4 * q + 3, hU + 8, WSR, WSR + 3, sQR, 1024 * q))
    A("s_waitcnt vmcnt(0)")
    for q in range(4):
        for r in range(4):
            A("v_xor_b32 v%d, s%d, v%d" % (hP + 4 * q + r, sQT + r, hP + 4 * q + r))
    A("v_or3_b32 v%d, v%d, v%d, v%d" % (hU + 11, hP, hP + 1, hP + 2))
    for k in range(3, 15, 2):
        A("v_or3_b32 v%d, v%d, v%d, v%d" % (hU + 11, hU + 11, hP + k, hP + k + 1))
    A("v_or_b32 v%d, v%d, v%d" % (hU + 11, hU + 11, hP + 15))
    A("v_and_b32 v%d, 0xff, v%d" % (hU + 11, hU + 11))
    A("v_cmp_ne_u32 vcc, 0, v%d" % (hU + 11))
    A("s_cbranch_vccz L_qgo")
    A("s_sub_u32 s%d, s%d, 1" % (sSPIN, sSPIN))
    A("s_cmp_lg_u32 s%d, 0" % sSPIN)
    A("s_cbranch_scc1 L_qpoll")
    A("s_cmp_eq_u32 s%d, 0" % sSAME)
    A("s_cbranch_scc1 L_qgo")
    LB("L_qfail")
    C("some producer of this head is not behind our L2 (or is very late): compute all 16 tiles here")
    A("s_mov_b32 s%d, 0" % sSAME)
    A("s_mov_b32 s%d, 0" % sTILE)
    A("s_lshl_b32 s%d, s2, 13" % sQW)
    A("s_add_u32 s%d, s%d, %d" % (sQW, sQW, WS_QP))
    A("s_branch L_tile")
    LB("L_qgo")
    for r in range(4):
        A("v_add_f32 v%d, v%d, v%d" % (hP + r, hP + r, hP + 4 + r))
        A("v_add_f32 v%d, v%d, v%d" % (hP + 8 + r, hP + 8 + r, hP + 12 + r))
    for r in range(4):
        A("v_add_f32 v%d, v%d, v%d" % (hP + r, hP + r, hP + 8 + r))
    A("v_cvt_pk_bf16_f32 v%d, v%d, v%d" % (hP, hP, hP + 1))
    A("v_cvt_pk_bf16_f32 v%d, v%d, v%d" % (hP + 1, hP + 2, hP + 3))
    A("v_lshlrev_b32 v%d, 3, v%d" % (hU + 11, hL))
    A("v_mov_b32 v%d, 1" % (hP + 2))
    A("ds_write_b64 v%d, v[%d:%d] offset:%d" % (hU + 11, hP, hP + 1, L_Q))
    A("s_waitcnt lgkmcnt(0)")
    A("ds_write_b32 v%d, v%d offset:%d" % (hU + 10, hP + 2, L_FLAG))
    stamp(2)
    A("s_branch L_h_common")

    LB("L_h_other")
    A("v_mov_b32 v%d, 0" % (hU + 10))
    A("s_mov_b32 s%d, 0" % sSAME)
    A("s_waitcnt lgkmcnt(0)")
    A("s_mov_b32 s%d, s%d" % (WSR, sWS))
    A("s_mov_b32 s%d, s%d" % (WSR + 1, sWS + 1))
    A("s_barrier")
    A("s_mov_b32 s%d, %d" % (sSPIN, spin * 4))
    LB("L_hwait")
    A("s_sleep 8")
    A("ds_read_b32 v%d, v%d offset:%d" % (hU + 8, hU + 10, L_FLAG))
    A("ds_read_b32 v%d, v%d offset:%d" % (hU + 9, hU + 10, L_TAG))
    A("s_sub_u32 s%d, s%d, 1" % (sSPIN, sSPIN))
    A("s_cmp_eq_u32 s%d, 0" % sSPIN)
    A("s_waitcnt lgkmcnt(0)")
    A("s_cbranch_scc1 L_hok")
    A("v_cmp_eq_u32 vcc, 0, v%d" % (hU + 8))
    A("s_cbranch_vccnz L_hwait")
    LB("L_hok")
    A("v_readfirstlane_b32 s%d, v%d" % (sTAG, hU + 9))
    A("s_nop 0")
    for r in range(4):
        A("s_bfe_u32 s%d, s%d, 0x%x" % (sT + r, sTAG, 0x80000 | (8 * r)))

    LB("L_h_common")
    C("prefetch this wave's wo fragment: rows h*256+128*(c>>2)+32*hw+8g+4hi+r, cols 112*(c&3) + 8*min(j,13)")
    sSL, sCB = sTMP, sTMP + 1
    A("s_mov_b32 s%d, s%d" % (SRD, sWO))
    A("s_mov_b32 s%d, s%d" % (SRD + 1, sWO + 1))
    A("v_min_u32 v%d, 13, v%d" % (hU, hJ))
    A("v_lshlrev_b32 v%d, 4, v%d" % (hU, hU))
    A("v_mul_u32_u24 v%d, %d, v%d" % (hU + 1, 8 * 896, hG))
    A("v_add_u32 v%d, v%d, v%d" % (hU, hU, hU + 1))
    A("s_and_b32 s%d, s%d, 4" % (sSL, sC))
    A("s_add_u32 s%d, s%d, s%d" % (sSL, sSL, sHW))
    A("s_and_b32 s%d, s%d, 3" % (sCB, sC))
    A("s_lshl_b32 s%d, s%d, 3" % (sOFF, sH))
    A("s_add_u32 s%d, s%d, s%d" % (sOFF, sOFF, sSL))
    A("s_mul_i32 s%d, s%d, %d" % (sOFF, sOFF, 32 * 896))
    A("s_mul_i32 s%d, s%d, 224" % (sIT, sCB))
    A("s_add_u32 s%d, s%d, s%d" % (sOFF, sOFF, sIT))
    A("s_add_u32 s%d, s%d, %d" % (sIT, sOFF, 4 * 896))
    for n in range(8 if not abl & 8 else 0):
        A("buffer_load_dwordx4 v[%d:%d], v%d, s[%d:%d], s%d offen offset:%d %s" %
          (hW + 4 * n, hW + 4 * n + 3, hU, SRD, SRD + 3, sOFF if n < 4 else sIT, (n & 3) * 896, wflags))
        A("s_waitcnt vmcnt(0)")
    A("v_lshrrev_b32 v%d, 1, v%d" % (hU + 1, hJ))
    A("v_and_b32 v%d, 1, v%d" % (hU + 2, hL))
    A("v_lshlrev_b32 v%d, 4, v%d" % (hU + 2, hU + 2))
    A("v_mov_b32 v%d, 0xffff" % (hU + 3))
    A("v_lshlrev_b32 v%d, v%d, v%d" % (hU + 3, hU + 2, hU + 3))
    for r in range(4):
        A("v_cmp_eq_u32 vcc, %d, v%d" % (r, hU + 1))
        A("s_nop 1")
        A("v_cndmask_b32 v%d, 0, v%d, vcc" % (hMK + r, hU + 3))
    A("v_and_b32 v%d, 7, v%d" % (hU + 1, hL))
    A("v_lshlrev_b32 v%d, 10, v%d" % (hU + 1, hU + 1))
    A("v_lshrrev_b32 v%d, 3, v%d" % (hU + 2, hL))
    A("v_lshl_add_u32 v%d, v%d, 4, v%d" % (hU + 1, hU + 2, hU + 1))
    sO1R, sO1W, sYW = sTMP + 4, sTMP + 5, sTMP + 6
    A("s_lshl_b32 s%d, s%d, 13" % (sO1R, sGRP))
    A("s_add_u32 s%d, s%d, %d" % (sO1R, sO1R, WS_O1))
    A("s_lshl_b32 s%d, s%d, 10" % (sIT, sC))
    A("s_add_u32 s%d, s%d, s%d" % (sO1W, sO1R, sIT))
    A("s_lshl_b32 s%d, s%d, 7" % (sIT, sSL))
    A("s_add_u32 s%d, s%d, s%d" % (sO1R, sO1R, sIT))
    A("s_lshl_b32 s%d, s%d, 2" % (sYW, sB))
    A("s_add_u32 s%d, s%d, s%d" % (sYW, sYW, sCB))
    A("s_lshl_b32 s%d, s%d, 4" % (sYW, sYW))
    A("s_add_u32 s%d, s%d, s%d" % (sYW, sYW, sH))
    A("s_lshl_b32 s%d, s%d, 1" % (sYW, sYW))
    A("s_lshr_b32 s%d, s%d, 2" % (sIT, sC))
    A("s_add_u32 s%d, s%d, s%d" % (sYW, sYW, sIT))
    A("s_lshl_b32 s%d, s%d, 9" % (sYW, sYW))
    A("s_add_u32 s%d, s%d, %d" % (sYW, sYW, WS_Y))
    A("v_lshlrev_b32 v%d, 5, v%d" % (hU + 2, hJ))
    A("v_lshl_add_u32 v%d, v%d, 4, v%d" % (hU + 2, hG, hU + 2))
    C("final reducer set-up: unit u = (wg&7) + 8*(wg>>6) = (b, cb, line), sub = (wg>>3)&7")
    sU, sSUB, sKQ = sTMP + 2, sTMP + 3, sTMP + 7
    sYA, sOO, sRED = 90, 92, 93
    rV, rO, ya, rT, rL, rE = 128, 129, 100, 130, 132, 133
    A("s_lshr_b32 s%d, s2, 6" % sU)
    A("s_lshl_b32 s%d, s%d, 3" % (sU, sU))
    A("s_and_b32 s%d, s2, 7" % sSUB)
    A("s_or_b32 s%d, s%d, s%d" % (sU, sU, sSUB))
    A("s_bfe_u32 s%d, s2, 0x30003" % sSUB)
    A("s_and_b32 s%d, s%d, 3" % (sKQ, sU))
    A("s_lshl_b32 s%d, s%d, 2" % (sKQ, sKQ))
    A("s_add_u32 s%d, s%d, s%d" % (sKQ, sKQ, sSUB))
    A("s_cmp_lt_u32 s%d, 4" % sSUB)
    A("s_cselect_b32 s%d, s%d, 99" % (sKQ, sKQ))
    A("s_cmp_lt_u32 s%d, 14" % sKQ)
    A("s_cselect_b32 s%d, s%d, 0" % (sRED, sHW))
    A("s_lshr_b32 s%d, s%d, 2" % (sU, sU))
    A("s_lshl_b32 s%d, s%d, 14" % (sYA, sU))
    A("s_lshl_b32 s%d, s%d, 5" % (sIT, sKQ))
    A("s_add_u32 s%d, s%d, s%d" % (sYA, sYA, sIT))
    A("s_add_u32 s%d, s%d, %d" % (sYA, sYA, WS_Y))
    A("v_lshrrev_b32 v%d, 1, v%d" % (rV, hL))
    A("v_lshlrev_b32 v%d, 9, v%d" % (rV, rV))
    A("v_and_b32 v%d, 1, v%d" % (rT, hL))
    A("v_lshl_add_u32 v%d, v%d, 4, v%d" % (rV, rT, rV))
    A("s_mul_i32 s%d, s%d, 224" % (sOO, sU))
    A("s_lshl_b32 s%d, s%d, 4" % (sIT, sKQ))
    A("s_add_u32 s%d, s%d, s%d" % (sOO, sOO, sIT))
    A("s_mov_b32 s%d, s%d" % (SR2, sOUT))
    A("s_mov_b32 s%d, s%d" % (SR2 + 1, sOUT + 1))
    A("s_mov_b32 s%d, 1792" % (SR2 + 2))
    A("v_lshrrev_b32 v%d, 5, v%d" % (rO, hL))
    A("v_lshl_add_u32 v%d, v%d, 2, v%d" % (rO, rT, rO))
    A("v_bfe_u32 v%d, v%d, 4, 1" % (rT, hL))
    A("v_lshl_add_u32 v%d, v%d, 1, v%d" % (rO, rT, rO))
    A("v_lshlrev_b32 v%d, 1, v%d" % (rO, rO))
    A("v_lshlrev_b32 v%d, 9, v%d" % (rE, hL))
    A("s_lshl_b32 s%d, s%d, 9" % (sIT, sHW))
    A("v_lshlrev_b32 v%d, 4, v%d" % (rL, hL))
    A("v_add_u32 v%d, s%d, v%d" % (rL + 2, sIT, rL))
    A("s_cmp_lg_u32 s%d, 0" % sHW)
    A("s_cbranch_scc1 L_h_b2")

    C("helper 0: softmax statistics exchange inside the (b,h) group")
    A("v_and_b32 v%d, %d, v%d" % (hU + 3, NW - 1, hL))
    A("v_lshlrev_b32 v%d, 4, v%d" % (hU + 3, hU + 3))
    sSR, sSW = sTMP, sTMP + 1
    A("s_lshl_b32 s%d, s%d, 10" % (sSR, sGRP))
    A("s_add_u32 s%d, s%d, %d" % (sSR, sSR, WS_STAT))
    A("s_lshl_b32 s%d, s%d, 7" % (sSW, sC))
    A("s_add_u32 s%d, s%d, s%d" % (sSW, sSW, sSR))
    if pre & 2:
        A("s_cmp_eq_u32 s%d, 0" % sSAME)
        A("s_cbranch_scc1 L_nopw1")
        for r in range(4):
            A("v_not_b32 v%d, v%d" % (hP + 12 + r, hU + 9))
        A("s_mov_b64 exec, 0xff")
        A("buffer_store_dwordx4 v[%d:%d], v%d, s[%d:%d], s%d offen" % (hP + 12, hP + 15, rL, WSR, WSR + 3, sSW))
        A("s_mov_b64 exec, -1")
        LB("L_nopw1")
    A("s_mov_b32 s%d, %d" % (sSPIN, spin * 4))
    LB("L_lpoll")
    A("s_sleep 4")
    A("ds_read_b128 v[%d:%d], v%d offset:%d" % (hP, hP + 3, hU + 3, L_STAT))
    A("s_sub_u32 s%d, s%d, 1" % (sSPIN, sSPIN))
    A("s_cmp_eq_u32 s%d, 0" % sSPIN)
    A("s_cbranch_scc1 L_lgo")
    A("s_waitcnt lgkmcnt(0)")
    A("v_cmp_eq_u32 vcc, 0, v%d" % (hP + 2))
    A("s_cbranch_vccnz L_lpoll")
    LB("L_lgo")
    A("s_waitcnt lgkmcnt(0)")
    A("v_mov_b32 v%d, v%d" % (hP + 2, hU + 9))
    A("v_mov_b32 v%d, v%d" % (hP + 3, hU + 9))
    A("s_mov_b64 exec, %d" % ((1 << NW) - 1) if NW <= 4 else "s_mov_b64 exec, 0xff")
    if not abl & 4:
        lab[0] += 1
        A("s_cmp_eq_u32 s%d, 0" % sSAME)
        A("s_cbranch_scc1 L_wt%d" % lab[0])
        A("buffer_store_dwordx4 v[%d:%d], v%d, s[%d:%d], s%d offen" % (hP, hP + 3, hU + 3, WSR, WSR + 3, sSW))
        A("s_branch L_wd%d" % lab[0])
        LB("L_wt%d" % lab[0])
        A("buffer_store_dwordx4 v[%d:%d], v%d, s[%d:%d], s%d offen sc1" % (hP, hP + 3, hU + 3, WSR, WSR + 3, sSW))
        LB("L_wd%d" % lab[0])
    A("s_mov_b64 exec, -1")
    A("v_bfe_u32 v%d, v%d, %d, 3" % (hU + 4, hL, int(math.log2(NW))))
    A("v_lshl_add_u32 v%d, v%d, 7, v%d" % (hU + 4, hU + 4, hU + 3))
    A("s_mov_b32 s%d, %d" % (sSPIN, spin))
    if abl & 4:
        A("s_branch L_sgo")
    LB("L_spoll")
    A("s_sleep 8")
    A("buffer_load_dwordx4 v[%d:%d], v%d, s[%d:%d], s%d offen sc1" % (hP + 4, hP + 7, hU + 4, WSR, WSR + 3, sSR))
    A("s_sub_u32 s%d, s%d, 1" % (sSPIN, sSPIN))
    A("s_cmp_eq_u32 s%d, 0" % sSPIN)
    A("s_cbranch_scc1 L_sgo")
    A("s_waitcnt vmcnt(0)")
    A("v_xor_b32 v%d, v%d, v%d" % (hP + 8, hP + 6, hU + 9))
    A("v_xor_b32 v%d, v%d, v%d" % (hP + 9, hP + 7, hU + 9))
    A("v_or_b32 v%d, v%d, v%d" % (hP + 8, hP + 8, hP + 9))
    A("v_cmp_ne_u32 vcc, 0, v%d" % (hP + 8))
    A("s_cbranch_vccnz L_spoll")
    LB("L_sgo")
    A("s_waitcnt vmcnt(0)")
    stamp(3)
    def allreduce_full(op, r, tmp):
        for c_ in ("quad_perm:[1,0,3,2]", "quad_perm:[2,3,0,1]", "row_half_mirror", "row_mirror"):
            A("s_nop 1")
            A("%s_dpp v%d, v%d, v%d %s row_mask:0xf bank_mask:0xf" % (op, r, r, r, c_))
        sw = ["v_permlane16_swap_b32"] + (["v_permlane32_swap_b32"] if NW == 8 else [])
        for s_ in sw:
            A("v_mov_b32 v%d, v%d" % (tmp, r))
            A("s_nop 1")
            A("%s v%d, v%d" % (s_, r, tmp))
            A("%s v%d, v%d, v%d" % (op, r, r, tmp))
    A("v_mov_b32 v%d, v%d" % (hP + 8, hP + 4))
    allreduce_full("v_max_f32", hP + 8, hP + 9)
    A("v_sub_f32 v%d, v%d, v%d" % (hP + 8, hP + 4, hP + 8))
    A("v_exp_f32 v%d, v%d" % (hP + 8, hP + 8))
    A("s_nop 0")
    A("v_mul_f32 v%d, v%d, v%d" % (hP + 10, hP + 8, hP + 5))
    allreduce_full("v_add_f32", hP + 10, hP + 9)
    A("v_rcp_f32 v%d, v%d" % (hP + 10, hP + 10))
    A("s_mul_i32 s%d, s%d, %d" % (sIT, sC, NW))
    A("v_mul_f32 v%d, v%d, v%d" % (hP + 8, hP + 8, hP + 10))
    for w in range(NW):
        A("s_nop 0")
        A("v_readlane_b32 s%d, v%d, s%d" % (sF + w, hP + 8, sIT))
        A("s_add_u32 s%d, s%d, 1" % (sIT, sIT))
    A("v_lshrrev_b32 v%d, 1, v%d" % (hU + 3, hG))
    A("v_lshlrev_b32 v%d, 9, v%d" % (hU + 3, hU + 3))
    A("v_lshl_add_u32 v%d, v%d, 5, v%d" % (hU + 3, hJ, hU + 3))
    A("v_and_b32 v%d, 1, v%d" % (hU + 4, hG))
    A("v_lshl_add_u32 v%d, v%d, 4, v%d" % (hU + 3, hU + 4, hU + 3))
    A("v_lshlrev_b32 v%d, 4, v%d" % (hU + 4, hL))
    if pre & 4:
        A("s_cmp_eq_u32 s%d, 0" % sSAME)
        A("s_cbranch_scc1 L_nopw2")
        A("v_not_b32 v%d, v%d" % (hP + 4, hU + 9))
        for r in range(4):
            A("v_perm_b32 v%d, v%d, v%d, s%d" % (hP + 12 + r, hP + 4, hP + 4, sSEL + r))
        A("buffer_store_dwordx4 v[%d:%d], v%d, s[%d:%d], s%d offen" % (hP + 12, hP + 15, hU + 3, WSR, WSR + 3, sO1W))
        LB("L_nopw2")
    A("s_barrier")
    OR = 96
    for w in range(NW):
        A("ds_read_b128 v[%d:%d], v%d offset:%d" % (OR + 4 * w, OR + 4 * w + 3, hU + 4, L_O + 1024 * w))
    for w in range(NW):
        A("s_waitcnt lgkmcnt(%d)" % (NW - 1 - w))
        for r in range(4):
            if w == 0:
                A("v_mul_f32 v%d, s%d, v%d" % (hD + r, sF, OR + r))
            else:
                A("v_fmac_f32 v%d, s%d, v%d" % (hD + r, sF + w, OR + 4 * w + r))
    for r in range(4):
        A("v_perm_b32 v%d, v%d, v%d, s%d" % (hX + r, hD + r, hU + 9, sSEL + r))
    if not abl & 32:
        lab[0] += 1
        A("s_cmp_eq_u32 s%d, 0" % sSAME)
        A("s_cbranch_scc1 L_wt%d" % lab[0])
        A("buffer_store_dwordx4 v[%d:%d], v%d, s[%d:%d], s%d offen" % (hX, hX + 3, hU + 3, WSR, WSR + 3, sO1W))
        A("s_branch L_wd%d" % lab[0])
        LB("L_wt%d" % lab[0])
        A("buffer_store_dwordx4 v[%d:%d], v%d, s[%d:%d], s%d offen sc1" % (hX, hX + 3, hU + 3, WSR, WSR + 3, sO1W))
        LB("L_wd%d" % lab[0])
    A("s_branch L_h_hop1")
    LB("L_h_b2")
    A("s_barrier")
    LB("L_h_hop1")
    if abl & 32:
        A("s_branch L_fin")
    stamp(4)
    A("s_mov_b32 s%d, %d" % (sSPIN, spin))
    def ringpoll(name, K, pad, ring, res, tmp, voff, soff, slp, fail):
        ld = lambda k: A("buffer_load_dwordx4 v[%d:%d], v%d, s[%d:%d], s%d offen sc1" % (ring + 4 * k, ring + 4 * k + 3, voff, WSR, WSR + 3, soff))
        for k in range(K - 1):
            ld(k)
            if pad:
                A("s_nop %d" % (pad - 1))
        LB(name)
        for k in range(K):
            if slp:
                A("s_sleep %d" % slp)
            ld((k + K - 1) % K)
            if k == 0:
                A("s_sub_u32 s%d, s%d, 1" % (sSPIN, sSPIN))
                A("s_cmp_eq_u32 s%d, 0" % sSPIN)
                A("s_cbranch_scc1 %s" % fail)
            elif pad:
                A("s_nop %d" % (pad - 1))
            A("s_waitcnt vmcnt(%d)" % (K - 1))
            for r in range(4):
                A("v_xor_b32 v%d, s%d, v%d" % (res + r, sT + r, ring + 4 * k + r))
            A("v_or3_b32 v%d, v%d, v%d, v%d" % (tmp, res, res + 1, res + 2))
            A("v_or_b32 v%d, v%d, v%d" % (tmp, tmp, res + 3))
            A("v_and_b32 v%d, 0xff, v%d" % (tmp, tmp))
            A("v_cmp_ne_u32 vcc, 0, v%d" % tmp)
            A("s_and_b64 exec, exec, vcc")
            if k == K - 1:
                A("s_cbranch_scc1 %s" % name)
            else:
                A("s_cbranch_scc0 %s_done" % name)
        LB(name + "_done")
    ringpoll("L_opoll", ok, opad, 136, hP, hP + 4, hU + 1, sO1R, slp1, "L_fin")
    A("s_mov_b64 exec, -1")
    stamp(5)
    for c_ in ("quad_perm:[1,0,3,2]", "quad_perm:[2,3,0,1]", "row_half_mirror"):
        for r in range(4):
            A("v_add_f32_dpp v%d, v%d, v%d %s row_mask:0xf bank_mask:0xf" % (hP + r, hP + r, hP + r, c_))
    for r in range(4):
        A("v_cvt_pk_bf16_f32 v%d, v%d, v%d" % (hP + r, hP + r, hP + r))
    A2 = [hA, hSEL]
    def buildA(n):
        hi, r0 = n >> 2, n & 3
        for r in range(4):
            A("v_and_b32_dpp v%d, v%d, v%d row_newbcast:%d row_mask:0xf bank_mask:0xf" % (A2[n & 1] + r, hP + r0, hMK + r, 8 * hi))
    buildA(0)
    for n in range(8):
        if n + 1 < 8:
            buildA(n + 1)
        else:
            A("s_nop 1")
        A("v_mfma_f32_16x16x32_bf16 v[%d:%d], v[%d:%d], v[%d:%d], %s" %
          (hD, hD + 3, A2[n & 1], A2[n & 1] + 3, hW + 4 * n, hW + 4 * n + 3, "0" if n == 0 else "v[%d:%d]" % (hD, hD + 3)))
    A("s_mov_b32 exec_hi, 0")
    A("s_cmp_eq_u32 s%d, 0" % sHW)
    A("s_cbranch_scc1 L_ysum")
    A("s_nop 4")
    A("ds_write_b128 v%d, v[%d:%d] offset:%d" % (rL + 2, hD, hD + 3, L_Y))
    A("s_waitcnt lgkmcnt(0)")
    A("s_barrier")
    stamp(6)
    A("s_cmp_lg_u32 s%d, %d" % (sRED, NH - 1))
    A("s_cbranch_scc1 L_notred")
    A("s_mov_b64 exec, -1")
    A("s_mov_b32 s%d, %d" % (sSPIN, spin))
    ringpoll("L_rpoll", rk, rpad, hW, ya, rT, rV, sYA, slp2, "L_fin")
    A("s_mov_b64 exec, -1")
    stamp(3)
    A("v_permlane32_swap_b32 v%d, v%d" % (ya, ya + 1))
    A("v_permlane32_swap_b32 v%d, v%d" % (ya + 2, ya + 3))
    A("v_add_f32 v%d, v%d, v%d" % (ya, ya, ya + 1))
    A("v_add_f32 v%d, v%d, v%d" % (ya + 2, ya + 2, ya + 3))
    A("s_nop 1")
    A("v_permlane16_swap_b32 v%d, v%d" % (ya, ya + 2))
    A("v_add_f32 v%d, v%d, v%d" % (ya, ya, ya + 2))
    for c_ in ("row_ror:8", "row_ror:4", "quad_perm:[2,3,0,1]"):
        A("s_nop 1")
        A("v_add_f32_dpp v%d, v%d, v%d %s row_mask:0xf bank_mask:0xf" % (ya, ya, ya, c_))
    A("v_cvt_pk_bf16_f32 v%d, v%d, v%d" % (ya, ya, ya))
    A("s_mov_b32 exec_lo, 0x00030003")
    A("s_mov_b32 exec_hi, 0x00030003")
    A("buffer_store_short v%d, v%d, s[%d:%d], s%d offen" % (ya, rO, SR2, SR2 + 3, sOO))
    if diag >= 0:
        A("s_cmp_lg_u32 s2, 0")
        A("s_cbranch_scc1 L_fin")
    if diag >= 0:
        C("DIAGNOSTIC ONLY")
        A("s_memrealtime s[%d:%d]" % (sST + 14, sST + 15))
        A("s_waitcnt lgkmcnt(0)")
        A("s_sub_u32 s%d, s%d, s%d" % (sTMP, sST + 2 * diag, sST))
        A("s_min_u32 s%d, s%d, 20000" % (sTMP, sTMP))
        A("s_mul_i32 s%d, s%d, %d" % (sTMP, sTMP, dk))
        LB("L_diag")
        A("s_memrealtime s[%d:%d]" % (sST + 12, sST + 13))
        A("s_waitcnt lgkmcnt(0)")
        A("s_sub_u32 s%d, s%d, s%d" % (sTMP + 1, sST + 12, sST + 14))
        A("s_cmp_lt_u32 s%d, s%d" % (sTMP + 1, sTMP))
        A("s_cbranch_scc1 L_diag")
    A("s_branch L_fin")
    LB("L_ysum")
    A("s_barrier")
    for w in range(1, 4):
        A("ds_read_b128 v[%d:%d], v%d offset:%d" % (ya + 4 * w, ya + 4 * w + 3, rL, L_Y + 512 * w))
    A("s_nop 1")
    for w in range(1, 4):
        A("s_waitcnt lgkmcnt(%d)" % (3 - w))
        for r in range(4):
            A("v_add_f32 v%d, v%d, v%d" % (hD + r, hD + r, ya + 4 * w + r))
    for r in range(4):
        A("v_perm_b32 v%d, v%d, v%d, s%d" % (hD + r, hD + r, hU + 9, sSEL + r))
    A("buffer_store_dwordx4 v[%d:%d], v%d, s[%d:%d], s%d offen sc1" % (hD, hD + 3, hU + 2, WSR, WSR + 3, sYW))
    stamp(6)
    A("s_branch L_fin")
    LB("L_notred")
    C("one wave that has no output to reduce advances the hand-off epoch once EVERY workgroup has published")
    A("s_cmp_lg_u32 s2, %d" % EPOCH_WG)
    A("s_cbranch_scc1 L_fin")
    A("s_cmp_lg_u32 s%d, %d" % (sHW, NH - 1))
    A("s_cbranch_scc1 L_fin")
    A("s_mov_b64 exec, -1")
    for q in range(4):
        A("s_mov_b32 s%d, %d" % (sTMP + q, WS_Y + q * 64 * 512))
    A("s_mov_b32 s%d, %d" % (sSPIN, spin))
    LB("L_epoll")
    for q in range(4):
        A("buffer_load_dwordx4 v[%d:%d], v%d, s[%d:%d], s%d offen sc1" % (ya + 4 * q, ya + 4 * q + 3, rE, WSR, WSR + 3, sTMP + q))
    A("s_sub_u32 s%d, s%d, 1" % (sSPIN, sSPIN))
    A("s_cmp_eq_u32 s%d, 0" % sSPIN)
    A("s_cbranch_scc1 L_ego")
    A("s_waitcnt vmcnt(0)")
    for q in range(4):
        for r in range(4):
            A("v_xor_b32 v%d, s%d, v%d" % (ya + 4 * q + r, sT + r, ya + 4 * q + r))
    A("v_or3_b32 v%d, v%d, v%d, v%d" % (rT, ya, ya + 1, ya + 2))
    for k in range(3, 15, 2):
        A("v_or3_b32 v%d, v%d, v%d, v%d" % (rT, rT, ya + k, ya + k + 1))
    A("v_or_b32 v%d, v%d, v%d" % (rT, rT, ya + 15))
    A("v_and_b32 v%d, 0xff, v%d" % (rT, rT))
    A("v_cmp_ne_u32 vcc, 0, v%d" % rT)
    A("s_and_b64 exec, exec, vcc")
    A("s_cbranch_scc1 L_epoll")
    LB("L_ego")
    A("s_mov_b64 exec, 1")
    A("buffer_store_dword v%d, v%d, s[%d:%d], 0 offen" % (hU + 9, rO, WSR, WSR + 3))

    LB("L_fin")
    stamp_store()
    LB("L_end")
    A("s_endpgm")
    nv = max(vSL + 4 * LZ, 96 + 4 * NW, 136 + 4 * ok)
    nv = (nv + 7) // 8 * 8
    L.append('.section .rodata,"a"')
    L.append(".p2align 6")
    L.append(".amdhsa_kernel " + KN)
    L.append("  .amdhsa_next_free_vgpr %d" % nv)
    L.append("  .amdhsa_next_free_sgpr 96")
    L.append("  .amdhsa_accum_offset %d" % nv)
    L.append("  .amdhsa_group_segment_fixed_size 0")
    L.append("  .amdhsa_kernarg_size 64")
    L.append("  .amdhsa_user_sgpr_count 2")
    L.append("  .amdhsa_user_sgpr_kernarg_segment_ptr 1")
    L.append("  .amdhsa_system_sgpr_workgroup_id_x 1")
    L.append("  .amdhsa_float_denorm_mode_32 3")
    L.append(".end_amdhsa_kernel")
    return "\n".join(L) + "\n"


def parse(spec):
    kw = {}
    for x in spec.split(","):
        if not x:
            continue
        k, v = x.split("=")
        if k in ("mapping", "kflags", "wflags", "cstf"):
            kw[k] = v.replace("+", " ").replace("def", "")
        else:
            kw[k] = int(v, 0)
    return kw


if __name__ == "__main__":
    names = []
    for spec in sys.argv[1:]:
        name = "k_" + spec.replace(",", "_").replace("=", "") + ".s"
        open(name, "w").write(gen(**parse(spec)))
        names.append(name)
    print(" ".join(names))
```

```python
import sys, math

KN = "standalone__mha_block_cached__decode_kernel"

HEADER = """; Kernarg layout for this problem (64 bytes, ptrs only, base s[0:1]):
"""

WS_EPOCH = 0
WS_Q = 0x1000
WS_STAT = 0x40000
WS_O1 = 0x80000
WS_Y = 0x100000
WS_PROG = 0x60000
WS_XP = 0x68000
WS_QP = 0x200000
WS_USED = 0x400000
STAMP_BASE = 0x10000000
EPOCH_WG = 35

L_Q = 0
L_TAG = 512
L_STAT = 576
L_FLAG = 768
L_MODE = 784
L_O = 1024


def pat(l, nf):
    p8 = lambda f: sum(1 << j for j in range(8) if ((j + 1) * f) // 8 != (j * f) // 8)
    w = 0
    for k in range(nf):
        w |= p8(min(max(l - 8 * k, 0), 8)) << (8 * k)
    return w


def gen(NW=4, D=5, LZ=32, mapping="xg", inter=4, stamps=0, spin=1 << 16, kflags="nt", wflags="nt",
        slp1=0, slp2=0, qslp=0, diag=-1, dk=1, abl=0, rotc=0, rotg=0, gmap=0, roth=0, qtry=24, force_slow=0, pre=0, rk=1, rpad=0, ok=1, opad=0, ctl=0, Dl=4, Dh=7, lv0=12, gain=4, cslp=0, cper=4, cld='sc1', xg=0, xgain=4, margin=12, xa=6, wgain=4, pper=1, b3=1, dry=0, cpf=0, spt=3, sptm=0, pwm=0, pstat=0, sptg=64, qt=1):
    L = []
    def A(s): L.append("  " + s)
    def LB(s): L.append(s + ":")
    def C(s): L.append("  ; " + s)
    NH = 4
    N = 512 // NW
    NB = N // 16
    assert LZ % 16 == 0 and LZ >= 16 and D < 16
    LAG = Dh if ctl else D
    lab = [0]
    L_Y = L_O + NW * 1024
    L_PROG = L_Y + 2048
    lds = L_PROG + (NW * 256 if ctl == 1 else 0)
    NF = Dh - Dl
    assert NF <= 4
    L.append(HEADER.rstrip("\n"))
    L.append("; @launch grid=(256,1,1) block=(%d,1,1) lds=%d" % ((NW + NH) * 64, lds))
    L.append('.amdgcn_target "amdgcn-amd-amdhsa--gfx950"')
    L.append(".text")
    L.append(".globl " + KN)
    L.append(".p2align 8")
    L.append(".type %s,@function" % KN)
    LB(KN)

    sX, sK, sV, sWQ, sWO, sOUT, sDBG, sWS = 4, 6, 8, 10, 12, 14, 16, 18
    SRD = 20
    WSR = 24
    SR2 = 28
    sGRP, sC, sB, sH = 32, 33, 34, 35
    sBASE, sOFF, sIT = 36, 37, 38
    sT = 40
    sSEL = 44
    sM2, sM1 = 48, 50
    sF = 52
    sTMP = 60
    sSPIN = 68
    sCS = 69
    sST = 70
    sTAG = 86
    sEX = 88
    nstamp = [0]

    def stamp(k):
        if stamps or (diag >= 0 and k in (0, diag)):
            A("s_memrealtime s[%d:%d]" % (sST + 2 * k, sST + 2 * k + 1))

    def stamp_store():
        if not stamps:
            return
        for _ in range(3):
            A("s_sleep 127")
        A("s_mul_i32 s%d, s2, %d" % (sTMP, NW + NH))
        A("s_add_u32 s%d, s%d, s3" % (sTMP, sTMP))
        A("s_lshl_b32 s%d, s%d, 6" % (sTMP, sTMP))
        A("s_add_u32 s%d, s%d, %d" % (sTMP, sTMP, STAMP_BASE))
        A("s_mov_b32 s%d, 0x20000000" % (WSR + 2))
        A("s_waitcnt lgkmcnt(0)")
        A("s_mov_b64 exec, 1")
        A("v_mov_b32 v1, 0")
        for q in range(4):
            for r in range(4):
                A("v_mov_b32 v%d, s%d" % (4 + 4 * q + r, sST + 4 * q + r))
        for q in range(4):
            A("buffer_store_dwordx4 v[%d:%d], v1, s[%d:%d], s%d offen offset:%d" % (4 + 4 * q, 7 + 4 * q, WSR, WSR + 3, sTMP, 16 * q))

    if stamps:
        for k in range(1, 8):
            A("s_mov_b64 s[%d:%d], 0" % (sST + 2 * k, sST + 2 * k + 1))
    stamp(0)
    A("s_cmp_ge_u32 s2, 256")
    A("s_cbranch_scc1 L_end")
    A("s_load_dwordx16 s[4:19], s[0:1], 0")
    if cpf:
        C("pull this kernel's own code into L2: every workgroup of an XCD class touches a few lines")
        A("s_getpc_b64 s[92:93]")
        A("s_lshr_b32 s94, s2, 3")
        A("s_lshl_b32 s94, s94, 9")
        A("v_lshlrev_b32 v2, 7, v0")
        A("v_add_u32 v2, s94, v2")
        A("v_min_u32 v2, (L_end - %s - 256), v2" % KN)
        A("v_cmp_gt_u32 vcc, 4, v0")
        A("s_and_saveexec_b64 s[94:95], vcc")
        A("s_cbranch_execz L_nopf")
        A("global_load_dword v3, v2, s[92:93]")
        LB("L_nopf")
        A("s_mov_b64 exec, -1")
    A("v_lshrrev_b32 v1, 6, v0")
    A("v_and_b32 v0, 63, v0")
    A("v_readfirstlane_b32 s3, v1")
    if mapping == "lin":
        A("s_lshr_b32 s%d, s2, 3" % sGRP)
        A("s_and_b32 s%d, s2, 7" % sC)
    elif gmap == 0:
        A("s_lshr_b32 s%d, s2, 3" % sTMP)
        A("s_and_b32 s%d, s%d, 7" % (sC, sTMP))
        A("s_and_b32 s%d, s%d, 24" % (sTMP, sTMP))
        A("s_and_b32 s%d, s2, 7" % sGRP)
        A("s_or_b32 s%d, s%d, s%d" % (sGRP, sGRP, sTMP))
    else:
        A("s_and_b32 s%d, s2, 31" % sGRP)
        A("s_lshr_b32 s%d, s2, 5" % sC)
    A("s_mov_b32 s%d, 0x20000" % (SRD + 3))
    A("s_mov_b32 s%d, 0x20000" % (WSR + 3))
    A("s_mov_b32 s%d, 0x20000" % (SR2 + 3))
    A("s_mov_b32 s%d, %d" % (WSR + 2, WS_USED))
    A("s_cmp_ge_u32 s3, %d" % NW)
    A("s_cbranch_scc1 L_helper")

    vOFF = 0
    vQ = 4
    vMK = 8
    vA = 12
    vO = 16
    vT = 20
    vS = 36
    vU = 44
    vLANE = 52
    vSL = 64
    def slot(i): return vSL + 4 * i
    A("v_mov_b32 v%d, v0" % vLANE)
    A("v_lshlrev_b32 v%d, 4, v0" % vOFF)
    GI = 8 if inter == 1 else max(inter, 1)
    if inter == -1: GI = 1
    lgi = int(math.log2(GI))
    span = GI * 512 * 1024
    stride = GI * NW * 4096
    sREG, sPH = 87, 39
    A("s_lshl_b32 s%d, s%d, 22" % (sREG, sGRP))
    A("s_lshr_b32 s%d, s%d, %d" % (sTMP, sC, lgi))
    A("s_mul_i32 s%d, s%d, %d" % (sTMP, sTMP, span))
    A("s_add_u32 s%d, s%d, s%d" % (sREG, sREG, sTMP))
    A("s_and_b32 s%d, s%d, %d" % (sTMP, sC, GI - 1))
    A("s_mul_i32 s%d, s%d, %d" % (sBASE, sTMP, NW * 4096))
    A("s_lshl_b32 s%d, s3, 12" % sTMP)
    A("s_add_u32 s%d, s%d, s%d" % (sBASE, sBASE, sTMP))
    ROT = rotc or rotg or roth
    if ROT:
        A("s_mul_i32 s%d, s%d, %d" % (sTMP, sC, rotc * stride))
        A("s_add_u32 s%d, s%d, s%d" % (sBASE, sBASE, sTMP))
        A("s_mul_i32 s%d, s%d, %d" % (sTMP, sGRP, rotg * stride))
        A("s_add_u32 s%d, s%d, s%d" % (sBASE, sBASE, sTMP))
        if roth:
            A("s_lshr_b32 s%d, s%d, %d" % (sTMP, sC, lgi))
            A("s_mul_i32 s%d, s%d, %d" % (sTMP, sTMP, roth * stride))
            A("s_add_u32 s%d, s%d, s%d" % (sBASE, sBASE, sTMP))
        A("s_and_b32 s%d, s%d, %d" % (sBASE, sBASE, span - 1))
        A("s_mov_b32 s%d, s%d" % (sPH, sBASE))
    A("s_add_u32 s%d, s%d, s%d" % (sBASE, sBASE, sREG))
    A("s_mov_b32 s%d, s%d" % (sOFF, sBASE))
    def advance():
        if ROT:
            A("s_add_u32 s%d, s%d, %d" % (sPH, sPH, stride))
            A("s_and_b32 s%d, s%d, %d" % (sPH, sPH, span - 1))
            A("s_add_u32 s%d, s%d, s%d" % (sOFF, sPH, sREG))
        else:
            A("s_add_u32 s%d, s%d, %d" % (sOFF, sOFF, stride))
    A("s_mov_b32 s%d, 0x8000000" % (SRD + 2))
    A("s_waitcnt lgkmcnt(0)")
    A("s_mov_b32 s%d, s%d" % (SRD, sK))
    A("s_mov_b32 s%d, s%d" % (SRD + 1, sK + 1))

    def issue(idx, sl, adv=True):
        if adv and idx % 4 == 0:
            advance()
        A("buffer_load_dwordx4 v[%d:%d], v%d, s[%d:%d], s%d offen offset:%d %s" %
          (slot(sl), slot(sl) + 3, vOFF, SRD, SRD + 3, sOFF, (idx % 4) * 1024, kflags))

    C("phase P: paced fill of the landing zone")
    for i in range(D):
        issue(i, i, adv=(i > 0))
    A("s_barrier")
    A("s_mov_b32 s%d, s%d" % (WSR, sWS))
    A("s_mov_b32 s%d, s%d" % (WSR + 1, sWS + 1))
    A("s_mov_b32 s%d, 0xcccccccc" % sM2)
    A("s_mov_b32 s%d, 0xcccccccc" % (sM2 + 1))
    A("s_mov_b32 s%d, 0xaaaaaaaa" % sM1)
    A("s_mov_b32 s%d, 0xaaaaaaaa" % (sM1 + 1))
    A("s_mov_b32 s%d, 0x3db8aa3b" % sCS)
    A("v_lshrrev_b32 v%d, 3, v%d" % (vU, vLANE))
    A("v_lshrrev_b32 v%d, 4, v%d" % (vU + 1, vLANE))
    A("v_xor_b32 v%d, v%d, v%d" % (vU, vU, vU + 1))
    A("v_and_b32 v%d, 1, v%d" % (vU, vU))
    A("v_lshlrev_b32 v%d, 2, v%d" % (vU, vU))
    A("v_bfe_u32 v%d, v%d, 1, 2" % (vU + 1, vLANE))
    A("v_or_b32 v%d, v%d, v%d" % (vU, vU, vU + 1))
    A("v_and_b32 v%d, 1, v%d" % (vU + 1, vLANE))
    A("v_lshlrev_b32 v%d, 4, v%d" % (vU + 1, vU + 1))
    A("v_mov_b32 v%d, 0xffff" % (vU + 2))
    A("v_lshlrev_b32 v%d, v%d, v%d" % (vU + 2, vU + 1, vU + 2))
    for r in range(4):
        A("v_cmp_eq_u32 vcc, %d, v%d" % (r, vU))
        A("v_mov_b32 v%d, 0" % (vO + r))
        A("s_nop 0")
        A("v_cndmask_b32 v%d, 0, v%d, vcc" % (vMK + r, vU + 2))
    A("v_and_b32 v%d, 31, v%d" % (vU + 3, vLANE))
    A("v_lshlrev_b32 v%d, 4, v%d" % (vU + 3, vU + 3))
    A("v_mov_b32 v%d, 0" % (vU + 4))
    for i in range(D, LZ):
        A("s_waitcnt vmcnt(%d)" % (D - 1))
        issue(i, i)
    stamp(1)
    A("s_mov_b32 s%d, %d" % (sSPIN, spin * 16))
    LB("L_qwait")
    A("ds_read_b32 v%d, v%d offset:%d" % (vU + 5, vU + 4, L_FLAG))
    A("ds_read_b128 v[%d:%d], v%d offset:%d" % (vQ, vQ + 3, vU + 3, L_Q))
    A("s_sub_u32 s%d, s%d, 1" % (sSPIN, sSPIN))
    A("s_cmp_eq_u32 s%d, 0" % sSPIN)
    A("s_waitcnt lgkmcnt(0)")
    A("s_cbranch_scc1 L_qok")
    A("v_cmp_eq_u32 vcc, 0, v%d" % (vU + 5))
    A("s_cbranch_vccnz L_qwait")
    LB("L_qok")
    stamp(2)

    def kdot(sl, n):
        b = slot(sl)
        A("v_dot2_f32_bf16 v%d, v%d, v%d, 0" % (vT + n, b, vQ))
        for r in range(1, 4):
            A("v_dot2_f32_bf16 v%d, v%d, v%d, v%d" % (vT + n, b + r, vQ + r, vT + n))

    def kreduce():
        t = lambda n: vT + n
        for k in range(NB - 1):
            A("v_mov_b32 v%d, v%d" % (vS + k, vS + k + 1))
        for n in range(8):
            A("v_add_f32_dpp v%d, v%d, v%d row_ror:8 row_mask:0xf bank_mask:0x3" % (t(n), t(n), t(n)))
        for n in range(8):
            A("v_add_f32_dpp v%d, v%d, v%d row_ror:8 row_mask:0xf bank_mask:0xc" % (t(n), t(n + 8), t(n + 8)))
        for n in range(4):
            A("v_add_f32_dpp v%d, v%d, v%d row_half_mirror row_mask:0xf bank_mask:0x5" % (t(n), t(n), t(n)))
        for n in range(4):
            A("v_add_f32_dpp v%d, v%d, v%d row_half_mirror row_mask:0xf bank_mask:0xa" % (t(n), t(n + 4), t(n + 4)))
        A("v_cndmask_b32 v%d, v%d, v%d, s[%d:%d]" % (t(9), t(2), t(0), sM2, sM2 + 1))
        A("v_cndmask_b32 v%d, v%d, v%d, s[%d:%d]" % (t(11), t(3), t(1), sM2, sM2 + 1))
        A("v_cndmask_b32 v%d, v%d, v%d, s[%d:%d]" % (t(8), t(0), t(2), sM2, sM2 + 1))
        A("v_cndmask_b32 v%d, v%d, v%d, s[%d:%d]" % (t(10), t(1), t(3), sM2, sM2 + 1))
        A("s_nop 0")
        A("v_add_f32_dpp v%d, v%d, v%d quad_perm:[2,3,0,1] row_mask:0xf bank_mask:0xf" % (t(0), t(9), t(8)))
        A("v_add_f32_dpp v%d, v%d, v%d quad_perm:[2,3,0,1] row_mask:0xf bank_mask:0xf" % (t(1), t(11), t(10)))
        A("v_cndmask_b32 v%d, v%d, v%d, s[%d:%d]" % (t(9), t(1), t(0), sM1, sM1 + 1))
        A("v_cndmask_b32 v%d, v%d, v%d, s[%d:%d]" % (t(8), t(0), t(1), sM1, sM1 + 1))
        A("s_nop 1")
        A("v_add_f32_dpp v%d, v%d, v%d quad_perm:[1,0,3,2] row_mask:0xf bank_mask:0xf" % (t(0), t(9), t(8)))
        A("v_mov_b32 v%d, v%d" % (t(1), t(0)))
        A("s_nop 1")
        A("v_permlane16_swap_b32 v%d, v%d" % (t(0), t(1)))
        A("v_add_f32 v%d, v%d, v%d" % (t(0), t(0), t(1)))
        A("v_cvt_pk_bf16_f32 v%d, v%d, v%d" % (t(0), t(0), t(0)))
        A("v_and_b32 v%d, 0xffff0000, v%d" % (vS + NB - 1, t(0)))

    sMODE = 90
    vMODE, vCNT, vPA, vMA = 53, 54, 55, 56
    def pace(j):
        if ctl:
            lab[0] += 1
            for k in range(NF - 1, -1, -1):
                A("s_bitcmp1_b32 s%d, %d" % (sMODE, 8 * k + j % 8))
                A("s_cbranch_scc1 L_p%d_%d" % (lab[0], k))
            A("s_waitcnt vmcnt(%d)" % (Dl - 1))
            for k in range(NF):
                LB("L_p%d_%d" % (lab[0], k))
                A("s_waitcnt vmcnt(%d)" % (Dl + k))
        else:
            A("s_waitcnt vmcnt(%d)" % (LAG - 1))

    def progress(j):
        if ctl == 1 and j % pper == pper - 1:
            A("v_add_u32 v%d, %d, v%d" % (vCNT, pper, vCNT))
            A("ds_write_b32 v%d, v%d offset:%d" % (vPA, vCNT, L_PROG))

    def checkpoint(last_hi=False):
        if ctl == 1:
            A("s_waitcnt lgkmcnt(0)")
            A("v_readfirstlane_b32 s%d, v%d" % (sMODE, vMODE))
            A("ds_read_b32 v%d, v%d offset:%d" % (vMODE, vMA, L_MODE))
        if ctl and last_hi:
            A("s_cmp_eq_u32 s%d, 1" % sIT)
            A("s_cselect_b32 s%d, -1, s%d" % (sMODE, sMODE))

    C("catch-up: consume the landing zone, keep D loads in flight")
    if ctl:
        A("s_mov_b32 s%d, 0x%x" % (sMODE, pat(lv0, NF)))
        A("v_mov_b32 v%d, 0" % vCNT)
        A("s_lshl_b32 s%d, s3, 8" % sTMP)
        A("v_lshl_add_u32 v%d, v%d, 2, s%d" % (vPA, vLANE, sTMP))
        A("s_lshl_b32 s%d, s3, 2" % sTMP)
        A("v_mov_b32 v%d, s%d" % (vMA, sTMP))
        A("v_mov_b32 v%d, s%d" % (vMODE, sMODE))
    free = LZ - D
    pts = []
    for e in range(LAG):
        p = max(e, int(round((e + 0.5) * free / LAG)) - 1)
        p = min(p, free - 1 + e, LZ - 1)
        pts.append(p)
    assert LZ + LAG <= N
    for j in range(LZ):
        kdot(j, j % 16)
        for e in range(LAG):
            if pts[e] == j:
                A("s_waitcnt vmcnt(%d)" % (D - 1))
                issue(LZ + e, e)
        if j % 16 == 15:
            kreduce()
    for e in range(LAG):
        assert e <= pts[e] < free + e, (pts, free)

    C("steady K loop")
    nit = (N - LZ) // 16
    A("s_mov_b32 s%d, %d" % (sIT, nit))
    LB("L_kloop")
    for j in range(16):
        if j % cper == 0:
            checkpoint()
        pace(j)
        if (j + LAG) % 16 == 0:
            advance()
            A("s_cmp_eq_u32 s%d, 1" % sIT)
            A("s_cselect_b32 s%d, s%d, s%d" % (SRD, sV, SRD))
            A("s_cselect_b32 s%d, s%d, s%d" % (SRD + 1, sV + 1, SRD + 1))
            A("s_cselect_b32 s%d, s%d, s%d" % (sOFF, sBASE, sOFF))
            issue(j + LAG, (j + LAG) % 16, adv=False)
        else:
            issue(j + LAG, (j + LAG) % 16)
        progress(j)
        kdot(j, j)
    kreduce()
    A("s_sub_u32 s%d, s%d, 1" % (sIT, sIT))
    A("s_cmp_lg_u32 s%d, 0" % sIT)
    A("s_cbranch_scc1 L_kloop")

    C("softmax over this wave's keys")
    stamp(3)
    m = vU
    A("v_max3_f32 v%d, v%d, v%d, v%d" % (m, vS, vS + 1, vS + 2))
    k = 3
    while k + 1 < NB:
        A("v_max3_f32 v%d, v%d, v%d, v%d" % (m, m, vS + k, vS + k + 1))
        k += 2
    if k < NB:
        A("v_max_f32 v%d, v%d, v%d" % (m, m, vS + k))
    def allreduce(op, r, tmp, half=True):
        for c_ in ("quad_perm:[1,0,3,2]", "quad_perm:[2,3,0,1]", "row_half_mirror", "row_mirror"):
            A("s_nop 1")
            A("%s_dpp v%d, v%d, v%d %s row_mask:0xf bank_mask:0xf" % (op, r, r, r, c_))
        if half:
            A("v_mov_b32 v%d, v%d" % (tmp, r))
            A("s_nop 1")
            A("v_permlane32_swap_b32 v%d, v%d" % (r, tmp))
            A("%s v%d, v%d, v%d" % (op, r, r, tmp))
    allreduce("v_max_f32", m, vU + 1)
    A("v_mul_f32 v%d, s%d, v%d" % (vU + 4, sCS, m))
    for k in range(NB):
        A("v_fma_f32 v%d, v%d, s%d, -v%d" % (vS + k, vS + k, sCS, vU + 4))
    for k in range(NB):
        A("v_exp_f32 v%d, v%d" % (vS + k, vS + k))
    l = vU + 5
    A("v_add_f32 v%d, v%d, v%d" % (l, vS, vS + 1))
    for k in range(2, NB):
        A("v_add_f32 v%d, v%d, v%d" % (l, l, vS + k))
    for k in range(NB):
        A("v_cvt_pk_bf16_f32 v%d, v%d, v%d" % (vS + k, vS + k, vS + k))
    allreduce("v_add_f32", l, vU + 1)
    A("v_mov_b32 v%d, 1" % (vU + 6))
    A("v_mov_b32 v%d, 1" % (vU + 7))
    A("s_lshl_b32 s%d, s3, 4" % sTMP)
    A("v_mov_b32 v%d, s%d" % (vU + 1, sTMP))
    A("ds_write_b128 v%d, v[%d:%d] offset:%d" % (vU + 1, vU + 4, vU + 7, L_STAT))

    C("V loop")
    A("s_mov_b32 s%d, %d" % (sIT, NB))
    LB("L_vloop")
    for j in range(16):
        if j % cper == 0:
            checkpoint(last_hi=(j + cper > 16 - LAG))
        for r in range(4):
            A("v_and_b32_dpp v%d, v%d, v%d row_newbcast:%d row_mask:0xf bank_mask:0xf" % (vA + r, vS, vMK + r, j))
        pace(j)
        if (j + LAG) % 16 == 0:
            advance()
            A("s_cmp_eq_u32 s%d, 1" % sIT)
            A("s_cselect_b32 s%d, 0x10000000, s%d" % (sOFF, sOFF))
            if ROT:
                A("s_cselect_b32 s%d, 0x10000000, s%d" % (sREG, sREG))
            issue(j + LAG, (j + LAG) % 16, adv=False)
        else:
            issue(j + LAG, (j + LAG) % 16)
        A("v_mfma_f32_16x16x32_bf16 v[%d:%d], v[%d:%d], v[%d:%d], v[%d:%d]" %
          (vO, vO + 3, vA, vA + 3, slot(j), slot(j) + 3, vO, vO + 3))
        progress(j)
    for k in range(NB - 1):
        A("v_mov_b32 v%d, v%d" % (vS + k, vS + k + 1))
    A("s_sub_u32 s%d, s%d, 1" % (sIT, sIT))
    A("s_cmp_lg_u32 s%d, 0" % sIT)
    A("s_cbranch_scc1 L_vloop")
    A("s_lshl_b32 s%d, s3, 10" % sTMP)
    A("v_add_u32 v%d, s%d, v%d" % (vU, sTMP, vOFF))
    pad = 8 - (NB - 1) - 3 - 2
    if pad > 0:
        A("s_nop %d" % (pad - 1))
    A("ds_write_b128 v%d, v[%d:%d] offset:%d" % (vU, vO, vO + 3, L_O))
    A("s_waitcnt lgkmcnt(0)")
    stamp(4)
    A("s_barrier")
    if b3:
        A("s_barrier")
    A("s_branch L_fin")

    LB("L_helper")
    hL = 0
    hG, hJ = 1, 2
    hU = 4
    hX = 16
    hSEL = 32
    hA = 36
    hD = 40
    hMK = 44
    hP = 48
    hW = 64
    sHW = 39
    A("s_sub_u32 s%d, s3, %d" % (sHW, NW))
    sDRY = 91
    A("s_mov_b32 s%d, 0" % sDRY)
    A("v_lshrrev_b32 v%d, 4, v%d" % (hG, hL))
    A("v_and_b32 v%d, 15, v%d" % (hJ, hL))
    A("s_lshr_b32 s%d, s%d, 4" % (sB, sGRP))
    A("s_and_b32 s%d, s%d, 15" % (sH, sGRP))
    A("s_mov_b32 s%d, %d" % (SRD + 2, 448 * 8192))
    for r in range(4):
        A("s_mov_b32 s%d, 0x%08x" % (sSEL + r, 0x07060500 | r))
    A("s_cmp_lg_u32 s%d, 0" % sHW)
    A("s_cbranch_scc1 L_h_other")

    C("helper 0: one 112-row x 64-column tile of q = x @ wq for this head, both batches")
    sTILE, sRQ, sCSL, sQW, sQR, sSAME, sQT = 87, sTMP + 1, sTMP + 2, 94, 95, 89, sF
    A("v_mov_b32 v%d, 0" % (hU + 10))
    A("v_lshlrev_b32 v%d, 2, v%d" % (hU + 5, hL))
    A("ds_write_b32 v%d, v%d offset:%d" % (hU + 5, hU + 10, L_STAT))
    A("v_mul_u32_u24 v%d, %d, v%d" % (hU, 28 * 8192, hG))
    A("v_lshl_add_u32 v%d, v%d, 3, v%d" % (hU, hJ, hU))
    A("v_bfe_u32 v%d, v%d, 2, 1" % (hU + 1, hL))
    A("v_mul_u32_u24 v%d, 896, v%d" % (hU + 1, hU + 1))
    A("v_mul_u32_u24 v%d, 56, v%d" % (hU + 2, hG))
    A("v_add_u32 v%d, v%d, v%d" % (hU + 1, hU + 1, hU + 2))
    A("s_lshl_b32 s%d, s%d, 3" % (sTILE, sB))
    A("s_add_u32 s%d, s%d, s%d" % (sTILE, sTILE, sC))
    A("s_lshl_b32 s%d, s%d, 13" % (sQW, sH))
    A("s_add_u32 s%d, s%d, %d" % (sQW, sQW, WS_Q))
    A("s_mov_b32 s%d, 1" % sSAME)
    A("s_mov_b32 s%d, 1792" % (SR2 + 2))
    A("s_getreg_b32 s%d, hwreg(HW_REG_XCC_ID, 0, 4)" % (sTMP + 3))
    A("s_waitcnt lgkmcnt(0)")
    A("s_load_dword s%d, s[%d:%d], %d" % (sTAG, sWS, sWS + 1, WS_EPOCH))
    A("s_mov_b32 s%d, s%d" % (SR2, sX))
    A("s_mov_b32 s%d, s%d" % (SR2 + 1, sX + 1))
    A("s_mov_b32 s%d, s%d" % (SRD, sWQ))
    A("s_mov_b32 s%d, s%d" % (SRD + 1, sWQ + 1))
    A("s_mov_b32 s%d, s%d" % (WSR, sWS))
    A("s_mov_b32 s%d, s%d" % (WSR + 1, sWS + 1))
    LB("L_tile")
    A("s_lshr_b32 s%d, s%d, 2" % (sRQ, sTILE))
    A("s_and_b32 s%d, s%d, 3" % (sCSL, sTILE))
    A("s_mul_i32 s%d, s%d, %d" % (sOFF, sRQ, 112 * 8192))
    A("s_lshl_b32 s%d, s%d, 9" % (sIT, sH))
    A("s_add_u32 s%d, s%d, s%d" % (sOFF, sOFF, sIT))
    A("s_lshl_b32 s%d, s%d, 7" % (sIT, sCSL))
    A("s_add_u32 s%d, s%d, s%d" % (sOFF, sOFF, sIT))
    A("s_mul_i32 s%d, s%d, 224" % (sBASE, sRQ))
    for q in range(3):
        A("buffer_load_dwordx4 v[%d:%d], v%d, s[%d:%d], s%d offen offset:%d" % (hX + 4 * q, hX + 4 * q + 3, hU + 1, SR2, SR2 + 3, sBASE, 16 * q))
    A("buffer_load_dwordx2 v[%d:%d], v%d, s[%d:%d], s%d offen offset:48" % (hX + 12, hX + 13, hU + 1, SR2, SR2 + 3, sBASE))
    for n in range(28 if not abl & 16 else 0):
        A("buffer_load_dwordx2 v[%d:%d], v%d, s[%d:%d], s%d offen %s" % (hW + 2 * n, hW + 2 * n + 1, hU, SRD, SRD + 3, sOFF, wflags))
        if n < 27:
            A("s_add_u32 s%d, s%d, 8192" % (sOFF, sOFF))
    A("s_cmp_eq_u32 s%d, 0" % sSAME)
    A("s_cbranch_scc1 L_tile_go")
    C("first pass only: B0 and one-time set-up")
    A("s_barrier")
    A("v_and_b32 v%d, 1, v%d" % (hU + 2, hL))
    A("v_lshlrev_b32 v%d, 4, v%d" % (hU + 2, hU + 2))
    A("v_bfe_u32 v%d, v%d, 1, 1" % (hU + 3, hL))
    A("v_bfe_u32 v%d, v%d, 3, 1" % (hU + 4, hL))
    A("v_lshl_add_u32 v%d, v%d, 1, v%d" % (hU + 3, hU + 4, hU + 3))
    A("v_mov_b32 v%d, 0x0c0c0c0c" % (hU + 6))
    for par, src in ((0, 0x0100), (1, 0x0302)):
        A("v_mov_b32 v%d, 0x%x" % (hU + 4, src ^ 0x0c0c))
        A("v_lshlrev_b32 v%d, v%d, v%d" % (hU + 4, hU + 2, hU + 4))
        A("v_xor_b32 v%d, v%d, v%d" % (hU + 4, hU + 6, hU + 4))
        for r in range(2):
            A("v_cmp_eq_u32 vcc, %d, v%d" % (r, hU + 3))
            A("s_nop 1")
            A("v_cndmask_b32 v%d, v%d, v%d, vcc" % (hSEL + 2 * par + r, hU + 6, hU + 4))
    A("s_waitcnt lgkmcnt(0)")
    A("s_add_u32 s%d, s%d, 0x01011001" % (sTAG, sTAG))
    A("v_mov_b32 v%d, s%d" % (hU + 9, sTAG))
    A("ds_write_b32 v%d, v%d offset:%d" % (hU + 10, hU + 9, L_TAG))
    if ctl == 1:
        A("v_mov_b32 v%d, 0x%x" % (hU + 4, pat(lv0, NF)))
        A("v_and_b32 v%d, %d, v%d" % (hU + 3, NW - 1, hL))
        A("v_lshlrev_b32 v%d, 2, v%d" % (hU + 2, hU + 3))
        A("ds_write_b32 v%d, v%d offset:%d" % (hU + 2, hU + 4, L_MODE))
        A("v_lshlrev_b32 v%d, 8, v%d" % (hU + 3, hU + 3))
        A("ds_write_b32 v%d, v%d offset:%d" % (hU + 3, hU + 10, L_PROG))
    for r in range(4):
        A("s_bfe_u32 s%d, s%d, 0x%x" % (sT + r, sTAG, 0x80000 | (8 * r)))
    C("q tiles carry the producer's XCC id in their tag: accepting one proves a shared L2")
    A("s_lshl_b32 s%d, s%d, 8" % (sIT, sTMP + 3))
    A("s_xor_b32 s%d, s%d, s%d" % (sIT, sIT, sTAG))
    A("v_mov_b32 v%d, s%d" % (hU + 6, sIT))
    for r in range(4):
        A("s_bfe_u32 s%d, s%d, 0x%x" % (sQT + r, sIT, 0x80000 | (8 * r)))
    LB("L_tile_go")
    for r in range(4):
        A("v_mov_b32 v%d, 0" % (hD + r))
    A("s_lshl_b32 s%d, s%d, 8" % (sOFF, sTILE))
    A("s_add_u32 s%d, s%d, s%d" % (sOFF, sOFF, sQW))
    A("v_lshlrev_b32 v%d, 12, v%d" % (hU + 7, hG))
    A("v_lshl_add_u32 v%d, v%d, 4, v%d" % (hU + 7, hJ, hU + 7))
    A("s_lshl_b32 s%d, s%d, 12" % (sQR, sB))
    A("s_add_u32 s%d, s%d, s%d" % (sQR, sQR, sQW))
    A("v_lshlrev_b32 v%d, 4, v%d" % (hU + 8, hL))
    PW = 1 if pre & 1 else 0
    if PW:
        C("allocate the tile's lines in L2 with a not-yet-valid tag so early polls do not miss to memory")
        A("v_not_b32 v%d, v%d" % (hP + 4, hU + 6))
        for r in range(4):
            A("v_perm_b32 v%d, v%d, v%d, s%d" % (hP + r, hP + 4, hP + 4, sSEL + r))
        A("s_mov_b32 exec_hi, 0")
        A("buffer_store_dwordx4 v[%d:%d], v%d, s[%d:%d], s%d offen" % (hP, hP + 3, hU + 7, WSR, WSR + 3, sOFF))
        A("s_mov_b32 exec_hi, -1")
    A("s_waitcnt vmcnt(%d)" % (28 + PW))
    for n in range(28):
        a = hA + 2 * (n & 1)
        for r in range(2):
            A("v_perm_b32 v%d, v%d, v%d, v%d" % (a + r, hX + (n >> 1), hX + (n >> 1), hSEL + 2 * (n & 1) + r))
        A("s_waitcnt vmcnt(%d)" % (27 - n + PW))
        A("s_nop 0")
        A("v_mfma_f32_16x16x16_bf16 v[%d:%d], v[%d:%d], v[%d:%d], v[%d:%d]" %
          (hD, hD + 3, a, a + 1, hW + 2 * n, hW + 2 * n + 1, hD, hD + 3))
    A("s_nop 7")
    for r in range(4):
        A("v_perm_b32 v%d, v%d, v%d, s%d" % (hMK + r, hD + r, hU + 6, sSEL + r))
    A("s_mov_b32 exec_hi, 0")
    if not abl & 2:
        A("buffer_store_dwordx4 v[%d:%d], v%d, s[%d:%d], s%d offen" % (hMK, hMK + 3, hU + 7, WSR, WSR + 3, sOFF))
    A("s_mov_b32 exec_hi, -1")
    stamp(1)
    A("s_mov_b32 s%d, %d" % (sSPIN, qtry))
    A("s_cmp_lg_u32 s%d, 0" % sSAME)
    A("s_cbranch_scc1 L_qpoll0")
    A("s_waitcnt vmcnt(0)")
    A("s_add_u32 s%d, s%d, 1" % (sTILE, sTILE))
    A("s_cmp_lt_u32 s%d, 16" % sTILE)
    A("s_cbranch_scc1 L_tile")
    A("s_mov_b32 s%d, %d" % (sSPIN, spin))
    LB("L_qpoll0")
    if abl & 1:
        A("s_branch L_qgo")
    if force_slow:
        A("s_cmp_lg_u32 s%d, 0" % sSAME)
        A("s_cbranch_scc1 L_qfail")
    LB("L_qpoll")
    if qslp:
        A("s_sleep %d" % qslp)
    for q in range(4):
        A("buffer_load_dwordx4 v[%d:%d], v%d, s[%d:%d], s%d offen offset:%d sc1" % (hP + 4 * q, hP + 4 * q + 3, hU + 8, WSR, WSR + 3, sQR, 1024 * q))
    A("s_waitcnt vmcnt(0)")
    for q in range(4):
        for r in range(4):
            A("v_xor_b32 v%d, s%d, v%d" % (hP + 4 * q + r, sQT + r, hP + 4 * q + r))
    A("v_or3_b32 v%d, v%d, v%d, v%d" % (hU + 11, hP, hP + 1, hP + 2))
    for k in range(3, 15, 2):
        A("v_or3_b32 v%d, v%d, v%d, v%d" % (hU + 11, hU + 11, hP + k, hP + k + 1))
    A("v_or_b32 v%d, v%d, v%d" % (hU + 11, hU + 11, hP + 15))
    A("v_and_b32 v%d, 0xff, v%d" % (hU + 11, hU + 11))
    A("v_cmp_ne_u32 vcc, 0, v%d" % (hU + 11))
    A("s_cbranch_vccz L_qgo")
    A("s_sub_u32 s%d, s%d, 1" % (sSPIN, sSPIN))
    A("s_cmp_lg_u32 s%d, 0" % sSPIN)
    A("s_cbranch_scc1 L_qpoll")
    A("s_cmp_eq_u32 s%d, 0" % sSAME)
    A("s_cbranch_scc1 L_qgo")
    LB("L_qfail")
    C("some producer of this head is not behind our L2 (or is very late): compute all 16 tiles here")
    A("s_mov_b32 s%d, 0" % sSAME)
    A("s_mov_b32 s%d, 0" % sTILE)
    A("s_lshl_b32 s%d, s2, 13" % sQW)
    A("s_add_u32 s%d, s%d, %d" % (sQW, sQW, WS_QP))
    A("s_branch L_tile")
    LB("L_qgo")
    for r in range(4):
        A("v_add_f32 v%d, v%d, v%d" % (hP + r, hP + r, hP + 4 + r))
        A("v_add_f32 v%d, v%d, v%d" % (hP + 8 + r, hP + 8 + r, hP + 12 + r))
    for r in range(4):
        A("v_add_f32 v%d, v%d, v%d" % (hP + r, hP + r, hP + 8 + r))
    A("v_cvt_pk_bf16_f32 v%d, v%d, v%d" % (hP, hP, hP + 1))
    A("v_cvt_pk_bf16_f32 v%d, v%d, v%d" % (hP + 1, hP + 2, hP + 3))
    A("v_lshlrev_b32 v%d, 3, v%d" % (hU + 11, hL))
    A("v_mov_b32 v%d, 1" % (hP + 2))
    A("ds_write_b64 v%d, v[%d:%d] offset:%d" % (hU + 11, hP, hP + 1, L_Q))
    A("s_waitcnt lgkmcnt(0)")
    A("ds_write_b32 v%d, v%d offset:%d" % (hU + 10, hP + 2, L_FLAG))
    stamp(2)
    A("s_branch L_h_common")

    LB("L_h_other")
    A("v_mov_b32 v%d, 0" % (hU + 10))
    A("s_mov_b32 s%d, 0" % sSAME)
    A("s_waitcnt lgkmcnt(0)")
    A("s_mov_b32 s%d, s%d" % (WSR, sWS))
    A("s_mov_b32 s%d, s%d" % (WSR + 1, sWS + 1))
    if qt:
        C("helper 1 reads this workgroup's q-tile and statistics lines once (scalar path) so later polls hit L2")
        A("s_cmp_lg_u32 s%d, 1" % sHW)
        A("s_cbranch_scc1 L_noqt")
        A("s_lshl_b32 s%d, s%d, 3" % (sIT, sB))
        A("s_add_u32 s%d, s%d, s%d" % (sIT, sIT, sC))
        A("s_lshl_b32 s%d, s%d, 8" % (sIT, sIT))
        A("s_lshl_b32 s%d, s%d, 13" % (sOFF, sH))
        A("s_add_u32 s%d, s%d, s%d" % (sIT, sIT, sOFF))
        A("s_add_u32 s%d, s%d, s%d" % (sTMP, sWS, sIT))
        A("s_addc_u32 s%d, s%d, 0" % (sTMP + 1, sWS + 1))
        for k in range(8):
            A("s_load_dword s%d, s[%d:%d], %d" % (sF + k, sTMP, sTMP + 1, WS_Q + (k >> 2) * 4096 + (k & 3) * 64))
        A("s_lshl_b32 s%d, s%d, 3" % (sIT, sGRP))
        A("s_add_u32 s%d, s%d, s%d" % (sIT, sIT, sC))
        A("s_lshl_b32 s%d, s%d, 7" % (sIT, sIT))
        A("s_add_u32 s%d, s%d, s%d" % (sTMP + 2, sWS, sIT))
        A("s_addc_u32 s%d, s%d, 0" % (sTMP + 3, sWS + 1))
        for k in range(2):
            A("s_load_dword s%d, s[%d:%d], %d" % (sTMP + 4 + k, sTMP + 2, sTMP + 3, WS_STAT + k * 64))
        LB("L_noqt")
    A("s_barrier")
    A("s_mov_b32 s%d, %d" % (sSPIN, spin * 4))
    LB("L_hwait")
    A("s_sleep 8")
    A("ds_read_b32 v%d, v%d offset:%d" % (hU + 8, hU + 10, L_FLAG))
    A("ds_read_b32 v%d, v%d offset:%d" % (hU + 9, hU + 10, L_TAG))
    A("s_sub_u32 s%d, s%d, 1" % (sSPIN, sSPIN))
    A("s_cmp_eq_u32 s%d, 0" % sSPIN)
    A("s_waitcnt lgkmcnt(0)")
    A("s_cbranch_scc1 L_hok")
    A("v_cmp_eq_u32 vcc, 0, v%d" % (hU + 8))
    A("s_cbranch_vccnz L_hwait")
    LB("L_hok")
    A("v_readfirstlane_b32 s%d, v%d" % (sTAG, hU + 9))
    A("s_nop 0")
    for r in range(4):
        A("s_bfe_u32 s%d, s%d, 0x%x" % (sT + r, sTAG, 0x80000 | (8 * r)))

    LB("L_h_common")
    C("prefetch this wave's wo fragment: rows h*256+128*(c>>2)+64*(hw&1)+4*(hw>>1)+8n+(g>>1)+2(g&1), cols 112*(c&3) + 8*min(j,13)")
    sSL, sCB = sTMP, sTMP + 1
    A("s_mov_b32 s%d, s%d" % (SRD, sWO))
    A("s_mov_b32 s%d, s%d" % (SRD + 1, sWO + 1))
    A("v_min_u32 v%d, 13, v%d" % (hU, hJ))
    A("v_lshlrev_b32 v%d, 4, v%d" % (hU, hU))
    A("v_lshrrev_b32 v%d, 1, v%d" % (hU + 1, hG))
    A("v_and_b32 v%d, 1, v%d" % (hU + 2, hG))
    A("v_lshl_add_u32 v%d, v%d, 1, v%d" % (hU + 1, hU + 2, hU + 1))
    A("v_mul_u32_u24 v%d, 896, v%d" % (hU + 1, hU + 1))
    A("v_add_u32 v%d, v%d, v%d" % (hU, hU, hU + 1))
    A("s_and_b32 s%d, s%d, 4" % (sSL, sC))
    A("s_add_u32 s%d, s%d, s%d" % (sSL, sSL, sHW))
    A("s_and_b32 s%d, s%d, 3" % (sCB, sC))
    A("s_lshl_b32 s%d, s%d, 8" % (sOFF, sH))
    A("s_lshr_b32 s%d, s%d, 2" % (sIT, sC))
    A("s_lshl_b32 s%d, s%d, 7" % (sIT, sIT))
    A("s_add_u32 s%d, s%d, s%d" % (sOFF, sOFF, sIT))
    A("s_and_b32 s%d, s%d, 1" % (sIT, sHW))
    A("s_lshl_b32 s%d, s%d, 6" % (sIT, sIT))
    A("s_add_u32 s%d, s%d, s%d" % (sOFF, sOFF, sIT))
    A("s_lshr_b32 s%d, s%d, 1" % (sIT, sHW))
    A("s_lshl_b32 s%d, s%d, 2" % (sIT, sIT))
    A("s_add_u32 s%d, s%d, s%d" % (sOFF, sOFF, sIT))
    A("s_mul_i32 s%d, s%d, 896" % (sOFF, sOFF))
    A("s_mul_i32 s%d, s%d, 224" % (sIT, sCB))
    A("s_add_u32 s%d, s%d, s%d" % (sOFF, sOFF, sIT))
    for n in range(8 if not abl & 8 else 0):
        A("buffer_load_dwordx4 v[%d:%d], v%d, s[%d:%d], s%d offen %s" %
          (hW + 4 * n, hW + 4 * n + 3, hU, SRD, SRD + 3, sOFF, wflags))
        A("s_add_u32 s%d, s%d, %d" % (sOFF, sOFF, 8 * 896))
        A("s_waitcnt vmcnt(0)")
    A("v_lshrrev_b32 v%d, 1, v%d" % (hU + 1, hJ))
    A("v_and_b32 v%d, 1, v%d" % (hU + 2, hL))
    A("v_lshlrev_b32 v%d, 4, v%d" % (hU + 2, hU + 2))
    A("v_mov_b32 v%d, 0xffff" % (hU + 3))
    A("v_lshlrev_b32 v%d, v%d, v%d" % (hU + 3, hU + 2, hU + 3))
    for r in range(4):
        A("v_cmp_eq_u32 vcc, %d, v%d" % (r, hU + 1))
        A("s_nop 1")
        A("v_cndmask_b32 v%d, 0, v%d, vcc" % (hMK + r, hU + 3))
    A("v_lshrrev_b32 v%d, 3, v%d" % (hU + 1, hL))
    A("v_lshlrev_b32 v%d, 10, v%d" % (hU + 1, hU + 1))
    A("v_and_b32 v%d, 7, v%d" % (hU + 2, hL))
    A("v_lshl_add_u32 v%d, v%d, 4, v%d" % (hU + 1, hU + 2, hU + 1))
    sO1R, sO1W, sYW = sTMP + 4, sTMP + 5, sTMP + 6
    A("s_lshl_b32 s%d, s%d, 13" % (sO1R, sGRP))
    A("s_add_u32 s%d, s%d, %d" % (sO1R, sO1R, WS_O1))
    A("s_lshl_b32 s%d, s%d, 10" % (sIT, sC))
    A("s_add_u32 s%d, s%d, s%d" % (sO1W, sO1R, sIT))
    A("s_lshl_b32 s%d, s%d, 7" % (sIT, sSL))
    A("s_add_u32 s%d, s%d, s%d" % (sO1R, sO1R, sIT))
    A("s_lshl_b32 s%d, s%d, 2" % (sYW, sB))
    A("s_add_u32 s%d, s%d, s%d" % (sYW, sYW, sCB))
    A("s_lshl_b32 s%d, s%d, 4" % (sYW, sYW))
    A("s_add_u32 s%d, s%d, s%d" % (sYW, sYW, sH))
    A("s_lshl_b32 s%d, s%d, 1" % (sYW, sYW))
    A("s_lshr_b32 s%d, s%d, 2" % (sIT, sC))
    A("s_add_u32 s%d, s%d, s%d" % (sYW, sYW, sIT))
    A("s_lshl_b32 s%d, s%d, 9" % (sYW, sYW))
    A("s_add_u32 s%d, s%d, %d" % (sYW, sYW, WS_Y))
    C("final reducer set-up: unit u = (wg&7) + 8*(wg>>6) = (b, cb, line), sub = (wg>>3)&7")
    sU, sSUB, sKQ = sTMP + 2, sTMP + 3, sTMP + 7
    sYA, sOO, sRED = 90, 92, 93
    rV, rO, ya, rT, rL, rE = 128, 129, 100, 130, 132, 133
    A("s_lshr_b32 s%d, s2, 6" % sU)
    A("s_lshl_b32 s%d, s%d, 3" % (sU, sU))
    A("s_and_b32 s%d, s2, 7" % sSUB)
    A("s_or_b32 s%d, s%d, s%d" % (sU, sU, sSUB))
    A("s_bfe_u32 s%d, s2, 0x30003" % sSUB)
    A("s_and_b32 s%d, s%d, 3" % (sKQ, sU))
    A("s_lshl_b32 s%d, s%d, 2" % (sKQ, sKQ))
    A("s_add_u32 s%d, s%d, s%d" % (sKQ, sKQ, sSUB))
    A("s_and_b32 s%d, s%d, 7" % (sIT, sKQ))
    A("s_cmp_lt_u32 s%d, 4" % sSUB)
    A("s_cselect_b32 s%d, s%d, 7" % (sIT, sIT))
    A("s_cmp_lt_u32 s%d, 7" % sIT)
    A("s_cselect_b32 s%d, s%d, 0" % (sRED, sHW))
    A("s_lshr_b32 s%d, s%d, 2" % (sU, sU))
    A("s_lshl_b32 s%d, s%d, 14" % (sYA, sU))
    A("s_lshl_b32 s%d, s%d, 5" % (sIT, sKQ))
    A("s_add_u32 s%d, s%d, s%d" % (sYA, sYA, sIT))
    A("s_add_u32 s%d, s%d, %d" % (sYA, sYA, WS_Y))
    A("v_lshrrev_b32 v%d, 1, v%d" % (rV, hL))
    A("v_lshlrev_b32 v%d, 9, v%d" % (rV, rV))
    A("v_and_b32 v%d, 1, v%d" % (rT, hL))
    A("v_lshl_add_u32 v%d, v%d, 4, v%d" % (rV, rT, rV))
    A("s_mul_i32 s%d, s%d, 224" % (sOO, sU))
    A("s_and_b32 s%d, s%d, 7" % (sIT, sKQ))
    A("s_lshl_b32 s%d, s%d, 5" % (sIT, sIT))
    A("s_add_u32 s%d, s%d, s%d" % (sOO, sOO, sIT))
    A("s_and_b32 s%d, s%d, 8" % (sIT, sKQ))
    A("s_add_u32 s%d, s%d, s%d" % (sOO, sOO, sIT))
    A("s_mov_b32 s%d, s%d" % (SR2, sOUT))
    A("s_mov_b32 s%d, s%d" % (SR2 + 1, sOUT + 1))
    A("s_mov_b32 s%d, 1792" % (SR2 + 2))
    A("v_lshrrev_b32 v%d, 5, v%d" % (rO, hL))
    A("v_lshl_add_u32 v%d, v%d, 3, v%d" % (rO, rT, rO))
    A("v_bfe_u32 v%d, v%d, 4, 1" % (rT, hL))
    A("v_lshl_add_u32 v%d, v%d, 1, v%d" % (rO, rT, rO))
    A("v_lshlrev_b32 v%d, 1, v%d" % (rO, rO))
    A("s_lshl_b32 s%d, s%d, 9" % (sIT, sHW))
    A("v_lshlrev_b32 v%d, 4, v%d" % (rL, hL))
    A("v_add_u32 v%d, s%d, v%d" % (rL + 2, sIT, rL))
    A("s_cmp_lg_u32 s%d, 0" % sHW)
    A("s_cbranch_scc1 L_h_b2")

    C("helper 0: softmax statistics exchange inside the (b,h) group")
    A("v_and_b32 v%d, %d, v%d" % (hU + 3, NW - 1, hL))
    A("v_lshlrev_b32 v%d, 4, v%d" % (hU + 3, hU + 3))
    sSR, sSW = sTMP, sTMP + 1
    A("s_lshl_b32 s%d, s%d, 10" % (sSR, sGRP))
    A("s_add_u32 s%d, s%d, %d" % (sSR, sSR, WS_STAT))
    A("s_lshl_b32 s%d, s%d, 7" % (sSW, sC))
    A("s_add_u32 s%d, s%d, s%d" % (sSW, sSW, sSR))
    if pre & 2:
        A("s_cmp_eq_u32 s%d, 0" % sSAME)
        A("s_cbranch_scc1 L_nopw1")
        for r in range(4):
            A("v_not_b32 v%d, v%d" % (hP + 12 + r, hU + 9))
        A("s_mov_b64 exec, 0xff")
        A("buffer_store_dwordx4 v[%d:%d], v%d, s[%d:%d], s%d offen" % (hP + 12, hP + 15, rL, WSR, WSR + 3, sSW))
        A("s_mov_b64 exec, -1")
        LB("L_nopw1")
    A("s_mov_b32 s%d, %d" % (sSPIN, spin * 4))
    LB("L_lpoll")
    A("s_sleep 4")
    A("ds_read_b128 v[%d:%d], v%d offset:%d" % (hP, hP + 3, hU + 3, L_STAT))
    A("s_sub_u32 s%d, s%d, 1" % (sSPIN, sSPIN))
    A("s_cmp_eq_u32 s%d, 0" % sSPIN)
    A("s_cbranch_scc1 L_lgo")
    A("s_waitcnt lgkmcnt(0)")
    A("v_cmp_eq_u32 vcc, 0, v%d" % (hP + 2))
    A("s_cbranch_vccnz L_lpoll")
    LB("L_lgo")
    A("s_waitcnt lgkmcnt(0)")
    A("v_mov_b32 v%d, v%d" % (hP + 2, hU + 9))
    A("v_mov_b32 v%d, v%d" % (hP + 3, hU + 9))
    A("s_mov_b64 exec, %d" % ((1 << NW) - 1) if NW <= 4 else "s_mov_b64 exec, 0xff")
    if not abl & 4:
        lab[0] += 1
        A("s_cmp_eq_u32 s%d, 0" % sSAME)
        A("s_cbranch_scc1 L_wt%d" % lab[0])
        A("buffer_store_dwordx4 v[%d:%d], v%d, s[%d:%d], s%d offen" % (hP, hP + 3, hU + 3, WSR, WSR + 3, sSW))
        A("s_branch L_wd%d" % lab[0])
        LB("L_wt%d" % lab[0])
        A("buffer_store_dwordx4 v[%d:%d], v%d, s[%d:%d], s%d offen sc1" % (hP, hP + 3, hU + 3, WSR, WSR + 3, sSW))
        LB("L_wd%d" % lab[0])
    A("s_mov_b64 exec, -1")
    A("v_bfe_u32 v%d, v%d, %d, 3" % (hU + 4, hL, int(math.log2(NW))))
    A("v_lshl_add_u32 v%d, v%d, 7, v%d" % (hU + 4, hU + 4, hU + 3))
    A("s_mov_b32 s%d, %d" % (sSPIN, spin))
    if abl & 4:
        A("s_branch L_sgo")
    LB("L_spoll")
    A("s_sleep 8")
    A("buffer_load_dwordx4 v[%d:%d], v%d, s[%d:%d], s%d offen sc1" % (hP + 4, hP + 7, hU + 4, WSR, WSR + 3, sSR))
    A("s_sub_u32 s%d, s%d, 1" % (sSPIN, sSPIN))
    A("s_cmp_eq_u32 s%d, 0" % sSPIN)
    A("s_cbranch_scc1 L_sgo")
    A("s_waitcnt vmcnt(0)")
    A("v_xor_b32 v%d, v%d, v%d" % (hP + 8, hP + 6, hU + 9))
    A("v_xor_b32 v%d, v%d, v%d" % (hP + 9, hP + 7, hU + 9))
    A("v_or_b32 v%d, v%d, v%d" % (hP + 8, hP + 8, hP + 9))
    A("v_cmp_ne_u32 vcc, 0, v%d" % (hP + 8))
    A("s_cbranch_vccnz L_spoll")
    C("all 8 members of this group have read the epoch; the last of the 32 groups to get here advances it")
    A("s_cmp_lg_u32 s%d, 0" % sC)
    A("s_cbranch_scc1 L_sgo")
    A("s_mov_b32 s%d, 1" % sIT)
    A("s_atomic_add s%d, s[%d:%d], 0 glc" % (sIT, sDBG, sDBG + 1))
    A("s_waitcnt lgkmcnt(0)")
    A("s_cmp_lg_u32 s%d, 31" % sIT)
    A("s_cbranch_scc1 L_sgo")
    A("s_mov_b64 exec, 1")
    A("buffer_store_dword v%d, v%d, s[%d:%d], 0 offen" % (hU + 9, hU + 10, WSR, WSR + 3))
    A("s_mov_b64 exec, -1")
    LB("L_sgo")
    A("s_waitcnt vmcnt(0)")
    stamp(3)
    def allreduce_full(op, r, tmp):
        for c_ in ("quad_perm:[1,0,3,2]", "quad_perm:[2,3,0,1]", "row_half_mirror", "row_mirror"):
            A("s_nop 1")
            A("%s_dpp v%d, v%d, v%d %s row_mask:0xf bank_mask:0xf" % (op, r, r, r, c_))
        sw = ["v_permlane16_swap_b32"] + (["v_permlane32_swap_b32"] if NW == 8 else [])
        for s_ in sw:
            A("v_mov_b32 v%d, v%d" % (tmp, r))
            A("s_nop 1")
            A("%s v%d, v%d" % (s_, r, tmp))
            A("%s v%d, v%d, v%d" % (op, r, r, tmp))
    A("v_mov_b32 v%d, v%d" % (hP + 8, hP + 4))
    allreduce_full("v_max_f32", hP + 8, hP + 9)
    A("v_sub_f32 v%d, v%d, v%d" % (hP + 8, hP + 4, hP + 8))
    A("v_exp_f32 v%d, v%d" % (hP + 8, hP + 8))
    A("s_nop 0")
    A("v_mul_f32 v%d, v%d, v%d" % (hP + 10, hP + 8, hP + 5))
    allreduce_full("v_add_f32", hP + 10, hP + 9)
    A("v_rcp_f32 v%d, v%d" % (hP + 10, hP + 10))
    A("s_mul_i32 s%d, s%d, %d" % (sIT, sC, NW))
    A("v_mul_f32 v%d, v%d, v%d" % (hP + 8, hP + 8, hP + 10))
    for w in range(NW):
        A("s_nop 0")
        A("v_readlane_b32 s%d, v%d, s%d" % (sF + w, hP + 8, sIT))
        A("s_add_u32 s%d, s%d, 1" % (sIT, sIT))
    if pre & 4:
        A("s_cmp_eq_u32 s%d, 0" % sSAME)
        A("s_cbranch_scc1 L_nopw2")
        if pwm:
            assert ctl == 1
            A("s_mov_b32 s%d, %d" % (sSPIN, spin * 4))
            LB("L_pww")
            A("s_sleep 4")
            A("ds_read_b32 v%d, v%d offset:%d" % (hP, hU + 10, L_PROG))
            A("s_sub_u32 s%d, s%d, 1" % (sSPIN, sSPIN))
            A("s_cmp_eq_u32 s%d, 0" % sSPIN)
            A("s_waitcnt lgkmcnt(0)")
            A("s_cbranch_scc1 L_nopw2")
            A("v_cmp_gt_u32 vcc, %d, v%d" % (2 * N - LZ - pwm, hP))
            A("s_cbranch_vccnz L_pww")
        A("v_not_b32 v%d, v%d" % (hP + 4, hU + 9))
        for r in range(4):
            A("v_perm_b32 v%d, v%d, v%d, s%d" % (hP + 12 + r, hP + 4, hP + 4, sSEL + r))
        A("buffer_store_dwordx4 v[%d:%d], v%d, s[%d:%d], s%d offen" % (hP + 12, hP + 15, rL, WSR, WSR + 3, sO1W))
        LB("L_nopw2")
    A("s_barrier")
    LB("L_comb")
    OR = 96
    for w in range(NW):
        A("ds_read_b128 v[%d:%d], v%d offset:%d" % (OR + 4 * w, OR + 4 * w + 3, rL, L_O + 1024 * w))
    for w in range(NW):
        A("s_waitcnt lgkmcnt(%d)" % (NW - 1 - w))
        for r in range(4):
            if w == 0:
                A("v_mul_f32 v%d, s%d, v%d" % (hD + r, sF, OR + r))
            else:
                A("v_fmac_f32 v%d, s%d, v%d" % (hD + r, sF + w, OR + 4 * w + r))
    for r in range(4):
        A("v_perm_b32 v%d, v%d, v%d, s%d" % (hX + r, hD + r, hU + 9, sSEL + r))
    if not abl & 32:
        lab[0] += 1
        A("s_cmp_eq_u32 s%d, 0" % sSAME)
        A("s_cbranch_scc1 L_wt%d" % lab[0])
        A("buffer_store_dwordx4 v[%d:%d], v%d, s[%d:%d], s%d offen" % (hX, hX + 3, rL, WSR, WSR + 3, sO1W))
        A("s_branch L_wd%d" % lab[0])
        LB("L_wt%d" % lab[0])
        A("buffer_store_dwordx4 v[%d:%d], v%d, s[%d:%d], s%d offen sc1" % (hX, hX + 3, rL, WSR, WSR + 3, sO1W))
        LB("L_wd%d" % lab[0])
    A("s_branch L_h_hop1")
    LB("L_h_b2")
    if ctl == 1:
        A("s_cmp_lg_u32 s%d, 1" % sHW)
        A("s_cbranch_scc1 L_h_noctl")
        C("helper 1: bandwidth-share feedback (performance only; results never depend on it)")
        assert NW == 4
        total = NW * ((N - LZ) + N)
        cV = 96
        sPW, sPR, sME, sTG, sXW, sPREV, sXPREV, sREF = sF, sF + 1, sF + 2, sF + 3, sF + 4, sF + 5, sF + 6, sF + 7
        A("s_mov_b32 s%d, 0" % sPREV)
        A("s_mov_b32 s%d, 0" % sXPREV)
        XS = 4096 + 256
        A("s_lshr_b32 s%d, s2, 3" % sME)
        A("s_and_b32 s%d, s2, 7" % sPR)
        A("s_mul_i32 s%d, s%d, %d" % (sXW, sPR, XS))
        A("s_add_u32 s%d, s%d, %d" % (sXW, sXW, WS_XP))
        A("s_lshl_b32 s%d, s%d, 8" % (sPR, sPR))
        A("s_add_u32 s%d, s%d, %d" % (sPR, sPR, WS_PROG))
        A("s_lshl_b32 s%d, s%d, 2" % (sPW, sME))
        A("s_add_u32 s%d, s%d, s%d" % (sPW, sPW, sPR))
        A("s_lshl_b32 s%d, s%d, 16" % (sTG, sTAG))
        A("s_add_u32 s16, s%d, %d" % (sWS, WS_XP))
        A("s_addc_u32 s17, s%d, 0" % (sWS + 1))
        A("v_min_u32 v%d, 32, v%d" % (cV, hL))
        A("v_lshlrev_b32 v%d, 2, v%d" % (cV, cV))
        A("v_mov_b32 v%d, 0" % (cV + 1))
        A("v_and_b32 v%d, 3, v%d" % (cV + 7, hL))
        A("v_lshlrev_b32 v%d, 2, v%d" % (cV + 8, cV + 7))
        A("v_lshlrev_b32 v%d, 8, v%d" % (cV + 7, cV + 7))
        A("v_mov_b32 v%d, 0" % (cV + 2))
        for l_ in range(1, 8 * NF + 1):
            A("s_mov_b32 s%d, 0x%x" % (sIT, pat(l_, NF)))
            A("v_writelane_b32 v%d, s%d, %d" % (cV + 2, sIT, l_))
        A("s_mov_b32 s%d, %d" % (sSPIN, spin))
        LB("L_ctl")
        if cslp:
            A("s_sleep %d" % cslp)
        A("ds_read_b32 v%d, v%d offset:%d" % (cV + 9, cV + 7, L_PROG))
        A("s_sub_u32 s%d, s%d, 1" % (sSPIN, sSPIN))
        A("s_cmp_eq_u32 s%d, 0" % sSPIN)
        A("s_cbranch_scc1 L_h_noctl")
        A("s_waitcnt lgkmcnt(0)")
        A("v_add_u32_dpp v%d, v%d, v%d quad_perm:[1,0,3,2] row_mask:0xf bank_mask:0xf" % (cV + 4, cV + 9, cV + 9))
        A("s_nop 1")
        A("v_add_u32_dpp v%d, v%d, v%d quad_perm:[2,3,0,1] row_mask:0xf bank_mask:0xf" % (cV + 4, cV + 4, cV + 4))
        A("s_nop 0")
        A("v_readfirstlane_b32 s%d, v%d" % (sIT, cV + 4))
        A("v_or_b32 v%d, s%d, v%d" % (cV + 4, sTG, cV + 4))
        A("s_add_u32 s%d, s%d, s%d" % (sREF, sIT, sPREV))
        A("s_mov_b32 s%d, s%d" % (sPREV, sIT))
        A("s_mov_b64 exec, 1")
        A("buffer_store_dword v%d, v%d, s[%d:%d], s%d offen" % (cV + 4, cV + 1, WSR, WSR + 3, sPW))
        A("s_mov_b64 exec, -1")
        A("s_cmp_ge_u32 s%d, %d" % (sIT, total - NW * margin))
        A("s_cbranch_scc1 L_h_noctl")
        A("buffer_load_dword v%d, v%d, s[%d:%d], s%d offen %s" % (cV + 5, cV, WSR, WSR + 3, sPR, cld))
        A("s_waitcnt vmcnt(0)")
        A("v_xor_b32 v%d, s%d, v%d" % (cV + 5, sTG, cV + 5))
        A("v_cmp_gt_u32 vcc, 0x10000, v%d" % (cV + 5))
        A("s_nop 1")
        A("v_cndmask_b32 v%d, 0, v%d, vcc" % (cV + 5, cV + 5))
        A("s_cmp_lg_u32 vcc_lo, -1")
        A("s_cbranch_scc1 L_ctl")
        A("v_readlane_b32 s13, v%d, 32" % (cV + 5))
        for c_ in ("quad_perm:[1,0,3,2]", "quad_perm:[2,3,0,1]", "row_half_mirror", "row_mirror"):
            A("s_nop 1")
            A("v_add_u32_dpp v%d, v%d, v%d %s row_mask:0xf bank_mask:0xf" % (cV + 5, cV + 5, cV + 5, c_))
        A("s_nop 0")
        A("v_readlane_b32 s12, v%d, 0" % (cV + 5))
        A("v_readlane_b32 s14, v%d, 16" % (cV + 5))
        A("s_add_u32 s12, s12, s14")
        if xg:
            A("s_cmp_lg_u32 s%d, 16" % sME)
            A("s_cbranch_scc1 L_ctl_nl")
            C("class leader: swap class totals with the other leaders")
            A("s_or_b32 s14, s12, s%d" % sTG)
            A("v_mov_b32 v%d, s14" % (cV + 10))
            A("s_mov_b64 exec, 1")
            A("buffer_store_dword v%d, v%d, s[%d:%d], s%d offen sc1" % (cV + 10, cV + 1, WSR, WSR + 3, sXW))
            A("s_mov_b64 exec, -1")
            for k in range(8):
                A("s_load_dword s%d, s[16:17], %d glc" % (4 + k, k * XS))
            A("s_waitcnt lgkmcnt(0)")
            A("s_mov_b32 s15, 0")
            A("s_mov_b32 s14, 0")
            for k in range(8):
                A("s_xor_b32 s%d, s%d, s%d" % (4 + k, 4 + k, sTG))
                A("s_or_b32 s14, s14, s%d" % (4 + k))
                A("s_add_u32 s15, s15, s%d" % (4 + k))
            A("s_mul_i32 s4, s%d, %d" % (sXPREV, xa))
            A("s_mul_i32 s5, s12, %d" % (8 - xa))
            A("s_add_u32 s4, s4, s5")
            A("s_mov_b32 s%d, s12" % sXPREV)
            A("s_cmp_lt_u32 s14, 0x10000")
            A("s_cbranch_scc0 L_ctl_nl")
            A("s_sub_u32 s15, s15, s4")
            A("s_ashr_i32 s15, s15, 3")
            A("s_add_u32 s15, s15, 0x8000")
            A("s_and_b32 s15, s15, 0xffff")
            A("s_or_b32 s15, s15, s%d" % sTG)
            A("v_mov_b32 v%d, s15" % (cV + 6))
            A("s_mov_b64 exec, 1")
            A("buffer_store_dword v%d, v%d, s[%d:%d], s%d offen offset:128" % (cV + 6, cV + 1, WSR, WSR + 3, sPR))
            A("s_mov_b64 exec, -1")
            LB("L_ctl_nl")
        A("s_lshl_b32 s14, s%d, 4" % sREF)
        A("s_sub_u32 s12, s12, s14")
        A("s_mul_i32 s12, s12, %d" % gain)
        if xg:
            A("s_cmp_eq_u32 s13, 0")
            A("s_cselect_b32 s13, 0x8000, s13")
            A("s_sub_u32 s13, s13, 0x8000")
            A("s_mul_i32 s13, s13, %d" % xgain)
            A("s_add_u32 s12, s12, s13")
        C("fresh per-wave progress for the intra-workgroup term")
        A("ds_read_b32 v%d, v%d offset:%d" % (cV + 9, cV + 7, L_PROG))
        A("s_add_i32 s12, s12, %d" % (lv0 * 512 + 256))
        A("s_waitcnt lgkmcnt(0)")
        A("v_add_u32_dpp v%d, v%d, v%d quad_perm:[1,0,3,2] row_mask:0xf bank_mask:0xf" % (cV + 4, cV + 9, cV + 9))
        A("v_lshlrev_b32 v%d, 2, v%d" % (cV + 9, cV + 9))
        A("s_nop 0")
        A("v_add_u32_dpp v%d, v%d, v%d quad_perm:[2,3,0,1] row_mask:0xf bank_mask:0xf" % (cV + 4, cV + 4, cV + 4))
        A("v_sub_u32 v%d, v%d, v%d" % (cV + 4, cV + 4, cV + 9))
        A("v_mul_i32_i24 v%d, %d, v%d" % (cV + 4, 32 * wgain, cV + 4))
        A("v_add_u32 v%d, s12, v%d" % (cV + 4, cV + 4))
        A("v_ashrrev_i32 v%d, 9, v%d" % (cV + 4, cV + 4))
        A("v_max_i32 v%d, 0, v%d" % (cV + 4, cV + 4))
        A("v_min_i32 v%d, %d, v%d" % (cV + 4, 8 * NF, cV + 4))
        A("v_lshlrev_b32 v%d, 2, v%d" % (cV + 4, cV + 4))
        A("ds_bpermute_b32 v%d, v%d, v%d" % (cV + 5, cV + 4, cV + 2))
        A("s_waitcnt lgkmcnt(0)")
        A("ds_write_b32 v%d, v%d offset:%d" % (cV + 8, cV + 5, L_MODE))
        A("s_branch L_ctl")
        LB("L_h_noctl")
        A("s_waitcnt vmcnt(0) lgkmcnt(0)")
    if spt:
        C("helpers 2,3: shortly before the stream ends pull the hand-off lines into L2 over the scalar path")
        A("s_cmp_lt_u32 s%d, 2" % sHW)
        A("s_cbranch_scc1 L_nospt")
        if sptm:
            assert ctl == 1
            A("s_mov_b32 s%d, %d" % (sSPIN, spin * 4))
            LB("L_sptw")
            A("s_sleep 8")
            A("ds_read_b32 v%d, v%d offset:%d" % (hP, hU + 10, L_PROG))
            A("s_sub_u32 s%d, s%d, 1" % (sSPIN, sSPIN))
            A("s_cmp_eq_u32 s%d, 0" % sSPIN)
            A("s_waitcnt lgkmcnt(0)")
            A("s_cbranch_scc1 L_nospt")
            A("v_cmp_gt_u32 vcc, %d, v%d" % (2 * N - LZ - sptm, hP))
            A("s_cbranch_vccnz L_sptw")
        A("s_cmp_eq_u32 s%d, 2" % sHW)
        A("s_cbranch_scc1 L_spt2")
        if spt & 1:
            A("s_cmp_lg_u32 s%d, %d" % (sRED, NH - 1))
            A("s_cbranch_scc1 L_nospt")
            A("s_add_u32 s16, s%d, s%d" % (sWS, sYA))
            A("s_addc_u32 s17, s%d, 0" % (sWS + 1))
            for k in range(32):
                A("s_load_dword s%d, s[16:17], %d" % (4 + k % 8, k * 512))
                if k % 8 == 7:
                    A("s_waitcnt lgkmcnt(0)")
        A("s_branch L_nospt")
        LB("L_spt2")
        if spt & 2:
            A("s_add_u32 s16, s%d, s%d" % (sWS, sO1W))
            A("s_addc_u32 s17, s%d, 0" % (sWS + 1))
            for k in range(1024 // sptg):
                A("s_load_dword s%d, s[16:17], %d" % (4 + k % 8, k * sptg))
                if k % 8 == 7:
                    A("s_waitcnt lgkmcnt(0)")
        LB("L_nospt")
    if dry:
        A("s_cmp_lg_u32 s%d, 2" % sHW)
        A("s_cbranch_scc1 L_h_wait2")
        C("helper 2 walks the tail code once with empty descriptors (loads read 0, stores drop) to warm the instruction cache")
        A("s_mov_b32 s%d, 0" % (WSR + 2))
        A("s_mov_b32 s%d, 0" % (SR2 + 2))
        for r in range(4):
            A("s_mov_b32 s%d, 0" % (sT + r))
        A("s_mov_b32 s%d, 1" % sDRY)
        A("s_mov_b32 s%d, 1" % sSAME)
        A("s_mov_b32 s%d, %d" % (sRED, NH - 1))
        A("s_branch L_comb")
        LB("L_dry_done")
        A("s_waitcnt vmcnt(0) lgkmcnt(0)")
        A("s_mov_b64 exec, -1")
        A("s_mov_b32 s%d, %d" % (WSR + 2, WS_USED))
        A("s_mov_b32 s%d, 1792" % (SR2 + 2))
        for r in range(4):
            A("s_bfe_u32 s%d, s%d, 0x%x" % (sT + r, sTAG, 0x80000 | (8 * r)))
        A("s_mov_b32 s%d, 0" % sDRY)
        A("s_mov_b32 s%d, 0" % sRED)
        LB("L_h_wait2")
    A("s_barrier")
    LB("L_h_hop1")
    if abl & 32:
        A("s_branch L_fin")
    stamp(4)
    A("s_mov_b32 s%d, %d" % (sSPIN, spin))
    def ringpoll(name, K, pad, ring, res, tmp, voff, soff, slp, fail):
        ld = lambda k: A("buffer_load_dwordx4 v[%d:%d], v%d, s[%d:%d], s%d offen sc1" % (ring + 4 * k, ring + 4 * k + 3, voff, WSR, WSR + 3, soff))
        for k in range(K - 1):
            ld(k)
            if pad:
                A("s_nop %d" % (pad - 1))
        LB(name)
        for k in range(K):
            if slp:
                A("s_sleep %d" % slp)
            ld((k + K - 1) % K)
            if k == 0:
                A("s_sub_u32 s%d, s%d, 1" % (sSPIN, sSPIN))
                A("s_cmp_eq_u32 s%d, 0" % sSPIN)
                A("s_cbranch_scc1 %s" % fail)
            elif pad:
                A("s_nop %d" % (pad - 1))
            A("s_waitcnt vmcnt(%d)" % (K - 1))
            if (pstat == 1 and name == "L_opoll") or (pstat == 2 and name == "L_rpoll"):
                A("s_cmp_lg_u32 s%d, %d" % (sSPIN, spin - 1))
                A("s_cbranch_scc1 %s_ns" % name)
                stamp(1)
                LB(name + "_ns")
                A("s_sub_u32 s%d, %d, s%d" % (sST + 4, spin, sSPIN))
                A("s_mul_i32 s%d, s%d, 100" % (sST + 4, sST + 4))
                A("s_add_u32 s%d, s%d, s%d" % (sST + 4, sST + 4, sST))
                A("s_addc_u32 s%d, s%d, 0" % (sST + 5, sST + 1))
            for r in range(4):
                A("v_xor_b32 v%d, s%d, v%d" % (res + r, sT + r, ring + 4 * k + r))
            A("v_or3_b32 v%d, v%d, v%d, v%d" % (tmp, res, res + 1, res + 2))
            A("v_or_b32 v%d, v%d, v%d" % (tmp, tmp, res + 3))
            A("v_and_b32 v%d, 0xff, v%d" % (tmp, tmp))
            A("v_cmp_ne_u32 vcc, 0, v%d" % tmp)
            A("s_and_b64 exec, exec, vcc")
            if k == K - 1:
                A("s_cbranch_scc1 %s" % name)
            else:
                A("s_cbranch_scc0 %s_done" % name)
        LB(name + "_done")
    ringpoll("L_opoll", ok, opad, 136, hP, hP + 4, hU + 1, sO1R, slp1, "L_fin")
    A("s_mov_b64 exec, -1")
    stamp(5)
    A("v_permlane32_swap_b32 v%d, v%d" % (hP, hP + 1))
    A("v_permlane32_swap_b32 v%d, v%d" % (hP + 2, hP + 3))
    A("v_add_f32 v%d, v%d, v%d" % (hP, hP, hP + 1))
    A("v_add_f32 v%d, v%d, v%d" % (hP + 2, hP + 2, hP + 3))
    A("s_nop 1")
    A("v_permlane16_swap_b32 v%d, v%d" % (hP, hP + 2))
    A("v_add_f32 v%d, v%d, v%d" % (hP, hP, hP + 2))
    A("s_nop 1")
    A("v_add_f32_dpp v%d, v%d, v%d row_ror:8 row_mask:0xf bank_mask:0xf" % (hP, hP, hP))
    A("v_cvt_pk_bf16_f32 v%d, v%d, v%d" % (hP, hP, hP))
    A("s_nop 1")
    A2 = [hA, hSEL]
    def buildA(n):
        for r in range(4):
            A("v_and_b32_dpp v%d, v%d, v%d row_newbcast:%d row_mask:0xf bank_mask:0xf" % (A2[n & 1] + r, hP, hMK + r, n))
    buildA(0)
    for n in range(8):
        if n + 1 < 8:
            buildA(n + 1)
        else:
            A("s_nop 1")
        A("v_mfma_f32_16x16x32_bf16 v[%d:%d], v[%d:%d], v[%d:%d], %s" %
          (hD, hD + 3, A2[n & 1], A2[n & 1] + 3, hW + 4 * n, hW + 4 * n + 3, "0" if n == 0 else "v[%d:%d]" % (hD, hD + 3)))
    A("s_mov_b32 exec_hi, 0")
    A("s_cmp_eq_u32 s%d, 0" % sHW)
    A("s_cbranch_scc1 L_ysum")
    A("s_cmp_lg_u32 s%d, 0" % sDRY)
    A("s_nop 3")
    A("ds_write_b128 v%d, v[%d:%d] offset:%d" % (rL + 2, hD, hD + 3, L_Y))
    A("s_cbranch_scc1 L_skip3")
    A("s_waitcnt lgkmcnt(0)")
    A("s_barrier")
    LB("L_skip3")
    stamp(6)
    A("s_cmp_lg_u32 s%d, %d" % (sRED, NH - 1))
    A("s_cbranch_scc1 L_fin")
    A("s_mov_b64 exec, -1")
    A("s_mov_b32 s%d, %d" % (sSPIN, spin))
    ringpoll("L_rpoll", rk, rpad, 136 + 4 * ok, ya, rT, rV, sYA, slp2, "L_fin")
    A("s_mov_b64 exec, -1")
    stamp(3)
    A("v_permlane32_swap_b32 v%d, v%d" % (ya, ya + 1))
    A("v_permlane32_swap_b32 v%d, v%d" % (ya + 2, ya + 3))
    A("v_add_f32 v%d, v%d, v%d" % (ya, ya, ya + 1))
    A("v_add_f32 v%d, v%d, v%d" % (ya + 2, ya + 2, ya + 3))
    A("s_nop 1")
    A("v_permlane16_swap_b32 v%d, v%d" % (ya, ya + 2))
    A("v_add_f32 v%d, v%d, v%d" % (ya, ya, ya + 2))
    for c_ in ("row_ror:8", "row_ror:4", "quad_perm:[2,3,0,1]"):
        A("s_nop 1")
        A("v_add_f32_dpp v%d, v%d, v%d %s row_mask:0xf bank_mask:0xf" % (ya, ya, ya, c_))
    A("v_cvt_pk_bf16_f32 v%d, v%d, v%d" % (ya, ya, ya))
    A("s_mov_b32 exec_lo, 0x00030003")
    A("s_mov_b32 exec_hi, 0x00030003")
    A("buffer_store_short v%d, v%d, s[%d:%d], s%d offen" % (ya, rO, SR2, SR2 + 3, sOO))
    if diag >= 0:
        A("s_cmp_lg_u32 s2, 0")
        A("s_cbranch_scc1 L_fin")
    if diag >= 0:
        C("DIAGNOSTIC ONLY")
        A("s_memrealtime s[%d:%d]" % (sST + 14, sST + 15))
        A("s_waitcnt lgkmcnt(0)")
        A("s_sub_u32 s%d, s%d, s%d" % (sTMP, sST + 2 * diag, sST))
        A("s_min_u32 s%d, s%d, 20000" % (sTMP, sTMP))
        A("s_mul_i32 s%d, s%d, %d" % (sTMP, sTMP, dk))
        LB("L_diag")
        A("s_memrealtime s[%d:%d]" % (sST + 12, sST + 13))
        A("s_waitcnt lgkmcnt(0)")
        A("s_sub_u32 s%d, s%d, s%d" % (sTMP + 1, sST + 12, sST + 14))
        A("s_cmp_lt_u32 s%d, s%d" % (sTMP + 1, sTMP))
        A("s_cbranch_scc1 L_diag")
    if dry:
        A("s_cmp_lg_u32 s%d, 0" % sDRY)
        A("s_cbranch_scc1 L_ysum2")
    A("s_branch L_fin0")
    LB("L_ysum")
    A("s_barrier")
    LB("L_ysum2")
    for w in range(1, 4):
        A("ds_read_b128 v[%d:%d], v%d offset:%d" % (ya + 4 * w, ya + 4 * w + 3, rL, L_Y + 512 * w))
    A("s_nop 1")
    for w in range(1, 4):
        A("s_waitcnt lgkmcnt(%d)" % (3 - w))
        for r in range(4):
            A("v_add_f32 v%d, v%d, v%d" % (hD + r, hD + r, ya + 4 * w + r))
    for r in range(4):
        A("v_perm_b32 v%d, v%d, v%d, s%d" % (hD + r, hD + r, hU + 9, sSEL + r))
    A("buffer_store_dwordx4 v[%d:%d], v%d, s[%d:%d], s%d offen sc1" % (hD, hD + 3, rL, WSR, WSR + 3, sYW))
    stamp(6)
    if dry:
        A("s_cmp_lg_u32 s%d, 0" % sDRY)
        A("s_cbranch_scc1 L_dry_done")
    A("s_branch L_fin")

    LB("L_fin0")
    stamp(7)
    LB("L_fin")
    stamp_store()
    LB("L_end")
    A("s_endpgm")
    nv = max(vSL + 4 * LZ, 96 + 4 * NW, 136 + 4 * ok + 4 * rk)
    nv = (nv + 7) // 8 * 8
    L.append('.section .rodata,"a"')
    L.append(".p2align 6")
    L.append(".amdhsa_kernel " + KN)
    L.append("  .amdhsa_next_free_vgpr %d" % nv)
    L.append("  .amdhsa_next_free_sgpr 96")
    L.append("  .amdhsa_accum_offset %d" % nv)
    L.append("  .amdhsa_group_segment_fixed_size 0")
    L.append("  .amdhsa_kernarg_size 64")
    L.append("  .amdhsa_user_sgpr_count 2")
    L.append("  .amdhsa_user_sgpr_kernarg_segment_ptr 1")
    L.append("  .amdhsa_system_sgpr_workgroup_id_x 1")
    L.append("  .amdhsa_float_denorm_mode_32 3")
    L.append(".end_amdhsa_kernel")
    return "\n".join(L) + "\n"


def parse(spec):
    kw = {}
    for x in spec.split(","):
        if not x:
            continue
        k, v = x.split("=")
        if k in ("mapping", "kflags", "wflags", "cstf", "cld"):
            kw[k] = v.replace("+", " ").replace("def", "")
        else:
            kw[k] = int(v, 0)
    return kw


if __name__ == "__main__":
    names = []
    for spec in sys.argv[1:]:
        name = "k_" + spec.replace(",", "_").replace("=", "") + ".s"
        open(name, "w").write(gen(**parse(spec)))
        names.append(name)
    print(" ".join(names))
```

```python
import sys, math

KN = "standalone__mha_block_cached__decode_kernel"

HEADER = """; Kernarg layout for this problem (64 bytes, ptrs only, base s[0:1]):
"""

WS_EPOCH = 0
WS_Q = 0x1000
WS_STAT = 0x40000
WS_O1 = 0x80000
WS_Y = 0x100000
WS_PROG = 0x60000
WS_XP = 0x68000
WS_QP = 0x200000
WS_USED = 0x400000
STAMP_BASE = 0x10000000
EPOCH_WG = 35

L_Q = 0
L_TAG = 512
L_STAT = 576
L_FLAG = 768
L_MODE = 784
L_O = 1024


def pat(l, nf):
    p8 = lambda f: sum(1 << j for j in range(8) if ((j + 1) * f) // 8 != (j * f) // 8)
    w = 0
    for k in range(nf):
        w |= p8(min(max(l - 8 * k, 0), 8)) << (8 * k)
    return w


def gen(NW=4, D=5, LZ=32, mapping="xg", inter=4, stamps=0, spin=1 << 16, kflags="nt", wflags="nt",
        slp1=0, slp2=0, qslp=0, diag=-1, dk=1, abl=0, rotc=0, rotg=0, gmap=0, roth=0, qtry=24, force_slow=0, pre=0, rk=1, rpad=0, ok=1, opad=0, ctl=0, Dl=4, Dh=7, lv0=12, gain=4, cslp=0, cper=4, cld='sc1', xg=0, xgain=4, margin=12, xa=6, wgain=4, pper=1, b3=1, dry=0, cpf=0, spt=3, sptm=0, pwm=0, pstat=0, sptg=64, qt=1, oflags='', otouch=0, dwg=0, dfix=0, dmask=0):
    L = []
    def A(s): L.append("  " + s)
    def LB(s): L.append(s + ":")
    def C(s): L.append("  ; " + s)
    NH = 4
    N = 512 // NW
    NB = N // 16
    assert LZ % 16 == 0 and LZ >= 16 and D < 16
    LAG = Dh if ctl else D
    lab = [0]
    L_Y = L_O + NW * 1024
    L_PROG = L_Y + 2048
    lds = L_PROG + (NW * 256 if ctl == 1 else 0)
    NF = Dh - Dl
    assert NF <= 4
    L.append(HEADER.rstrip("\n"))
    L.append("; @launch grid=(256,1,1) block=(%d,1,1) lds=%d" % ((NW + NH) * 64, lds))
    L.append('.amdgcn_target "amdgcn-amd-amdhsa--gfx950"')
    L.append(".text")
    L.append(".globl " + KN)
    L.append(".p2align 8")
    L.append(".type %s,@function" % KN)
    LB(KN)

    sX, sK, sV, sWQ, sWO, sOUT, sDBG, sWS = 4, 6, 8, 10, 12, 14, 16, 18
    SRD = 20
    WSR = 24
    SR2 = 28
    sGRP, sC, sB, sH = 32, 33, 34, 35
    sBASE, sOFF, sIT = 36, 37, 38
    sT = 40
    sSEL = 44
    sM2, sM1 = 48, 50
    sF = 52
    sTMP = 60
    sSPIN = 68
    sCS = 69
    sST = 70
    sTAG = 86
    sEX = 88
    nstamp = [0]

    def stamp(k):
        if stamps or (diag >= 0 and k in (0, diag)):
            A("s_memrealtime s[%d:%d]" % (sST + 2 * k, sST + 2 * k + 1))

    def stamp_store():
        if not stamps:
            return
        for _ in range(3):
            A("s_sleep 127")
        A("s_mul_i32 s%d, s2, %d" % (sTMP, NW + NH))
        A("s_add_u32 s%d, s%d, s3" % (sTMP, sTMP))
        A("s_lshl_b32 s%d, s%d, 6" % (sTMP, sTMP))
        A("s_add_u32 s%d, s%d, %d" % (sTMP, sTMP, STAMP_BASE))
        A("s_mov_b32 s%d, 0x20000000" % (WSR + 2))
        A("s_waitcnt lgkmcnt(0)")
        A("s_mov_b64 exec, 1")
        A("v_mov_b32 v1, 0")
        for q in range(4):
            for r in range(4):
                A("v_mov_b32 v%d, s%d" % (4 + 4 * q + r, sST + 4 * q + r))
        for q in range(4):
            A("buffer_store_dwordx4 v[%d:%d], v1, s[%d:%d], s%d offen offset:%d" % (4 + 4 * q, 7 + 4 * q, WSR, WSR + 3, sTMP, 16 * q))

    if stamps:
        for k in range(1, 8):
            A("s_mov_b64 s[%d:%d], 0" % (sST + 2 * k, sST + 2 * k + 1))
    stamp(0)
    A("s_cmp_ge_u32 s2, 256")
    A("s_cbranch_scc1 L_end")
    A("s_load_dwordx16 s[4:19], s[0:1], 0")
    if cpf:
        C("pull this kernel's own code into L2: every workgroup of an XCD class touches a few lines")
        A("s_getpc_b64 s[92:93]")
        A("s_lshr_b32 s94, s2, 3")
        A("s_lshl_b32 s94, s94, 9")
        A("v_lshlrev_b32 v2, 7, v0")
        A("v_add_u32 v2, s94, v2")
        A("v_min_u32 v2, (L_end - %s - 256), v2" % KN)
        A("v_cmp_gt_u32 vcc, 4, v0")
        A("s_and_saveexec_b64 s[94:95], vcc")
        A("s_cbranch_execz L_nopf")
        A("global_load_dword v3, v2, s[92:93]")
        LB("L_nopf")
        A("s_mov_b64 exec, -1")
    A("v_lshrrev_b32 v1, 6, v0")
    A("v_and_b32 v0, 63, v0")
    A("v_readfirstlane_b32 s3, v1")
    if mapping == "lin":
        A("s_lshr_b32 s%d, s2, 3" % sGRP)
        A("s_and_b32 s%d, s2, 7" % sC)
    elif gmap == 0:
        A("s_lshr_b32 s%d, s2, 3" % sTMP)
        A("s_and_b32 s%d, s%d, 7" % (sC, sTMP))
        A("s_and_b32 s%d, s%d, 24" % (sTMP, sTMP))
        A("s_and_b32 s%d, s2, 7" % sGRP)
        A("s_or_b32 s%d, s%d, s%d" % (sGRP, sGRP, sTMP))
    else:
        A("s_and_b32 s%d, s2, 31" % sGRP)
        A("s_lshr_b32 s%d, s2, 5" % sC)
    A("s_mov_b32 s%d, 0x20000" % (SRD + 3))
    A("s_mov_b32 s%d, 0x20000" % (WSR + 3))
    A("s_mov_b32 s%d, 0x20000" % (SR2 + 3))
    A("s_mov_b32 s%d, %d" % (WSR + 2, WS_USED))
    A("s_cmp_ge_u32 s3, %d" % NW)
    A("s_cbranch_scc1 L_helper")

    vOFF = 0
    vQ = 4
    vMK = 8
    vA = 12
    vO = 16
    vT = 20
    vS = 36
    vU = 44
    vLANE = 52
    vSL = 64
    def slot(i): return vSL + 4 * i
    A("v_mov_b32 v%d, v0" % vLANE)
    A("v_lshlrev_b32 v%d, 4, v0" % vOFF)
    GI = 8 if inter == 1 else max(inter, 1)
    if inter == -1: GI = 1
    lgi = int(math.log2(GI))
    span = GI * 512 * 1024
    stride = GI * NW * 4096
    sREG, sPH = 87, 39
    A("s_lshl_b32 s%d, s%d, 22" % (sREG, sGRP))
    A("s_lshr_b32 s%d, s%d, %d" % (sTMP, sC, lgi))
    A("s_mul_i32 s%d, s%d, %d" % (sTMP, sTMP, span))
    A("s_add_u32 s%d, s%d, s%d" % (sREG, sREG, sTMP))
    A("s_and_b32 s%d, s%d, %d" % (sTMP, sC, GI - 1))
    A("s_mul_i32 s%d, s%d, %d" % (sBASE, sTMP, NW * 4096))
    A("s_lshl_b32 s%d, s3, 12" % sTMP)
    A("s_add_u32 s%d, s%d, s%d" % (sBASE, sBASE, sTMP))
    ROT = rotc or rotg or roth
    if ROT:
        A("s_mul_i32 s%d, s%d, %d" % (sTMP, sC, rotc * stride))
        A("s_add_u32 s%d, s%d, s%d" % (sBASE, sBASE, sTMP))
        A("s_mul_i32 s%d, s%d, %d" % (sTMP, sGRP, rotg * stride))
        A("s_add_u32 s%d, s%d, s%d" % (sBASE, sBASE, sTMP))
        if roth:
            A("s_lshr_b32 s%d, s%d, %d" % (sTMP, sC, lgi))
            A("s_mul_i32 s%d, s%d, %d" % (sTMP, sTMP, roth * stride))
            A("s_add_u32 s%d, s%d, s%d" % (sBASE, sBASE, sTMP))
        A("s_and_b32 s%d, s%d, %d" % (sBASE, sBASE, span - 1))
        A("s_mov_b32 s%d, s%d" % (sPH, sBASE))
    A("s_add_u32 s%d, s%d, s%d" % (sBASE, sBASE, sREG))
    A("s_mov_b32 s%d, s%d" % (sOFF, sBASE))
    def advance():
        if ROT:
            A("s_add_u32 s%d, s%d, %d" % (sPH, sPH, stride))
            A("s_and_b32 s%d, s%d, %d" % (sPH, sPH, span - 1))
            A("s_add_u32 s%d, s%d, s%d" % (sOFF, sPH, sREG))
        else:
            A("s_add_u32 s%d, s%d, %d" % (sOFF, sOFF, stride))
    A("s_mov_b32 s%d, 0x8000000" % (SRD + 2))
    A("s_waitcnt lgkmcnt(0)")
    A("s_mov_b32 s%d, s%d" % (SRD, sK))
    A("s_mov_b32 s%d, s%d" % (SRD + 1, sK + 1))

    def issue(idx, sl, adv=True):
        if adv and idx % 4 == 0:
            advance()
        A("buffer_load_dwordx4 v[%d:%d], v%d, s[%d:%d], s%d offen offset:%d %s" %
          (slot(sl), slot(sl) + 3, vOFF, SRD, SRD + 3, sOFF, (idx % 4) * 1024, kflags))

    C("phase P: paced fill of the landing zone")
    for i in range(D):
        issue(i, i, adv=(i > 0))
    A("s_barrier")
    A("s_mov_b32 s%d, s%d" % (WSR, sWS))
    A("s_mov_b32 s%d, s%d" % (WSR + 1, sWS + 1))
    A("s_mov_b32 s%d, 0xcccccccc" % sM2)
    A("s_mov_b32 s%d, 0xcccccccc" % (sM2 + 1))
    A("s_mov_b32 s%d, 0xaaaaaaaa" % sM1)
    A("s_mov_b32 s%d, 0xaaaaaaaa" % (sM1 + 1))
    A("s_mov_b32 s%d, 0x3db8aa3b" % sCS)
    A("v_lshrrev_b32 v%d, 3, v%d" % (vU, vLANE))
    A("v_lshrrev_b32 v%d, 4, v%d" % (vU + 1, vLANE))
    A("v_xor_b32 v%d, v%d, v%d" % (vU, vU, vU + 1))
    A("v_and_b32 v%d, 1, v%d" % (vU, vU))
    A("v_lshlrev_b32 v%d, 2, v%d" % (vU, vU))
    A("v_bfe_u32 v%d, v%d, 1, 2" % (vU + 1, vLANE))
    A("v_or_b32 v%d, v%d, v%d" % (vU, vU, vU + 1))
    A("v_and_b32 v%d, 1, v%d" % (vU + 1, vLANE))
    A("v_lshlrev_b32 v%d, 4, v%d" % (vU + 1, vU + 1))
    A("v_mov_b32 v%d, 0xffff" % (vU + 2))
    A("v_lshlrev_b32 v%d, v%d, v%d" % (vU + 2, vU + 1, vU + 2))
    for r in range(4):
        A("v_cmp_eq_u32 vcc, %d, v%d" % (r, vU))
        A("v_mov_b32 v%d, 0" % (vO + r))
        A("s_nop 0")
        A("v_cndmask_b32 v%d, 0, v%d, vcc" % (vMK + r, vU + 2))
    A("v_and_b32 v%d, 31, v%d" % (vU + 3, vLANE))
    A("v_lshlrev_b32 v%d, 4, v%d" % (vU + 3, vU + 3))
    A("v_mov_b32 v%d, 0" % (vU + 4))
    for i in range(D, LZ):
        A("s_waitcnt vmcnt(%d)" % (D - 1))
        issue(i, i)
    stamp(1)
    A("s_mov_b32 s%d, %d" % (sSPIN, spin * 16))
    LB("L_qwait")
    A("ds_read_b32 v%d, v%d offset:%d" % (vU + 5, vU + 4, L_FLAG))
    A("ds_read_b128 v[%d:%d], v%d offset:%d" % (vQ, vQ + 3, vU + 3, L_Q))
    A("s_sub_u32 s%d, s%d, 1" % (sSPIN, sSPIN))
    A("s_cmp_eq_u32 s%d, 0" % sSPIN)
    A("s_waitcnt lgkmcnt(0)")
    A("s_cbranch_scc1 L_qok")
    A("v_cmp_eq_u32 vcc, 0, v%d" % (vU + 5))
    A("s_cbranch_vccnz L_qwait")
    LB("L_qok")
    stamp(2)

    def kdot(sl, n):
        b = slot(sl)
        A("v_dot2_f32_bf16 v%d, v%d, v%d, 0" % (vT + n, b, vQ))
        for r in range(1, 4):
            A("v_dot2_f32_bf16 v%d, v%d, v%d, v%d" % (vT + n, b + r, vQ + r, vT + n))

    def kreduce():
        t = lambda n: vT + n
        for k in range(NB - 1):
            A("v_mov_b32 v%d, v%d" % (vS + k, vS + k + 1))
        for n in range(8):
            A("v_add_f32_dpp v%d, v%d, v%d row_ror:8 row_mask:0xf bank_mask:0x3" % (t(n), t(n), t(n)))
        for n in range(8):
            A("v_add_f32_dpp v%d, v%d, v%d row_ror:8 row_mask:0xf bank_mask:0xc" % (t(n), t(n + 8), t(n + 8)))
        for n in range(4):
            A("v_add_f32_dpp v%d, v%d, v%d row_half_mirror row_mask:0xf bank_mask:0x5" % (t(n), t(n), t(n)))
        for n in range(4):
            A("v_add_f32_dpp v%d, v%d, v%d row_half_mirror row_mask:0xf bank_mask:0xa" % (t(n), t(n + 4), t(n + 4)))
        A("v_cndmask_b32 v%d, v%d, v%d, s[%d:%d]" % (t(9), t(2), t(0), sM2, sM2 + 1))
        A("v_cndmask_b32 v%d, v%d, v%d, s[%d:%d]" % (t(11), t(3), t(1), sM2, sM2 + 1))
        A("v_cndmask_b32 v%d, v%d, v%d, s[%d:%d]" % (t(8), t(0), t(2), sM2, sM2 + 1))
        A("v_cndmask_b32 v%d, v%d, v%d, s[%d:%d]" % (t(10), t(1), t(3), sM2, sM2 + 1))
        A("s_nop 0")
        A("v_add_f32_dpp v%d, v%d, v%d quad_perm:[2,3,0,1] row_mask:0xf bank_mask:0xf" % (t(0), t(9), t(8)))
        A("v_add_f32_dpp v%d, v%d, v%d quad_perm:[2,3,0,1] row_mask:0xf bank_mask:0xf" % (t(1), t(11), t(10)))
        A("v_cndmask_b32 v%d, v%d, v%d, s[%d:%d]" % (t(9), t(1), t(0), sM1, sM1 + 1))
        A("v_cndmask_b32 v%d, v%d, v%d, s[%d:%d]" % (t(8), t(0), t(1), sM1, sM1 + 1))
        A("s_nop 1")
        A("v_add_f32_dpp v%d, v%d, v%d quad_perm:[1,0,3,2] row_mask:0xf bank_mask:0xf" % (t(0), t(9), t(8)))
        A("v_mov_b32 v%d, v%d" % (t(1), t(0)))
        A("s_nop 1")
        A("v_permlane16_swap_b32 v%d, v%d" % (t(0), t(1)))
        A("v_add_f32 v%d, v%d, v%d" % (t(0), t(0), t(1)))
        A("v_cvt_pk_bf16_f32 v%d, v%d, v%d" % (t(0), t(0), t(0)))
        A("v_and_b32 v%d, 0xffff0000, v%d" % (vS + NB - 1, t(0)))

    sMODE = 90
    vMODE, vCNT, vPA, vMA = 53, 54, 55, 56
    def pace(j):
        if ctl:
            lab[0] += 1
            for k in range(NF - 1, -1, -1):
                A("s_bitcmp1_b32 s%d, %d" % (sMODE, 8 * k + j % 8))
                A("s_cbranch_scc1 L_p%d_%d" % (lab[0], k))
            A("s_waitcnt vmcnt(%d)" % (Dl - 1))
            for k in range(NF):
                LB("L_p%d_%d" % (lab[0], k))
                A("s_waitcnt vmcnt(%d)" % (Dl + k))
        else:
            A("s_waitcnt vmcnt(%d)" % (LAG - 1))

    def progress(j):
        if ctl == 1 and j % pper == pper - 1:
            A("v_add_u32 v%d, %d, v%d" % (vCNT, pper, vCNT))
            A("ds_write_b32 v%d, v%d offset:%d" % (vPA, vCNT, L_PROG))

    def checkpoint(last_hi=False):
        if ctl == 1:
            A("s_waitcnt lgkmcnt(0)")
            A("v_readfirstlane_b32 s%d, v%d" % (sMODE, vMODE))
            A("ds_read_b32 v%d, v%d offset:%d" % (vMODE, vMA, L_MODE))
        if ctl and last_hi:
            A("s_cmp_eq_u32 s%d, 1" % sIT)
            A("s_cselect_b32 s%d, -1, s%d" % (sMODE, sMODE))

    C("catch-up: consume the landing zone, keep D loads in flight")
    if ctl:
        A("s_mov_b32 s%d, 0x%x" % (sMODE, pat(lv0, NF)))
        A("v_mov_b32 v%d, 0" % vCNT)
        A("s_lshl_b32 s%d, s3, 8" % sTMP)
        A("v_lshl_add_u32 v%d, v%d, 2, s%d" % (vPA, vLANE, sTMP))
        A("s_lshl_b32 s%d, s3, 2" % sTMP)
        A("v_mov_b32 v%d, s%d" % (vMA, sTMP))
        A("v_mov_b32 v%d, s%d" % (vMODE, sMODE))
    free = LZ - D
    pts = []
    for e in range(LAG):
        p = max(e, int(round((e + 0.5) * free / LAG)) - 1)
        p = min(p, free - 1 + e, LZ - 1)
        pts.append(p)
    assert LZ + LAG <= N
    for j in range(LZ):
        kdot(j, j % 16)
        for e in range(LAG):
            if pts[e] == j:
                A("s_waitcnt vmcnt(%d)" % (D - 1))
                issue(LZ + e, e)
        if j % 16 == 15:
            kreduce()
    for e in range(LAG):
        assert e <= pts[e] < free + e, (pts, free)

    C("steady K loop")
    nit = (N - LZ) // 16
    A("s_mov_b32 s%d, %d" % (sIT, nit))
    LB("L_kloop")
    for j in range(16):
        if j % cper == 0:
            checkpoint()
        pace(j)
        if (j + LAG) % 16 == 0:
            advance()
            A("s_cmp_eq_u32 s%d, 1" % sIT)
            A("s_cselect_b32 s%d, s%d, s%d" % (SRD, sV, SRD))
            A("s_cselect_b32 s%d, s%d, s%d" % (SRD + 1, sV + 1, SRD + 1))
            A("s_cselect_b32 s%d, s%d, s%d" % (sOFF, sBASE, sOFF))
            issue(j + LAG, (j + LAG) % 16, adv=False)
        else:
            issue(j + LAG, (j + LAG) % 16)
        progress(j)
        kdot(j, j)
    kreduce()
    A("s_sub_u32 s%d, s%d, 1" % (sIT, sIT))
    A("s_cmp_lg_u32 s%d, 0" % sIT)
    A("s_cbranch_scc1 L_kloop")

    C("softmax over this wave's keys")
    stamp(3)
    m = vU
    A("v_max3_f32 v%d, v%d, v%d, v%d" % (m, vS, vS + 1, vS + 2))
    k = 3
    while k + 1 < NB:
        A("v_max3_f32 v%d, v%d, v%d, v%d" % (m, m, vS + k, vS + k + 1))
        k += 2
    if k < NB:
        A("v_max_f32 v%d, v%d, v%d" % (m, m, vS + k))
    def allreduce(op, r, tmp, half=True):
        for c_ in ("quad_perm:[1,0,3,2]", "quad_perm:[2,3,0,1]", "row_half_mirror", "row_mirror"):
            A("s_nop 1")
            A("%s_dpp v%d, v%d, v%d %s row_mask:0xf bank_mask:0xf" % (op, r, r, r, c_))
        if half:
            A("v_mov_b32 v%d, v%d" % (tmp, r))
            A("s_nop 1")
            A("v_permlane32_swap_b32 v%d, v%d" % (r, tmp))
            A("%s v%d, v%d, v%d" % (op, r, r, tmp))
    allreduce("v_max_f32", m, vU + 1)
    A("v_mul_f32 v%d, s%d, v%d" % (vU + 4, sCS, m))
    for k in range(NB):
        A("v_fma_f32 v%d, v%d, s%d, -v%d" % (vS + k, vS + k, sCS, vU + 4))
    for k in range(NB):
        A("v_exp_f32 v%d, v%d" % (vS + k, vS + k))
    l = vU + 5
    A("v_add_f32 v%d, v%d, v%d" % (l, vS, vS + 1))
    for k in range(2, NB):
        A("v_add_f32 v%d, v%d, v%d" % (l, l, vS + k))
    for k in range(NB):
        A("v_cvt_pk_bf16_f32 v%d, v%d, v%d" % (vS + k, vS + k, vS + k))
    allreduce("v_add_f32", l, vU + 1)
    A("v_mov_b32 v%d, 1" % (vU + 6))
    A("v_mov_b32 v%d, 1" % (vU + 7))
    A("s_lshl_b32 s%d, s3, 4" % sTMP)
    A("v_mov_b32 v%d, s%d" % (vU + 1, sTMP))
    A("ds_write_b128 v%d, v[%d:%d] offset:%d" % (vU + 1, vU + 4, vU + 7, L_STAT))

    C("V loop")
    A("s_mov_b32 s%d, %d" % (sIT, NB))
    LB("L_vloop")
    for j in range(16):
        if j % cper == 0:
            checkpoint(last_hi=(j + cper > 16 - LAG))
        for r in range(4):
            A("v_and_b32_dpp v%d, v%d, v%d row_newbcast:%d row_mask:0xf bank_mask:0xf" % (vA + r, vS, vMK + r, j))
        pace(j)
        if (j + LAG) % 16 == 0:
            advance()
            A("s_cmp_eq_u32 s%d, 1" % sIT)
            A("s_cselect_b32 s%d, 0x10000000, s%d" % (sOFF, sOFF))
            if ROT:
                A("s_cselect_b32 s%d, 0x10000000, s%d" % (sREG, sREG))
            issue(j + LAG, (j + LAG) % 16, adv=False)
        else:
            issue(j + LAG, (j + LAG) % 16)
        A("v_mfma_f32_16x16x32_bf16 v[%d:%d], v[%d:%d], v[%d:%d], v[%d:%d]" %
          (vO, vO + 3, vA, vA + 3, slot(j), slot(j) + 3, vO, vO + 3))
        progress(j)
    for k in range(NB - 1):
        A("v_mov_b32 v%d, v%d" % (vS + k, vS + k + 1))
    A("s_sub_u32 s%d, s%d, 1" % (sIT, sIT))
    A("s_cmp_lg_u32 s%d, 0" % sIT)
    A("s_cbranch_scc1 L_vloop")
    A("s_lshl_b32 s%d, s3, 10" % sTMP)
    A("v_add_u32 v%d, s%d, v%d" % (vU, sTMP, vOFF))
    pad = 8 - (NB - 1) - 3 - 2
    if pad > 0:
        A("s_nop %d" % (pad - 1))
    A("ds_write_b128 v%d, v[%d:%d] offset:%d" % (vU, vO, vO + 3, L_O))
    A("s_waitcnt lgkmcnt(0)")
    stamp(4)
    A("s_barrier")
    if b3:
        A("s_barrier")
    A("s_branch L_fin")

    LB("L_helper")
    hL = 0
    hG, hJ = 1, 2
    hU = 4
    hX = 16
    hSEL = 32
    hA = 36
    hD = 40
    hMK = 44
    hP = 48
    hW = 64
    sHW = 39
    A("s_sub_u32 s%d, s3, %d" % (sHW, NW))
    sDRY = 91
    A("s_mov_b32 s%d, 0" % sDRY)
    A("v_lshrrev_b32 v%d, 4, v%d" % (hG, hL))
    A("v_and_b32 v%d, 15, v%d" % (hJ, hL))
    A("s_lshr_b32 s%d, s%d, 4" % (sB, sGRP))
    A("s_and_b32 s%d, s%d, 15" % (sH, sGRP))
    A("s_mov_b32 s%d, %d" % (SRD + 2, 448 * 8192))
    for r in range(4):
        A("s_mov_b32 s%d, 0x%08x" % (sSEL + r, 0x07060500 | r))
    A("s_cmp_lg_u32 s%d, 0" % sHW)
    A("s_cbranch_scc1 L_h_other")

    C("helper 0: one 112-row x 64-column tile of q = x @ wq for this head, both batches")
    sTILE, sRQ, sCSL, sQW, sQR, sSAME, sQT = 87, sTMP + 1, sTMP + 2, 94, 95, 89, sF
    A("v_mov_b32 v%d, 0" % (hU + 10))
    A("v_lshlrev_b32 v%d, 2, v%d" % (hU + 5, hL))
    A("ds_write_b32 v%d, v%d offset:%d" % (hU + 5, hU + 10, L_STAT))
    A("v_mul_u32_u24 v%d, %d, v%d" % (hU, 28 * 8192, hG))
    A("v_lshl_add_u32 v%d, v%d, 3, v%d" % (hU, hJ, hU))
    A("v_bfe_u32 v%d, v%d, 2, 1" % (hU + 1, hL))
    A("v_mul_u32_u24 v%d, 896, v%d" % (hU + 1, hU + 1))
    A("v_mul_u32_u24 v%d, 56, v%d" % (hU + 2, hG))
    A("v_add_u32 v%d, v%d, v%d" % (hU + 1, hU + 1, hU + 2))
    A("s_lshl_b32 s%d, s%d, 3" % (sTILE, sB))
    A("s_add_u32 s%d, s%d, s%d" % (sTILE, sTILE, sC))
    A("s_lshl_b32 s%d, s%d, 13" % (sQW, sH))
    A("s_add_u32 s%d, s%d, %d" % (sQW, sQW, WS_Q))
    A("s_mov_b32 s%d, 1" % sSAME)
    A("s_mov_b32 s%d, 1792" % (SR2 + 2))
    A("s_getreg_b32 s%d, hwreg(HW_REG_XCC_ID, 0, 4)" % (sTMP + 3))
    A("s_waitcnt lgkmcnt(0)")
    A("s_load_dword s%d, s[%d:%d], %d" % (sTAG, sWS, sWS + 1, WS_EPOCH))
    A("s_mov_b32 s%d, s%d" % (SR2, sX))
    A("s_mov_b32 s%d, s%d" % (SR2 + 1, sX + 1))
    A("s_mov_b32 s%d, s%d" % (SRD, sWQ))
    A("s_mov_b32 s%d, s%d" % (SRD + 1, sWQ + 1))
    A("s_mov_b32 s%d, s%d" % (WSR, sWS))
    A("s_mov_b32 s%d, s%d" % (WSR + 1, sWS + 1))
    LB("L_tile")
    A("s_lshr_b32 s%d, s%d, 2" % (sRQ, sTILE))
    A("s_and_b32 s%d, s%d, 3" % (sCSL, sTILE))
    A("s_mul_i32 s%d, s%d, %d" % (sOFF, sRQ, 112 * 8192))
    A("s_lshl_b32 s%d, s%d, 9" % (sIT, sH))
    A("s_add_u32 s%d, s%d, s%d" % (sOFF, sOFF, sIT))
    A("s_lshl_b32 s%d, s%d, 7" % (sIT, sCSL))
    A("s_add_u32 s%d, s%d, s%d" % (sOFF, sOFF, sIT))
    A("s_mul_i32 s%d, s%d, 224" % (sBASE, sRQ))
    for q in range(3):
        A("buffer_load_dwordx4 v[%d:%d], v%d, s[%d:%d], s%d offen offset:%d" % (hX + 4 * q, hX + 4 * q + 3, hU + 1, SR2, SR2 + 3, sBASE, 16 * q))
    A("buffer_load_dwordx2 v[%d:%d], v%d, s[%d:%d], s%d offen offset:48" % (hX + 12, hX + 13, hU + 1, SR2, SR2 + 3, sBASE))
    for n in range(28 if not abl & 16 else 0):
        A("buffer_load_dwordx2 v[%d:%d], v%d, s[%d:%d], s%d offen %s" % (hW + 2 * n, hW + 2 * n + 1, hU, SRD, SRD + 3, sOFF, wflags))
        if n < 27:
            A("s_add_u32 s%d, s%d, 8192" % (sOFF, sOFF))
    A("s_cmp_eq_u32 s%d, 0" % sSAME)
    A("s_cbranch_scc1 L_tile_go")
    C("first pass only: B0 and one-time set-up")
    A("s_barrier")
    A("v_and_b32 v%d, 1, v%d" % (hU + 2, hL))
    A("v_lshlrev_b32 v%d, 4, v%d" % (hU + 2, hU + 2))
    A("v_bfe_u32 v%d, v%d, 1, 1" % (hU + 3, hL))
    A("v_bfe_u32 v%d, v%d, 3, 1" % (hU + 4, hL))
    A("v_lshl_add_u32 v%d, v%d, 1, v%d" % (hU + 3, hU + 4, hU + 3))
    A("v_mov_b32 v%d, 0x0c0c0c0c" % (hU + 6))
    for par, src in ((0, 0x0100), (1, 0x0302)):
        A("v_mov_b32 v%d, 0x%x" % (hU + 4, src ^ 0x0c0c))
        A("v_lshlrev_b32 v%d, v%d, v%d" % (hU + 4, hU + 2, hU + 4))
        A("v_xor_b32 v%d, v%d, v%d" % (hU + 4, hU + 6, hU + 4))
        for r in range(2):
            A("v_cmp_eq_u32 vcc, %d, v%d" % (r, hU + 3))
            A("s_nop 1")
            A("v_cndmask_b32 v%d, v%d, v%d, vcc" % (hSEL + 2 * par + r, hU + 6, hU + 4))
    A("s_waitcnt lgkmcnt(0)")
    A("s_add_u32 s%d, s%d, 0x01011001" % (sTAG, sTAG))
    A("v_mov_b32 v%d, s%d" % (hU + 9, sTAG))
    A("ds_write_b32 v%d, v%d offset:%d" % (hU + 10, hU + 9, L_TAG))
    if ctl == 1:
        A("v_mov_b32 v%d, 0x%x" % (hU + 4, pat(lv0, NF)))
        A("v_and_b32 v%d, %d, v%d" % (hU + 3, NW - 1, hL))
        A("v_lshlrev_b32 v%d, 2, v%d" % (hU + 2, hU + 3))
        A("ds_write_b32 v%d, v%d offset:%d" % (hU + 2, hU + 4, L_MODE))
        A("v_lshlrev_b32 v%d, 8, v%d" % (hU + 3, hU + 3))
        A("ds_write_b32 v%d, v%d offset:%d" % (hU + 3, hU + 10, L_PROG))
    for r in range(4):
        A("s_bfe_u32 s%d, s%d, 0x%x" % (sT + r, sTAG, 0x80000 | (8 * r)))
    C("q tiles carry the producer's XCC id in their tag: accepting one proves a shared L2")
    A("s_lshl_b32 s%d, s%d, 8" % (sIT, sTMP + 3))
    A("s_xor_b32 s%d, s%d, s%d" % (sIT, sIT, sTAG))
    A("v_mov_b32 v%d, s%d" % (hU + 6, sIT))
    for r in range(4):
        A("s_bfe_u32 s%d, s%d, 0x%x" % (sQT + r, sIT, 0x80000 | (8 * r)))
    LB("L_tile_go")
    for r in range(4):
        A("v_mov_b32 v%d, 0" % (hD + r))
    A("s_lshl_b32 s%d, s%d, 8" % (sOFF, sTILE))
    A("s_add_u32 s%d, s%d, s%d" % (sOFF, sOFF, sQW))
    A("v_lshlrev_b32 v%d, 12, v%d" % (hU + 7, hG))
    A("v_lshl_add_u32 v%d, v%d, 4, v%d" % (hU + 7, hJ, hU + 7))
    A("s_lshl_b32 s%d, s%d, 12" % (sQR, sB))
    A("s_add_u32 s%d, s%d, s%d" % (sQR, sQR, sQW))
    A("v_lshlrev_b32 v%d, 4, v%d" % (hU + 8, hL))
    PW = 1 if pre & 1 else 0
    if PW:
        C("allocate the tile's lines in L2 with a not-yet-valid tag so early polls do not miss to memory")
        A("v_not_b32 v%d, v%d" % (hP + 4, hU + 6))
        for r in range(4):
            A("v_perm_b32 v%d, v%d, v%d, s%d" % (hP + r, hP + 4, hP + 4, sSEL + r))
        A("s_mov_b32 exec_hi, 0")
        A("buffer_store_dwordx4 v[%d:%d], v%d, s[%d:%d], s%d offen" % (hP, hP + 3, hU + 7, WSR, WSR + 3, sOFF))
        A("s_mov_b32 exec_hi, -1")
    A("s_waitcnt vmcnt(%d)" % (28 + PW))
    for n in range(28):
        a = hA + 2 * (n & 1)
        for r in range(2):
            A("v_perm_b32 v%d, v%d, v%d, v%d" % (a + r, hX + (n >> 1), hX + (n >> 1), hSEL + 2 * (n & 1) + r))
        A("s_waitcnt vmcnt(%d)" % (27 - n + PW))
        A("s_nop 0")
        A("v_mfma_f32_16x16x16_bf16 v[%d:%d], v[%d:%d], v[%d:%d], v[%d:%d]" %
          (hD, hD + 3, a, a + 1, hW + 2 * n, hW + 2 * n + 1, hD, hD + 3))
    A("s_nop 7")
    for r in range(4):
        A("v_perm_b32 v%d, v%d, v%d, s%d" % (hMK + r, hD + r, hU + 6, sSEL + r))
    A("s_mov_b32 exec_hi, 0")
    if not abl & 2:
        A("buffer_store_dwordx4 v[%d:%d], v%d, s[%d:%d], s%d offen" % (hMK, hMK + 3, hU + 7, WSR, WSR + 3, sOFF))
    A("s_mov_b32 exec_hi, -1")
    stamp(1)
    A("s_mov_b32 s%d, %d" % (sSPIN, qtry))
    A("s_cmp_lg_u32 s%d, 0" % sSAME)
    A("s_cbranch_scc1 L_qpoll0")
    A("s_waitcnt vmcnt(0)")
    A("s_add_u32 s%d, s%d, 1" % (sTILE, sTILE))
    A("s_cmp_lt_u32 s%d, 16" % sTILE)
    A("s_cbranch_scc1 L_tile")
    A("s_mov_b32 s%d, %d" % (sSPIN, spin))
    LB("L_qpoll0")
    if abl & 1:
        A("s_branch L_qgo")
    if force_slow:
        A("s_cmp_lg_u32 s%d, 0" % sSAME)
        A("s_cbranch_scc1 L_qfail")
    LB("L_qpoll")
    if qslp:
        A("s_sleep %d" % qslp)
    for q in range(4):
        A("buffer_load_dwordx4 v[%d:%d], v%d, s[%d:%d], s%d offen offset:%d sc1" % (hP + 4 * q, hP + 4 * q + 3, hU + 8, WSR, WSR + 3, sQR, 1024 * q))
    A("s_waitcnt vmcnt(0)")
    for q in range(4):
        for r in range(4):
            A("v_xor_b32 v%d, s%d, v%d" % (hP + 4 * q + r, sQT + r, hP + 4 * q + r))
    A("v_or3_b32 v%d, v%d, v%d, v%d" % (hU + 11, hP, hP + 1, hP + 2))
    for k in range(3, 15, 2):
        A("v_or3_b32 v%d, v%d, v%d, v%d" % (hU + 11, hU + 11, hP + k, hP + k + 1))
    A("v_or_b32 v%d, v%d, v%d" % (hU + 11, hU + 11, hP + 15))
    A("v_and_b32 v%d, 0xff, v%d" % (hU + 11, hU + 11))
    A("v_cmp_ne_u32 vcc, 0, v%d" % (hU + 11))
    A("s_cbranch_vccz L_qgo")
    A("s_sub_u32 s%d, s%d, 1" % (sSPIN, sSPIN))
    A("s_cmp_lg_u32 s%d, 0" % sSPIN)
    A("s_cbranch_scc1 L_qpoll")
    A("s_cmp_eq_u32 s%d, 0" % sSAME)
    A("s_cbranch_scc1 L_qgo")
    LB("L_qfail")
    C("some producer of this head is not behind our L2 (or is very late): compute all 16 tiles here")
    A("s_mov_b32 s%d, 0" % sSAME)
    A("s_mov_b32 s%d, 0" % sTILE)
    A("s_lshl_b32 s%d, s2, 13" % sQW)
    A("s_add_u32 s%d, s%d, %d" % (sQW, sQW, WS_QP))
    A("s_branch L_tile")
    LB("L_qgo")
    for r in range(4):
        A("v_add_f32 v%d, v%d, v%d" % (hP + r, hP + r, hP + 4 + r))
        A("v_add_f32 v%d, v%d, v%d" % (hP + 8 + r, hP + 8 + r, hP + 12 + r))
    for r in range(4):
        A("v_add_f32 v%d, v%d, v%d" % (hP + r, hP + r, hP + 8 + r))
    A("v_cvt_pk_bf16_f32 v%d, v%d, v%d" % (hP, hP, hP + 1))
    A("v_cvt_pk_bf16_f32 v%d, v%d, v%d" % (hP + 1, hP + 2, hP + 3))
    A("v_lshlrev_b32 v%d, 3, v%d" % (hU + 11, hL))
    A("v_mov_b32 v%d, 1" % (hP + 2))
    A("ds_write_b64 v%d, v[%d:%d] offset:%d" % (hU + 11, hP, hP + 1, L_Q))
    A("s_waitcnt lgkmcnt(0)")
    A("ds_write_b32 v%d, v%d offset:%d" % (hU + 10, hP + 2, L_FLAG))
    stamp(2)
    A("s_branch L_h_common")

    LB("L_h_other")
    A("v_mov_b32 v%d, 0" % (hU + 10))
    A("s_mov_b32 s%d, 0" % sSAME)
    A("s_waitcnt lgkmcnt(0)")
    A("s_mov_b32 s%d, s%d" % (WSR, sWS))
    A("s_mov_b32 s%d, s%d" % (WSR + 1, sWS + 1))
    if qt:
        C("helper 1 reads this workgroup's q-tile and statistics lines once (scalar path) so later polls hit L2")
        A("s_cmp_lg_u32 s%d, 1" % sHW)
        A("s_cbranch_scc1 L_noqt")
        A("s_lshl_b32 s%d, s%d, 3" % (sIT, sB))
        A("s_add_u32 s%d, s%d, s%d" % (sIT, sIT, sC))
        A("s_lshl_b32 s%d, s%d, 8" % (sIT, sIT))
        A("s_lshl_b32 s%d, s%d, 13" % (sOFF, sH))
        A("s_add_u32 s%d, s%d, s%d" % (sIT, sIT, sOFF))
        A("s_add_u32 s%d, s%d, s%d" % (sTMP, sWS, sIT))
        A("s_addc_u32 s%d, s%d, 0" % (sTMP + 1, sWS + 1))
        for k in range(8):
            A("s_load_dword s%d, s[%d:%d], %d" % (sF + k, sTMP, sTMP + 1, WS_Q + (k >> 2) * 4096 + (k & 3) * 64))
        A("s_lshl_b32 s%d, s%d, 3" % (sIT, sGRP))
        A("s_add_u32 s%d, s%d, s%d" % (sIT, sIT, sC))
        A("s_lshl_b32 s%d, s%d, 7" % (sIT, sIT))
        A("s_add_u32 s%d, s%d, s%d" % (sTMP + 2, sWS, sIT))
        A("s_addc_u32 s%d, s%d, 0" % (sTMP + 3, sWS + 1))
        for k in range(2):
            A("s_load_dword s%d, s[%d:%d], %d" % (sTMP + 4 + k, sTMP + 2, sTMP + 3, WS_STAT + k * 64))
        LB("L_noqt")
    A("s_barrier")
    A("s_mov_b32 s%d, %d" % (sSPIN, spin * 4))
    LB("L_hwait")
    A("s_sleep 8")
    A("ds_read_b32 v%d, v%d offset:%d" % (hU + 8, hU + 10, L_FLAG))
    A("ds_read_b32 v%d, v%d offset:%d" % (hU + 9, hU + 10, L_TAG))
    A("s_sub_u32 s%d, s%d, 1" % (sSPIN, sSPIN))
    A("s_cmp_eq_u32 s%d, 0" % sSPIN)
    A("s_waitcnt lgkmcnt(0)")
    A("s_cbranch_scc1 L_hok")
    A("v_cmp_eq_u32 vcc, 0, v%d" % (hU + 8))
    A("s_cbranch_vccnz L_hwait")
    LB("L_hok")
    A("v_readfirstlane_b32 s%d, v%d" % (sTAG, hU + 9))
    A("s_nop 0")
    for r in range(4):
        A("s_bfe_u32 s%d, s%d, 0x%x" % (sT + r, sTAG, 0x80000 | (8 * r)))

    LB("L_h_common")
    C("prefetch this wave's wo fragment: rows h*256+128*(c>>2)+64*(hw&1)+4*(hw>>1)+8n+(g>>1)+2(g&1), cols 112*(c&3) + 8*min(j,13)")
    sSL, sCB = sTMP, sTMP + 1
    A("s_mov_b32 s%d, s%d" % (SRD, sWO))
    A("s_mov_b32 s%d, s%d" % (SRD + 1, sWO + 1))
    A("v_min_u32 v%d, 13, v%d" % (hU, hJ))
    A("v_lshlrev_b32 v%d, 4, v%d" % (hU, hU))
    A("v_lshrrev_b32 v%d, 1, v%d" % (hU + 1, hG))
    A("v_and_b32 v%d, 1, v%d" % (hU + 2, hG))
    A("v_lshl_add_u32 v%d, v%d, 1, v%d" % (hU + 1, hU + 2, hU + 1))
    A("v_mul_u32_u24 v%d, 896, v%d" % (hU + 1, hU + 1))
    A("v_add_u32 v%d, v%d, v%d" % (hU, hU, hU + 1))
    A("s_and_b32 s%d, s%d, 4" % (sSL, sC))
    A("s_add_u32 s%d, s%d, s%d" % (sSL, sSL, sHW))
    A("s_and_b32 s%d, s%d, 3" % (sCB, sC))
    A("s_lshl_b32 s%d, s%d, 8" % (sOFF, sH))
    A("s_lshr_b32 s%d, s%d, 2" % (sIT, sC))
    A("s_lshl_b32 s%d, s%d, 7" % (sIT, sIT))
    A("s_add_u32 s%d, s%d, s%d" % (sOFF, sOFF, sIT))
    A("s_and_b32 s%d, s%d, 1" % (sIT, sHW))
    A("s_lshl_b32 s%d, s%d, 6" % (sIT, sIT))
    A("s_add_u32 s%d, s%d, s%d" % (sOFF, sOFF, sIT))
    A("s_lshr_b32 s%d, s%d, 1" % (sIT, sHW))
    A("s_lshl_b32 s%d, s%d, 2" % (sIT, sIT))
    A("s_add_u32 s%d, s%d, s%d" % (sOFF, sOFF, sIT))
    A("s_mul_i32 s%d, s%d, 896" % (sOFF, sOFF))
    A("s_mul_i32 s%d, s%d, 224" % (sIT, sCB))
    A("s_add_u32 s%d, s%d, s%d" % (sOFF, sOFF, sIT))
    for n in range(8 if not abl & 8 else 0):
        A("buffer_load_dwordx4 v[%d:%d], v%d, s[%d:%d], s%d offen %s" %
          (hW + 4 * n, hW + 4 * n + 3, hU, SRD, SRD + 3, sOFF, wflags))
        A("s_add_u32 s%d, s%d, %d" % (sOFF, sOFF, 8 * 896))
        A("s_waitcnt vmcnt(0)")
    A("v_lshrrev_b32 v%d, 1, v%d" % (hU + 1, hJ))
    A("v_and_b32 v%d, 1, v%d" % (hU + 2, hL))
    A("v_lshlrev_b32 v%d, 4, v%d" % (hU + 2, hU + 2))
    A("v_mov_b32 v%d, 0xffff" % (hU + 3))
    A("v_lshlrev_b32 v%d, v%d, v%d" % (hU + 3, hU + 2, hU + 3))
    for r in range(4):
        A("v_cmp_eq_u32 vcc, %d, v%d" % (r, hU + 1))
        A("s_nop 1")
        A("v_cndmask_b32 v%d, 0, v%d, vcc" % (hMK + r, hU + 3))
    A("v_lshrrev_b32 v%d, 3, v%d" % (hU + 1, hL))
    A("v_lshlrev_b32 v%d, 10, v%d" % (hU + 1, hU + 1))
    A("v_and_b32 v%d, 7, v%d" % (hU + 2, hL))
    A("v_lshl_add_u32 v%d, v%d, 4, v%d" % (hU + 1, hU + 2, hU + 1))
    sO1R, sO1W, sYW = sTMP + 4, sTMP + 5, sTMP + 6
    A("s_lshl_b32 s%d, s%d, 13" % (sO1R, sGRP))
    A("s_add_u32 s%d, s%d, %d" % (sO1R, sO1R, WS_O1))
    A("s_lshl_b32 s%d, s%d, 10" % (sIT, sC))
    A("s_add_u32 s%d, s%d, s%d" % (sO1W, sO1R, sIT))
    A("s_lshl_b32 s%d, s%d, 7" % (sIT, sSL))
    A("s_add_u32 s%d, s%d, s%d" % (sO1R, sO1R, sIT))
    A("s_lshl_b32 s%d, s%d, 2" % (sYW, sB))
    A("s_add_u32 s%d, s%d, s%d" % (sYW, sYW, sCB))
    A("s_lshl_b32 s%d, s%d, 4" % (sYW, sYW))
    A("s_add_u32 s%d, s%d, s%d" % (sYW, sYW, sH))
    A("s_lshl_b32 s%d, s%d, 1" % (sYW, sYW))
    A("s_lshr_b32 s%d, s%d, 2" % (sIT, sC))
    A("s_add_u32 s%d, s%d, s%d" % (sYW, sYW, sIT))
    A("s_lshl_b32 s%d, s%d, 9" % (sYW, sYW))
    A("s_add_u32 s%d, s%d, %d" % (sYW, sYW, WS_Y))
    C("final reducer set-up: unit u = (wg&7) + 8*(wg>>6) = (b, cb, line), sub = (wg>>3)&7")
    sU, sSUB, sKQ = sTMP + 2, sTMP + 3, sTMP + 7
    sYA, sOO, sRED = 90, 92, 93
    rV, rO, ya, rT, rL, rE = 128, 129, 100, 130, 132, 133
    A("s_lshr_b32 s%d, s2, 6" % sU)
    A("s_lshl_b32 s%d, s%d, 3" % (sU, sU))
    A("s_and_b32 s%d, s2, 7" % sSUB)
    A("s_or_b32 s%d, s%d, s%d" % (sU, sU, sSUB))
    A("s_bfe_u32 s%d, s2, 0x30003" % sSUB)
    A("s_and_b32 s%d, s%d, 3" % (sKQ, sU))
    A("s_lshl_b32 s%d, s%d, 2" % (sKQ, sKQ))
    A("s_add_u32 s%d, s%d, s%d" % (sKQ, sKQ, sSUB))
    A("s_and_b32 s%d, s%d, 7" % (sIT, sKQ))
    A("s_cmp_lt_u32 s%d, 4" % sSUB)
    A("s_cselect_b32 s%d, s%d, 7" % (sIT, sIT))
    A("s_cmp_lt_u32 s%d, 7" % sIT)
    A("s_cselect_b32 s%d, s%d, 0" % (sRED, sHW))
    A("s_lshr_b32 s%d, s%d, 2" % (sU, sU))
    A("s_lshl_b32 s%d, s%d, 14" % (sYA, sU))
    A("s_lshl_b32 s%d, s%d, 5" % (sIT, sKQ))
    A("s_add_u32 s%d, s%d, s%d" % (sYA, sYA, sIT))
    A("s_add_u32 s%d, s%d, %d" % (sYA, sYA, WS_Y))
    A("v_lshrrev_b32 v%d, 1, v%d" % (rV, hL))
    A("v_lshlrev_b32 v%d, 9, v%d" % (rV, rV))
    A("v_and_b32 v%d, 1, v%d" % (rT, hL))
    A("v_lshl_add_u32 v%d, v%d, 4, v%d" % (rV, rT, rV))
    A("s_mul_i32 s%d, s%d, 224" % (sOO, sU))
    A("s_and_b32 s%d, s%d, 7" % (sIT, sKQ))
    A("s_lshl_b32 s%d, s%d, 5" % (sIT, sIT))
    A("s_add_u32 s%d, s%d, s%d" % (sOO, sOO, sIT))
    A("s_and_b32 s%d, s%d, 8" % (sIT, sKQ))
    A("s_add_u32 s%d, s%d, s%d" % (sOO, sOO, sIT))
    A("s_mov_b32 s%d, s%d" % (SR2, sOUT))
    A("s_mov_b32 s%d, s%d" % (SR2 + 1, sOUT + 1))
    A("s_mov_b32 s%d, 1792" % (SR2 + 2))
    A("v_lshrrev_b32 v%d, 5, v%d" % (rO, hL))
    A("v_lshl_add_u32 v%d, v%d, 3, v%d" % (rO, rT, rO))
    A("v_bfe_u32 v%d, v%d, 4, 1" % (rT, hL))
    A("v_lshl_add_u32 v%d, v%d, 1, v%d" % (rO, rT, rO))
    A("v_lshlrev_b32 v%d, 1, v%d" % (rO, rO))
    A("s_lshl_b32 s%d, s%d, 9" % (sIT, sHW))
    A("v_lshlrev_b32 v%d, 4, v%d" % (rL, hL))
    A("v_add_u32 v%d, s%d, v%d" % (rL + 2, sIT, rL))
    A("s_cmp_lg_u32 s%d, 0" % sHW)
    A("s_cbranch_scc1 L_h_b2")

    C("helper 0: softmax statistics exchange inside the (b,h) group")
    A("v_and_b32 v%d, %d, v%d" % (hU + 3, NW - 1, hL))
    A("v_lshlrev_b32 v%d, 4, v%d" % (hU + 3, hU + 3))
    sSR, sSW = sTMP, sTMP + 1
    A("s_lshl_b32 s%d, s%d, 10" % (sSR, sGRP))
    A("s_add_u32 s%d, s%d, %d" % (sSR, sSR, WS_STAT))
    A("s_lshl_b32 s%d, s%d, 7" % (sSW, sC))
    A("s_add_u32 s%d, s%d, s%d" % (sSW, sSW, sSR))
    if pre & 2:
        A("s_cmp_eq_u32 s%d, 0" % sSAME)
        A("s_cbranch_scc1 L_nopw1")
        for r in range(4):
            A("v_not_b32 v%d, v%d" % (hP + 12 + r, hU + 9))
        A("s_mov_b64 exec, 0xff")
        A("buffer_store_dwordx4 v[%d:%d], v%d, s[%d:%d], s%d offen" % (hP + 12, hP + 15, rL, WSR, WSR + 3, sSW))
        A("s_mov_b64 exec, -1")
        LB("L_nopw1")
    A("s_mov_b32 s%d, %d" % (sSPIN, spin * 4))
    LB("L_lpoll")
    A("s_sleep 4")
    A("ds_read_b128 v[%d:%d], v%d offset:%d" % (hP, hP + 3, hU + 3, L_STAT))
    A("s_sub_u32 s%d, s%d, 1" % (sSPIN, sSPIN))
    A("s_cmp_eq_u32 s%d, 0" % sSPIN)
    A("s_cbranch_scc1 L_lgo")
    A("s_waitcnt lgkmcnt(0)")
    A("v_cmp_eq_u32 vcc, 0, v%d" % (hP + 2))
    A("s_cbranch_vccnz L_lpoll")
    LB("L_lgo")
    A("s_waitcnt lgkmcnt(0)")
    A("v_mov_b32 v%d, v%d" % (hP + 2, hU + 9))
    A("v_mov_b32 v%d, v%d" % (hP + 3, hU + 9))
    A("s_mov_b64 exec, %d" % ((1 << NW) - 1) if NW <= 4 else "s_mov_b64 exec, 0xff")
    if not abl & 4:
        lab[0] += 1
        A("s_cmp_eq_u32 s%d, 0" % sSAME)
        A("s_cbranch_scc1 L_wt%d" % lab[0])
        A("buffer_store_dwordx4 v[%d:%d], v%d, s[%d:%d], s%d offen" % (hP, hP + 3, hU + 3, WSR, WSR + 3, sSW))
        A("s_branch L_wd%d" % lab[0])
        LB("L_wt%d" % lab[0])
        A("buffer_store_dwordx4 v[%d:%d], v%d, s[%d:%d], s%d offen sc1" % (hP, hP + 3, hU + 3, WSR, WSR + 3, sSW))
        LB("L_wd%d" % lab[0])
    A("s_mov_b64 exec, -1")
    A("v_bfe_u32 v%d, v%d, %d, 3" % (hU + 4, hL, int(math.log2(NW))))
    A("v_lshl_add_u32 v%d, v%d, 7, v%d" % (hU + 4, hU + 4, hU + 3))
    A("s_mov_b32 s%d, %d" % (sSPIN, spin))
    if abl & 4:
        A("s_branch L_sgo")
    LB("L_spoll")
    A("s_sleep 8")
    A("buffer_load_dwordx4 v[%d:%d], v%d, s[%d:%d], s%d offen sc1" % (hP + 4, hP + 7, hU + 4, WSR, WSR + 3, sSR))
    A("s_sub_u32 s%d, s%d, 1" % (sSPIN, sSPIN))
    A("s_cmp_eq_u32 s%d, 0" % sSPIN)
    A("s_cbranch_scc1 L_sgo")
    A("s_waitcnt vmcnt(0)")
    A("v_xor_b32 v%d, v%d, v%d" % (hP + 8, hP + 6, hU + 9))
    A("v_xor_b32 v%d, v%d, v%d" % (hP + 9, hP + 7, hU + 9))
    A("v_or_b32 v%d, v%d, v%d" % (hP + 8, hP + 8, hP + 9))
    A("v_cmp_ne_u32 vcc, 0, v%d" % (hP + 8))
    A("s_cbranch_vccnz L_spoll")
    C("all 8 members of this group have read the epoch; the last of the 32 groups to get here advances it")
    A("s_cmp_lg_u32 s%d, 0" % sC)
    A("s_cbranch_scc1 L_sgo")
    A("s_mov_b32 s%d, 1" % sIT)
    A("s_atomic_add s%d, s[%d:%d], 0 glc" % (sIT, sDBG, sDBG + 1))
    A("s_waitcnt lgkmcnt(0)")
    A("s_cmp_lg_u32 s%d, 31" % sIT)
    A("s_cbranch_scc1 L_sgo")
    A("s_mov_b64 exec, 1")
    A("buffer_store_dword v%d, v%d, s[%d:%d], 0 offen" % (hU + 9, hU + 10, WSR, WSR + 3))
    A("s_mov_b64 exec, -1")
    LB("L_sgo")
    A("s_waitcnt vmcnt(0)")
    stamp(3)
    def allreduce_full(op, r, tmp):
        for c_ in ("quad_perm:[1,0,3,2]", "quad_perm:[2,3,0,1]", "row_half_mirror", "row_mirror"):
            A("s_nop 1")
            A("%s_dpp v%d, v%d, v%d %s row_mask:0xf bank_mask:0xf" % (op, r, r, r, c_))
        sw = ["v_permlane16_swap_b32"] + (["v_permlane32_swap_b32"] if NW == 8 else [])
        for s_ in sw:
            A("v_mov_b32 v%d, v%d" % (tmp, r))
            A("s_nop 1")
            A("%s v%d, v%d" % (s_, r, tmp))
            A("%s v%d, v%d, v%d" % (op, r, r, tmp))
    A("v_mov_b32 v%d, v%d" % (hP + 8, hP + 4))
    allreduce_full("v_max_f32", hP + 8, hP + 9)
    A("v_sub_f32 v%d, v%d, v%d" % (hP + 8, hP + 4, hP + 8))
    A("v_exp_f32 v%d, v%d" % (hP + 8, hP + 8))
    A("s_nop 0")
    A("v_mul_f32 v%d, v%d, v%d" % (hP + 10, hP + 8, hP + 5))
    allreduce_full("v_add_f32", hP + 10, hP + 9)
    A("v_rcp_f32 v%d, v%d" % (hP + 10, hP + 10))
    A("s_mul_i32 s%d, s%d, %d" % (sIT, sC, NW))
    A("v_mul_f32 v%d, v%d, v%d" % (hP + 8, hP + 8, hP + 10))
    for w in range(NW):
        A("s_nop 0")
        A("v_readlane_b32 s%d, v%d, s%d" % (sF + w, hP + 8, sIT))
        A("s_add_u32 s%d, s%d, 1" % (sIT, sIT))
    if pre & 4:
        A("s_cmp_eq_u32 s%d, 0" % sSAME)
        A("s_cbranch_scc1 L_nopw2")
        if pwm:
            assert ctl == 1
            A("s_mov_b32 s%d, %d" % (sSPIN, spin * 4))
            LB("L_pww")
            A("s_sleep 4")
            A("ds_read_b32 v%d, v%d offset:%d" % (hP, hU + 10, L_PROG))
            A("s_sub_u32 s%d, s%d, 1" % (sSPIN, sSPIN))
            A("s_cmp_eq_u32 s%d, 0" % sSPIN)
            A("s_waitcnt lgkmcnt(0)")
            A("s_cbranch_scc1 L_nopw2")
            A("v_cmp_gt_u32 vcc, %d, v%d" % (2 * N - LZ - pwm, hP))
            A("s_cbranch_vccnz L_pww")
        A("v_not_b32 v%d, v%d" % (hP + 4, hU + 9))
        for r in range(4):
            A("v_perm_b32 v%d, v%d, v%d, s%d" % (hP + 12 + r, hP + 4, hP + 4, sSEL + r))
        A("buffer_store_dwordx4 v[%d:%d], v%d, s[%d:%d], s%d offen" % (hP + 12, hP + 15, rL, WSR, WSR + 3, sO1W))
        LB("L_nopw2")
    A("s_barrier")
    LB("L_comb")
    OR = 96
    for w in range(NW):
        A("ds_read_b128 v[%d:%d], v%d offset:%d" % (OR + 4 * w, OR + 4 * w + 3, rL, L_O + 1024 * w))
    for w in range(NW):
        A("s_waitcnt lgkmcnt(%d)" % (NW - 1 - w))
        for r in range(4):
            if w == 0:
                A("v_mul_f32 v%d, s%d, v%d" % (hD + r, sF, OR + r))
            else:
                A("v_fmac_f32 v%d, s%d, v%d" % (hD + r, sF + w, OR + 4 * w + r))
    for r in range(4):
        A("v_perm_b32 v%d, v%d, v%d, s%d" % (hX + r, hD + r, hU + 9, sSEL + r))
    if not abl & 32:
        lab[0] += 1
        A("s_cmp_eq_u32 s%d, 0" % sSAME)
        A("s_cbranch_scc1 L_wt%d" % lab[0])
        A("buffer_store_dwordx4 v[%d:%d], v%d, s[%d:%d], s%d offen" % (hX, hX + 3, rL, WSR, WSR + 3, sO1W))
        A("s_branch L_wd%d" % lab[0])
        LB("L_wt%d" % lab[0])
        A("buffer_store_dwordx4 v[%d:%d], v%d, s[%d:%d], s%d offen sc1" % (hX, hX + 3, rL, WSR, WSR + 3, sO1W))
        LB("L_wd%d" % lab[0])
    A("s_branch L_h_hop1")
    LB("L_h_b2")
    if ctl == 1:
        A("s_cmp_lg_u32 s%d, 1" % sHW)
        A("s_cbranch_scc1 L_h_noctl")
        C("helper 1: bandwidth-share feedback (performance only; results never depend on it)")
        assert NW == 4
        total = NW * ((N - LZ) + N)
        cV = 96
        sPW, sPR, sME, sTG, sXW, sPREV, sXPREV, sREF = sF, sF + 1, sF + 2, sF + 3, sF + 4, sF + 5, sF + 6, sF + 7
        A("s_mov_b32 s%d, 0" % sPREV)
        A("s_mov_b32 s%d, 0" % sXPREV)
        XS = 4096 + 256
        A("s_lshr_b32 s%d, s2, 3" % sME)
        A("s_and_b32 s%d, s2, 7" % sPR)
        A("s_mul_i32 s%d, s%d, %d" % (sXW, sPR, XS))
        A("s_add_u32 s%d, s%d, %d" % (sXW, sXW, WS_XP))
        A("s_lshl_b32 s%d, s%d, 8" % (sPR, sPR))
        A("s_add_u32 s%d, s%d, %d" % (sPR, sPR, WS_PROG))
        A("s_lshl_b32 s%d, s%d, 2" % (sPW, sME))
        A("s_add_u32 s%d, s%d, s%d" % (sPW, sPW, sPR))
        A("s_lshl_b32 s%d, s%d, 16" % (sTG, sTAG))
        A("s_add_u32 s16, s%d, %d" % (sWS, WS_XP))
        A("s_addc_u32 s17, s%d, 0" % (sWS + 1))
        A("v_min_u32 v%d, 32, v%d" % (cV, hL))
        A("v_lshlrev_b32 v%d, 2, v%d" % (cV, cV))
        A("v_mov_b32 v%d, 0" % (cV + 1))
        A("v_and_b32 v%d, 3, v%d" % (cV + 7, hL))
        A("v_lshlrev_b32 v%d, 2, v%d" % (cV + 8, cV + 7))
        A("v_lshlrev_b32 v%d, 8, v%d" % (cV + 7, cV + 7))
        A("v_mov_b32 v%d, 0" % (cV + 2))
        for l_ in range(1, 8 * NF + 1):
            A("s_mov_b32 s%d, 0x%x" % (sIT, pat(l_, NF)))
            A("v_writelane_b32 v%d, s%d, %d" % (cV + 2, sIT, l_))
        A("s_mov_b32 s%d, %d" % (sSPIN, spin))
        LB("L_ctl")
        if cslp:
            A("s_sleep %d" % cslp)
        A("ds_read_b32 v%d, v%d offset:%d" % (cV + 9, cV + 7, L_PROG))
        A("s_sub_u32 s%d, s%d, 1" % (sSPIN, sSPIN))
        A("s_cmp_eq_u32 s%d, 0" % sSPIN)
        A("s_cbranch_scc1 L_h_noctl")
        A("s_waitcnt lgkmcnt(0)")
        A("v_add_u32_dpp v%d, v%d, v%d quad_perm:[1,0,3,2] row_mask:0xf bank_mask:0xf" % (cV + 4, cV + 9, cV + 9))
        A("s_nop 1")
        A("v_add_u32_dpp v%d, v%d, v%d quad_perm:[2,3,0,1] row_mask:0xf bank_mask:0xf" % (cV + 4, cV + 4, cV + 4))
        A("s_nop 0")
        A("v_readfirstlane_b32 s%d, v%d" % (sIT, cV + 4))
        A("v_or_b32 v%d, s%d, v%d" % (cV + 4, sTG, cV + 4))
        A("s_add_u32 s%d, s%d, s%d" % (sREF, sIT, sPREV))
        A("s_mov_b32 s%d, s%d" % (sPREV, sIT))
        A("s_mov_b64 exec, 1")
        A("buffer_store_dword v%d, v%d, s[%d:%d], s%d offen" % (cV + 4, cV + 1, WSR, WSR + 3, sPW))
        A("s_mov_b64 exec, -1")
        A("s_cmp_ge_u32 s%d, %d" % (sIT, total - NW * margin))
        A("s_cbranch_scc1 L_h_noctl")
        A("buffer_load_dword v%d, v%d, s[%d:%d], s%d offen %s" % (cV + 5, cV, WSR, WSR + 3, sPR, cld))
        A("s_waitcnt vmcnt(0)")
        A("v_xor_b32 v%d, s%d, v%d" % (cV + 5, sTG, cV + 5))
        A("v_cmp_gt_u32 vcc, 0x10000, v%d" % (cV + 5))
        A("s_nop 1")
        A("v_cndmask_b32 v%d, 0, v%d, vcc" % (cV + 5, cV + 5))
        A("s_cmp_lg_u32 vcc_lo, -1")
        A("s_cbranch_scc1 L_ctl")
        A("v_readlane_b32 s13, v%d, 32" % (cV + 5))
        for c_ in ("quad_perm:[1,0,3,2]", "quad_perm:[2,3,0,1]", "row_half_mirror", "row_mirror"):
            A("s_nop 1")
            A("v_add_u32_dpp v%d, v%d, v%d %s row_mask:0xf bank_mask:0xf" % (cV + 5, cV + 5, cV + 5, c_))
        A("s_nop 0")
        A("v_readlane_b32 s12, v%d, 0" % (cV + 5))
        A("v_readlane_b32 s14, v%d, 16" % (cV + 5))
        A("s_add_u32 s12, s12, s14")
        if xg:
            A("s_cmp_lg_u32 s%d, 16" % sME)
            A("s_cbranch_scc1 L_ctl_nl")
            C("class leader: swap class totals with the other leaders")
            A("s_or_b32 s14, s12, s%d" % sTG)
            A("v_mov_b32 v%d, s14" % (cV + 10))
            A("s_mov_b64 exec, 1")
            A("buffer_store_dword v%d, v%d, s[%d:%d], s%d offen sc1" % (cV + 10, cV + 1, WSR, WSR + 3, sXW))
            A("s_mov_b64 exec, -1")
            for k in range(8):
                A("s_load_dword s%d, s[16:17], %d glc" % (4 + k, k * XS))
            A("s_waitcnt lgkmcnt(0)")
            A("s_mov_b32 s15, 0")
            A("s_mov_b32 s14, 0")
            for k in range(8):
                A("s_xor_b32 s%d, s%d, s%d" % (4 + k, 4 + k, sTG))
                A("s_or_b32 s14, s14, s%d" % (4 + k))
                A("s_add_u32 s15, s15, s%d" % (4 + k))
            A("s_mul_i32 s4, s%d, %d" % (sXPREV, xa))
            A("s_mul_i32 s5, s12, %d" % (8 - xa))
            A("s_add_u32 s4, s4, s5")
            A("s_mov_b32 s%d, s12" % sXPREV)
            A("s_cmp_lt_u32 s14, 0x10000")
            A("s_cbranch_scc0 L_ctl_nl")
            A("s_sub_u32 s15, s15, s4")
            A("s_ashr_i32 s15, s15, 3")
            A("s_add_u32 s15, s15, 0x8000")
            A("s_and_b32 s15, s15, 0xffff")
            A("s_or_b32 s15, s15, s%d" % sTG)
            A("v_mov_b32 v%d, s15" % (cV + 6))
            A("s_mov_b64 exec, 1")
            A("buffer_store_dword v%d, v%d, s[%d:%d], s%d offen offset:128" % (cV + 6, cV + 1, WSR, WSR + 3, sPR))
            A("s_mov_b64 exec, -1")
            LB("L_ctl_nl")
        A("s_lshl_b32 s14, s%d, 4" % sREF)
        A("s_sub_u32 s12, s12, s14")
        A("s_mul_i32 s12, s12, %d" % gain)
        if xg:
            A("s_cmp_eq_u32 s13, 0")
            A("s_cselect_b32 s13, 0x8000, s13")
            A("s_sub_u32 s13, s13, 0x8000")
            A("s_mul_i32 s13, s13, %d" % xgain)
            A("s_add_u32 s12, s12, s13")
        C("fresh per-wave progress for the intra-workgroup term")
        A("ds_read_b32 v%d, v%d offset:%d" % (cV + 9, cV + 7, L_PROG))
        A("s_add_i32 s12, s12, %d" % (lv0 * 512 + 256))
        A("s_waitcnt lgkmcnt(0)")
        A("v_add_u32_dpp v%d, v%d, v%d quad_perm:[1,0,3,2] row_mask:0xf bank_mask:0xf" % (cV + 4, cV + 9, cV + 9))
        A("v_lshlrev_b32 v%d, 2, v%d" % (cV + 9, cV + 9))
        A("s_nop 0")
        A("v_add_u32_dpp v%d, v%d, v%d quad_perm:[2,3,0,1] row_mask:0xf bank_mask:0xf" % (cV + 4, cV + 4, cV + 4))
        A("v_sub_u32 v%d, v%d, v%d" % (cV + 4, cV + 4, cV + 9))
        A("v_mul_i32_i24 v%d, %d, v%d" % (cV + 4, 32 * wgain, cV + 4))
        A("v_add_u32 v%d, s12, v%d" % (cV + 4, cV + 4))
        A("v_ashrrev_i32 v%d, 9, v%d" % (cV + 4, cV + 4))
        A("v_max_i32 v%d, 0, v%d" % (cV + 4, cV + 4))
        A("v_min_i32 v%d, %d, v%d" % (cV + 4, 8 * NF, cV + 4))
        A("v_lshlrev_b32 v%d, 2, v%d" % (cV + 4, cV + 4))
        A("ds_bpermute_b32 v%d, v%d, v%d" % (cV + 5, cV + 4, cV + 2))
        A("s_waitcnt lgkmcnt(0)")
        A("ds_write_b32 v%d, v%d offset:%d" % (cV + 8, cV + 5, L_MODE))
        A("s_branch L_ctl")
        LB("L_h_noctl")
        A("s_waitcnt vmcnt(0) lgkmcnt(0)")
    if spt:
        C("helpers 2,3: shortly before the stream ends pull the hand-off lines into L2 over the scalar path")
        A("s_cmp_lt_u32 s%d, 2" % sHW)
        A("s_cbranch_scc1 L_nospt")
        if sptm:
            assert ctl == 1
            A("s_mov_b32 s%d, %d" % (sSPIN, spin * 4))
            LB("L_sptw")
            A("s_sleep 8")
            A("ds_read_b32 v%d, v%d offset:%d" % (hP, hU + 10, L_PROG))
            A("s_sub_u32 s%d, s%d, 1" % (sSPIN, sSPIN))
            A("s_cmp_eq_u32 s%d, 0" % sSPIN)
            A("s_waitcnt lgkmcnt(0)")
            A("s_cbranch_scc1 L_nospt")
            A("v_cmp_gt_u32 vcc, %d, v%d" % (2 * N - LZ - sptm, hP))
            A("s_cbranch_vccnz L_sptw")
        A("s_cmp_eq_u32 s%d, 2" % sHW)
        A("s_cbranch_scc1 L_spt2")
        if spt & 1:
            A("s_cmp_lg_u32 s%d, %d" % (sRED, NH - 1))
            A("s_cbranch_scc1 L_nospt")
            A("s_add_u32 s16, s%d, s%d" % (sWS, sYA))
            A("s_addc_u32 s17, s%d, 0" % (sWS + 1))
            if otouch:
                A("buffer_load_ushort v%d, v%d, s[%d:%d], s%d offen nt" % (hP, rO, SR2, SR2 + 3, sOO))
            for k in range(32):
                A("s_load_dword s%d, s[16:17], %d" % (4 + k % 8, k * 512))
                if k % 8 == 7:
                    A("s_waitcnt lgkmcnt(0)")
        A("s_branch L_nospt")
        LB("L_spt2")
        if spt & 2:
            A("s_add_u32 s16, s%d, s%d" % (sWS, sO1W))
            A("s_addc_u32 s17, s%d, 0" % (sWS + 1))
            for k in range(1024 // sptg):
                A("s_load_dword s%d, s[16:17], %d" % (4 + k % 8, k * sptg))
                if k % 8 == 7:
                    A("s_waitcnt lgkmcnt(0)")
        LB("L_nospt")
        A("s_waitcnt vmcnt(0)")
    if dry:
        A("s_cmp_lg_u32 s%d, 2" % sHW)
        A("s_cbranch_scc1 L_h_wait2")
        C("helper 2 walks the tail code once with empty descriptors (loads read 0, stores drop) to warm the instruction cache")
        A("s_mov_b32 s%d, 0" % (WSR + 2))
        A("s_mov_b32 s%d, 0" % (SR2 + 2))
        for r in range(4):
            A("s_mov_b32 s%d, 0" % (sT + r))
        A("s_mov_b32 s%d, 1" % sDRY)
        A("s_mov_b32 s%d, 1" % sSAME)
        A("s_mov_b32 s%d, %d" % (sRED, NH - 1))
        A("s_branch L_comb")
        LB("L_dry_done")
        A("s_waitcnt vmcnt(0) lgkmcnt(0)")
        A("s_mov_b64 exec, -1")
        A("s_mov_b32 s%d, %d" % (WSR + 2, WS_USED))
        A("s_mov_b32 s%d, 1792" % (SR2 + 2))
        for r in range(4):
            A("s_bfe_u32 s%d, s%d, 0x%x" % (sT + r, sTAG, 0x80000 | (8 * r)))
        A("s_mov_b32 s%d, 0" % sDRY)
        A("s_mov_b32 s%d, 0" % sRED)
        LB("L_h_wait2")
    A("s_barrier")
    LB("L_h_hop1")
    if abl & 32:
        A("s_branch L_fin")
    stamp(4)
    A("s_mov_b32 s%d, %d" % (sSPIN, spin))
    def ringpoll(name, K, pad, ring, res, tmp, voff, soff, slp, fail):
        ld = lambda k: A("buffer_load_dwordx4 v[%d:%d], v%d, s[%d:%d], s%d offen sc1" % (ring + 4 * k, ring + 4 * k + 3, voff, WSR, WSR + 3, soff))
        for k in range(K - 1):
            ld(k)
            if pad:
                A("s_nop %d" % (pad - 1))
        LB(name)
        for k in range(K):
            if slp:
                A("s_sleep %d" % slp)
            ld((k + K - 1) % K)
            if k == 0:
                A("s_sub_u32 s%d, s%d, 1" % (sSPIN, sSPIN))
                A("s_cmp_eq_u32 s%d, 0" % sSPIN)
                A("s_cbranch_scc1 %s" % fail)
            elif pad:
                A("s_nop %d" % (pad - 1))
            A("s_waitcnt vmcnt(%d)" % (K - 1))
            if (pstat == 1 and name == "L_opoll") or (pstat == 2 and name == "L_rpoll"):
                A("s_cmp_lg_u32 s%d, %d" % (sSPIN, spin - 1))
                A("s_cbranch_scc1 %s_ns" % name)
                stamp(1)
                LB(name + "_ns")
                A("s_sub_u32 s%d, %d, s%d" % (sST + 4, spin, sSPIN))
                A("s_mul_i32 s%d, s%d, 100" % (sST + 4, sST + 4))
                A("s_add_u32 s%d, s%d, s%d" % (sST + 4, sST + 4, sST))
                A("s_addc_u32 s%d, s%d, 0" % (sST + 5, sST + 1))
            for r in range(4):
                A("v_xor_b32 v%d, s%d, v%d" % (res + r, sT + r, ring + 4 * k + r))
            A("v_or3_b32 v%d, v%d, v%d, v%d" % (tmp, res, res + 1, res + 2))
            A("v_or_b32 v%d, v%d, v%d" % (tmp, tmp, res + 3))
            A("v_and_b32 v%d, 0xff, v%d" % (tmp, tmp))
            A("v_cmp_ne_u32 vcc, 0, v%d" % tmp)
            A("s_and_b64 exec, exec, vcc")
            if k == K - 1:
                A("s_cbranch_scc1 %s" % name)
            else:
                A("s_cbranch_scc0 %s_done" % name)
        LB(name + "_done")
    ringpoll("L_opoll", ok, opad, 136, hP, hP + 4, hU + 1, sO1R, slp1, "L_fin")
    A("s_mov_b64 exec, -1")
    stamp(5)
    A("v_permlane32_swap_b32 v%d, v%d" % (hP, hP + 1))
    A("v_permlane32_swap_b32 v%d, v%d" % (hP + 2, hP + 3))
    A("v_add_f32 v%d, v%d, v%d" % (hP, hP, hP + 1))
    A("v_add_f32 v%d, v%d, v%d" % (hP + 2, hP + 2, hP + 3))
    A("s_nop 1")
    A("v_permlane16_swap_b32 v%d, v%d" % (hP, hP + 2))
    A("v_add_f32 v%d, v%d, v%d" % (hP, hP, hP + 2))
    A("s_nop 1")
    A("v_add_f32_dpp v%d, v%d, v%d row_ror:8 row_mask:0xf bank_mask:0xf" % (hP, hP, hP))
    A("v_cvt_pk_bf16_f32 v%d, v%d, v%d" % (hP, hP, hP))
    A("s_nop 1")
    A2 = [hA, hSEL]
    def buildA(n):
        for r in range(4):
            A("v_and_b32_dpp v%d, v%d, v%d row_newbcast:%d row_mask:0xf bank_mask:0xf" % (A2[n & 1] + r, hP, hMK + r, n))
    buildA(0)
    for n in range(8):
        if n + 1 < 8:
            buildA(n + 1)
        else:
            A("s_nop 1")
        A("v_mfma_f32_16x16x32_bf16 v[%d:%d], v[%d:%d], v[%d:%d], %s" %
          (hD, hD + 3, A2[n & 1], A2[n & 1] + 3, hW + 4 * n, hW + 4 * n + 3, "0" if n == 0 else "v[%d:%d]" % (hD, hD + 3)))
    A("s_mov_b32 exec_hi, 0")
    A("s_cmp_eq_u32 s%d, 0" % sHW)
    A("s_cbranch_scc1 L_ysum")
    A("s_cmp_lg_u32 s%d, 0" % sDRY)
    A("s_nop 3")
    A("ds_write_b128 v%d, v[%d:%d] offset:%d" % (rL + 2, hD, hD + 3, L_Y))
    A("s_cbranch_scc1 L_skip3")
    A("s_waitcnt lgkmcnt(0)")
    A("s_barrier")
    LB("L_skip3")
    stamp(6)
    A("s_cmp_lg_u32 s%d, %d" % (sRED, NH - 1))
    A("s_cbranch_scc1 L_fin")
    A("s_mov_b64 exec, -1")
    A("s_mov_b32 s%d, %d" % (sSPIN, spin))
    ringpoll("L_rpoll", rk, rpad, 136 + 4 * ok, ya, rT, rV, sYA, slp2, "L_fin")
    A("s_mov_b64 exec, -1")
    stamp(3)
    A("v_permlane32_swap_b32 v%d, v%d" % (ya, ya + 1))
    A("v_permlane32_swap_b32 v%d, v%d" % (ya + 2, ya + 3))
    A("v_add_f32 v%d, v%d, v%d" % (ya, ya, ya + 1))
    A("v_add_f32 v%d, v%d, v%d" % (ya + 2, ya + 2, ya + 3))
    A("s_nop 1")
    A("v_permlane16_swap_b32 v%d, v%d" % (ya, ya + 2))
    A("v_add_f32 v%d, v%d, v%d" % (ya, ya, ya + 2))
    for c_ in ("row_ror:8", "row_ror:4", "quad_perm:[2,3,0,1]"):
        A("s_nop 1")
        A("v_add_f32_dpp v%d, v%d, v%d %s row_mask:0xf bank_mask:0xf" % (ya, ya, ya, c_))
    A("v_cvt_pk_bf16_f32 v%d, v%d, v%d" % (ya, ya, ya))
    A("s_mov_b32 exec_lo, 0x00030003")
    A("s_mov_b32 exec_hi, 0x00030003")
    A("buffer_store_short v%d, v%d, s[%d:%d], s%d offen %s" % (ya, rO, SR2, SR2 + 3, sOO, oflags))
    if diag >= 0:
        if dmask:
            A("s_cmp_ge_u32 s2, 8")
            A("s_cbranch_scc1 L_fin")
            A("s_bitcmp0_b32 0x%x, s2" % dmask)
        else:
            A("s_cmp_lg_u32 s2, %d" % dwg)
        A("s_cbranch_scc1 L_fin")
    if diag >= 0:
        C("DIAGNOSTIC ONLY")
        A("s_memrealtime s[%d:%d]" % (sST + 14, sST + 15))
        A("s_waitcnt lgkmcnt(0)")
        A("s_sub_u32 s%d, s%d, s%d" % (sTMP, sST + 2 * diag, sST))
        A("s_min_u32 s%d, s%d, 20000" % (sTMP, sTMP))
        A("s_mul_i32 s%d, s%d, %d" % (sTMP, sTMP, dk))
        if dfix:
            A("s_mov_b32 s%d, %d" % (sTMP, dfix))
        LB("L_diag")
        A("s_memrealtime s[%d:%d]" % (sST + 12, sST + 13))
        A("s_waitcnt lgkmcnt(0)")
        A("s_sub_u32 s%d, s%d, s%d" % (sTMP + 1, sST + 12, sST + 14))
        A("s_cmp_lt_u32 s%d, s%d" % (sTMP + 1, sTMP))
        A("s_cbranch_scc1 L_diag")
    if dry:
        A("s_cmp_lg_u32 s%d, 0" % sDRY)
        A("s_cbranch_scc1 L_ysum2")
    A("s_branch L_fin0")
    LB("L_ysum")
    A("s_barrier")
    LB("L_ysum2")
    for w in range(1, 4):
        A("ds_read_b128 v[%d:%d], v%d offset:%d" % (ya + 4 * w, ya + 4 * w + 3, rL, L_Y + 512 * w))
    A("s_nop 1")
    for w in range(1, 4):
        A("s_waitcnt lgkmcnt(%d)" % (3 - w))
        for r in range(4):
            A("v_add_f32 v%d, v%d, v%d" % (hD + r, hD + r, ya + 4 * w + r))
    for r in range(4):
        A("v_perm_b32 v%d, v%d, v%d, s%d" % (hD + r, hD + r, hU + 9, sSEL + r))
    A("buffer_store_dwordx4 v[%d:%d], v%d, s[%d:%d], s%d offen sc1" % (hD, hD + 3, rL, WSR, WSR + 3, sYW))
    stamp(6)
    if dry:
        A("s_cmp_lg_u32 s%d, 0" % sDRY)
        A("s_cbranch_scc1 L_dry_done")
    A("s_branch L_fin")

    LB("L_fin0")
    stamp(7)
    LB("L_fin")
    stamp_store()
    LB("L_end")
    A("s_endpgm")
    nv = max(vSL + 4 * LZ, 96 + 4 * NW, 136 + 4 * ok + 4 * rk)
    nv = (nv + 7) // 8 * 8
    L.append('.section .rodata,"a"')
    L.append(".p2align 6")
    L.append(".amdhsa_kernel " + KN)
    L.append("  .amdhsa_next_free_vgpr %d" % nv)
    L.append("  .amdhsa_next_free_sgpr 96")
    L.append("  .amdhsa_accum_offset %d" % nv)
    L.append("  .amdhsa_group_segment_fixed_size 0")
    L.append("  .amdhsa_kernarg_size 64")
    L.append("  .amdhsa_user_sgpr_count 2")
    L.append("  .amdhsa_user_sgpr_kernarg_segment_ptr 1")
    L.append("  .amdhsa_system_sgpr_workgroup_id_x 1")
    L.append("  .amdhsa_float_denorm_mode_32 3")
    L.append(".end_amdhsa_kernel")
    return "\n".join(L) + "\n"


def parse(spec):
    kw = {}
    for x in spec.split(","):
        if not x:
            continue
        k, v = x.split("=")
        if k in ("mapping", "kflags", "wflags", "cstf", "cld", "oflags"):
            kw[k] = v.replace("+", " ").replace("def", "")
        else:
            kw[k] = int(v, 0)
    return kw


if __name__ == "__main__":
    names = []
    for spec in sys.argv[1:]:
        name = "k_" + spec.replace(",", "_").replace("=", "") + ".s"
        open(name, "w").write(gen(**parse(spec)))
        names.append(name)
    print(" ".join(names))
```

```python
import sys, math

KN = "standalone__mha_block_cached__decode_kernel"

HEADER = """; Kernarg layout for this problem (64 bytes, ptrs only, base s[0:1]):
"""

WS_EPOCH = 0
WS_Q = 0x1000
WS_STAT = 0x40000
WS_O1 = 0x80000
WS_Y = 0x100000
WS_PROG = 0x60000
WS_XP = 0x68000
WS_QP = 0x200000
WS_USED = 0x400000
STAMP_BASE = 0x10000000
EPOCH_WG = 35

L_Q = 0
L_TAG = 512
L_STAT = 576
L_FLAG = 768
L_MODE = 784
L_O = 1024


def pat(l, nf):
    p8 = lambda f: sum(1 << j for j in range(8) if ((j + 1) * f) // 8 != (j * f) // 8)
    w = 0
    for k in range(nf):
        w |= p8(min(max(l - 8 * k, 0), 8)) << (8 * k)
    return w


def gen(NW=4, D=5, LZ=32, mapping="xg", inter=4, stamps=0, spin=1 << 16, kflags="nt", wflags="nt",
        slp1=0, slp2=0, qslp=0, diag=-1, dk=1, abl=0, rotc=0, rotg=0, gmap=0, roth=0, qtry=24, force_slow=0, pre=0, rk=1, rpad=0, ok=1, opad=0, ctl=0, Dl=4, Dh=7, lv0=12, gain=4, cslp=0, cper=4, cld='sc1', xg=0, xgain=4, margin=12, xa=6, wgain=4, pper=1, b3=1, dry=0, cpf=0, spt=3, sptm=0, pwm=0, pstat=0, sptg=64, qt=1, oflags='', otouch=0, dwg=0, dfix=0, dmask=0, rcls=0):
    L = []
    def A(s): L.append("  " + s)
    def LB(s): L.append(s + ":")
    def C(s): L.append("  ; " + s)
    NH = 4
    N = 512 // NW
    NB = N // 16
    assert LZ % 16 == 0 and LZ >= 16 and D < 16
    LAG = Dh if ctl else D
    lab = [0]
    L_Y = L_O + NW * 1024
    L_PROG = L_Y + 2048
    lds = L_PROG + (NW * 256 if ctl == 1 else 0)
    NF = Dh - Dl
    assert NF <= 4
    L.append(HEADER.rstrip("\n"))
    L.append("; @launch grid=(256,1,1) block=(%d,1,1) lds=%d" % ((NW + NH) * 64, lds))
    L.append('.amdgcn_target "amdgcn-amd-amdhsa--gfx950"')
    L.append(".text")
    L.append(".globl " + KN)
    L.append(".p2align 8")
    L.append(".type %s,@function" % KN)
    LB(KN)

    sX, sK, sV, sWQ, sWO, sOUT, sDBG, sWS = 4, 6, 8, 10, 12, 14, 16, 18
    SRD = 20
    WSR = 24
    SR2 = 28
    sGRP, sC, sB, sH = 32, 33, 34, 35
    sBASE, sOFF, sIT = 36, 37, 38
    sT = 40
    sSEL = 44
    sM2, sM1 = 48, 50
    sF = 52
    sTMP = 60
    sSPIN = 68
    sCS = 69
    sST = 70
    sTAG = 86
    sEX = 88
    nstamp = [0]

    def stamp(k):
        if stamps or (diag >= 0 and k in (0, diag)):
            A("s_memrealtime s[%d:%d]" % (sST + 2 * k, sST + 2 * k + 1))

    def stamp_store():
        if not stamps:
            return
        for _ in range(3):
            A("s_sleep 127")
        A("s_mul_i32 s%d, s2, %d" % (sTMP, NW + NH))
        A("s_add_u32 s%d, s%d, s3" % (sTMP, sTMP))
        A("s_lshl_b32 s%d, s%d, 6" % (sTMP, sTMP))
        A("s_add_u32 s%d, s%d, %d" % (sTMP, sTMP, STAMP_BASE))
        A("s_mov_b32 s%d, 0x20000000" % (WSR + 2))
        A("s_waitcnt lgkmcnt(0)")
        A("s_mov_b64 exec, 1")
        A("v_mov_b32 v1, 0")
        for q in range(4):
            for r in range(4):
                A("v_mov_b32 v%d, s%d" % (4 + 4 * q + r, sST + 4 * q + r))
        for q in range(4):
            A("buffer_store_dwordx4 v[%d:%d], v1, s[%d:%d], s%d offen offset:%d" % (4 + 4 * q, 7 + 4 * q, WSR, WSR + 3, sTMP, 16 * q))

    if stamps:
        for k in range(1, 8):
            A("s_mov_b64 s[%d:%d], 0" % (sST + 2 * k, sST + 2 * k + 1))
    stamp(0)
    A("s_cmp_ge_u32 s2, 256")
    A("s_cbranch_scc1 L_end")
    A("s_load_dwordx16 s[4:19], s[0:1], 0")
    if cpf:
        C("pull this kernel's own code into L2: every workgroup of an XCD class touches a few lines")
        A("s_getpc_b64 s[92:93]")
        A("s_lshr_b32 s94, s2, 3")
        A("s_lshl_b32 s94, s94, 9")
        A("v_lshlrev_b32 v2, 7, v0")
        A("v_add_u32 v2, s94, v2")
        A("v_min_u32 v2, (L_end - %s - 256), v2" % KN)
        A("v_cmp_gt_u32 vcc, 4, v0")
        A("s_and_saveexec_b64 s[94:95], vcc")
        A("s_cbranch_execz L_nopf")
        A("global_load_dword v3, v2, s[92:93]")
        LB("L_nopf")
        A("s_mov_b64 exec, -1")
    A("v_lshrrev_b32 v1, 6, v0")
    A("v_and_b32 v0, 63, v0")
    A("v_readfirstlane_b32 s3, v1")
    if mapping == "lin":
        A("s_lshr_b32 s%d, s2, 3" % sGRP)
        A("s_and_b32 s%d, s2, 7" % sC)
    elif gmap == 0:
        A("s_lshr_b32 s%d, s2, 3" % sTMP)
        A("s_and_b32 s%d, s%d, 7" % (sC, sTMP))
        A("s_and_b32 s%d, s%d, 24" % (sTMP, sTMP))
        A("s_and_b32 s%d, s2, 7" % sGRP)
        A("s_or_b32 s%d, s%d, s%d" % (sGRP, sGRP, sTMP))
    else:
        A("s_and_b32 s%d, s2, 31" % sGRP)
        A("s_lshr_b32 s%d, s2, 5" % sC)
    A("s_mov_b32 s%d, 0x20000" % (SRD + 3))
    A("s_mov_b32 s%d, 0x20000" % (WSR + 3))
    A("s_mov_b32 s%d, 0x20000" % (SR2 + 3))
    A("s_mov_b32 s%d, %d" % (WSR + 2, WS_USED))
    A("s_cmp_ge_u32 s3, %d" % NW)
    A("s_cbranch_scc1 L_helper")

    vOFF = 0
    vQ = 4
    vMK = 8
    vA = 12
    vO = 16
    vT = 20
    vS = 36
    vU = 44
    vLANE = 52
    vSL = 64
    def slot(i): return vSL + 4 * i
    A("v_mov_b32 v%d, v0" % vLANE)
    A("v_lshlrev_b32 v%d, 4, v0" % vOFF)
    GI = 8 if inter == 1 else max(inter, 1)
    if inter == -1: GI = 1
    lgi = int(math.log2(GI))
    span = GI * 512 * 1024
    stride = GI * NW * 4096
    sREG, sPH = 87, 39
    A("s_lshl_b32 s%d, s%d, 22" % (sREG, sGRP))
    A("s_lshr_b32 s%d, s%d, %d" % (sTMP, sC, lgi))
    A("s_mul_i32 s%d, s%d, %d" % (sTMP, sTMP, span))
    A("s_add_u32 s%d, s%d, s%d" % (sREG, sREG, sTMP))
    A("s_and_b32 s%d, s%d, %d" % (sTMP, sC, GI - 1))
    A("s_mul_i32 s%d, s%d, %d" % (sBASE, sTMP, NW * 4096))
    A("s_lshl_b32 s%d, s3, 12" % sTMP)
    A("s_add_u32 s%d, s%d, s%d" % (sBASE, sBASE, sTMP))
    ROT = rotc or rotg or roth
    if ROT:
        A("s_mul_i32 s%d, s%d, %d" % (sTMP, sC, rotc * stride))
        A("s_add_u32 s%d, s%d, s%d" % (sBASE, sBASE, sTMP))
        A("s_mul_i32 s%d, s%d, %d" % (sTMP, sGRP, rotg * stride))
        A("s_add_u32 s%d, s%d, s%d" % (sBASE, sBASE, sTMP))
        if roth:
            A("s_lshr_b32 s%d, s%d, %d" % (sTMP, sC, lgi))
            A("s_mul_i32 s%d, s%d, %d" % (sTMP, sTMP, roth * stride))
            A("s_add_u32 s%d, s%d, s%d" % (sBASE, sBASE, sTMP))
        A("s_and_b32 s%d, s%d, %d" % (sBASE, sBASE, span - 1))
        A("s_mov_b32 s%d, s%d" % (sPH, sBASE))
    A("s_add_u32 s%d, s%d, s%d" % (sBASE, sBASE, sREG))
    A("s_mov_b32 s%d, s%d" % (sOFF, sBASE))
    def advance():
        if ROT:
            A("s_add_u32 s%d, s%d, %d" % (sPH, sPH, stride))
            A("s_and_b32 s%d, s%d, %d" % (sPH, sPH, span - 1))
            A("s_add_u32 s%d, s%d, s%d" % (sOFF, sPH, sREG))
        else:
            A("s_add_u32 s%d, s%d, %d" % (sOFF, sOFF, stride))
    A("s_mov_b32 s%d, 0x8000000" % (SRD + 2))
    A("s_waitcnt lgkmcnt(0)")
    A("s_mov_b32 s%d, s%d" % (SRD, sK))
    A("s_mov_b32 s%d, s%d" % (SRD + 1, sK + 1))

    def issue(idx, sl, adv=True):
        if adv and idx % 4 == 0:
            advance()
        A("buffer_load_dwordx4 v[%d:%d], v%d, s[%d:%d], s%d offen offset:%d %s" %
          (slot(sl), slot(sl) + 3, vOFF, SRD, SRD + 3, sOFF, (idx % 4) * 1024, kflags))

    C("phase P: paced fill of the landing zone")
    for i in range(D):
        issue(i, i, adv=(i > 0))
    A("s_barrier")
    A("s_mov_b32 s%d, s%d" % (WSR, sWS))
    A("s_mov_b32 s%d, s%d" % (WSR + 1, sWS + 1))
    A("s_mov_b32 s%d, 0xcccccccc" % sM2)
    A("s_mov_b32 s%d, 0xcccccccc" % (sM2 + 1))
    A("s_mov_b32 s%d, 0xaaaaaaaa" % sM1)
    A("s_mov_b32 s%d, 0xaaaaaaaa" % (sM1 + 1))
    A("s_mov_b32 s%d, 0x3db8aa3b" % sCS)
    A("v_lshrrev_b32 v%d, 3, v%d" % (vU, vLANE))
    A("v_lshrrev_b32 v%d, 4, v%d" % (vU + 1, vLANE))
    A("v_xor_b32 v%d, v%d, v%d" % (vU, vU, vU + 1))
    A("v_and_b32 v%d, 1, v%d" % (vU, vU))
    A("v_lshlrev_b32 v%d, 2, v%d" % (vU, vU))
    A("v_bfe_u32 v%d, v%d, 1, 2" % (vU + 1, vLANE))
    A("v_or_b32 v%d, v%d, v%d" % (vU, vU, vU + 1))
    A("v_and_b32 v%d, 1, v%d" % (vU + 1, vLANE))
    A("v_lshlrev_b32 v%d, 4, v%d" % (vU + 1, vU + 1))
    A("v_mov_b32 v%d, 0xffff" % (vU + 2))
    A("v_lshlrev_b32 v%d, v%d, v%d" % (vU + 2, vU + 1, vU + 2))
    for r in range(4):
        A("v_cmp_eq_u32 vcc, %d, v%d" % (r, vU))
        A("v_mov_b32 v%d, 0" % (vO + r))
        A("s_nop 0")
        A("v_cndmask_b32 v%d, 0, v%d, vcc" % (vMK + r, vU + 2))
    A("v_and_b32 v%d, 31, v%d" % (vU + 3, vLANE))
    A("v_lshlrev_b32 v%d, 4, v%d" % (vU + 3, vU + 3))
    A("v_mov_b32 v%d, 0" % (vU + 4))
    for i in range(D, LZ):
        A("s_waitcnt vmcnt(%d)" % (D - 1))
        issue(i, i)
    stamp(1)
    A("s_mov_b32 s%d, %d" % (sSPIN, spin * 16))
    LB("L_qwait")
    A("ds_read_b32 v%d, v%d offset:%d" % (vU + 5, vU + 4, L_FLAG))
    A("ds_read_b128 v[%d:%d], v%d offset:%d" % (vQ, vQ + 3, vU + 3, L_Q))
    A("s_sub_u32 s%d, s%d, 1" % (sSPIN, sSPIN))
    A("s_cmp_eq_u32 s%d, 0" % sSPIN)
    A("s_waitcnt lgkmcnt(0)")
    A("s_cbranch_scc1 L_qok")
    A("v_cmp_eq_u32 vcc, 0, v%d" % (vU + 5))
    A("s_cbranch_vccnz L_qwait")
    LB("L_qok")
    stamp(2)

    def kdot(sl, n):
        b = slot(sl)
        A("v_dot2_f32_bf16 v%d, v%d, v%d, 0" % (vT + n, b, vQ))
        for r in range(1, 4):
            A("v_dot2_f32_bf16 v%d, v%d, v%d, v%d" % (vT + n, b + r, vQ + r, vT + n))

    def kreduce():
        t = lambda n: vT + n
        for k in range(NB - 1):
            A("v_mov_b32 v%d, v%d" % (vS + k, vS + k + 1))
        for n in range(8):
            A("v_add_f32_dpp v%d, v%d, v%d row_ror:8 row_mask:0xf bank_mask:0x3" % (t(n), t(n), t(n)))
        for n in range(8):
            A("v_add_f32_dpp v%d, v%d, v%d row_ror:8 row_mask:0xf bank_mask:0xc" % (t(n), t(n + 8), t(n + 8)))
        for n in range(4):
            A("v_add_f32_dpp v%d, v%d, v%d row_half_mirror row_mask:0xf bank_mask:0x5" % (t(n), t(n), t(n)))
        for n in range(4):
            A("v_add_f32_dpp v%d, v%d, v%d row_half_mirror row_mask:0xf bank_mask:0xa" % (t(n), t(n + 4), t(n + 4)))
        A("v_cndmask_b32 v%d, v%d, v%d, s[%d:%d]" % (t(9), t(2), t(0), sM2, sM2 + 1))
        A("v_cndmask_b32 v%d, v%d, v%d, s[%d:%d]" % (t(11), t(3), t(1), sM2, sM2 + 1))
        A("v_cndmask_b32 v%d, v%d, v%d, s[%d:%d]" % (t(8), t(0), t(2), sM2, sM2 + 1))
        A("v_cndmask_b32 v%d, v%d, v%d, s[%d:%d]" % (t(10), t(1), t(3), sM2, sM2 + 1))
        A("s_nop 0")
        A("v_add_f32_dpp v%d, v%d, v%d quad_perm:[2,3,0,1] row_mask:0xf bank_mask:0xf" % (t(0), t(9), t(8)))
        A("v_add_f32_dpp v%d, v%d, v%d quad_perm:[2,3,0,1] row_mask:0xf bank_mask:0xf" % (t(1), t(11), t(10)))
        A("v_cndmask_b32 v%d, v%d, v%d, s[%d:%d]" % (t(9), t(1), t(0), sM1, sM1 + 1))
        A("v_cndmask_b32 v%d, v%d, v%d, s[%d:%d]" % (t(8), t(0), t(1), sM1, sM1 + 1))
        A("s_nop 1")
        A("v_add_f32_dpp v%d, v%d, v%d quad_perm:[1,0,3,2] row_mask:0xf bank_mask:0xf" % (t(0), t(9), t(8)))
        A("v_mov_b32 v%d, v%d" % (t(1), t(0)))
        A("s_nop 1")
        A("v_permlane16_swap_b32 v%d, v%d" % (t(0), t(1)))
        A("v_add_f32 v%d, v%d, v%d" % (t(0), t(0), t(1)))
        A("v_cvt_pk_bf16_f32 v%d, v%d, v%d" % (t(0), t(0), t(0)))
        A("v_and_b32 v%d, 0xffff0000, v%d" % (vS + NB - 1, t(0)))

    sMODE = 90
    vMODE, vCNT, vPA, vMA = 53, 54, 55, 56
    def pace(j):
        if ctl:
            lab[0] += 1
            for k in range(NF - 1, -1, -1):
                A("s_bitcmp1_b32 s%d, %d" % (sMODE, 8 * k + j % 8))
                A("s_cbranch_scc1 L_p%d_%d" % (lab[0], k))
            A("s_waitcnt vmcnt(%d)" % (Dl - 1))
            for k in range(NF):
                LB("L_p%d_%d" % (lab[0], k))
                A("s_waitcnt vmcnt(%d)" % (Dl + k))
        else:
            A("s_waitcnt vmcnt(%d)" % (LAG - 1))

    def progress(j):
        if ctl == 1 and j % pper == pper - 1:
            A("v_add_u32 v%d, %d, v%d" % (vCNT, pper, vCNT))
            A("ds_write_b32 v%d, v%d offset:%d" % (vPA, vCNT, L_PROG))

    def checkpoint(last_hi=False):
        if ctl == 1:
            A("s_waitcnt lgkmcnt(0)")
            A("v_readfirstlane_b32 s%d, v%d" % (sMODE, vMODE))
            A("ds_read_b32 v%d, v%d offset:%d" % (vMODE, vMA, L_MODE))
        if ctl and last_hi:
            A("s_cmp_eq_u32 s%d, 1" % sIT)
            A("s_cselect_b32 s%d, -1, s%d" % (sMODE, sMODE))

    C("catch-up: consume the landing zone, keep D loads in flight")
    if ctl:
        A("s_mov_b32 s%d, 0x%x" % (sMODE, pat(lv0, NF)))
        A("v_mov_b32 v%d, 0" % vCNT)
        A("s_lshl_b32 s%d, s3, 8" % sTMP)
        A("v_lshl_add_u32 v%d, v%d, 2, s%d" % (vPA, vLANE, sTMP))
        A("s_lshl_b32 s%d, s3, 2" % sTMP)
        A("v_mov_b32 v%d, s%d" % (vMA, sTMP))
        A("v_mov_b32 v%d, s%d" % (vMODE, sMODE))
    free = LZ - D
    pts = []
    for e in range(LAG):
        p = max(e, int(round((e + 0.5) * free / LAG)) - 1)
        p = min(p, free - 1 + e, LZ - 1)
        pts.append(p)
    assert LZ + LAG <= N
    for j in range(LZ):
        kdot(j, j % 16)
        for e in range(LAG):
            if pts[e] == j:
                A("s_waitcnt vmcnt(%d)" % (D - 1))
                issue(LZ + e, e)
        if j % 16 == 15:
            kreduce()
    for e in range(LAG):
        assert e <= pts[e] < free + e, (pts, free)

    C("steady K loop")
    nit = (N - LZ) // 16
    A("s_mov_b32 s%d, %d" % (sIT, nit))
    LB("L_kloop")
    for j in range(16):
        if j % cper == 0:
            checkpoint()
        pace(j)
        if (j + LAG) % 16 == 0:
            advance()
            A("s_cmp_eq_u32 s%d, 1" % sIT)
            A("s_cselect_b32 s%d, s%d, s%d" % (SRD, sV, SRD))
            A("s_cselect_b32 s%d, s%d, s%d" % (SRD + 1, sV + 1, SRD + 1))
            A("s_cselect_b32 s%d, s%d, s%d" % (sOFF, sBASE, sOFF))
            issue(j + LAG, (j + LAG) % 16, adv=False)
        else:
            issue(j + LAG, (j + LAG) % 16)
        progress(j)
        kdot(j, j)
    kreduce()
    A("s_sub_u32 s%d, s%d, 1" % (sIT, sIT))
    A("s_cmp_lg_u32 s%d, 0" % sIT)
    A("s_cbranch_scc1 L_kloop")

    C("softmax over this wave's keys")
    stamp(3)
    m = vU
    A("v_max3_f32 v%d, v%d, v%d, v%d" % (m, vS, vS + 1, vS + 2))
    k = 3
    while k + 1 < NB:
        A("v_max3_f32 v%d, v%d, v%d, v%d" % (m, m, vS + k, vS + k + 1))
        k += 2
    if k < NB:
        A("v_max_f32 v%d, v%d, v%d" % (m, m, vS + k))
    def allreduce(op, r, tmp, half=True):
        for c_ in ("quad_perm:[1,0,3,2]", "quad_perm:[2,3,0,1]", "row_half_mirror", "row_mirror"):
            A("s_nop 1")
            A("%s_dpp v%d, v%d, v%d %s row_mask:0xf bank_mask:0xf" % (op, r, r, r, c_))
        if half:
            A("v_mov_b32 v%d, v%d" % (tmp, r))
            A("s_nop 1")
            A("v_permlane32_swap_b32 v%d, v%d" % (r, tmp))
            A("%s v%d, v%d, v%d" % (op, r, r, tmp))
    allreduce("v_max_f32", m, vU + 1)
    A("v_mul_f32 v%d, s%d, v%d" % (vU + 4, sCS, m))
    for k in range(NB):
        A("v_fma_f32 v%d, v%d, s%d, -v%d" % (vS + k, vS + k, sCS, vU + 4))
    for k in range(NB):
        A("v_exp_f32 v%d, v%d" % (vS + k, vS + k))
    l = vU + 5
    A("v_add_f32 v%d, v%d, v%d" % (l, vS, vS + 1))
    for k in range(2, NB):
        A("v_add_f32 v%d, v%d, v%d" % (l, l, vS + k))
    for k in range(NB):
        A("v_cvt_pk_bf16_f32 v%d, v%d, v%d" % (vS + k, vS + k, vS + k))
    allreduce("v_add_f32", l, vU + 1)
    A("v_mov_b32 v%d, 1" % (vU + 6))
    A("v_mov_b32 v%d, 1" % (vU + 7))
    A("s_lshl_b32 s%d, s3, 4" % sTMP)
    A("v_mov_b32 v%d, s%d" % (vU + 1, sTMP))
    A("ds_write_b128 v%d, v[%d:%d] offset:%d" % (vU + 1, vU + 4, vU + 7, L_STAT))

    C("V loop")
    A("s_mov_b32 s%d, %d" % (sIT, NB))
    LB("L_vloop")
    for j in range(16):
        if j % cper == 0:
            checkpoint(last_hi=(j + cper > 16 - LAG))
        for r in range(4):
            A("v_and_b32_dpp v%d, v%d, v%d row_newbcast:%d row_mask:0xf bank_mask:0xf" % (vA + r, vS, vMK + r, j))
        pace(j)
        if (j + LAG) % 16 == 0:
            advance()
            A("s_cmp_eq_u32 s%d, 1" % sIT)
            A("s_cselect_b32 s%d, 0x10000000, s%d" % (sOFF, sOFF))
            if ROT:
                A("s_cselect_b32 s%d, 0x10000000, s%d" % (sREG, sREG))
            issue(j + LAG, (j + LAG) % 16, adv=False)
        else:
            issue(j + LAG, (j + LAG) % 16)
        A("v_mfma_f32_16x16x32_bf16 v[%d:%d], v[%d:%d], v[%d:%d], v[%d:%d]" %
          (vO, vO + 3, vA, vA + 3, slot(j), slot(j) + 3, vO, vO + 3))
        progress(j)
    for k in range(NB - 1):
        A("v_mov_b32 v%d, v%d" % (vS + k, vS + k + 1))
    A("s_sub_u32 s%d, s%d, 1" % (sIT, sIT))
    A("s_cmp_lg_u32 s%d, 0" % sIT)
    A("s_cbranch_scc1 L_vloop")
    A("s_lshl_b32 s%d, s3, 10" % sTMP)
    A("v_add_u32 v%d, s%d, v%d" % (vU, sTMP, vOFF))
    pad = 8 - (NB - 1) - 3 - 2
    if pad > 0:
        A("s_nop %d" % (pad - 1))
    A("ds_write_b128 v%d, v[%d:%d] offset:%d" % (vU, vO, vO + 3, L_O))
    A("s_waitcnt lgkmcnt(0)")
    stamp(4)
    A("s_barrier")
    A("s_and_b32 s%d, s2, 7" % sTMP)
    A("s_cmp_eq_u32 s%d, %d" % (sTMP, rcls))
    A("s_cbranch_scc1 L_redset")
    if b3:
        A("s_barrier")
    A("s_branch L_fin")

    LB("L_helper")
    hL = 0
    hG, hJ = 1, 2
    hU = 4
    hX = 16
    hSEL = 32
    hA = 36
    hD = 40
    hMK = 44
    hP = 48
    hW = 64
    sHW = 39
    A("s_sub_u32 s%d, s3, %d" % (sHW, NW))
    A("v_lshrrev_b32 v%d, 4, v%d" % (hG, hL))
    A("v_and_b32 v%d, 15, v%d" % (hJ, hL))
    A("s_lshr_b32 s%d, s%d, 4" % (sB, sGRP))
    A("s_and_b32 s%d, s%d, 15" % (sH, sGRP))
    A("s_mov_b32 s%d, %d" % (SRD + 2, 448 * 8192))
    for r in range(4):
        A("s_mov_b32 s%d, 0x%08x" % (sSEL + r, 0x07060500 | r))
    A("s_cmp_lg_u32 s%d, 0" % sHW)
    A("s_cbranch_scc1 L_h_other")

    C("helper 0: one 112-row x 64-column tile of q = x @ wq for this head, both batches")
    sTILE, sRQ, sCSL, sQW, sQR, sSAME, sQT = 87, sTMP + 1, sTMP + 2, 94, 95, 89, sF
    A("v_mov_b32 v%d, 0" % (hU + 10))
    A("v_lshlrev_b32 v%d, 2, v%d" % (hU + 5, hL))
    A("ds_write_b32 v%d, v%d offset:%d" % (hU + 5, hU + 10, L_STAT))
    A("v_mul_u32_u24 v%d, %d, v%d" % (hU, 28 * 8192, hG))
    A("v_lshl_add_u32 v%d, v%d, 3, v%d" % (hU, hJ, hU))
    A("v_bfe_u32 v%d, v%d, 2, 1" % (hU + 1, hL))
    A("v_mul_u32_u24 v%d, 896, v%d" % (hU + 1, hU + 1))
    A("v_mul_u32_u24 v%d, 56, v%d" % (hU + 2, hG))
    A("v_add_u32 v%d, v%d, v%d" % (hU + 1, hU + 1, hU + 2))
    A("s_lshl_b32 s%d, s%d, 3" % (sTILE, sB))
    A("s_add_u32 s%d, s%d, s%d" % (sTILE, sTILE, sC))
    A("s_lshl_b32 s%d, s%d, 13" % (sQW, sH))
    A("s_add_u32 s%d, s%d, %d" % (sQW, sQW, WS_Q))
    A("s_mov_b32 s%d, 1" % sSAME)
    A("s_mov_b32 s%d, 1792" % (SR2 + 2))
    A("s_getreg_b32 s%d, hwreg(HW_REG_XCC_ID, 0, 4)" % (sTMP + 3))
    A("s_waitcnt lgkmcnt(0)")
    A("s_load_dword s%d, s[%d:%d], %d" % (sTAG, sWS, sWS + 1, WS_EPOCH))
    A("s_mov_b32 s%d, s%d" % (SR2, sX))
    A("s_mov_b32 s%d, s%d" % (SR2 + 1, sX + 1))
    A("s_mov_b32 s%d, s%d" % (SRD, sWQ))
    A("s_mov_b32 s%d, s%d" % (SRD + 1, sWQ + 1))
    A("s_mov_b32 s%d, s%d" % (WSR, sWS))
    A("s_mov_b32 s%d, s%d" % (WSR + 1, sWS + 1))
    LB("L_tile")
    A("s_lshr_b32 s%d, s%d, 2" % (sRQ, sTILE))
    A("s_and_b32 s%d, s%d, 3" % (sCSL, sTILE))
    A("s_mul_i32 s%d, s%d, %d" % (sOFF, sRQ, 112 * 8192))
    A("s_lshl_b32 s%d, s%d, 9" % (sIT, sH))
    A("s_add_u32 s%d, s%d, s%d" % (sOFF, sOFF, sIT))
    A("s_lshl_b32 s%d, s%d, 7" % (sIT, sCSL))
    A("s_add_u32 s%d, s%d, s%d" % (sOFF, sOFF, sIT))
    A("s_mul_i32 s%d, s%d, 224" % (sBASE, sRQ))
    for q in range(3):
        A("buffer_load_dwordx4 v[%d:%d], v%d, s[%d:%d], s%d offen offset:%d" % (hX + 4 * q, hX + 4 * q + 3, hU + 1, SR2, SR2 + 3, sBASE, 16 * q))
    A("buffer_load_dwordx2 v[%d:%d], v%d, s[%d:%d], s%d offen offset:48" % (hX + 12, hX + 13, hU + 1, SR2, SR2 + 3, sBASE))
    for n in range(28 if not abl & 16 else 0):
        A("buffer_load_dwordx2 v[%d:%d], v%d, s[%d:%d], s%d offen %s" % (hW + 2 * n, hW + 2 * n + 1, hU, SRD, SRD + 3, sOFF, wflags))
        if n < 27:
            A("s_add_u32 s%d, s%d, 8192" % (sOFF, sOFF))
    A("s_cmp_eq_u32 s%d, 0" % sSAME)
    A("s_cbranch_scc1 L_tile_go")
    C("first pass only: B0 and one-time set-up")
    A("s_barrier")
    A("v_and_b32 v%d, 1, v%d" % (hU + 2, hL))
    A("v_lshlrev_b32 v%d, 4, v%d" % (hU + 2, hU + 2))
    A("v_bfe_u32 v%d, v%d, 1, 1" % (hU + 3, hL))
    A("v_bfe_u32 v%d, v%d, 3, 1" % (hU + 4, hL))
    A("v_lshl_add_u32 v%d, v%d, 1, v%d" % (hU + 3, hU + 4, hU + 3))
    A("v_mov_b32 v%d, 0x0c0c0c0c" % (hU + 6))
    for par, src in ((0, 0x0100), (1, 0x0302)):
        A("v_mov_b32 v%d, 0x%x" % (hU + 4, src ^ 0x0c0c))
        A("v_lshlrev_b32 v%d, v%d, v%d" % (hU + 4, hU + 2, hU + 4))
        A("v_xor_b32 v%d, v%d, v%d" % (hU + 4, hU + 6, hU + 4))
        for r in range(2):
            A("v_cmp_eq_u32 vcc, %d, v%d" % (r, hU + 3))
            A("s_nop 1")
            A("v_cndmask_b32 v%d, v%d, v%d, vcc" % (hSEL + 2 * par + r, hU + 6, hU + 4))
    A("s_waitcnt lgkmcnt(0)")
    A("s_add_u32 s%d, s%d, 0x01011001" % (sTAG, sTAG))
    A("v_mov_b32 v%d, s%d" % (hU + 9, sTAG))
    A("ds_write_b32 v%d, v%d offset:%d" % (hU + 10, hU + 9, L_TAG))
    if ctl == 1:
        A("v_mov_b32 v%d, 0x%x" % (hU + 4, pat(lv0, NF)))
        A("v_and_b32 v%d, %d, v%d" % (hU + 3, NW - 1, hL))
        A("v_lshlrev_b32 v%d, 2, v%d" % (hU + 2, hU + 3))
        A("ds_write_b32 v%d, v%d offset:%d" % (hU + 2, hU + 4, L_MODE))
        A("v_lshlrev_b32 v%d, 8, v%d" % (hU + 3, hU + 3))
        A("ds_write_b32 v%d, v%d offset:%d" % (hU + 3, hU + 10, L_PROG))
    for r in range(4):
        A("s_bfe_u32 s%d, s%d, 0x%x" % (sT + r, sTAG, 0x80000 | (8 * r)))
    C("q tiles carry the producer's XCC id in their tag: accepting one proves a shared L2")
    A("s_lshl_b32 s%d, s%d, 8" % (sIT, sTMP + 3))
    A("s_xor_b32 s%d, s%d, s%d" % (sIT, sIT, sTAG))
    A("v_mov_b32 v%d, s%d" % (hU + 6, sIT))
    for r in range(4):
        A("s_bfe_u32 s%d, s%d, 0x%x" % (sQT + r, sIT, 0x80000 | (8 * r)))
    LB("L_tile_go")
    for r in range(4):
        A("v_mov_b32 v%d, 0" % (hD + r))
    A("s_lshl_b32 s%d, s%d, 8" % (sOFF, sTILE))
    A("s_add_u32 s%d, s%d, s%d" % (sOFF, sOFF, sQW))
    A("v_lshlrev_b32 v%d, 12, v%d" % (hU + 7, hG))
    A("v_lshl_add_u32 v%d, v%d, 4, v%d" % (hU + 7, hJ, hU + 7))
    A("s_lshl_b32 s%d, s%d, 12" % (sQR, sB))
    A("s_add_u32 s%d, s%d, s%d" % (sQR, sQR, sQW))
    A("v_lshlrev_b32 v%d, 4, v%d" % (hU + 8, hL))
    PW = 1 if pre & 1 else 0
    if PW:
        C("allocate the tile's lines in L2 with a not-yet-valid tag so early polls do not miss to memory")
        A("v_not_b32 v%d, v%d" % (hP + 4, hU + 6))
        for r in range(4):
            A("v_perm_b32 v%d, v%d, v%d, s%d" % (hP + r, hP + 4, hP + 4, sSEL + r))
        A("s_mov_b32 exec_hi, 0")
        A("buffer_store_dwordx4 v[%d:%d], v%d, s[%d:%d], s%d offen" % (hP, hP + 3, hU + 7, WSR, WSR + 3, sOFF))
        A("s_mov_b32 exec_hi, -1")
    A("s_waitcnt vmcnt(%d)" % (28 + PW))
    for n in range(28):
        a = hA + 2 * (n & 1)
        for r in range(2):
            A("v_perm_b32 v%d, v%d, v%d, v%d" % (a + r, hX + (n >> 1), hX + (n >> 1), hSEL + 2 * (n & 1) + r))
        A("s_waitcnt vmcnt(%d)" % (27 - n + PW))
        A("s_nop 0")
        A("v_mfma_f32_16x16x16_bf16 v[%d:%d], v[%d:%d], v[%d:%d], v[%d:%d]" %
          (hD, hD + 3, a, a + 1, hW + 2 * n, hW + 2 * n + 1, hD, hD + 3))
    A("s_nop 7")
    for r in range(4):
        A("v_perm_b32 v%d, v%d, v%d, s%d" % (hMK + r, hD + r, hU + 6, sSEL + r))
    A("s_mov_b32 exec_hi, 0")
    if not abl & 2:
        A("buffer_store_dwordx4 v[%d:%d], v%d, s[%d:%d], s%d offen" % (hMK, hMK + 3, hU + 7, WSR, WSR + 3, sOFF))
    A("s_mov_b32 exec_hi, -1")
    stamp(1)
    A("s_mov_b32 s%d, %d" % (sSPIN, qtry))
    A("s_cmp_lg_u32 s%d, 0" % sSAME)
    A("s_cbranch_scc1 L_qpoll0")
    A("s_waitcnt vmcnt(0)")
    A("s_add_u32 s%d, s%d, 1" % (sTILE, sTILE))
    A("s_cmp_lt_u32 s%d, 16" % sTILE)
    A("s_cbranch_scc1 L_tile")
    A("s_mov_b32 s%d, %d" % (sSPIN, spin))
    LB("L_qpoll0")
    if abl & 1:
        A("s_branch L_qgo")
    if force_slow:
        A("s_cmp_lg_u32 s%d, 0" % sSAME)
        A("s_cbranch_scc1 L_qfail")
    LB("L_qpoll")
    if qslp:
        A("s_sleep %d" % qslp)
    for q in range(4):
        A("buffer_load_dwordx4 v[%d:%d], v%d, s[%d:%d], s%d offen offset:%d sc1" % (hP + 4 * q, hP + 4 * q + 3, hU + 8, WSR, WSR + 3, sQR, 1024 * q))
    A("s_waitcnt vmcnt(0)")
    for q in range(4):
        for r in range(4):
            A("v_xor_b32 v%d, s%d, v%d" % (hP + 4 * q + r, sQT + r, hP + 4 * q + r))
    A("v_or3_b32 v%d, v%d, v%d, v%d" % (hU + 11, hP, hP + 1, hP + 2))
    for k in range(3, 15, 2):
        A("v_or3_b32 v%d, v%d, v%d, v%d" % (hU + 11, hU + 11, hP + k, hP + k + 1))
    A("v_or_b32 v%d, v%d, v%d" % (hU + 11, hU + 11, hP + 15))
    A("v_and_b32 v%d, 0xff, v%d" % (hU + 11, hU + 11))
    A("v_cmp_ne_u32 vcc, 0, v%d" % (hU + 11))
    A("s_cbranch_vccz L_qgo")
    A("s_sub_u32 s%d, s%d, 1" % (sSPIN, sSPIN))
    A("s_cmp_lg_u32 s%d, 0" % sSPIN)
    A("s_cbranch_scc1 L_qpoll")
    A("s_cmp_eq_u32 s%d, 0" % sSAME)
    A("s_cbranch_scc1 L_qgo")
    LB("L_qfail")
    C("some producer of this head is not behind our L2 (or is very late): compute all 16 tiles here")
    A("s_mov_b32 s%d, 0" % sSAME)
    A("s_mov_b32 s%d, 0" % sTILE)
    A("s_lshl_b32 s%d, s2, 13" % sQW)
    A("s_add_u32 s%d, s%d, %d" % (sQW, sQW, WS_QP))
    A("s_branch L_tile")
    LB("L_qgo")
    for r in range(4):
        A("v_add_f32 v%d, v%d, v%d" % (hP + r, hP + r, hP + 4 + r))
        A("v_add_f32 v%d, v%d, v%d" % (hP + 8 + r, hP + 8 + r, hP + 12 + r))
    for r in range(4):
        A("v_add_f32 v%d, v%d, v%d" % (hP + r, hP + r, hP + 8 + r))
    A("v_cvt_pk_bf16_f32 v%d, v%d, v%d" % (hP, hP, hP + 1))
    A("v_cvt_pk_bf16_f32 v%d, v%d, v%d" % (hP + 1, hP + 2, hP + 3))
    A("v_lshlrev_b32 v%d, 3, v%d" % (hU + 11, hL))
    A("v_mov_b32 v%d, 1" % (hP + 2))
    A("ds_write_b64 v%d, v[%d:%d] offset:%d" % (hU + 11, hP, hP + 1, L_Q))
    A("s_waitcnt lgkmcnt(0)")
    A("ds_write_b32 v%d, v%d offset:%d" % (hU + 10, hP + 2, L_FLAG))
    stamp(2)
    A("s_branch L_h_common")

    LB("L_h_other")
    A("v_mov_b32 v%d, 0" % (hU + 10))
    A("s_mov_b32 s%d, 0" % sSAME)
    A("s_waitcnt lgkmcnt(0)")
    A("s_mov_b32 s%d, s%d" % (WSR, sWS))
    A("s_mov_b32 s%d, s%d" % (WSR + 1, sWS + 1))
    if qt:
        C("helper 1 reads this workgroup's q-tile and statistics lines once (scalar path) so later polls hit L2")
        A("s_cmp_lg_u32 s%d, 1" % sHW)
        A("s_cbranch_scc1 L_noqt")
        A("s_lshl_b32 s%d, s%d, 3" % (sIT, sB))
        A("s_add_u32 s%d, s%d, s%d" % (sIT, sIT, sC))
        A("s_lshl_b32 s%d, s%d, 8" % (sIT, sIT))
        A("s_lshl_b32 s%d, s%d, 13" % (sOFF, sH))
        A("s_add_u32 s%d, s%d, s%d" % (sIT, sIT, sOFF))
        A("s_add_u32 s%d, s%d, s%d" % (sTMP, sWS, sIT))
        A("s_addc_u32 s%d, s%d, 0" % (sTMP + 1, sWS + 1))
        for k in range(8):
            A("s_load_dword s%d, s[%d:%d], %d" % (sF + k, sTMP, sTMP + 1, WS_Q + (k >> 2) * 4096 + (k & 3) * 64))
        A("s_lshl_b32 s%d, s%d, 3" % (sIT, sGRP))
        A("s_add_u32 s%d, s%d, s%d" % (sIT, sIT, sC))
        A("s_lshl_b32 s%d, s%d, 7" % (sIT, sIT))
        A("s_add_u32 s%d, s%d, s%d" % (sTMP + 2, sWS, sIT))
        A("s_addc_u32 s%d, s%d, 0" % (sTMP + 3, sWS + 1))
        for k in range(2):
            A("s_load_dword s%d, s[%d:%d], %d" % (sTMP + 4 + k, sTMP + 2, sTMP + 3, WS_STAT + k * 64))
        LB("L_noqt")
    A("s_barrier")
    A("s_mov_b32 s%d, %d" % (sSPIN, spin * 4))
    LB("L_hwait")
    A("s_sleep 8")
    A("ds_read_b32 v%d, v%d offset:%d" % (hU + 8, hU + 10, L_FLAG))
    A("ds_read_b32 v%d, v%d offset:%d" % (hU + 9, hU + 10, L_TAG))
    A("s_sub_u32 s%d, s%d, 1" % (sSPIN, sSPIN))
    A("s_cmp_eq_u32 s%d, 0" % sSPIN)
    A("s_waitcnt lgkmcnt(0)")
    A("s_cbranch_scc1 L_hok")
    A("v_cmp_eq_u32 vcc, 0, v%d" % (hU + 8))
    A("s_cbranch_vccnz L_hwait")
    LB("L_hok")
    A("v_readfirstlane_b32 s%d, v%d" % (sTAG, hU + 9))
    A("s_nop 0")
    for r in range(4):
        A("s_bfe_u32 s%d, s%d, 0x%x" % (sT + r, sTAG, 0x80000 | (8 * r)))

    LB("L_h_common")
    C("prefetch this wave's wo fragment: rows h*256+128*(c>>2)+64*(hw&1)+4*(hw>>1)+8n+(g>>1)+2(g&1), cols 112*(c&3) + 8*min(j,13)")
    sSL, sCB = sTMP, sTMP + 1
    A("s_mov_b32 s%d, s%d" % (SRD, sWO))
    A("s_mov_b32 s%d, s%d" % (SRD + 1, sWO + 1))
    A("v_min_u32 v%d, 13, v%d" % (hU, hJ))
    A("v_lshlrev_b32 v%d, 4, v%d" % (hU, hU))
    A("v_lshrrev_b32 v%d, 1, v%d" % (hU + 1, hG))
    A("v_and_b32 v%d, 1, v%d" % (hU + 2, hG))
    A("v_lshl_add_u32 v%d, v%d, 1, v%d" % (hU + 1, hU + 2, hU + 1))
    A("v_mul_u32_u24 v%d, 896, v%d" % (hU + 1, hU + 1))
    A("v_add_u32 v%d, v%d, v%d" % (hU, hU, hU + 1))
    A("s_and_b32 s%d, s%d, 4" % (sSL, sC))
    A("s_add_u32 s%d, s%d, s%d" % (sSL, sSL, sHW))
    A("s_and_b32 s%d, s%d, 3" % (sCB, sC))
    A("s_lshl_b32 s%d, s%d, 8" % (sOFF, sH))
    A("s_lshr_b32 s%d, s%d, 2" % (sIT, sC))
    A("s_lshl_b32 s%d, s%d, 7" % (sIT, sIT))
    A("s_add_u32 s%d, s%d, s%d" % (sOFF, sOFF, sIT))
    A("s_and_b32 s%d, s%d, 1" % (sIT, sHW))
    A("s_lshl_b32 s%d, s%d, 6" % (sIT, sIT))
    A("s_add_u32 s%d, s%d, s%d" % (sOFF, sOFF, sIT))
    A("s_lshr_b32 s%d, s%d, 1" % (sIT, sHW))
    A("s_lshl_b32 s%d, s%d, 2" % (sIT, sIT))
    A("s_add_u32 s%d, s%d, s%d" % (sOFF, sOFF, sIT))
    A("s_mul_i32 s%d, s%d, 896" % (sOFF, sOFF))
    A("s_mul_i32 s%d, s%d, 224" % (sIT, sCB))
    A("s_add_u32 s%d, s%d, s%d" % (sOFF, sOFF, sIT))
    for n in range(8 if not abl & 8 else 0):
        A("buffer_load_dwordx4 v[%d:%d], v%d, s[%d:%d], s%d offen %s" %
          (hW + 4 * n, hW + 4 * n + 3, hU, SRD, SRD + 3, sOFF, wflags))
        A("s_add_u32 s%d, s%d, %d" % (sOFF, sOFF, 8 * 896))
        A("s_waitcnt vmcnt(0)")
    A("v_lshrrev_b32 v%d, 1, v%d" % (hU + 1, hJ))
    A("v_and_b32 v%d, 1, v%d" % (hU + 2, hL))
    A("v_lshlrev_b32 v%d, 4, v%d" % (hU + 2, hU + 2))
    A("v_mov_b32 v%d, 0xffff" % (hU + 3))
    A("v_lshlrev_b32 v%d, v%d, v%d" % (hU + 3, hU + 2, hU + 3))
    for r in range(4):
        A("v_cmp_eq_u32 vcc, %d, v%d" % (r, hU + 1))
        A("s_nop 1")
        A("v_cndmask_b32 v%d, 0, v%d, vcc" % (hMK + r, hU + 3))
    A("v_lshrrev_b32 v%d, 3, v%d" % (hU + 1, hL))
    A("v_lshlrev_b32 v%d, 10, v%d" % (hU + 1, hU + 1))
    A("v_and_b32 v%d, 7, v%d" % (hU + 2, hL))
    A("v_lshl_add_u32 v%d, v%d, 4, v%d" % (hU + 1, hU + 2, hU + 1))
    sO1R, sO1W, sYW = sTMP + 4, sTMP + 5, sTMP + 6
    A("s_lshl_b32 s%d, s%d, 13" % (sO1R, sGRP))
    A("s_add_u32 s%d, s%d, %d" % (sO1R, sO1R, WS_O1))
    A("s_lshl_b32 s%d, s%d, 10" % (sIT, sC))
    A("s_add_u32 s%d, s%d, s%d" % (sO1W, sO1R, sIT))
    A("s_lshl_b32 s%d, s%d, 7" % (sIT, sSL))
    A("s_add_u32 s%d, s%d, s%d" % (sO1R, sO1R, sIT))
    A("s_lshl_b32 s%d, s%d, 2" % (sYW, sB))
    A("s_add_u32 s%d, s%d, s%d" % (sYW, sYW, sCB))
    A("s_lshl_b32 s%d, s%d, 4" % (sYW, sYW))
    A("s_add_u32 s%d, s%d, s%d" % (sYW, sYW, sH))
    A("s_lshl_b32 s%d, s%d, 1" % (sYW, sYW))
    A("s_lshr_b32 s%d, s%d, 2" % (sIT, sC))
    A("s_add_u32 s%d, s%d, s%d" % (sYW, sYW, sIT))
    A("s_lshl_b32 s%d, s%d, 9" % (sYW, sYW))
    A("s_add_u32 s%d, s%d, %d" % (sYW, sYW, WS_Y))
    sYA, sOO = 90, 92
    rV, rO, ya, rT, rL = 128, 129, 100, 130, 132
    A("s_lshl_b32 s%d, s%d, 9" % (sIT, sHW))
    A("v_lshlrev_b32 v%d, 4, v%d" % (rL, hL))
    A("v_add_u32 v%d, s%d, v%d" % (rL + 2, sIT, rL))
    A("s_cmp_lg_u32 s%d, 0" % sHW)
    A("s_cbranch_scc1 L_h_b2")

    C("helper 0: softmax statistics exchange inside the (b,h) group")
    A("v_and_b32 v%d, %d, v%d" % (hU + 3, NW - 1, hL))
    A("v_lshlrev_b32 v%d, 4, v%d" % (hU + 3, hU + 3))
    sSR, sSW = sTMP, sTMP + 1
    A("s_lshl_b32 s%d, s%d, 10" % (sSR, sGRP))
    A("s_add_u32 s%d, s%d, %d" % (sSR, sSR, WS_STAT))
    A("s_lshl_b32 s%d, s%d, 7" % (sSW, sC))
    A("s_add_u32 s%d, s%d, s%d" % (sSW, sSW, sSR))
    if pre & 2:
        A("s_cmp_eq_u32 s%d, 0" % sSAME)
        A("s_cbranch_scc1 L_nopw1")
        for r in range(4):
            A("v_not_b32 v%d, v%d" % (hP + 12 + r, hU + 9))
        A("s_mov_b64 exec, 0xff")
        A("buffer_store_dwordx4 v[%d:%d], v%d, s[%d:%d], s%d offen" % (hP + 12, hP + 15, rL, WSR, WSR + 3, sSW))
        A("s_mov_b64 exec, -1")
        LB("L_nopw1")
    A("s_mov_b32 s%d, %d" % (sSPIN, spin * 4))
    LB("L_lpoll")
    A("s_sleep 4")
    A("ds_read_b128 v[%d:%d], v%d offset:%d" % (hP, hP + 3, hU + 3, L_STAT))
    A("s_sub_u32 s%d, s%d, 1" % (sSPIN, sSPIN))
    A("s_cmp_eq_u32 s%d, 0" % sSPIN)
    A("s_cbranch_scc1 L_lgo")
    A("s_waitcnt lgkmcnt(0)")
    A("v_cmp_eq_u32 vcc, 0, v%d" % (hP + 2))
    A("s_cbranch_vccnz L_lpoll")
    LB("L_lgo")
    A("s_waitcnt lgkmcnt(0)")
    A("v_mov_b32 v%d, v%d" % (hP + 2, hU + 9))
    A("v_mov_b32 v%d, v%d" % (hP + 3, hU + 9))
    A("s_mov_b64 exec, %d" % ((1 << NW) - 1) if NW <= 4 else "s_mov_b64 exec, 0xff")
    if not abl & 4:
        lab[0] += 1
        A("s_cmp_eq_u32 s%d, 0" % sSAME)
        A("s_cbranch_scc1 L_wt%d" % lab[0])
        A("buffer_store_dwordx4 v[%d:%d], v%d, s[%d:%d], s%d offen" % (hP, hP + 3, hU + 3, WSR, WSR + 3, sSW))
        A("s_branch L_wd%d" % lab[0])
        LB("L_wt%d" % lab[0])
        A("buffer_store_dwordx4 v[%d:%d], v%d, s[%d:%d], s%d offen sc1" % (hP, hP + 3, hU + 3, WSR, WSR + 3, sSW))
        LB("L_wd%d" % lab[0])
    A("s_mov_b64 exec, -1")
    A("v_bfe_u32 v%d, v%d, %d, 3" % (hU + 4, hL, int(math.log2(NW))))
    A("v_lshl_add_u32 v%d, v%d, 7, v%d" % (hU + 4, hU + 4, hU + 3))
    A("s_mov_b32 s%d, %d" % (sSPIN, spin))
    if abl & 4:
        A("s_branch L_sgo")
    LB("L_spoll")
    A("s_sleep 8")
    A("buffer_load_dwordx4 v[%d:%d], v%d, s[%d:%d], s%d offen sc1" % (hP + 4, hP + 7, hU + 4, WSR, WSR + 3, sSR))
    A("s_sub_u32 s%d, s%d, 1" % (sSPIN, sSPIN))
    A("s_cmp_eq_u32 s%d, 0" % sSPIN)
    A("s_cbranch_scc1 L_sgo")
    A("s_waitcnt vmcnt(0)")
    A("v_xor_b32 v%d, v%d, v%d" % (hP + 8, hP + 6, hU + 9))
    A("v_xor_b32 v%d, v%d, v%d" % (hP + 9, hP + 7, hU + 9))
    A("v_or_b32 v%d, v%d, v%d" % (hP + 8, hP + 8, hP + 9))
    A("v_cmp_ne_u32 vcc, 0, v%d" % (hP + 8))
    A("s_cbranch_vccnz L_spoll")
    C("all 8 members of this group have read the epoch; the last of the 32 groups to get here advances it")
    A("s_cmp_lg_u32 s%d, 0" % sC)
    A("s_cbranch_scc1 L_sgo")
    A("s_mov_b32 s%d, 1" % sIT)
    A("s_atomic_add s%d, s[%d:%d], 0 glc" % (sIT, sDBG, sDBG + 1))
    A("s_waitcnt lgkmcnt(0)")
    A("s_cmp_lg_u32 s%d, 31" % sIT)
    A("s_cbranch_scc1 L_sgo")
    A("s_mov_b64 exec, 1")
    A("buffer_store_dword v%d, v%d, s[%d:%d], 0 offen" % (hU + 9, hU + 10, WSR, WSR + 3))
    A("s_mov_b64 exec, -1")
    LB("L_sgo")
    A("s_waitcnt vmcnt(0)")
    stamp(3)
    def allreduce_full(op, r, tmp):
        for c_ in ("quad_perm:[1,0,3,2]", "quad_perm:[2,3,0,1]", "row_half_mirror", "row_mirror"):
            A("s_nop 1")
            A("%s_dpp v%d, v%d, v%d %s row_mask:0xf bank_mask:0xf" % (op, r, r, r, c_))
        sw = ["v_permlane16_swap_b32"] + (["v_permlane32_swap_b32"] if NW == 8 else [])
        for s_ in sw:
            A("v_mov_b32 v%d, v%d" % (tmp, r))
            A("s_nop 1")
            A("%s v%d, v%d" % (s_, r, tmp))
            A("%s v%d, v%d, v%d" % (op, r, r, tmp))
    A("v_mov_b32 v%d, v%d" % (hP + 8, hP + 4))
    allreduce_full("v_max_f32", hP + 8, hP + 9)
    A("v_sub_f32 v%d, v%d, v%d" % (hP + 8, hP + 4, hP + 8))
    A("v_exp_f32 v%d, v%d" % (hP + 8, hP + 8))
    A("s_nop 0")
    A("v_mul_f32 v%d, v%d, v%d" % (hP + 10, hP + 8, hP + 5))
    allreduce_full("v_add_f32", hP + 10, hP + 9)
    A("v_rcp_f32 v%d, v%d" % (hP + 10, hP + 10))
    A("s_mul_i32 s%d, s%d, %d" % (sIT, sC, NW))
    A("v_mul_f32 v%d, v%d, v%d" % (hP + 8, hP + 8, hP + 10))
    for w in range(NW):
        A("s_nop 0")
        A("v_readlane_b32 s%d, v%d, s%d" % (sF + w, hP + 8, sIT))
        A("s_add_u32 s%d, s%d, 1" % (sIT, sIT))
    if pre & 4:
        A("s_cmp_eq_u32 s%d, 0" % sSAME)
        A("s_cbranch_scc1 L_nopw2")
        if pwm:
            assert ctl == 1
            A("s_mov_b32 s%d, %d" % (sSPIN, spin * 4))
            LB("L_pww")
            A("s_sleep 4")
            A("ds_read_b32 v%d, v%d offset:%d" % (hP, hU + 10, L_PROG))
            A("s_sub_u32 s%d, s%d, 1" % (sSPIN, sSPIN))
            A("s_cmp_eq_u32 s%d, 0" % sSPIN)
            A("s_waitcnt lgkmcnt(0)")
            A("s_cbranch_scc1 L_nopw2")
            A("v_cmp_gt_u32 vcc, %d, v%d" % (2 * N - LZ - pwm, hP))
            A("s_cbranch_vccnz L_pww")
        A("v_not_b32 v%d, v%d" % (hP + 4, hU + 9))
        for r in range(4):
            A("v_perm_b32 v%d, v%d, v%d, s%d" % (hP + 12 + r, hP + 4, hP + 4, sSEL + r))
        A("buffer_store_dwordx4 v[%d:%d], v%d, s[%d:%d], s%d offen" % (hP + 12, hP + 15, rL, WSR, WSR + 3, sO1W))
        LB("L_nopw2")
    A("s_barrier")
    LB("L_comb")
    OR = 96
    for w in range(NW):
        A("ds_read_b128 v[%d:%d], v%d offset:%d" % (OR + 4 * w, OR + 4 * w + 3, rL, L_O + 1024 * w))
    for w in range(NW):
        A("s_waitcnt lgkmcnt(%d)" % (NW - 1 - w))
        for r in range(4):
            if w == 0:
                A("v_mul_f32 v%d, s%d, v%d" % (hD + r, sF, OR + r))
            else:
                A("v_fmac_f32 v%d, s%d, v%d" % (hD + r, sF + w, OR + 4 * w + r))
    for r in range(4):
        A("v_perm_b32 v%d, v%d, v%d, s%d" % (hX + r, hD + r, hU + 9, sSEL + r))
    if not abl & 32:
        lab[0] += 1
        A("s_cmp_eq_u32 s%d, 0" % sSAME)
        A("s_cbranch_scc1 L_wt%d" % lab[0])
        A("buffer_store_dwordx4 v[%d:%d], v%d, s[%d:%d], s%d offen" % (hX, hX + 3, rL, WSR, WSR + 3, sO1W))
        A("s_branch L_wd%d" % lab[0])
        LB("L_wt%d" % lab[0])
        A("buffer_store_dwordx4 v[%d:%d], v%d, s[%d:%d], s%d offen sc1" % (hX, hX + 3, rL, WSR, WSR + 3, sO1W))
        LB("L_wd%d" % lab[0])
    A("s_branch L_h_hop1")
    LB("L_h_b2")
    if ctl == 1:
        A("s_cmp_lg_u32 s%d, 1" % sHW)
        A("s_cbranch_scc1 L_h_noctl")
        C("helper 1: bandwidth-share feedback (performance only; results never depend on it)")
        assert NW == 4
        total = NW * ((N - LZ) + N)
        cV = 96
        sPW, sPR, sME, sTG, sXW, sPREV, sXPREV, sREF = sF, sF + 1, sF + 2, sF + 3, sF + 4, sF + 5, sF + 6, sF + 7
        A("s_mov_b32 s%d, 0" % sPREV)
        A("s_mov_b32 s%d, 0" % sXPREV)
        XS = 4096 + 256
        A("s_lshr_b32 s%d, s2, 3" % sME)
        A("s_and_b32 s%d, s2, 7" % sPR)
        A("s_mul_i32 s%d, s%d, %d" % (sXW, sPR, XS))
        A("s_add_u32 s%d, s%d, %d" % (sXW, sXW, WS_XP))
        A("s_lshl_b32 s%d, s%d, 8" % (sPR, sPR))
        A("s_add_u32 s%d, s%d, %d" % (sPR, sPR, WS_PROG))
        A("s_lshl_b32 s%d, s%d, 2" % (sPW, sME))
        A("s_add_u32 s%d, s%d, s%d" % (sPW, sPW, sPR))
        A("s_lshl_b32 s%d, s%d, 16" % (sTG, sTAG))
        A("s_add_u32 s16, s%d, %d" % (sWS, WS_XP))
        A("s_addc_u32 s17, s%d, 0" % (sWS + 1))
        A("v_min_u32 v%d, 32, v%d" % (cV, hL))
        A("v_lshlrev_b32 v%d, 2, v%d" % (cV, cV))
        A("v_mov_b32 v%d, 0" % (cV + 1))
        A("v_and_b32 v%d, 3, v%d" % (cV + 7, hL))
        A("v_lshlrev_b32 v%d, 2, v%d" % (cV + 8, cV + 7))
        A("v_lshlrev_b32 v%d, 8, v%d" % (cV + 7, cV + 7))
        A("v_mov_b32 v%d, 0" % (cV + 2))
        for l_ in range(1, 8 * NF + 1):
            A("s_mov_b32 s%d, 0x%x" % (sIT, pat(l_, NF)))
            A("v_writelane_b32 v%d, s%d, %d" % (cV + 2, sIT, l_))
        A("s_mov_b32 s%d, %d" % (sSPIN, spin))
        LB("L_ctl")
        if cslp:
            A("s_sleep %d" % cslp)
        A("ds_read_b32 v%d, v%d offset:%d" % (cV + 9, cV + 7, L_PROG))
        A("s_sub_u32 s%d, s%d, 1" % (sSPIN, sSPIN))
        A("s_cmp_eq_u32 s%d, 0" % sSPIN)
        A("s_cbranch_scc1 L_h_noctl")
        A("s_waitcnt lgkmcnt(0)")
        A("v_add_u32_dpp v%d, v%d, v%d quad_perm:[1,0,3,2] row_mask:0xf bank_mask:0xf" % (cV + 4, cV + 9, cV + 9))
        A("s_nop 1")
        A("v_add_u32_dpp v%d, v%d, v%d quad_perm:[2,3,0,1] row_mask:0xf bank_mask:0xf" % (cV + 4, cV + 4, cV + 4))
        A("s_nop 0")
        A("v_readfirstlane_b32 s%d, v%d" % (sIT, cV + 4))
        A("v_or_b32 v%d, s%d, v%d" % (cV + 4, sTG, cV + 4))
        A("s_add_u32 s%d, s%d, s%d" % (sREF, sIT, sPREV))
        A("s_mov_b32 s%d, s%d" % (sPREV, sIT))
        A("s_mov_b64 exec, 1")
        A("buffer_store_dword v%d, v%d, s[%d:%d], s%d offen" % (cV + 4, cV + 1, WSR, WSR + 3, sPW))
        A("s_mov_b64 exec, -1")
        A("s_cmp_ge_u32 s%d, %d" % (sIT, total - NW * margin))
        A("s_cbranch_scc1 L_h_noctl")
        A("buffer_load_dword v%d, v%d, s[%d:%d], s%d offen %s" % (cV + 5, cV, WSR, WSR + 3, sPR, cld))
        A("s_waitcnt vmcnt(0)")
        A("v_xor_b32 v%d, s%d, v%d" % (cV + 5, sTG, cV + 5))
        A("v_cmp_gt_u32 vcc, 0x10000, v%d" % (cV + 5))
        A("s_nop 1")
        A("v_cndmask_b32 v%d, 0, v%d, vcc" % (cV + 5, cV + 5))
        A("s_cmp_lg_u32 vcc_lo, -1")
        A("s_cbranch_scc1 L_ctl")
        A("v_readlane_b32 s13, v%d, 32" % (cV + 5))
        for c_ in ("quad_perm:[1,0,3,2]", "quad_perm:[2,3,0,1]", "row_half_mirror", "row_mirror"):
            A("s_nop 1")
            A("v_add_u32_dpp v%d, v%d, v%d %s row_mask:0xf bank_mask:0xf" % (cV + 5, cV + 5, cV + 5, c_))
        A("s_nop 0")
        A("v_readlane_b32 s12, v%d, 0" % (cV + 5))
        A("v_readlane_b32 s14, v%d, 16" % (cV + 5))
        A("s_add_u32 s12, s12, s14")
        if xg:
            A("s_cmp_lg_u32 s%d, 16" % sME)
            A("s_cbranch_scc1 L_ctl_nl")
            C("class leader: swap class totals with the other leaders")
            A("s_or_b32 s14, s12, s%d" % sTG)
            A("v_mov_b32 v%d, s14" % (cV + 10))
            A("s_mov_b64 exec, 1")
            A("buffer_store_dword v%d, v%d, s[%d:%d], s%d offen sc1" % (cV + 10, cV + 1, WSR, WSR + 3, sXW))
            A("s_mov_b64 exec, -1")
            for k in range(8):
                A("s_load_dword s%d, s[16:17], %d glc" % (4 + k, k * XS))
            A("s_waitcnt lgkmcnt(0)")
            A("s_mov_b32 s15, 0")
            A("s_mov_b32 s14, 0")
            for k in range(8):
                A("s_xor_b32 s%d, s%d, s%d" % (4 + k, 4 + k, sTG))
                A("s_or_b32 s14, s14, s%d" % (4 + k))
                A("s_add_u32 s15, s15, s%d" % (4 + k))
            A("s_mul_i32 s4, s%d, %d" % (sXPREV, xa))
            A("s_mul_i32 s5, s12, %d" % (8 - xa))
            A("s_add_u32 s4, s4, s5")
            A("s_mov_b32 s%d, s12" % sXPREV)
            A("s_cmp_lt_u32 s14, 0x10000")
            A("s_cbranch_scc0 L_ctl_nl")
            A("s_sub_u32 s15, s15, s4")
            A("s_ashr_i32 s15, s15, 3")
            A("s_add_u32 s15, s15, 0x8000")
            A("s_and_b32 s15, s15, 0xffff")
            A("s_or_b32 s15, s15, s%d" % sTG)
            A("v_mov_b32 v%d, s15" % (cV + 6))
            A("s_mov_b64 exec, 1")
            A("buffer_store_dword v%d, v%d, s[%d:%d], s%d offen offset:128" % (cV + 6, cV + 1, WSR, WSR + 3, sPR))
            A("s_mov_b64 exec, -1")
            LB("L_ctl_nl")
        A("s_lshl_b32 s14, s%d, 4" % sREF)
        A("s_sub_u32 s12, s12, s14")
        A("s_mul_i32 s12, s12, %d" % gain)
        if xg:
            A("s_cmp_eq_u32 s13, 0")
            A("s_cselect_b32 s13, 0x8000, s13")
            A("s_sub_u32 s13, s13, 0x8000")
            A("s_mul_i32 s13, s13, %d" % xgain)
            A("s_add_u32 s12, s12, s13")
        C("fresh per-wave progress for the intra-workgroup term")
        A("ds_read_b32 v%d, v%d offset:%d" % (cV + 9, cV + 7, L_PROG))
        A("s_add_i32 s12, s12, %d" % (lv0 * 512 + 256))
        A("s_waitcnt lgkmcnt(0)")
        A("v_add_u32_dpp v%d, v%d, v%d quad_perm:[1,0,3,2] row_mask:0xf bank_mask:0xf" % (cV + 4, cV + 9, cV + 9))
        A("v_lshlrev_b32 v%d, 2, v%d" % (cV + 9, cV + 9))
        A("s_nop 0")
        A("v_add_u32_dpp v%d, v%d, v%d quad_perm:[2,3,0,1] row_mask:0xf bank_mask:0xf" % (cV + 4, cV + 4, cV + 4))
        A("v_sub_u32 v%d, v%d, v%d" % (cV + 4, cV + 4, cV + 9))
        A("v_mul_i32_i24 v%d, %d, v%d" % (cV + 4, 32 * wgain, cV + 4))
        A("v_add_u32 v%d, s12, v%d" % (cV + 4, cV + 4))
        A("v_ashrrev_i32 v%d, 9, v%d" % (cV + 4, cV + 4))
        A("v_max_i32 v%d, 0, v%d" % (cV + 4, cV + 4))
        A("v_min_i32 v%d, %d, v%d" % (cV + 4, 8 * NF, cV + 4))
        A("v_lshlrev_b32 v%d, 2, v%d" % (cV + 4, cV + 4))
        A("ds_bpermute_b32 v%d, v%d, v%d" % (cV + 5, cV + 4, cV + 2))
        A("s_waitcnt lgkmcnt(0)")
        A("ds_write_b32 v%d, v%d offset:%d" % (cV + 8, cV + 5, L_MODE))
        A("s_branch L_ctl")
        LB("L_h_noctl")
        A("s_waitcnt vmcnt(0) lgkmcnt(0)")
    if spt:
        C("helpers 2,3: shortly before the stream ends pull the hand-off lines into L2 over the scalar path")
        A("s_cmp_lt_u32 s%d, 2" % sHW)
        A("s_cbranch_scc1 L_nospt")
        if sptm:
            assert ctl == 1
            A("s_mov_b32 s%d, %d" % (sSPIN, spin * 4))
            LB("L_sptw")
            A("s_sleep 8")
            A("ds_read_b32 v%d, v%d offset:%d" % (hP, hU + 10, L_PROG))
            A("s_sub_u32 s%d, s%d, 1" % (sSPIN, sSPIN))
            A("s_cmp_eq_u32 s%d, 0" % sSPIN)
            A("s_waitcnt lgkmcnt(0)")
            A("s_cbranch_scc1 L_nospt")
            A("v_cmp_gt_u32 vcc, %d, v%d" % (2 * N - LZ - sptm, hP))
            A("s_cbranch_vccnz L_sptw")
        A("s_cmp_eq_u32 s%d, 2" % sHW)
        A("s_cbranch_scc1 L_spt2")
        if spt & 1:
            A("s_and_b32 s%d, s2, 7" % sIT)
            A("s_cmp_lg_u32 s%d, %d" % (sIT, rcls))
            A("s_cbranch_scc1 L_nospt")
            A("s_lshr_b32 s%d, s2, 5" % sIT)
            A("s_lshl_b32 s%d, s%d, 14" % (sYA, sIT))
            A("s_bfe_u32 s%d, s2, 0x20003" % sIT)
            A("s_lshl_b32 s%d, s%d, 7" % (sIT, sIT))
            A("s_add_u32 s%d, s%d, s%d" % (sYA, sYA, sIT))
            A("s_add_u32 s%d, s%d, %d" % (sYA, sYA, WS_Y))
            A("s_add_u32 s16, s%d, s%d" % (sWS, sYA))
            A("s_addc_u32 s17, s%d, 0" % (sWS + 1))
            for k in range(64):
                A("s_load_dword s%d, s[16:17], %d" % (4 + k % 8, (k >> 1) * 512 + (k & 1) * 64))
                if k % 8 == 7:
                    A("s_waitcnt lgkmcnt(0)")
        A("s_branch L_nospt")
        LB("L_spt2")
        if spt & 2:
            A("s_add_u32 s16, s%d, s%d" % (sWS, sO1W))
            A("s_addc_u32 s17, s%d, 0" % (sWS + 1))
            for k in range(1024 // sptg):
                A("s_load_dword s%d, s[16:17], %d" % (4 + k % 8, k * sptg))
                if k % 8 == 7:
                    A("s_waitcnt lgkmcnt(0)")
        LB("L_nospt")
        A("s_waitcnt vmcnt(0)")
    A("s_barrier")
    LB("L_h_hop1")
    if abl & 32:
        A("s_branch L_fin")
    stamp(4)
    A("s_mov_b32 s%d, %d" % (sSPIN, spin))
    def ringpoll(name, K, pad, ring, res, tmp, voff, soff, slp, fail):
        ld = lambda k: A("buffer_load_dwordx4 v[%d:%d], v%d, s[%d:%d], s%d offen sc1" % (ring + 4 * k, ring + 4 * k + 3, voff, WSR, WSR + 3, soff))
        for k in range(K - 1):
            ld(k)
            if pad:
                A("s_nop %d" % (pad - 1))
        LB(name)
        for k in range(K):
            if slp:
                A("s_sleep %d" % slp)
            ld((k + K - 1) % K)
            if k == 0:
                A("s_sub_u32 s%d, s%d, 1" % (sSPIN, sSPIN))
                A("s_cmp_eq_u32 s%d, 0" % sSPIN)
                A("s_cbranch_scc1 %s" % fail)
            elif pad:
                A("s_nop %d" % (pad - 1))
            A("s_waitcnt vmcnt(%d)" % (K - 1))
            if (pstat == 1 and name == "L_opoll") or (pstat == 2 and name == "L_rpoll"):
                A("s_cmp_lg_u32 s%d, %d" % (sSPIN, spin - 1))
                A("s_cbranch_scc1 %s_ns" % name)
                stamp(1)
                LB(name + "_ns")
                A("s_sub_u32 s%d, %d, s%d" % (sST + 4, spin, sSPIN))
                A("s_mul_i32 s%d, s%d, 100" % (sST + 4, sST + 4))
                A("s_add_u32 s%d, s%d, s%d" % (sST + 4, sST + 4, sST))
                A("s_addc_u32 s%d, s%d, 0" % (sST + 5, sST + 1))
            for r in range(4):
                A("v_xor_b32 v%d, s%d, v%d" % (res + r, sT + r, ring + 4 * k + r))
            A("v_or3_b32 v%d, v%d, v%d, v%d" % (tmp, res, res + 1, res + 2))
            A("v_or_b32 v%d, v%d, v%d" % (tmp, tmp, res + 3))
            A("v_and_b32 v%d, 0xff, v%d" % (tmp, tmp))
            A("v_cmp_ne_u32 vcc, 0, v%d" % tmp)
            A("s_and_b64 exec, exec, vcc")
            if k == K - 1:
                A("s_cbranch_scc1 %s" % name)
            else:
                A("s_cbranch_scc0 %s_done" % name)
        LB(name + "_done")
    ringpoll("L_opoll", ok, opad, 136, hP, hP + 4, hU + 1, sO1R, slp1, "L_fin")
    A("s_mov_b64 exec, -1")
    stamp(5)
    A("v_permlane32_swap_b32 v%d, v%d" % (hP, hP + 1))
    A("v_permlane32_swap_b32 v%d, v%d" % (hP + 2, hP + 3))
    A("v_add_f32 v%d, v%d, v%d" % (hP, hP, hP + 1))
    A("v_add_f32 v%d, v%d, v%d" % (hP + 2, hP + 2, hP + 3))
    A("s_nop 1")
    A("v_permlane16_swap_b32 v%d, v%d" % (hP, hP + 2))
    A("v_add_f32 v%d, v%d, v%d" % (hP, hP, hP + 2))
    A("s_nop 1")
    A("v_add_f32_dpp v%d, v%d, v%d row_ror:8 row_mask:0xf bank_mask:0xf" % (hP, hP, hP))
    A("v_cvt_pk_bf16_f32 v%d, v%d, v%d" % (hP, hP, hP))
    A("s_nop 1")
    A2 = [hA, hSEL]
    def buildA(n):
        for r in range(4):
            A("v_and_b32_dpp v%d, v%d, v%d row_newbcast:%d row_mask:0xf bank_mask:0xf" % (A2[n & 1] + r, hP, hMK + r, n))
    buildA(0)
    for n in range(8):
        if n + 1 < 8:
            buildA(n + 1)
        else:
            A("s_nop 1")
        A("v_mfma_f32_16x16x32_bf16 v[%d:%d], v[%d:%d], v[%d:%d], %s" %
          (hD, hD + 3, A2[n & 1], A2[n & 1] + 3, hW + 4 * n, hW + 4 * n + 3, "0" if n == 0 else "v[%d:%d]" % (hD, hD + 3)))
    A("s_mov_b32 exec_hi, 0")
    A("s_cmp_eq_u32 s%d, 0" % sHW)
    A("s_cbranch_scc1 L_ysum")
    A("s_nop 4")
    A("ds_write_b128 v%d, v[%d:%d] offset:%d" % (rL + 2, hD, hD + 3, L_Y))
    A("s_waitcnt lgkmcnt(0)")
    A("s_barrier")
    stamp(6)
    A("s_branch L_fin")

    LB("L_redset")
    C("final reduction: the stream waves of one workgroup class; unit u = wg>>3 = (b, cb, line), sub = wave")
    sU, sKQ = sTMP + 2, sTMP + 7
    A("v_mov_b32 v%d, 0" % rT)
    A("ds_read_b32 v%d, v%d offset:%d" % (rT + 1, rT, L_TAG))
    A("s_bfe_u32 s%d, s2, 0x20003" % sKQ)
    A("s_lshl_b32 s%d, s%d, 2" % (sKQ, sKQ))
    A("s_add_u32 s%d, s%d, s3" % (sKQ, sKQ))
    A("s_lshr_b32 s%d, s2, 5" % sU)
    A("s_lshl_b32 s%d, s%d, 14" % (sYA, sU))
    A("s_lshl_b32 s%d, s%d, 5" % (sIT, sKQ))
    A("s_add_u32 s%d, s%d, s%d" % (sYA, sYA, sIT))
    A("s_add_u32 s%d, s%d, %d" % (sYA, sYA, WS_Y))
    A("v_lshrrev_b32 v%d, 1, v%d" % (rV, vLANE))
    A("v_lshlrev_b32 v%d, 9, v%d" % (rV, rV))
    A("v_and_b32 v%d, 1, v%d" % (rL, vLANE))
    A("v_lshl_add_u32 v%d, v%d, 4, v%d" % (rV, rL, rV))
    A("s_mul_i32 s%d, s%d, 224" % (sOO, sU))
    A("s_and_b32 s%d, s%d, 8" % (sIT, sKQ))
    A("s_add_u32 s%d, s%d, s%d" % (sOO, sOO, sIT))
    A("s_and_b32 s%d, s%d, 7" % (sKQ, sKQ))
    A("s_lshl_b32 s%d, s%d, 5" % (sIT, sKQ))
    A("s_add_u32 s%d, s%d, s%d" % (sOO, sOO, sIT))
    A("s_mov_b32 s%d, s%d" % (SR2, sOUT))
    A("s_mov_b32 s%d, s%d" % (SR2 + 1, sOUT + 1))
    A("s_mov_b32 s%d, 1792" % (SR2 + 2))
    A("v_lshrrev_b32 v%d, 5, v%d" % (rO, vLANE))
    A("v_lshl_add_u32 v%d, v%d, 3, v%d" % (rO, rL, rO))
    A("v_bfe_u32 v%d, v%d, 4, 1" % (rL, vLANE))
    A("v_lshl_add_u32 v%d, v%d, 1, v%d" % (rO, rL, rO))
    A("v_lshlrev_b32 v%d, 1, v%d" % (rO, rO))
    A("s_waitcnt vmcnt(0) lgkmcnt(0)")
    A("v_readfirstlane_b32 s%d, v%d" % (sTAG, rT + 1))
    A("s_nop 0")
    for r in range(4):
        A("s_bfe_u32 s%d, s%d, 0x%x" % (sT + r, sTAG, 0x80000 | (8 * r)))
    A("s_cmp_eq_u32 s%d, 7" % sKQ)
    A("s_barrier")
    A("s_cbranch_scc1 L_fin")
    stamp(6)
    A("s_mov_b32 s%d, %d" % (sSPIN, spin))
    ringpoll("L_rpoll", rk, rpad, 136 + 4 * ok, ya, rT, rV, sYA, slp2, "L_fin")
    A("s_mov_b64 exec, -1")
    stamp(5)
    A("v_permlane32_swap_b32 v%d, v%d" % (ya, ya + 1))
    A("v_permlane32_swap_b32 v%d, v%d" % (ya + 2, ya + 3))
    A("v_add_f32 v%d, v%d, v%d" % (ya, ya, ya + 1))
    A("v_add_f32 v%d, v%d, v%d" % (ya + 2, ya + 2, ya + 3))
    A("s_nop 1")
    A("v_permlane16_swap_b32 v%d, v%d" % (ya, ya + 2))
    A("v_add_f32 v%d, v%d, v%d" % (ya, ya, ya + 2))
    for c_ in ("row_ror:8", "row_ror:4", "quad_perm:[2,3,0,1]"):
        A("s_nop 1")
        A("v_add_f32_dpp v%d, v%d, v%d %s row_mask:0xf bank_mask:0xf" % (ya, ya, ya, c_))
    A("v_cvt_pk_bf16_f32 v%d, v%d, v%d" % (ya, ya, ya))
    A("s_mov_b32 exec_lo, 0x00030003")
    A("s_mov_b32 exec_hi, 0x00030003")
    A("buffer_store_short v%d, v%d, s[%d:%d], s%d offen %s" % (ya, rO, SR2, SR2 + 3, sOO, oflags))
    if diag >= 0:
        if dmask:
            A("s_cmp_ge_u32 s2, 8")
            A("s_cbranch_scc1 L_fin")
            A("s_bitcmp0_b32 0x%x, s2" % dmask)
        else:
            A("s_cmp_lg_u32 s2, %d" % dwg)
        A("s_cbranch_scc1 L_fin")
    if diag >= 0:
        C("DIAGNOSTIC ONLY")
        A("s_memrealtime s[%d:%d]" % (sST + 14, sST + 15))
        A("s_waitcnt lgkmcnt(0)")
        A("s_sub_u32 s%d, s%d, s%d" % (sTMP, sST + 2 * diag, sST))
        A("s_min_u32 s%d, s%d, 20000" % (sTMP, sTMP))
        A("s_mul_i32 s%d, s%d, %d" % (sTMP, sTMP, dk))
        if dfix:
            A("s_mov_b32 s%d, %d" % (sTMP, dfix))
        LB("L_diag")
        A("s_memrealtime s[%d:%d]" % (sST + 12, sST + 13))
        A("s_waitcnt lgkmcnt(0)")
        A("s_sub_u32 s%d, s%d, s%d" % (sTMP + 1, sST + 12, sST + 14))
        A("s_cmp_lt_u32 s%d, s%d" % (sTMP + 1, sTMP))
        A("s_cbranch_scc1 L_diag")
    A("s_branch L_fin0")
    LB("L_ysum")
    A("s_barrier")
    LB("L_ysum2")
    for w in range(1, 4):
        A("ds_read_b128 v[%d:%d], v%d offset:%d" % (ya + 4 * w, ya + 4 * w + 3, rL, L_Y + 512 * w))
    A("s_nop 1")
    for w in range(1, 4):
        A("s_waitcnt lgkmcnt(%d)" % (3 - w))
        for r in range(4):
            A("v_add_f32 v%d, v%d, v%d" % (hD + r, hD + r, ya + 4 * w + r))
    for r in range(4):
        A("v_perm_b32 v%d, v%d, v%d, s%d" % (hD + r, hD + r, hU + 9, sSEL + r))
    A("buffer_store_dwordx4 v[%d:%d], v%d, s[%d:%d], s%d offen sc1" % (hD, hD + 3, rL, WSR, WSR + 3, sYW))
    stamp(6)
    A("s_branch L_fin")

    LB("L_fin0")
    stamp(7)
    LB("L_fin")
    stamp_store()
    LB("L_end")
    A("s_endpgm")
    nv = max(vSL + 4 * LZ, 96 + 4 * NW, 136 + 4 * ok + 4 * rk)
    nv = (nv + 7) // 8 * 8
    L.append('.section .rodata,"a"')
    L.append(".p2align 6")
    L.append(".amdhsa_kernel " + KN)
    L.append("  .amdhsa_next_free_vgpr %d" % nv)
    L.append("  .amdhsa_next_free_sgpr 96")
    L.append("  .amdhsa_accum_offset %d" % nv)
    L.append("  .amdhsa_group_segment_fixed_size 0")
    L.append("  .amdhsa_kernarg_size 64")
    L.append("  .amdhsa_user_sgpr_count 2")
    L.append("  .amdhsa_user_sgpr_kernarg_segment_ptr 1")
    L.append("  .amdhsa_system_sgpr_workgroup_id_x 1")
    L.append("  .amdhsa_float_denorm_mode_32 3")
    L.append(".end_amdhsa_kernel")
    return "\n".join(L) + "\n"


def parse(spec):
    kw = {}
    for x in spec.split(","):
        if not x:
            continue
        k, v = x.split("=")
        if k in ("mapping", "kflags", "wflags", "cstf", "cld", "oflags"):
            kw[k] = v.replace("+", " ").replace("def", "")
        else:
            kw[k] = int(v, 0)
    return kw


if __name__ == "__main__":
    names = []
    for spec in sys.argv[1:]:
        name = "k_" + spec.replace(",", "_").replace("=", "") + ".s"
        open(name, "w").write(gen(**parse(spec)))
        names.append(name)
    print(" ".join(names))
```

```python
import sys, math

KN = "standalone__mha_block_cached__decode_kernel"

HEADER = """; Kernarg layout for this problem (64 bytes, ptrs only, base s[0:1]):
"""

WS_EPOCH = 0
WS_Q = 0x1000
WS_STAT = 0x40000
WS_O1 = 0x80000
WS_Y = 0x100000
WS_PROG = 0x60000
WS_XP = 0x180000
WS_QP = 0x200000
WS_USED = 0x400000
STAMP_BASE = 0x10000000
EPOCH_WG = 35

L_Q = 0
L_TAG = 512
L_STAT = 576
L_FLAG = 768
L_MODE = 784
L_O = 1024


def pat(l, nf):
    p8 = lambda f: sum(1 << j for j in range(8) if ((j + 1) * f) // 8 != (j * f) // 8)
    w = 0
    for k in range(nf):
        w |= p8(min(max(l - 8 * k, 0), 8)) << (8 * k)
    return w


def gen(NW=4, D=5, LZ=32, mapping="xg", inter=4, stamps=0, spin=1 << 16, kflags="nt", wflags="nt",
        slp1=0, slp2=0, qslp=0, diag=-1, dk=1, abl=0, rotc=0, rotg=1, gmap=0, roth=0, qtry=24, force_slow=0, pre=0, rk=1, rpad=0, ok=1, opad=0, ctl=1, Dl=4, Dh=7, lv0=11, gain=4, cslp=0, cper=4, cld='sc1', xg=0, xgain=2, margin=12, xa=6, wgain=2, pper=2, b3=1, dry=0, cpf=1, spt=3, sptm=0, pwm=0, pstat=0, sptg=64, qt=1, oflags='', otouch=0, dwg=0, dfix=0, dmask=0, rcls=0, wb=0, prio=0, o1f='', tab=0, wol=0, wom=7, b0e=1, odel=0, owait=-1, wany=0, red=2, xsh=11, xrate=151, xd=0):
    L = []
    def A(s): L.append("  " + s)
    def LB(s): L.append(s + ":")
    def C(s): L.append("  ; " + s)
    NH = 4
    N = 512 // NW
    NB = N // 16
    assert LZ % 16 == 0 and LZ >= 16 and D < 16
    LAG = Dh if ctl else D
    lab = [0]
    L_Y = L_O + NW * 1024
    L_PROG = L_Y + 2048
    lds = L_PROG + (NW * 256 if ctl == 1 else 0)
    NF = Dh - Dl
    assert NF <= 4
    L.append(HEADER.rstrip("\n"))
    L.append("; @launch grid=(256,1,1) block=(%d,1,1) lds=%d" % ((NW + NH) * 64, lds))
    L.append('.amdgcn_target "amdgcn-amd-amdhsa--gfx950"')
    L.append(".text")
    L.append(".globl " + KN)
    L.append(".p2align 8")
    L.append(".type %s,@function" % KN)
    LB(KN)

    sX, sK, sV, sWQ, sWO, sOUT, sDBG, sWS = 4, 6, 8, 10, 12, 14, 16, 18
    SRD = 20
    WSR = 24
    SR2 = 28
    sGRP, sC, sB, sH = 32, 33, 34, 35
    sBASE, sOFF, sIT = 36, 37, 38
    sT = 40
    sSEL = 44
    sM2, sM1 = 48, 50
    sF = 52
    sTMP = 60
    sSPIN = 68
    sCS = 69
    sST = 70
    sTAG = 86
    sEX = 88
    nstamp = [0]

    frozen = [False]
    def stamp(k):
        if frozen[0]:
            return
        if stamps or (diag >= 0 and k in (0, diag)):
            A("s_memrealtime s[%d:%d]" % (sST + 2 * k, sST + 2 * k + 1))

    def stamp_store():
        if not stamps:
            return
        for _ in range(3):
            A("s_sleep 127")
        A("s_mul_i32 s%d, s2, %d" % (sTMP, NW + NH))
        A("s_add_u32 s%d, s%d, s3" % (sTMP, sTMP))
        A("s_lshl_b32 s%d, s%d, 6" % (sTMP, sTMP))
        A("s_add_u32 s%d, s%d, %d" % (sTMP, sTMP, STAMP_BASE))
        A("s_mov_b32 s%d, 0x20000000" % (WSR + 2))
        A("s_waitcnt lgkmcnt(0)")
        A("s_mov_b64 exec, 1")
        A("v_mov_b32 v1, 0")
        for q in range(4):
            for r in range(4):
                A("v_mov_b32 v%d, s%d" % (4 + 4 * q + r, sST + 4 * q + r))
        for q in range(4):
            A("buffer_store_dwordx4 v[%d:%d], v1, s[%d:%d], s%d offen offset:%d" % (4 + 4 * q, 7 + 4 * q, WSR, WSR + 3, sTMP, 16 * q))

    if stamps:
        for k in range(1, 8):
            A("s_mov_b64 s[%d:%d], 0" % (sST + 2 * k, sST + 2 * k + 1))
    stamp(0)
    A("s_cmp_ge_u32 s2, 256")
    A("s_cbranch_scc1 L_end")
    A("s_load_dwordx16 s[4:19], s[0:1], 0")
    if cpf:
        C("pull this kernel's own code into L2: every workgroup of an XCD class touches a few lines")
        A("s_getpc_b64 s[92:93]")
        A("s_lshr_b32 s94, s2, 3")
        A("s_lshl_b32 s94, s94, 9")
        A("v_lshlrev_b32 v2, 7, v0")
        A("v_add_u32 v2, s94, v2")
        A("v_min_u32 v2, (L_end - %s - 256), v2" % KN)
        A("v_cmp_gt_u32 vcc, 4, v0")
        A("s_and_saveexec_b64 s[94:95], vcc")
        A("s_cbranch_execz L_nopf")
        A("global_load_dword v3, v2, s[92:93]")
        LB("L_nopf")
        A("s_mov_b64 exec, -1")
    A("v_lshrrev_b32 v1, 6, v0")
    A("v_and_b32 v0, 63, v0")
    A("v_readfirstlane_b32 s3, v1")
    if mapping == "lin":
        A("s_lshr_b32 s%d, s2, 3" % sGRP)
        A("s_and_b32 s%d, s2, 7" % sC)
    elif gmap == 0:
        A("s_lshr_b32 s%d, s2, 3" % sTMP)
        A("s_and_b32 s%d, s%d, 7" % (sC, sTMP))
        A("s_and_b32 s%d, s%d, 24" % (sTMP, sTMP))
        A("s_and_b32 s%d, s2, 7" % sGRP)
        A("s_or_b32 s%d, s%d, s%d" % (sGRP, sGRP, sTMP))
    else:
        A("s_and_b32 s%d, s2, 31" % sGRP)
        A("s_lshr_b32 s%d, s2, 5" % sC)
    A("s_mov_b32 s%d, 0x20000" % (SRD + 3))
    A("s_mov_b32 s%d, 0x20000" % (WSR + 3))
    A("s_mov_b32 s%d, 0x20000" % (SR2 + 3))
    A("s_mov_b32 s%d, %d" % (WSR + 2, WS_USED))
    A("s_cmp_ge_u32 s3, %d" % NW)
    A("s_cbranch_scc1 L_helper")

    vOFF = 0
    vQ = 4
    vMK = 8
    vA = 12
    vO = 16
    vT = 20
    vS = 36
    vU = 44
    vLANE = 52
    vSL = 64
    def slot(i): return vSL + 4 * i
    A("v_mov_b32 v%d, v0" % vLANE)
    A("v_lshlrev_b32 v%d, 4, v0" % vOFF)
    GI = 8 if inter == 1 else max(inter, 1)
    if inter == -1: GI = 1
    lgi = int(math.log2(GI))
    span = GI * 512 * 1024
    stride = GI * NW * 4096
    sREG, sPH = 87, 39
    A("s_lshl_b32 s%d, s%d, 22" % (sREG, sGRP))
    A("s_lshr_b32 s%d, s%d, %d" % (sTMP, sC, lgi))
    A("s_mul_i32 s%d, s%d, %d" % (sTMP, sTMP, span))
    A("s_add_u32 s%d, s%d, s%d" % (sREG, sREG, sTMP))
    A("s_and_b32 s%d, s%d, %d" % (sTMP, sC, GI - 1))
    A("s_mul_i32 s%d, s%d, %d" % (sBASE, sTMP, NW * 4096))
    A("s_lshl_b32 s%d, s3, 12" % sTMP)
    A("s_add_u32 s%d, s%d, s%d" % (sBASE, sBASE, sTMP))
    ROT = rotc or rotg or roth
    if ROT:
        A("s_mul_i32 s%d, s%d, %d" % (sTMP, sC, rotc * stride))
        A("s_add_u32 s%d, s%d, s%d" % (sBASE, sBASE, sTMP))
        A("s_mul_i32 s%d, s%d, %d" % (sTMP, sGRP, rotg * stride))
        A("s_add_u32 s%d, s%d, s%d" % (sBASE, sBASE, sTMP))
        if roth:
            A("s_lshr_b32 s%d, s%d, %d" % (sTMP, sC, lgi))
            A("s_mul_i32 s%d, s%d, %d" % (sTMP, sTMP, roth * stride))
            A("s_add_u32 s%d, s%d, s%d" % (sBASE, sBASE, sTMP))
        A("s_and_b32 s%d, s%d, %d" % (sBASE, sBASE, span - 1))
        A("s_mov_b32 s%d, s%d" % (sPH, sBASE))
    A("s_add_u32 s%d, s%d, s%d" % (sBASE, sBASE, sREG))
    A("s_mov_b32 s%d, s%d" % (sOFF, sBASE))
    if tab:
        ROT = 1
    vTAB, sNXT = 57, 91
    def advance():
        if tab:
            A("s_add_u32 s%d, s%d, s%d" % (sOFF, sNXT, sREG))
            A("s_add_u32 s%d, s%d, 1" % (sPH, sPH))
            A("s_and_b32 s%d, s%d, 31" % (sPH, sPH))
            A("v_readlane_b32 s%d, v%d, s%d" % (sNXT, vTAB, sPH))
        elif ROT:
            A("s_add_u32 s%d, s%d, %d" % (sPH, sPH, stride))
            A("s_and_b32 s%d, s%d, %d" % (sPH, sPH, span - 1))
            A("s_add_u32 s%d, s%d, s%d" % (sOFF, sPH, sREG))
        else:
            A("s_add_u32 s%d, s%d, %d" % (sOFF, sOFF, stride))
    A("s_mov_b32 s%d, 0x8000000" % (SRD + 2))
    A("s_waitcnt lgkmcnt(0)")
    if pstat == 3:
        stamp(2)
    A("s_mov_b32 s%d, s%d" % (SRD, sK))
    A("s_mov_b32 s%d, s%d" % (SRD + 1, sK + 1))
    if tab:
        C("EXPERIMENT: granule offsets from a host table")
        A("s_mov_b32 s%d, s%d" % (WSR, sWS))
        A("s_mov_b32 s%d, s%d" % (WSR + 1, sWS + 1))
        A("s_lshl_b32 s%d, s2, 2" % sTMP)
        A("s_add_u32 s%d, s%d, s3" % (sTMP, sTMP))
        A("s_lshl_b32 s%d, s%d, 7" % (sTMP, sTMP))
        A("s_add_u32 s%d, s%d, 0x380000" % (sTMP, sTMP))
        A("v_lshlrev_b32 v%d, 2, v%d" % (vTAB, vLANE))
        A("buffer_load_dword v%d, v%d, s[%d:%d], s%d offen" % (vTAB, vTAB, WSR, WSR + 3, sTMP))
        A("s_mov_b32 s%d, 0" % sREG)
        A("s_mov_b32 s%d, 1" % sPH)
        A("s_waitcnt vmcnt(0)")
        A("v_readlane_b32 s%d, v%d, 0" % (sBASE, vTAB))
        A("v_readlane_b32 s%d, v%d, 1" % (sNXT, vTAB))
        A("s_mov_b32 s%d, s%d" % (sOFF, sBASE))

    def issue(idx, sl, adv=True):
        if adv and idx % 4 == 0:
            advance()
        A("buffer_load_dwordx4 v[%d:%d], v%d, s[%d:%d], s%d offen offset:%d %s" %
          (slot(sl), slot(sl) + 3, vOFF, SRD, SRD + 3, sOFF, (idx % 4) * 1024, kflags))

    C("phase P: paced fill of the landing zone")
    for i in range(D):
        issue(i, i, adv=(i > 0))
    A("s_barrier")
    A("s_mov_b32 s%d, s%d" % (WSR, sWS))
    A("s_mov_b32 s%d, s%d" % (WSR + 1, sWS + 1))
    A("s_mov_b32 s%d, 0xcccccccc" % sM2)
    A("s_mov_b32 s%d, 0xcccccccc" % (sM2 + 1))
    A("s_mov_b32 s%d, 0xaaaaaaaa" % sM1)
    A("s_mov_b32 s%d, 0xaaaaaaaa" % (sM1 + 1))
    A("s_mov_b32 s%d, 0x3db8aa3b" % sCS)
    A("v_lshrrev_b32 v%d, 3, v%d" % (vU, vLANE))
    A("v_lshrrev_b32 v%d, 4, v%d" % (vU + 1, vLANE))
    A("v_xor_b32 v%d, v%d, v%d" % (vU, vU, vU + 1))
    A("v_and_b32 v%d, 1, v%d" % (vU, vU))
    A("v_lshlrev_b32 v%d, 2, v%d" % (vU, vU))
    A("v_bfe_u32 v%d, v%d, 1, 2" % (vU + 1, vLANE))
    A("v_or_b32 v%d, v%d, v%d" % (vU, vU, vU + 1))
    A("v_and_b32 v%d, 1, v%d" % (vU + 1, vLANE))
    A("v_lshlrev_b32 v%d, 4, v%d" % (vU + 1, vU + 1))
    A("v_mov_b32 v%d, 0xffff" % (vU + 2))
    A("v_lshlrev_b32 v%d, v%d, v%d" % (vU + 2, vU + 1, vU + 2))
    for r in range(4):
        A("v_cmp_eq_u32 vcc, %d, v%d" % (r, vU))
        A("v_mov_b32 v%d, 0" % (vO + r))
        A("s_nop 0")
        A("v_cndmask_b32 v%d, 0, v%d, vcc" % (vMK + r, vU + 2))
    A("v_and_b32 v%d, 31, v%d" % (vU + 3, vLANE))
    A("v_lshlrev_b32 v%d, 4, v%d" % (vU + 3, vU + 3))
    A("v_mov_b32 v%d, 0" % (vU + 4))
    if pstat == 3:
        stamp(3)
    for i in range(D, LZ):
        A("s_waitcnt vmcnt(%d)" % (D - 1))
        if pstat == 3 and i in (D, 2 * D - 1, 2 * D):
            stamp({D: 4, 2 * D - 1: 5, 2 * D: 6}[i])
        issue(i, i)
    stamp(1)
    frozen[0] = pstat == 3
    A("s_mov_b32 s%d, %d" % (sSPIN, spin * 16))
    LB("L_qwait")
    A("ds_read_b32 v%d, v%d offset:%d" % (vU + 5, vU + 4, L_FLAG))
    A("ds_read_b128 v[%d:%d], v%d offset:%d" % (vQ, vQ + 3, vU + 3, L_Q))
    A("s_sub_u32 s%d, s%d, 1" % (sSPIN, sSPIN))
    A("s_cmp_eq_u32 s%d, 0" % sSPIN)
    A("s_waitcnt lgkmcnt(0)")
    A("s_cbranch_scc1 L_qok")
    A("v_cmp_eq_u32 vcc, 0, v%d" % (vU + 5))
    A("s_cbranch_vccnz L_qwait")
    LB("L_qok")
    stamp(2)

    def kdot(sl, n):
        b = slot(sl)
        A("v_dot2_f32_bf16 v%d, v%d, v%d, 0" % (vT + n, b, vQ))
        for r in range(1, 4):
            A("v_dot2_f32_bf16 v%d, v%d, v%d, v%d" % (vT + n, b + r, vQ + r, vT + n))

    def kreduce():
        t = lambda n: vT + n
        for k in range(NB - 1):
            A("v_mov_b32 v%d, v%d" % (vS + k, vS + k + 1))
        for n in range(8):
            A("v_add_f32_dpp v%d, v%d, v%d row_ror:8 row_mask:0xf bank_mask:0x3" % (t(n), t(n), t(n)))
        for n in range(8):
            A("v_add_f32_dpp v%d, v%d, v%d row_ror:8 row_mask:0xf bank_mask:0xc" % (t(n), t(n + 8), t(n + 8)))
        for n in range(4):
            A("v_add_f32_dpp v%d, v%d, v%d row_half_mirror row_mask:0xf bank_mask:0x5" % (t(n), t(n), t(n)))
        for n in range(4):
            A("v_add_f32_dpp v%d, v%d, v%d row_half_mirror row_mask:0xf bank_mask:0xa" % (t(n), t(n + 4), t(n + 4)))
        A("v_cndmask_b32 v%d, v%d, v%d, s[%d:%d]" % (t(9), t(2), t(0), sM2, sM2 + 1))
        A("v_cndmask_b32 v%d, v%d, v%d, s[%d:%d]" % (t(11), t(3), t(1), sM2, sM2 + 1))
        A("v_cndmask_b32 v%d, v%d, v%d, s[%d:%d]" % (t(8), t(0), t(2), sM2, sM2 + 1))
        A("v_cndmask_b32 v%d, v%d, v%d, s[%d:%d]" % (t(10), t(1), t(3), sM2, sM2 + 1))
        A("s_nop 0")
        A("v_add_f32_dpp v%d, v%d, v%d quad_perm:[2,3,0,1] row_mask:0xf bank_mask:0xf" % (t(0), t(9), t(8)))
        A("v_add_f32_dpp v%d, v%d, v%d quad_perm:[2,3,0,1] row_mask:0xf bank_mask:0xf" % (t(1), t(11), t(10)))
        A("v_cndmask_b32 v%d, v%d, v%d, s[%d:%d]" % (t(9), t(1), t(0), sM1, sM1 + 1))
        A("v_cndmask_b32 v%d, v%d, v%d, s[%d:%d]" % (t(8), t(0), t(1), sM1, sM1 + 1))
        A("s_nop 1")
        A("v_add_f32_dpp v%d, v%d, v%d quad_perm:[1,0,3,2] row_mask:0xf bank_mask:0xf" % (t(0), t(9), t(8)))
        A("v_mov_b32 v%d, v%d" % (t(1), t(0)))
        A("s_nop 1")
        A("v_permlane16_swap_b32 v%d, v%d" % (t(0), t(1)))
        A("v_add_f32 v%d, v%d, v%d" % (t(0), t(0), t(1)))
        A("v_cvt_pk_bf16_f32 v%d, v%d, v%d" % (t(0), t(0), t(0)))
        A("v_and_b32 v%d, 0xffff0000, v%d" % (vS + NB - 1, t(0)))

    sMODE = 90
    vMODE, vCNT, vPA, vMA = 53, 54, 55, 56
    def pace(j):
        if ctl:
            lab[0] += 1
            for k in range(NF - 1, -1, -1):
                A("s_bitcmp1_b32 s%d, %d" % (sMODE, 8 * k + j % 8))
                A("s_cbranch_scc1 L_p%d_%d" % (lab[0], k))
            A("s_waitcnt vmcnt(%d)" % (Dl - 1))
            for k in range(NF):
                LB("L_p%d_%d" % (lab[0], k))
                A("s_waitcnt vmcnt(%d)" % (Dl + k))
        else:
            A("s_waitcnt vmcnt(%d)" % (LAG - 1))

    def progress(j):
        if ctl == 1 and j % pper == pper - 1:
            A("v_add_u32 v%d, %d, v%d" % (vCNT, pper, vCNT))
            A("ds_write_b32 v%d, v%d offset:%d" % (vPA, vCNT, L_PROG))

    def checkpoint(last_hi=False):
        if ctl == 1:
            A("s_waitcnt lgkmcnt(0)")
            A("v_readfirstlane_b32 s%d, v%d" % (sMODE, vMODE))
            A("ds_read_b32 v%d, v%d offset:%d" % (vMODE, vMA, L_MODE))
        if ctl and last_hi:
            A("s_cmp_eq_u32 s%d, 1" % sIT)
            A("s_cselect_b32 s%d, -1, s%d" % (sMODE, sMODE))

    C("catch-up: consume the landing zone, keep D loads in flight")
    if ctl:
        A("s_mov_b32 s%d, 0x%x" % (sMODE, pat(lv0, NF)))
        A("v_mov_b32 v%d, 0" % vCNT)
        A("s_lshl_b32 s%d, s3, 8" % sTMP)
        A("v_lshl_add_u32 v%d, v%d, 2, s%d" % (vPA, vLANE, sTMP))
        A("s_lshl_b32 s%d, s3, 2" % sTMP)
        A("v_mov_b32 v%d, s%d" % (vMA, sTMP))
        A("v_mov_b32 v%d, s%d" % (vMODE, sMODE))
    free = LZ - D
    pts = []
    for e in range(LAG):
        p = max(e, int(round((e + 0.5) * free / LAG)) - 1)
        p = min(p, free - 1 + e, LZ - 1)
        pts.append(p)
    assert LZ + LAG <= N
    for j in range(LZ):
        kdot(j, j % 16)
        for e in range(LAG):
            if pts[e] == j:
                A("s_waitcnt vmcnt(%d)" % (D - 1))
                issue(LZ + e, e)
        if j % 16 == 15:
            kreduce()
    for e in range(LAG):
        assert e <= pts[e] < free + e, (pts, free)

    C("steady K loop")
    nit = (N - LZ) // 16
    A("s_mov_b32 s%d, %d" % (sIT, nit))
    LB("L_kloop")
    for j in range(16):
        if j % cper == 0:
            checkpoint()
        pace(j)
        if (j + LAG) % 16 == 0:
            advance()
            A("s_cmp_eq_u32 s%d, 1" % sIT)
            A("s_cselect_b32 s%d, s%d, s%d" % (SRD, sV, SRD))
            A("s_cselect_b32 s%d, s%d, s%d" % (SRD + 1, sV + 1, SRD + 1))
            A("s_cselect_b32 s%d, s%d, s%d" % (sOFF, sBASE, sOFF))
            issue(j + LAG, (j + LAG) % 16, adv=False)
        else:
            issue(j + LAG, (j + LAG) % 16)
        progress(j)
        kdot(j, j)
    kreduce()
    A("s_sub_u32 s%d, s%d, 1" % (sIT, sIT))
    A("s_cmp_lg_u32 s%d, 0" % sIT)
    A("s_cbranch_scc1 L_kloop")

    C("softmax over this wave's keys")
    stamp(3)
    m = vU
    A("v_max3_f32 v%d, v%d, v%d, v%d" % (m, vS, vS + 1, vS + 2))
    k = 3
    while k + 1 < NB:
        A("v_max3_f32 v%d, v%d, v%d, v%d" % (m, m, vS + k, vS + k + 1))
        k += 2
    if k < NB:
        A("v_max_f32 v%d, v%d, v%d" % (m, m, vS + k))
    def allreduce(op, r, tmp, half=True):
        for c_ in ("quad_perm:[1,0,3,2]", "quad_perm:[2,3,0,1]", "row_half_mirror", "row_mirror"):
            A("s_nop 1")
            A("%s_dpp v%d, v%d, v%d %s row_mask:0xf bank_mask:0xf" % (op, r, r, r, c_))
        if half:
            A("v_mov_b32 v%d, v%d" % (tmp, r))
            A("s_nop 1")
            A("v_permlane32_swap_b32 v%d, v%d" % (r, tmp))
            A("%s v%d, v%d, v%d" % (op, r, r, tmp))
    allreduce("v_max_f32", m, vU + 1)
    A("v_mul_f32 v%d, s%d, v%d" % (vU + 4, sCS, m))
    for k in range(NB):
        A("v_fma_f32 v%d, v%d, s%d, -v%d" % (vS + k, vS + k, sCS, vU + 4))
    for k in range(NB):
        A("v_exp_f32 v%d, v%d" % (vS + k, vS + k))
    l = vU + 5
    A("v_add_f32 v%d, v%d, v%d" % (l, vS, vS + 1))
    for k in range(2, NB):
        A("v_add_f32 v%d, v%d, v%d" % (l, l, vS + k))
    for k in range(NB):
        A("v_cvt_pk_bf16_f32 v%d, v%d, v%d" % (vS + k, vS + k, vS + k))
    allreduce("v_add_f32", l, vU + 1)
    A("v_mov_b32 v%d, 1" % (vU + 6))
    A("v_mov_b32 v%d, 1" % (vU + 7))
    A("s_lshl_b32 s%d, s3, 4" % sTMP)
    A("v_mov_b32 v%d, s%d" % (vU + 1, sTMP))
    A("ds_write_b128 v%d, v[%d:%d] offset:%d" % (vU + 1, vU + 4, vU + 7, L_STAT))

    C("V loop")
    A("s_mov_b32 s%d, %d" % (sIT, NB))
    LB("L_vloop")
    for j in range(16):
        if j % cper == 0:
            checkpoint(last_hi=(j + cper > 16 - LAG))
        for r in range(4):
            A("v_and_b32_dpp v%d, v%d, v%d row_newbcast:%d row_mask:0xf bank_mask:0xf" % (vA + r, vS, vMK + r, j))
        pace(j)
        if (j + LAG) % 16 == 0:
            advance()
            A("s_cmp_eq_u32 s%d, 1" % sIT)
            A("s_cselect_b32 s%d, 0x10000000, s%d" % (sOFF, sOFF))
            if ROT:
                A("s_cselect_b32 s%d, 0x10000000, s%d" % (sREG, sREG))
            issue(j + LAG, (j + LAG) % 16, adv=False)
        else:
            issue(j + LAG, (j + LAG) % 16)
        A("v_mfma_f32_16x16x32_bf16 v[%d:%d], v[%d:%d], v[%d:%d], v[%d:%d]" %
          (vO, vO + 3, vA, vA + 3, slot(j), slot(j) + 3, vO, vO + 3))
        progress(j)
    for k in range(NB - 1):
        A("v_mov_b32 v%d, v%d" % (vS + k, vS + k + 1))
    A("s_sub_u32 s%d, s%d, 1" % (sIT, sIT))
    A("s_cmp_lg_u32 s%d, 0" % sIT)
    A("s_cbranch_scc1 L_vloop")
    A("s_lshl_b32 s%d, s3, 10" % sTMP)
    A("v_add_u32 v%d, s%d, v%d" % (vU, sTMP, vOFF))
    pad = 8 - (NB - 1) - 3 - 2
    if pad > 0:
        A("s_nop %d" % (pad - 1))
    A("ds_write_b128 v%d, v[%d:%d] offset:%d" % (vU, vO, vO + 3, L_O))
    A("s_waitcnt lgkmcnt(0)")
    stamp(4)
    A("s_barrier")
    A("s_and_b32 s%d, s2, 7" % sTMP)
    A("s_cmp_eq_u32 s%d, %d" % (sTMP, rcls if not abl & (32 | 64) else 99))
    A("s_cbranch_scc1 L_redset")
    if b3:
        A("s_barrier")
    A("s_branch L_fin")

    LB("L_helper")
    hL = 0
    hG, hJ = 1, 2
    hU = 4
    hX = 16
    hSEL = 32
    hA = 36
    hD = 40
    hMK = 44
    hP = 48
    hW = 64
    sHW = 39
    A("s_sub_u32 s%d, s3, %d" % (sHW, NW))
    A("v_lshrrev_b32 v%d, 4, v%d" % (hG, hL))
    A("v_and_b32 v%d, 15, v%d" % (hJ, hL))
    A("s_lshr_b32 s%d, s%d, 4" % (sB, sGRP))
    A("s_and_b32 s%d, s%d, 15" % (sH, sGRP))
    A("s_mov_b32 s%d, %d" % (SRD + 2, 448 * 8192))
    for r in range(4):
        A("s_mov_b32 s%d, 0x%08x" % (sSEL + r, 0x07060500 | r))
    A("s_cmp_lg_u32 s%d, 0" % sHW)
    A("s_cbranch_scc1 L_h_other")

    C("helper 0: one 112-row x 64-column tile of q = x @ wq for this head, both batches")
    sTILE, sRQ, sCSL, sQW, sQR, sSAME, sQT = 87, sTMP + 1, sTMP + 2, 94, 95, 89, sF
    A("v_mov_b32 v%d, 0" % (hU + 10))
    A("v_lshlrev_b32 v%d, 2, v%d" % (hU + 5, hL))
    A("ds_write_b32 v%d, v%d offset:%d" % (hU + 5, hU + 10, L_STAT))
    A("v_mul_u32_u24 v%d, %d, v%d" % (hU, 28 * 8192, hG))
    A("v_lshl_add_u32 v%d, v%d, 3, v%d" % (hU, hJ, hU))
    A("v_bfe_u32 v%d, v%d, 2, 1" % (hU + 1, hL))
    A("v_mul_u32_u24 v%d, 896, v%d" % (hU + 1, hU + 1))
    A("v_mul_u32_u24 v%d, 56, v%d" % (hU + 2, hG))
    A("v_add_u32 v%d, v%d, v%d" % (hU + 1, hU + 1, hU + 2))
    A("s_lshl_b32 s%d, s%d, 3" % (sTILE, sB))
    A("s_add_u32 s%d, s%d, s%d" % (sTILE, sTILE, sC))
    A("s_lshl_b32 s%d, s%d, 13" % (sQW, sH))
    A("s_add_u32 s%d, s%d, %d" % (sQW, sQW, WS_Q))
    A("s_mov_b32 s%d, 1" % sSAME)
    A("s_mov_b32 s%d, 1792" % (SR2 + 2))
    A("s_getreg_b32 s%d, hwreg(HW_REG_XCC_ID, 0, 4)" % (sTMP + 3))
    A("s_waitcnt lgkmcnt(0)")
    A("s_load_dword s%d, s[%d:%d], %d" % (sTAG, sWS, sWS + 1, WS_EPOCH))
    A("s_mov_b32 s%d, s%d" % (SR2, sX))
    A("s_mov_b32 s%d, s%d" % (SR2 + 1, sX + 1))
    A("s_mov_b32 s%d, s%d" % (SRD, sWQ))
    A("s_mov_b32 s%d, s%d" % (SRD + 1, sWQ + 1))
    A("s_mov_b32 s%d, s%d" % (WSR, sWS))
    A("s_mov_b32 s%d, s%d" % (WSR + 1, sWS + 1))
    if b0e:
        A("s_barrier")
    LB("L_tile")
    A("s_lshr_b32 s%d, s%d, 2" % (sRQ, sTILE))
    A("s_and_b32 s%d, s%d, 3" % (sCSL, sTILE))
    A("s_mul_i32 s%d, s%d, %d" % (sOFF, sRQ, 112 * 8192))
    A("s_lshl_b32 s%d, s%d, 9" % (sIT, sH))
    A("s_add_u32 s%d, s%d, s%d" % (sOFF, sOFF, sIT))
    A("s_lshl_b32 s%d, s%d, 7" % (sIT, sCSL))
    A("s_add_u32 s%d, s%d, s%d" % (sOFF, sOFF, sIT))
    A("s_mul_i32 s%d, s%d, 224" % (sBASE, sRQ))
    for q in range(3):
        A("buffer_load_dwordx4 v[%d:%d], v%d, s[%d:%d], s%d offen offset:%d" % (hX + 4 * q, hX + 4 * q + 3, hU + 1, SR2, SR2 + 3, sBASE, 16 * q))
    A("buffer_load_dwordx2 v[%d:%d], v%d, s[%d:%d], s%d offen offset:48" % (hX + 12, hX + 13, hU + 1, SR2, SR2 + 3, sBASE))
    for n in range(28 if not abl & 16 else 0):
        A("buffer_load_dwordx2 v[%d:%d], v%d, s[%d:%d], s%d offen %s" % (hW + 2 * n, hW + 2 * n + 1, hU, SRD, SRD + 3, sOFF, wflags))
        if n < 27:
            A("s_add_u32 s%d, s%d, 8192" % (sOFF, sOFF))
    A("s_cmp_eq_u32 s%d, 0" % sSAME)
    A("s_cbranch_scc1 L_tile_go")
    C("first pass only: one-time set-up")
    if not b0e:
        A("s_barrier")
    A("v_and_b32 v%d, 1, v%d" % (hU + 2, hL))
    A("v_lshlrev_b32 v%d, 4, v%d" % (hU + 2, hU + 2))
    A("v_bfe_u32 v%d, v%d, 1, 1" % (hU + 3, hL))
    A("v_bfe_u32 v%d, v%d, 3, 1" % (hU + 4, hL))
    A("v_lshl_add_u32 v%d, v%d, 1, v%d" % (hU + 3, hU + 4, hU + 3))
    A("v_mov_b32 v%d, 0x0c0c0c0c" % (hU + 6))
    for par, src in ((0, 0x0100), (1, 0x0302)):
        A("v_mov_b32 v%d, 0x%x" % (hU + 4, src ^ 0x0c0c))
        A("v_lshlrev_b32 v%d, v%d, v%d" % (hU + 4, hU + 2, hU + 4))
        A("v_xor_b32 v%d, v%d, v%d" % (hU + 4, hU + 6, hU + 4))
        for r in range(2):
            A("v_cmp_eq_u32 vcc, %d, v%d" % (r, hU + 3))
            A("s_nop 1")
            A("v_cndmask_b32 v%d, v%d, v%d, vcc" % (hSEL + 2 * par + r, hU + 6, hU + 4))
    A("s_waitcnt lgkmcnt(0)")
    A("s_add_u32 s%d, s%d, 0x01011001" % (sTAG, sTAG))
    A("v_mov_b32 v%d, s%d" % (hU + 9, sTAG))
    A("ds_write_b32 v%d, v%d offset:%d" % (hU + 10, hU + 9, L_TAG))
    if ctl == 1:
        A("v_mov_b32 v%d, 0x%x" % (hU + 4, pat(lv0, NF)))
        A("v_and_b32 v%d, %d, v%d" % (hU + 3, NW - 1, hL))
        A("v_lshlrev_b32 v%d, 2, v%d" % (hU + 2, hU + 3))
        A("ds_write_b32 v%d, v%d offset:%d" % (hU + 2, hU + 4, L_MODE))
        A("v_lshlrev_b32 v%d, 8, v%d" % (hU + 3, hU + 3))
        A("ds_write_b32 v%d, v%d offset:%d" % (hU + 3, hU + 10, L_PROG))
    for r in range(4):
        A("s_bfe_u32 s%d, s%d, 0x%x" % (sT + r, sTAG, 0x80000 | (8 * r)))
    C("q tiles carry the producer's XCC id in their tag: accepting one proves a shared L2")
    A("s_lshl_b32 s%d, s%d, 8" % (sIT, sTMP + 3))
    A("s_xor_b32 s%d, s%d, s%d" % (sIT, sIT, sTAG))
    A("v_mov_b32 v%d, s%d" % (hU + 6, sIT))
    for r in range(4):
        A("s_bfe_u32 s%d, s%d, 0x%x" % (sQT + r, sIT, 0x80000 | (8 * r)))
    LB("L_tile_go")
    for r in range(4):
        A("v_mov_b32 v%d, 0" % (hD + r))
    A("s_lshl_b32 s%d, s%d, 8" % (sOFF, sTILE))
    A("s_add_u32 s%d, s%d, s%d" % (sOFF, sOFF, sQW))
    A("v_lshlrev_b32 v%d, 12, v%d" % (hU + 7, hG))
    A("v_lshl_add_u32 v%d, v%d, 4, v%d" % (hU + 7, hJ, hU + 7))
    A("s_lshl_b32 s%d, s%d, 12" % (sQR, sB))
    A("s_add_u32 s%d, s%d, s%d" % (sQR, sQR, sQW))
    A("v_lshlrev_b32 v%d, 4, v%d" % (hU + 8, hL))
    PW = 1 if pre & 1 else 0
    if PW:
        C("allocate the tile's lines in L2 with a not-yet-valid tag so early polls do not miss to memory")
        A("v_not_b32 v%d, v%d" % (hP + 4, hU + 6))
        for r in range(4):
            A("v_perm_b32 v%d, v%d, v%d, s%d" % (hP + r, hP + 4, hP + 4, sSEL + r))
        A("s_mov_b32 exec_hi, 0")
        A("buffer_store_dwordx4 v[%d:%d], v%d, s[%d:%d], s%d offen" % (hP, hP + 3, hU + 7, WSR, WSR + 3, sOFF))
        A("s_mov_b32 exec_hi, -1")
    A("s_waitcnt vmcnt(%d)" % (28 + PW))
    for n in range(28):
        a = hA + 2 * (n & 1)
        for r in range(2):
            A("v_perm_b32 v%d, v%d, v%d, v%d" % (a + r, hX + (n >> 1), hX + (n >> 1), hSEL + 2 * (n & 1) + r))
        A("s_waitcnt vmcnt(%d)" % (27 - n + PW))
        A("s_nop 0")
        A("v_mfma_f32_16x16x16_bf16 v[%d:%d], v[%d:%d], v[%d:%d], v[%d:%d]" %
          (hD, hD + 3, a, a + 1, hW + 2 * n, hW + 2 * n + 1, hD, hD + 3))
    A("s_nop 7")
    for r in range(4):
        A("v_perm_b32 v%d, v%d, v%d, s%d" % (hMK + r, hD + r, hU + 6, sSEL + r))
    A("s_mov_b32 exec_hi, 0")
    if not abl & 2:
        A("buffer_store_dwordx4 v[%d:%d], v%d, s[%d:%d], s%d offen" % (hMK, hMK + 3, hU + 7, WSR, WSR + 3, sOFF))
    A("s_mov_b32 exec_hi, -1")
    stamp(1)
    A("s_mov_b32 s%d, %d" % (sSPIN, qtry))
    A("s_cmp_lg_u32 s%d, 0" % sSAME)
    A("s_cbranch_scc1 L_qpoll0")
    A("s_waitcnt vmcnt(0)")
    A("s_add_u32 s%d, s%d, 1" % (sTILE, sTILE))
    A("s_cmp_lt_u32 s%d, 16" % sTILE)
    A("s_cbranch_scc1 L_tile")
    A("s_mov_b32 s%d, %d" % (sSPIN, spin))
    LB("L_qpoll0")
    if abl & 1:
        A("s_branch L_qgo")
    if force_slow:
        A("s_cmp_lg_u32 s%d, 0" % sSAME)
        A("s_cbranch_scc1 L_qfail")
    LB("L_qpoll")
    if qslp:
        A("s_sleep %d" % qslp)
    for q in range(4):
        A("buffer_load_dwordx4 v[%d:%d], v%d, s[%d:%d], s%d offen offset:%d sc1" % (hP + 4 * q, hP + 4 * q + 3, hU + 8, WSR, WSR + 3, sQR, 1024 * q))
    A("s_waitcnt vmcnt(0)")
    for q in range(4):
        for r in range(4):
            A("v_xor_b32 v%d, s%d, v%d" % (hP + 4 * q + r, sQT + r, hP + 4 * q + r))
    A("v_or3_b32 v%d, v%d, v%d, v%d" % (hU + 11, hP, hP + 1, hP + 2))
    for k in range(3, 15, 2):
        A("v_or3_b32 v%d, v%d, v%d, v%d" % (hU + 11, hU + 11, hP + k, hP + k + 1))
    A("v_or_b32 v%d, v%d, v%d" % (hU + 11, hU + 11, hP + 15))
    A("v_and_b32 v%d, 0xff, v%d" % (hU + 11, hU + 11))
    A("v_cmp_ne_u32 vcc, 0, v%d" % (hU + 11))
    A("s_cbranch_vccz L_qgo")
    A("s_sub_u32 s%d, s%d, 1" % (sSPIN, sSPIN))
    A("s_cmp_lg_u32 s%d, 0" % sSPIN)
    A("s_cbranch_scc1 L_qpoll")
    A("s_cmp_eq_u32 s%d, 0" % sSAME)
    A("s_cbranch_scc1 L_qgo")
    LB("L_qfail")
    C("some producer of this head is not behind our L2 (or is very late): compute all 16 tiles here")
    A("s_mov_b32 s%d, 0" % sSAME)
    A("s_mov_b32 s%d, 0" % sTILE)
    A("s_lshl_b32 s%d, s2, 13" % sQW)
    A("s_add_u32 s%d, s%d, %d" % (sQW, sQW, WS_QP))
    A("s_branch L_tile")
    LB("L_qgo")
    for r in range(4):
        A("v_add_f32 v%d, v%d, v%d" % (hP + r, hP + r, hP + 4 + r))
        A("v_add_f32 v%d, v%d, v%d" % (hP + 8 + r, hP + 8 + r, hP + 12 + r))
    for r in range(4):
        A("v_add_f32 v%d, v%d, v%d" % (hP + r, hP + r, hP + 8 + r))
    A("v_cvt_pk_bf16_f32 v%d, v%d, v%d" % (hP, hP, hP + 1))
    A("v_cvt_pk_bf16_f32 v%d, v%d, v%d" % (hP + 1, hP + 2, hP + 3))
    A("v_lshlrev_b32 v%d, 3, v%d" % (hU + 11, hL))
    A("v_mov_b32 v%d, 1" % (hP + 2))
    A("ds_write_b64 v%d, v[%d:%d] offset:%d" % (hU + 11, hP, hP + 1, L_Q))
    A("s_waitcnt lgkmcnt(0)")
    A("ds_write_b32 v%d, v%d offset:%d" % (hU + 10, hP + 2, L_FLAG))
    stamp(2)
    A("s_branch L_h_common")

    LB("L_h_other")
    A("v_mov_b32 v%d, 0" % (hU + 10))
    A("s_mov_b32 s%d, 0" % sSAME)
    A("s_waitcnt lgkmcnt(0)")
    A("s_mov_b32 s%d, s%d" % (WSR, sWS))
    A("s_mov_b32 s%d, s%d" % (WSR + 1, sWS + 1))
    if qt:
        C("helper 1 reads this workgroup's q-tile and statistics lines once (scalar path) so later polls hit L2")
        A("s_cmp_lg_u32 s%d, 1" % sHW)
        A("s_cbranch_scc1 L_noqt")
        A("s_lshl_b32 s%d, s%d, 3" % (sIT, sB))
        A("s_add_u32 s%d, s%d, s%d" % (sIT, sIT, sC))
        A("s_lshl_b32 s%d, s%d, 8" % (sIT, sIT))
        A("s_lshl_b32 s%d, s%d, 13" % (sOFF, sH))
        A("s_add_u32 s%d, s%d, s%d" % (sIT, sIT, sOFF))
        A("s_add_u32 s%d, s%d, s%d" % (sTMP, sWS, sIT))
        A("s_addc_u32 s%d, s%d, 0" % (sTMP + 1, sWS + 1))
        for k in range(8):
            A("s_load_dword s%d, s[%d:%d], %d" % (sF + k, sTMP, sTMP + 1, WS_Q + (k >> 2) * 4096 + (k & 3) * 64))
        A("s_lshl_b32 s%d, s%d, 3" % (sIT, sGRP))
        A("s_add_u32 s%d, s%d, s%d" % (sIT, sIT, sC))
        A("s_lshl_b32 s%d, s%d, 7" % (sIT, sIT))
        A("s_add_u32 s%d, s%d, s%d" % (sTMP + 2, sWS, sIT))
        A("s_addc_u32 s%d, s%d, 0" % (sTMP + 3, sWS + 1))
        for k in range(2):
            A("s_load_dword s%d, s[%d:%d], %d" % (sTMP + 4 + k, sTMP + 2, sTMP + 3, WS_STAT + k * 64))
        LB("L_noqt")
    A("s_barrier")
    A("s_mov_b32 s%d, %d" % (sSPIN, spin * 4))
    LB("L_hwait")
    A("s_sleep 8")
    A("ds_read_b32 v%d, v%d offset:%d" % (hU + 8, hU + 10, L_FLAG))
    A("ds_read_b32 v%d, v%d offset:%d" % (hU + 9, hU + 10, L_TAG))
    A("s_sub_u32 s%d, s%d, 1" % (sSPIN, sSPIN))
    A("s_cmp_eq_u32 s%d, 0" % sSPIN)
    A("s_waitcnt lgkmcnt(0)")
    A("s_cbranch_scc1 L_hok")
    A("v_cmp_eq_u32 vcc, 0, v%d" % (hU + 8))
    A("s_cbranch_vccnz L_hwait")
    LB("L_hok")
    A("v_readfirstlane_b32 s%d, v%d" % (sTAG, hU + 9))
    A("s_nop 0")
    for r in range(4):
        A("s_bfe_u32 s%d, s%d, 0x%x" % (sT + r, sTAG, 0x80000 | (8 * r)))

    LB("L_h_common")
    if prio:
        A("s_setprio %d" % prio)
    C("prefetch this wave's wo fragment: rows h*256+128*(c>>2)+64*(hw&1)+4*(hw>>1)+8n+(g>>1)+2(g&1), cols 112*(c&3) + 8*min(j,13)")
    sSL, sCB = sTMP, sTMP + 1
    A("s_mov_b32 s%d, s%d" % (SRD, sWO))
    A("s_mov_b32 s%d, s%d" % (SRD + 1, sWO + 1))
    A("v_min_u32 v%d, 13, v%d" % (hU, hJ))
    A("v_lshlrev_b32 v%d, 4, v%d" % (hU, hU))
    A("v_lshrrev_b32 v%d, 1, v%d" % (hU + 1, hG))
    A("v_and_b32 v%d, 1, v%d" % (hU + 2, hG))
    A("v_lshl_add_u32 v%d, v%d, 1, v%d" % (hU + 1, hU + 2, hU + 1))
    A("v_mul_u32_u24 v%d, 896, v%d" % (hU + 1, hU + 1))
    A("v_add_u32 v%d, v%d, v%d" % (hU, hU, hU + 1))
    A("s_and_b32 s%d, s%d, 4" % (sSL, sC))
    A("s_add_u32 s%d, s%d, s%d" % (sSL, sSL, sHW))
    A("s_and_b32 s%d, s%d, 3" % (sCB, sC))
    A("s_lshl_b32 s%d, s%d, 8" % (sOFF, sH))
    A("s_lshr_b32 s%d, s%d, 2" % (sIT, sC))
    A("s_lshl_b32 s%d, s%d, 7" % (sIT, sIT))
    A("s_add_u32 s%d, s%d, s%d" % (sOFF, sOFF, sIT))
    A("s_and_b32 s%d, s%d, 1" % (sIT, sHW))
    A("s_lshl_b32 s%d, s%d, 6" % (sIT, sIT))
    A("s_add_u32 s%d, s%d, s%d" % (sOFF, sOFF, sIT))
    A("s_lshr_b32 s%d, s%d, 1" % (sIT, sHW))
    A("s_lshl_b32 s%d, s%d, 2" % (sIT, sIT))
    A("s_add_u32 s%d, s%d, s%d" % (sOFF, sOFF, sIT))
    A("s_mul_i32 s%d, s%d, 896" % (sOFF, sOFF))
    A("s_mul_i32 s%d, s%d, 224" % (sIT, sCB))
    A("s_add_u32 s%d, s%d, s%d" % (sOFF, sOFF, sIT))
    for n in range(8 - wol if not abl & 8 else 0):
        A("buffer_load_dwordx4 v[%d:%d], v%d, s[%d:%d], s%d offen %s" %
          (hW + 4 * n, hW + 4 * n + 3, hU, SRD, SRD + 3, sOFF, wflags))
        A("s_add_u32 s%d, s%d, %d" % (sOFF, sOFF, 8 * 896))
        A("s_waitcnt vmcnt(0)")
    def late_wo(tag):
        if not wol:
            return
        assert ctl == 1
        A("v_and_b32 v%d, %d, v%d" % (hP + 1, NW - 1, hL))
        A("v_lshlrev_b32 v%d, 8, v%d" % (hP + 1, hP + 1))
        A("s_mov_b32 s%d, %d" % (sSPIN, spin * 16))
        LB("L_wow" + tag)
        A("s_sleep 1")
        A("ds_read_b32 v%d, v%d offset:%d" % (hP, hP + 1, L_PROG))
        A("s_sub_u32 s%d, s%d, 1" % (sSPIN, sSPIN))
        A("s_cmp_eq_u32 s%d, 0" % sSPIN)
        A("s_waitcnt lgkmcnt(0)")
        A("s_cbranch_scc1 L_wog" + tag)
        if wany:
            A("v_cmp_le_u32 vcc, %d, v%d" % (2 * N - LZ - wom, hP))
            A("s_cbranch_vccz L_wow" + tag)
        else:
            A("v_cmp_gt_u32 vcc, %d, v%d" % (2 * N - LZ - wom, hP))
            A("s_cbranch_vccnz L_wow" + tag)
        LB("L_wog" + tag)
        for n in range(8 - wol, 8):
            A("buffer_load_dwordx4 v[%d:%d], v%d, s[%d:%d], s%d offen %s" %
              (hW + 4 * n, hW + 4 * n + 3, hU, SRD, SRD + 3, sOFF, wflags))
            if n < 7:
                A("s_add_u32 s%d, s%d, %d" % (sOFF, sOFF, 8 * 896))
    A("v_lshrrev_b32 v%d, 1, v%d" % (hU + 1, hJ))
    A("v_and_b32 v%d, 1, v%d" % (hU + 2, hL))
    A("v_lshlrev_b32 v%d, 4, v%d" % (hU + 2, hU + 2))
    A("v_mov_b32 v%d, 0xffff" % (hU + 3))
    A("v_lshlrev_b32 v%d, v%d, v%d" % (hU + 3, hU + 2, hU + 3))
    for r in range(4):
        A("v_cmp_eq_u32 vcc, %d, v%d" % (r, hU + 1))
        A("s_nop 1")
        A("v_cndmask_b32 v%d, 0, v%d, vcc" % (hMK + r, hU + 3))
    A("v_lshrrev_b32 v%d, 3, v%d" % (hU + 1, hL))
    A("v_lshlrev_b32 v%d, 10, v%d" % (hU + 1, hU + 1))
    A("v_and_b32 v%d, 7, v%d" % (hU + 2, hL))
    A("v_lshl_add_u32 v%d, v%d, 4, v%d" % (hU + 1, hU + 2, hU + 1))
    sO1R, sO1W, sYW = sTMP + 4, sTMP + 5, sTMP + 6
    A("s_lshl_b32 s%d, s%d, 13" % (sO1R, sGRP))
    A("s_add_u32 s%d, s%d, %d" % (sO1R, sO1R, WS_O1))
    A("s_lshl_b32 s%d, s%d, 10" % (sIT, sC))
    A("s_add_u32 s%d, s%d, s%d" % (sO1W, sO1R, sIT))
    A("s_lshl_b32 s%d, s%d, 7" % (sIT, sSL))
    A("s_add_u32 s%d, s%d, s%d" % (sO1R, sO1R, sIT))
    A("s_lshl_b32 s%d, s%d, 2" % (sYW, sB))
    A("s_add_u32 s%d, s%d, s%d" % (sYW, sYW, sCB))
    A("s_lshl_b32 s%d, s%d, 4" % (sYW, sYW))
    A("s_add_u32 s%d, s%d, s%d" % (sYW, sYW, sH))
    A("s_lshl_b32 s%d, s%d, 1" % (sYW, sYW))
    A("s_lshr_b32 s%d, s%d, 2" % (sIT, sC))
    A("s_add_u32 s%d, s%d, s%d" % (sYW, sYW, sIT))
    A("s_lshl_b32 s%d, s%d, 9" % (sYW, sYW))
    A("s_add_u32 s%d, s%d, %d" % (sYW, sYW, WS_Y))
    sYA, sOO = 90, 92
    rV, rO, ya, rT, rL = 128, 129, 100, 130, 132
    A("s_lshl_b32 s%d, s%d, 9" % (sIT, sHW))
    A("v_lshlrev_b32 v%d, 4, v%d" % (rL, hL))
    A("v_add_u32 v%d, s%d, v%d" % (rL + 2, sIT, rL))
    A("s_cmp_lg_u32 s%d, 0" % sHW)
    A("s_cbranch_scc1 L_h_b2")

    C("helper 0: softmax statistics exchange inside the (b,h) group")
    A("v_and_b32 v%d, %d, v%d" % (hU + 3, NW - 1, hL))
    A("v_lshlrev_b32 v%d, 4, v%d" % (hU + 3, hU + 3))
    sSR, sSW = sTMP, sTMP + 1
    A("s_lshl_b32 s%d, s%d, 10" % (sSR, sGRP))
    A("s_add_u32 s%d, s%d, %d" % (sSR, sSR, WS_STAT))
    A("s_lshl_b32 s%d, s%d, 7" % (sSW, sC))
    A("s_add_u32 s%d, s%d, s%d" % (sSW, sSW, sSR))
    if pre & 2:
        A("s_cmp_eq_u32 s%d, 0" % sSAME)
        A("s_cbranch_scc1 L_nopw1")
        for r in range(4):
            A("v_not_b32 v%d, v%d" % (hP + 12 + r, hU + 9))
        A("s_mov_b64 exec, 0xff")
        A("buffer_store_dwordx4 v[%d:%d], v%d, s[%d:%d], s%d offen" % (hP + 12, hP + 15, rL, WSR, WSR + 3, sSW))
        A("s_mov_b64 exec, -1")
        LB("L_nopw1")
    A("s_mov_b32 s%d, %d" % (sSPIN, spin * 4))
    LB("L_lpoll")
    A("s_sleep 4")
    A("ds_read_b128 v[%d:%d], v%d offset:%d" % (hP, hP + 3, hU + 3, L_STAT))
    A("s_sub_u32 s%d, s%d, 1" % (sSPIN, sSPIN))
    A("s_cmp_eq_u32 s%d, 0" % sSPIN)
    A("s_cbranch_scc1 L_lgo")
    A("s_waitcnt lgkmcnt(0)")
    A("v_cmp_eq_u32 vcc, 0, v%d" % (hP + 2))
    A("s_cbranch_vccnz L_lpoll")
    LB("L_lgo")
    A("s_waitcnt lgkmcnt(0)")
    A("v_mov_b32 v%d, v%d" % (hP + 2, hU + 9))
    A("v_mov_b32 v%d, v%d" % (hP + 3, hU + 9))
    A("s_mov_b64 exec, %d" % ((1 << NW) - 1) if NW <= 4 else "s_mov_b64 exec, 0xff")
    if not abl & 4:
        lab[0] += 1
        A("s_cmp_eq_u32 s%d, 0" % sSAME)
        A("s_cbranch_scc1 L_wt%d" % lab[0])
        A("buffer_store_dwordx4 v[%d:%d], v%d, s[%d:%d], s%d offen" % (hP, hP + 3, hU + 3, WSR, WSR + 3, sSW))
        A("s_branch L_wd%d" % lab[0])
        LB("L_wt%d" % lab[0])
        A("buffer_store_dwordx4 v[%d:%d], v%d, s[%d:%d], s%d offen sc1" % (hP, hP + 3, hU + 3, WSR, WSR + 3, sSW))
        LB("L_wd%d" % lab[0])
    A("s_mov_b64 exec, -1")
    A("v_bfe_u32 v%d, v%d, %d, 3" % (hU + 4, hL, int(math.log2(NW))))
    A("v_lshl_add_u32 v%d, v%d, 7, v%d" % (hU + 4, hU + 4, hU + 3))
    A("s_mov_b32 s%d, %d" % (sSPIN, spin))
    if abl & 4:
        A("s_branch L_sgo")
    LB("L_spoll")
    A("s_sleep 8")
    A("buffer_load_dwordx4 v[%d:%d], v%d, s[%d:%d], s%d offen sc1" % (hP + 4, hP + 7, hU + 4, WSR, WSR + 3, sSR))
    A("s_sub_u32 s%d, s%d, 1" % (sSPIN, sSPIN))
    A("s_cmp_eq_u32 s%d, 0" % sSPIN)
    A("s_cbranch_scc1 L_sgo")
    A("s_waitcnt vmcnt(0)")
    A("v_xor_b32 v%d, v%d, v%d" % (hP + 8, hP + 6, hU + 9))
    A("v_xor_b32 v%d, v%d, v%d" % (hP + 9, hP + 7, hU + 9))
    A("v_or_b32 v%d, v%d, v%d" % (hP + 8, hP + 8, hP + 9))
    A("v_cmp_ne_u32 vcc, 0, v%d" % (hP + 8))
    A("s_cbranch_vccnz L_spoll")
    C("all 8 members of this group have read the epoch; the last of the 32 groups to get here advances it")
    A("s_cmp_lg_u32 s%d, 0" % sC)
    A("s_cbranch_scc1 L_sgo")
    A("s_mov_b32 s%d, 1" % sIT)
    A("s_atomic_add s%d, s[%d:%d], 0 glc" % (sIT, sDBG, sDBG + 1))
    A("s_waitcnt lgkmcnt(0)")
    A("s_cmp_lg_u32 s%d, 31" % sIT)
    A("s_cbranch_scc1 L_sgo")
    A("s_mov_b64 exec, 1")
    A("buffer_store_dword v%d, v%d, s[%d:%d], 0 offen" % (hU + 9, hU + 10, WSR, WSR + 3))
    A("s_mov_b64 exec, -1")
    LB("L_sgo")
    A("s_waitcnt vmcnt(0)")
    stamp(3)
    def allreduce_full(op, r, tmp):
        for c_ in ("quad_perm:[1,0,3,2]", "quad_perm:[2,3,0,1]", "row_half_mirror", "row_mirror"):
            A("s_nop 1")
            A("%s_dpp v%d, v%d, v%d %s row_mask:0xf bank_mask:0xf" % (op, r, r, r, c_))
        sw = ["v_permlane16_swap_b32"] + (["v_permlane32_swap_b32"] if NW == 8 else [])
        for s_ in sw:
            A("v_mov_b32 v%d, v%d" % (tmp, r))
            A("s_nop 1")
            A("%s v%d, v%d" % (s_, r, tmp))
            A("%s v%d, v%d, v%d" % (op, r, r, tmp))
    A("v_mov_b32 v%d, v%d" % (hP + 8, hP + 4))
    allreduce_full("v_max_f32", hP + 8, hP + 9)
    A("v_sub_f32 v%d, v%d, v%d" % (hP + 8, hP + 4, hP + 8))
    A("v_exp_f32 v%d, v%d" % (hP + 8, hP + 8))
    A("s_nop 0")
    A("v_mul_f32 v%d, v%d, v%d" % (hP + 10, hP + 8, hP + 5))
    allreduce_full("v_add_f32", hP + 10, hP + 9)
    A("v_rcp_f32 v%d, v%d" % (hP + 10, hP + 10))
    A("s_mul_i32 s%d, s%d, %d" % (sIT, sC, NW))
    A("v_mul_f32 v%d, v%d, v%d" % (hP + 8, hP + 8, hP + 10))
    for w in range(NW):
        A("s_nop 0")
        A("v_readlane_b32 s%d, v%d, s%d" % (sF + w, hP + 8, sIT))
        A("s_add_u32 s%d, s%d, 1" % (sIT, sIT))
    if pre & 4:
        A("s_cmp_eq_u32 s%d, 0" % sSAME)
        A("s_cbranch_scc1 L_nopw2")
        if pwm:
            assert ctl == 1
            A("s_mov_b32 s%d, %d" % (sSPIN, spin * 4))
            LB("L_pww")
            A("s_sleep 4")
            A("ds_read_b32 v%d, v%d offset:%d" % (hP, hU + 10, L_PROG))
            A("s_sub_u32 s%d, s%d, 1" % (sSPIN, sSPIN))
            A("s_cmp_eq_u32 s%d, 0" % sSPIN)
            A("s_waitcnt lgkmcnt(0)")
            A("s_cbranch_scc1 L_nopw2")
            A("v_cmp_gt_u32 vcc, %d, v%d" % (2 * N - LZ - pwm, hP))
            A("s_cbranch_vccnz L_pww")
        A("v_not_b32 v%d, v%d" % (hP + 4, hU + 9))
        for r in range(4):
            A("v_perm_b32 v%d, v%d, v%d, s%d" % (hP + 12 + r, hP + 4, hP + 4, sSEL + r))
        A("buffer_store_dwordx4 v[%d:%d], v%d, s[%d:%d], s%d offen" % (hP + 12, hP + 15, rL, WSR, WSR + 3, sO1W))
        LB("L_nopw2")
    late_wo("a")
    A("s_barrier")
    LB("L_comb")
    OR = 96
    for w in range(NW):
        A("ds_read_b128 v[%d:%d], v%d offset:%d" % (OR + 4 * w, OR + 4 * w + 3, rL, L_O + 1024 * w))
    for w in range(NW):
        A("s_waitcnt lgkmcnt(%d)" % (NW - 1 - w))
        for r in range(4):
            if w == 0:
                A("v_mul_f32 v%d, s%d, v%d" % (hD + r, sF, OR + r))
            else:
                A("v_fmac_f32 v%d, s%d, v%d" % (hD + r, sF + w, OR + 4 * w + r))
    for r in range(4):
        A("v_perm_b32 v%d, v%d, v%d, s%d" % (hX + r, hD + r, hU + 9, sSEL + r))
    if not abl & 32:
        lab[0] += 1
        A("s_cmp_eq_u32 s%d, 0" % sSAME)
        A("s_cbranch_scc1 L_wt%d" % lab[0])
        A("buffer_store_dwordx4 v[%d:%d], v%d, s[%d:%d], s%d offen %s" % (hX, hX + 3, rL, WSR, WSR + 3, sO1W, o1f))
        A("s_branch L_wd%d" % lab[0])
        LB("L_wt%d" % lab[0])
        A("buffer_store_dwordx4 v[%d:%d], v%d, s[%d:%d], s%d offen sc1" % (hX, hX + 3, rL, WSR, WSR + 3, sO1W))
        LB("L_wd%d" % lab[0])
    A("s_branch L_h_hop1")
    LB("L_h_b2")
    if ctl == 1:
        A("s_cmp_lg_u32 s%d, 1" % sHW)
        A("s_cbranch_scc1 L_h_noctl")
        C("helper 1: bandwidth-share feedback (performance only; results never depend on it)")
        assert NW == 4
        total = NW * ((N - LZ) + N)
        cV = 96
        sPW, sPR, sME, sTG, sXW, sPREV, sXPREV, sREF = sF, sF + 1, sF + 2, sF + 3, sF + 4, sF + 5, sF + 6, sF + 7
        A("s_mov_b32 s%d, 0" % sPREV)
        A("s_mov_b32 s%d, 0" % sXPREV)
        XS = 4096 + 256
        A("s_lshr_b32 s%d, s2, 3" % sME)
        A("s_and_b32 s%d, s2, 7" % sPR)
        A("s_mul_i32 s%d, s%d, %d" % (sXW, sPR, XS if xg == 1 else 4))
        if xg == 2:
            A("s_mov_b32 s87, 0")
            A("s_mov_b32 s89, 0")
        A("s_add_u32 s%d, s%d, %d" % (sXW, sXW, WS_XP))
        A("s_lshl_b32 s%d, s%d, 8" % (sPR, sPR))
        A("s_add_u32 s%d, s%d, %d" % (sPR, sPR, WS_PROG))
        A("s_lshl_b32 s%d, s%d, 2" % (sPW, sME))
        A("s_add_u32 s%d, s%d, s%d" % (sPW, sPW, sPR))
        A("s_lshl_b32 s%d, s%d, 16" % (sTG, sTAG))
        A("s_add_u32 s16, s%d, %d" % (sWS, WS_XP))
        A("s_addc_u32 s17, s%d, 0" % (sWS + 1))
        A("v_min_u32 v%d, 32, v%d" % (cV, hL))
        A("v_lshlrev_b32 v%d, 2, v%d" % (cV, cV))
        A("v_mov_b32 v%d, 0" % (cV + 1))
        A("v_and_b32 v%d, 3, v%d" % (cV + 7, hL))
        A("v_lshlrev_b32 v%d, 2, v%d" % (cV + 8, cV + 7))
        A("v_lshlrev_b32 v%d, 8, v%d" % (cV + 7, cV + 7))
        A("v_mov_b32 v%d, 0" % (cV + 2))
        for l_ in range(1, 8 * NF + 1):
            A("s_mov_b32 s%d, 0x%x" % (sIT, pat(l_, NF)))
            A("v_writelane_b32 v%d, s%d, %d" % (cV + 2, sIT, l_))
        A("s_mov_b32 s%d, %d" % (sSPIN, spin))
        LB("L_ctl")
        if cslp:
            A("s_sleep %d" % cslp)
        A("ds_read_b32 v%d, v%d offset:%d" % (cV + 9, cV + 7, L_PROG))
        A("s_sub_u32 s%d, s%d, 1" % (sSPIN, sSPIN))
        A("s_cmp_eq_u32 s%d, 0" % sSPIN)
        A("s_cbranch_scc1 L_h_noctl")
        A("s_waitcnt lgkmcnt(0)")
        A("v_add_u32_dpp v%d, v%d, v%d quad_perm:[1,0,3,2] row_mask:0xf bank_mask:0xf" % (cV + 4, cV + 9, cV + 9))
        A("s_nop 1")
        A("v_add_u32_dpp v%d, v%d, v%d quad_perm:[2,3,0,1] row_mask:0xf bank_mask:0xf" % (cV + 4, cV + 4, cV + 4))
        A("s_nop 0")
        A("v_readfirstlane_b32 s%d, v%d" % (sIT, cV + 4))
        A("v_or_b32 v%d, s%d, v%d" % (cV + 4, sTG, cV + 4))
        A("s_add_u32 s%d, s%d, s%d" % (sREF, sIT, sPREV))
        A("s_mov_b32 s%d, s%d" % (sPREV, sIT))
        A("s_mov_b64 exec, 1")
        A("buffer_store_dword v%d, v%d, s[%d:%d], s%d offen" % (cV + 4, cV + 1, WSR, WSR + 3, sPW))
        A("s_mov_b64 exec, -1")
        A("s_cmp_ge_u32 s%d, %d" % (sIT, total - NW * margin))
        A("s_cbranch_scc1 L_h_noctl")
        A("buffer_load_dword v%d, v%d, s[%d:%d], s%d offen %s" % (cV + 5, cV, WSR, WSR + 3, sPR, cld))
        if xg == 2:
            A("s_memrealtime s[94:95]")
        A("s_waitcnt vmcnt(0)")
        A("v_xor_b32 v%d, s%d, v%d" % (cV + 5, sTG, cV + 5))
        A("v_cmp_gt_u32 vcc, 0x10000, v%d" % (cV + 5))
        A("s_nop 1")
        A("v_cndmask_b32 v%d, 0, v%d, vcc" % (cV + 5, cV + 5))
        A("s_cmp_lg_u32 vcc_lo, -1")
        A("s_cbranch_scc1 L_ctl")
        A("v_readlane_b32 s13, v%d, 32" % (cV + 5))
        for c_ in ("quad_perm:[1,0,3,2]", "quad_perm:[2,3,0,1]", "row_half_mirror", "row_mirror"):
            A("s_nop 1")
            A("v_add_u32_dpp v%d, v%d, v%d %s row_mask:0xf bank_mask:0xf" % (cV + 5, cV + 5, cV + 5, c_))
        A("s_nop 0")
        A("v_readlane_b32 s12, v%d, 0" % (cV + 5))
        A("v_readlane_b32 s14, v%d, 16" % (cV + 5))
        A("s_add_u32 s12, s12, s14")
        if xg == 2:
            sRND, sPEND, sPHI, sDP = sXPREV, 87, 88, 89
            A("s_cmp_lg_u32 s%d, 16" % sME)
            A("s_cbranch_scc1 L_ctl_nl")
            A("s_lshr_b32 s14, s12, %d" % xsh)
            A("s_cmp_eq_u32 s14, s%d" % sRND)
            A("s_cbranch_scc1 L_ctl_rd")
            C("class leader, new round: publish de-trended class progress on this round's line")
            A("s_mov_b32 s%d, s14" % sRND)
            A("s_mul_i32 s%d, s14, %d" % (sPEND, XS))
            A("s_waitcnt lgkmcnt(0)")
            A("s_mul_i32 s15, s94, %d" % xrate)
            A("s_lshr_b32 s15, s15, 4")
            A("s_sub_u32 s%d, s12, s15" % sPHI)
            A("s_and_b32 s%d, s%d, 0xffff" % (sPHI, sPHI))
            A("s_or_b32 s14, s%d, s%d" % (sPHI, sTG))
            A("v_mov_b32 v%d, s14" % (cV + 10))
            A("s_add_u32 s14, s%d, s%d" % (sPEND, sXW))
            A("s_mov_b64 exec, 1")
            A("buffer_store_dword v%d, v%d, s[%d:%d], s14 offen sc1" % (cV + 10, cV + 1, WSR, WSR + 3))
            A("s_mov_b64 exec, -1")
            A("s_branch L_ctl_nl")
            LB("L_ctl_rd")
            A("s_cmp_eq_u32 s%d, 0" % sPEND)
            A("s_cbranch_scc1 L_ctl_nl")
            A("s_load_dwordx8 s[4:11], s[16:17], s%d glc" % sPEND)
            A("s_waitcnt lgkmcnt(0)")
            A("s_mov_b32 s15, 0")
            A("s_mov_b32 s14, 0")
            for k in range(8):
                A("s_xor_b32 s%d, s%d, s%d" % (4 + k, 4 + k, sTG))
                A("s_or_b32 s14, s14, s%d" % (4 + k))
                A("s_sub_u32 s%d, s%d, s%d" % (4 + k, 4 + k, sPHI))
                A("s_sext_i32_i16 s%d, s%d" % (4 + k, 4 + k))
                A("s_add_u32 s15, s15, s%d" % (4 + k))
            A("s_cmp_lt_u32 s14, 0x10000")
            A("s_cbranch_scc0 L_ctl_nl")
            A("s_mov_b32 s%d, 0" % sPEND)
            A("s_ashr_i32 s15, s15, 3")
            if xd:
                A("s_sub_u32 s14, s15, s%d" % sDP)
                A("s_mov_b32 s%d, s15" % sDP)
                A("s_mul_i32 s14, s14, %d" % xd)
                A("s_ashr_i32 s14, s14, 2")
                A("s_add_u32 s15, s15, s14")
            A("s_add_u32 s15, s15, 0x8000")
            A("s_and_b32 s15, s15, 0xffff")
            A("s_or_b32 s15, s15, s%d" % sTG)
            A("v_mov_b32 v%d, s15" % (cV + 6))
            A("s_mov_b64 exec, 1")
            A("buffer_store_dword v%d, v%d, s[%d:%d], s%d offen offset:128" % (cV + 6, cV + 1, WSR, WSR + 3, sPR))
            A("s_mov_b64 exec, -1")
            LB("L_ctl_nl")
        if xg == 1:
            A("s_cmp_lg_u32 s%d, 16" % sME)
            A("s_cbranch_scc1 L_ctl_nl")
            C("class leader: swap class totals with the other leaders")
            A("s_or_b32 s14, s12, s%d" % sTG)
            A("v_mov_b32 v%d, s14" % (cV + 10))
            A("s_mov_b64 exec, 1")
            A("buffer_store_dword v%d, v%d, s[%d:%d], s%d offen sc1" % (cV + 10, cV + 1, WSR, WSR + 3, sXW))
            A("s_mov_b64 exec, -1")
            for k in range(8):
                A("s_load_dword s%d, s[16:17], %d glc" % (4 + k, k * XS))
            A("s_waitcnt lgkmcnt(0)")
            A("s_mov_b32 s15, 0")
            A("s_mov_b32 s14, 0")
            for k in range(8):
                A("s_xor_b32 s%d, s%d, s%d" % (4 + k, 4 + k, sTG))
                A("s_or_b32 s14, s14, s%d" % (4 + k))
                A("s_add_u32 s15, s15, s%d" % (4 + k))
            A("s_mul_i32 s4, s%d, %d" % (sXPREV, xa))
            A("s_mul_i32 s5, s12, %d" % (8 - xa))
            A("s_add_u32 s4, s4, s5")
            A("s_mov_b32 s%d, s12" % sXPREV)
            A("s_cmp_lt_u32 s14, 0x10000")
            A("s_cbranch_scc0 L_ctl_nl")
            A("s_sub_u32 s15, s15, s4")
            A("s_ashr_i32 s15, s15, 3")
            A("s_add_u32 s15, s15, 0x8000")
            A("s_and_b32 s15, s15, 0xffff")
            A("s_or_b32 s15, s15, s%d" % sTG)
            A("v_mov_b32 v%d, s15" % (cV + 6))
            A("s_mov_b64 exec, 1")
            A("buffer_store_dword v%d, v%d, s[%d:%d], s%d offen offset:128" % (cV + 6, cV + 1, WSR, WSR + 3, sPR))
            A("s_mov_b64 exec, -1")
            LB("L_ctl_nl")
        A("s_lshl_b32 s14, s%d, 4" % sREF)
        A("s_sub_u32 s12, s12, s14")
        A("s_mul_i32 s12, s12, %d" % gain)
        if xg:
            A("s_cmp_eq_u32 s13, 0")
            A("s_cselect_b32 s13, 0x8000, s13")
            A("s_sub_u32 s13, s13, 0x8000")
            A("s_mul_i32 s13, s13, %d" % xgain)
            A("s_add_u32 s12, s12, s13")
        C("fresh per-wave progress for the intra-workgroup term")
        A("ds_read_b32 v%d, v%d offset:%d" % (cV + 9, cV + 7, L_PROG))
        A("s_add_i32 s12, s12, %d" % (lv0 * 512 + 256))
        A("s_waitcnt lgkmcnt(0)")
        A("v_add_u32_dpp v%d, v%d, v%d quad_perm:[1,0,3,2] row_mask:0xf bank_mask:0xf" % (cV + 4, cV + 9, cV + 9))
        A("v_lshlrev_b32 v%d, 2, v%d" % (cV + 9, cV + 9))
        A("s_nop 0")
        A("v_add_u32_dpp v%d, v%d, v%d quad_perm:[2,3,0,1] row_mask:0xf bank_mask:0xf" % (cV + 4, cV + 4, cV + 4))
        A("v_sub_u32 v%d, v%d, v%d" % (cV + 4, cV + 4, cV + 9))
        A("v_mul_i32_i24 v%d, %d, v%d" % (cV + 4, 32 * wgain, cV + 4))
        A("v_add_u32 v%d, s12, v%d" % (cV + 4, cV + 4))
        A("v_ashrrev_i32 v%d, 9, v%d" % (cV + 4, cV + 4))
        A("v_max_i32 v%d, 0, v%d" % (cV + 4, cV + 4))
        A("v_min_i32 v%d, %d, v%d" % (cV + 4, 8 * NF, cV + 4))
        A("v_lshlrev_b32 v%d, 2, v%d" % (cV + 4, cV + 4))
        A("ds_bpermute_b32 v%d, v%d, v%d" % (cV + 5, cV + 4, cV + 2))
        A("s_waitcnt lgkmcnt(0)")
        A("ds_write_b32 v%d, v%d offset:%d" % (cV + 8, cV + 5, L_MODE))
        A("s_branch L_ctl")
        LB("L_h_noctl")
        A("s_waitcnt vmcnt(0) lgkmcnt(0)")
    if spt:
        C("helpers 2,3: shortly before the stream ends pull the hand-off lines into L2 over the scalar path")
        A("s_cmp_lt_u32 s%d, 2" % sHW)
        A("s_cbranch_scc1 L_nospt")
        if sptm:
            assert ctl == 1
            A("s_mov_b32 s%d, %d" % (sSPIN, spin * 4))
            LB("L_sptw")
            A("s_sleep 8")
            A("ds_read_b32 v%d, v%d offset:%d" % (hP, hU + 10, L_PROG))
            A("s_sub_u32 s%d, s%d, 1" % (sSPIN, sSPIN))
            A("s_cmp_eq_u32 s%d, 0" % sSPIN)
            A("s_waitcnt lgkmcnt(0)")
            A("s_cbranch_scc1 L_nospt")
            A("v_cmp_gt_u32 vcc, %d, v%d" % (2 * N - LZ - sptm, hP))
            A("s_cbranch_vccnz L_sptw")
        A("s_cmp_eq_u32 s%d, 2" % sHW)
        A("s_cbranch_scc1 L_spt2")
        if spt & 1:
            A("s_and_b32 s%d, s2, 7" % sIT)
            A("s_cmp_lg_u32 s%d, %d" % (sIT, rcls))
            A("s_cbranch_scc1 L_nospt")
            A("s_lshr_b32 s%d, s2, 5" % sIT)
            A("s_lshl_b32 s%d, s%d, 14" % (sYA, sIT))
            A("s_bfe_u32 s%d, s2, 0x20003" % sIT)
            A("s_lshl_b32 s%d, s%d, 7" % (sIT, sIT))
            A("s_add_u32 s%d, s%d, s%d" % (sYA, sYA, sIT))
            A("s_add_u32 s%d, s%d, %d" % (sYA, sYA, WS_Y))
            A("s_add_u32 s16, s%d, s%d" % (sWS, sYA))
            A("s_addc_u32 s17, s%d, 0" % (sWS + 1))
            for k in range(64):
                A("s_load_dword s%d, s[16:17], %d" % (4 + k % 8, (k >> 1) * 512 + (k & 1) * 64))
                if k % 8 == 7:
                    A("s_waitcnt lgkmcnt(0)")
        A("s_branch L_nospt")
        LB("L_spt2")
        if spt & 2:
            A("s_add_u32 s16, s%d, s%d" % (sWS, sO1W))
            A("s_addc_u32 s17, s%d, 0" % (sWS + 1))
            for k in range(1024 // sptg):
                A("s_load_dword s%d, s[16:17], %d" % (4 + k % 8, k * sptg))
                if k % 8 == 7:
                    A("s_waitcnt lgkmcnt(0)")
        LB("L_nospt")
        A("s_waitcnt vmcnt(0)")
    late_wo("b")
    A("s_barrier")
    if odel:
        A("s_sleep %d" % odel)
    LB("L_h_hop1")
    if owait >= 0:
        A("s_waitcnt vmcnt(%d)" % owait)
    if abl & 32:
        A("s_branch L_fin")
    stamp(4)
    A("s_mov_b32 s%d, %d" % (sSPIN, spin))
    def ringpoll(name, K, pad, ring, res, tmp, voff, soff, slp, fail):
        ld = lambda k: A("buffer_load_dwordx4 v[%d:%d], v%d, s[%d:%d], s%d offen sc1" % (ring + 4 * k, ring + 4 * k + 3, voff, WSR, WSR + 3, soff))
        for k in range(K - 1):
            ld(k)
            if pad:
                A("s_nop %d" % (pad - 1))
        LB(name)
        for k in range(K):
            if slp:
                A("s_sleep %d" % slp)
            ld((k + K - 1) % K)
            if k == 0:
                A("s_sub_u32 s%d, s%d, 1" % (sSPIN, sSPIN))
                A("s_cmp_eq_u32 s%d, 0" % sSPIN)
                A("s_cbranch_scc1 %s" % fail)
            elif pad:
                A("s_nop %d" % (pad - 1))
            A("s_waitcnt vmcnt(%d)" % (K - 1))
            if (pstat == 1 and name == "L_opoll") or (pstat == 2 and name == "L_rpoll"):
                A("s_cmp_lg_u32 s%d, %d" % (sSPIN, spin - 1))
                A("s_cbranch_scc1 %s_ns" % name)
                stamp(1)
                LB(name + "_ns")
                A("s_sub_u32 s%d, %d, s%d" % (sST + 4, spin, sSPIN))
                A("s_mul_i32 s%d, s%d, 100" % (sST + 4, sST + 4))
                A("s_add_u32 s%d, s%d, s%d" % (sST + 4, sST + 4, sST))
                A("s_addc_u32 s%d, s%d, 0" % (sST + 5, sST + 1))
            for r in range(4):
                A("v_xor_b32 v%d, s%d, v%d" % (res + r, sT + r, ring + 4 * k + r))
            A("v_or3_b32 v%d, v%d, v%d, v%d" % (tmp, res, res + 1, res + 2))
            A("v_or_b32 v%d, v%d, v%d" % (tmp, tmp, res + 3))
            A("v_and_b32 v%d, 0xff, v%d" % (tmp, tmp))
            A("v_cmp_ne_u32 vcc, 0, v%d" % tmp)
            A("s_and_b64 exec, exec, vcc")
            if k == K - 1:
                A("s_cbranch_scc1 %s" % name)
            else:
                A("s_cbranch_scc0 %s_done" % name)
        LB(name + "_done")
    ringpoll("L_opoll", ok, opad, 136, hP, hP + 4, hU + 1, sO1R, slp1, "L_fin")
    A("s_mov_b64 exec, -1")
    stamp(5)
    A("v_permlane32_swap_b32 v%d, v%d" % (hP, hP + 1))
    A("v_permlane32_swap_b32 v%d, v%d" % (hP + 2, hP + 3))
    A("v_add_f32 v%d, v%d, v%d" % (hP, hP, hP + 1))
    A("v_add_f32 v%d, v%d, v%d" % (hP + 2, hP + 2, hP + 3))
    A("s_nop 1")
    A("v_permlane16_swap_b32 v%d, v%d" % (hP, hP + 2))
    A("v_add_f32 v%d, v%d, v%d" % (hP, hP, hP + 2))
    A("s_nop 1")
    A("v_add_f32_dpp v%d, v%d, v%d row_ror:8 row_mask:0xf bank_mask:0xf" % (hP, hP, hP))
    A("v_cvt_pk_bf16_f32 v%d, v%d, v%d" % (hP, hP, hP))
    A("s_nop 1")
    A2 = [hA, hSEL]
    def buildA(n):
        for r in range(4):
            A("v_and_b32_dpp v%d, v%d, v%d row_newbcast:%d row_mask:0xf bank_mask:0xf" % (A2[n & 1] + r, hP, hMK + r, n))
    buildA(0)
    for n in range(8):
        if n + 1 < 8:
            buildA(n + 1)
        else:
            A("s_nop 1")
        A("v_mfma_f32_16x16x32_bf16 v[%d:%d], v[%d:%d], v[%d:%d], %s" %
          (hD, hD + 3, A2[n & 1], A2[n & 1] + 3, hW + 4 * n, hW + 4 * n + 3, "0" if n == 0 else "v[%d:%d]" % (hD, hD + 3)))
    A("s_mov_b32 exec_hi, 0")
    A("s_cmp_eq_u32 s%d, 0" % sHW)
    A("s_cbranch_scc1 L_ysum")
    A("s_nop 4")
    A("ds_write_b128 v%d, v[%d:%d] offset:%d" % (rL + 2, hD, hD + 3, L_Y))
    A("s_waitcnt lgkmcnt(0)")
    A("s_barrier")
    stamp(6)
    if wb:
        A("s_cmp_lg_u32 s%d, 1" % sHW)
        A("s_cbranch_scc1 L_fin")
        if wb == 2:
            A("s_cmp_lg_u32 s%d, 0" % sC)
            A("s_cbranch_scc1 L_fin")
        A("buffer_wbl2 sc1")
    A("s_branch L_fin")

    LB("L_redset")
    C("final reduction: the stream waves of one workgroup class; unit u = wg>>3 = (b, cb, line), sub = wave")
    sU, sKQ = sTMP + 2, sTMP + 7
    A("v_mov_b32 v%d, 0" % rT)
    A("ds_read_b32 v%d, v%d offset:%d" % (rT + 1, rT, L_TAG))
    if red == 2:
        A("s_bfe_u32 s%d, s2, 0x20003" % sKQ)
        A("s_lshr_b32 s%d, s2, 5" % sU)
        A("s_lshl_b32 s%d, s%d, 14" % (sYA, sU))
        A("s_lshl_b32 s%d, s%d, 7" % (sIT, sKQ))
        A("s_add_u32 s%d, s%d, s%d" % (sYA, sYA, sIT))
        A("s_lshl_b32 s%d, s3, 12" % sIT)
        A("s_add_u32 s%d, s%d, s%d" % (sYA, sYA, sIT))
        A("s_add_u32 s%d, s%d, %d" % (sYA, sYA, WS_Y))
        A("v_lshrrev_b32 v%d, 3, v%d" % (rV, vLANE))
        A("v_lshlrev_b32 v%d, 9, v%d" % (rV, rV))
        A("v_and_b32 v%d, 7, v%d" % (rL, vLANE))
        A("v_lshl_add_u32 v%d, v%d, 4, v%d" % (rV, rL, rV))
        A("s_mul_i32 s%d, s%d, 224" % (sOO, sU))
        A("s_and_b32 s%d, s%d, 1" % (sIT, sKQ))
        A("s_lshl_b32 s%d, s%d, 7" % (sIT, sIT))
        A("s_add_u32 s%d, s%d, s%d" % (sOO, sOO, sIT))
        A("s_lshr_b32 s%d, s%d, 1" % (sIT, sKQ))
        A("s_lshl_b32 s%d, s%d, 3" % (sIT, sIT))
        A("s_add_u32 s%d, s%d, s%d" % (sOO, sOO, sIT))
        A("s_bitcmp1_b32 s%d, 0" % sKQ)
        A("s_mov_b32 s%d, 0x00ff00ff" % sU)
        A("s_cselect_b32 s%d, 0x003f003f, s%d" % (sKQ, sU))
        A("s_mov_b32 s%d, s%d" % (SR2, sOUT))
        A("s_mov_b32 s%d, s%d" % (SR2 + 1, sOUT + 1))
        A("s_mov_b32 s%d, 1792" % (SR2 + 2))
        A("v_lshrrev_b32 v%d, 5, v%d" % (rO, vLANE))
        A("v_lshl_add_u32 v%d, v%d, 3, v%d" % (rO, rL, rO))
        A("v_bfe_u32 v%d, v%d, 4, 1" % (rL, vLANE))
        A("v_lshl_add_u32 v%d, v%d, 1, v%d" % (rO, rL, rO))
        A("v_lshlrev_b32 v%d, 1, v%d" % (rO, rO))
        A("v_lshlrev_b32 v%d, 2, v%d" % (rL, vLANE))
        A("s_lshl_b32 s%d, s3, 8" % sIT)
        A("v_add_u32 v%d, s%d, v%d" % (rL + 1, sIT, rL))
        A("s_waitcnt vmcnt(0) lgkmcnt(0)")
        A("v_readfirstlane_b32 s%d, v%d" % (sTAG, rT + 1))
        A("s_nop 0")
        for r in range(4):
            A("s_bfe_u32 s%d, s%d, 0x%x" % (sT + r, sTAG, 0x80000 | (8 * r)))
        A("s_mov_b32 s%d, %d" % (sSPIN, spin))
        A("s_barrier")
        stamp(6)
        ringpoll("L_rpoll", rk, rpad, 136 + 4 * ok, ya, rT, rV, sYA, slp2, "L_fin")
        A("s_mov_b64 exec, -1")
        stamp(5)
        A("v_permlane32_swap_b32 v%d, v%d" % (ya, ya + 1))
        A("v_permlane32_swap_b32 v%d, v%d" % (ya + 2, ya + 3))
        A("v_add_f32 v%d, v%d, v%d" % (ya, ya, ya + 1))
        A("v_add_f32 v%d, v%d, v%d" % (ya + 2, ya + 2, ya + 3))
        A("s_cmp_eq_u32 s3, 0")
        A("s_nop 0")
        A("v_permlane16_swap_b32 v%d, v%d" % (ya, ya + 2))
        A("v_add_f32 v%d, v%d, v%d" % (ya, ya, ya + 2))
        A("s_cbranch_scc1 L_rsum")
        A("ds_write_b32 v%d, v%d offset:%d" % (rL + 1, ya, L_O))
        A("s_waitcnt lgkmcnt(0)")
        A("s_barrier")
        A("s_branch L_fin")
        LB("L_rsum")
        A("s_barrier")
        for w in range(1, 4):
            A("ds_read_b32 v%d, v%d offset:%d" % (ya + w, rL, L_O + 256 * w))
        A("s_waitcnt lgkmcnt(0)")
        A("v_add_f32 v%d, v%d, v%d" % (ya, ya, ya + 1))
        A("v_add_f32 v%d, v%d, v%d" % (ya + 2, ya + 2, ya + 3))
        A("v_add_f32 v%d, v%d, v%d" % (ya, ya, ya + 2))
        A("s_nop 1")
        A("v_add_f32_dpp v%d, v%d, v%d row_ror:8 row_mask:0xf bank_mask:0xf" % (ya, ya, ya))
        A("s_mov_b32 exec_lo, s%d" % sKQ)
        A("s_mov_b32 exec_hi, s%d" % sKQ)
        A("v_cvt_pk_bf16_f32 v%d, v%d, v%d" % (ya, ya, ya))
        A("buffer_store_short v%d, v%d, s[%d:%d], s%d offen %s" % (ya, rO, SR2, SR2 + 3, sOO, oflags))
    else:
        A("s_bfe_u32 s%d, s2, 0x20003" % sKQ)
        A("s_lshl_b32 s%d, s%d, 2" % (sKQ, sKQ))
        A("s_add_u32 s%d, s%d, s3" % (sKQ, sKQ))
        A("s_lshr_b32 s%d, s2, 5" % sU)
        A("s_lshl_b32 s%d, s%d, 14" % (sYA, sU))
        A("s_lshl_b32 s%d, s%d, 5" % (sIT, sKQ))
        A("s_add_u32 s%d, s%d, s%d" % (sYA, sYA, sIT))
        A("s_add_u32 s%d, s%d, %d" % (sYA, sYA, WS_Y))
        A("v_lshrrev_b32 v%d, 1, v%d" % (rV, vLANE))
        A("v_lshlrev_b32 v%d, 9, v%d" % (rV, rV))
        A("v_and_b32 v%d, 1, v%d" % (rL, vLANE))
        A("v_lshl_add_u32 v%d, v%d, 4, v%d" % (rV, rL, rV))
        A("s_mul_i32 s%d, s%d, 224" % (sOO, sU))
        A("s_and_b32 s%d, s%d, 8" % (sIT, sKQ))
        A("s_add_u32 s%d, s%d, s%d" % (sOO, sOO, sIT))
        A("s_and_b32 s%d, s%d, 7" % (sKQ, sKQ))
        A("s_lshl_b32 s%d, s%d, 5" % (sIT, sKQ))
        A("s_add_u32 s%d, s%d, s%d" % (sOO, sOO, sIT))
        A("s_mov_b32 s%d, s%d" % (SR2, sOUT))
        A("s_mov_b32 s%d, s%d" % (SR2 + 1, sOUT + 1))
        A("s_mov_b32 s%d, 1792" % (SR2 + 2))
        A("v_lshrrev_b32 v%d, 5, v%d" % (rO, vLANE))
        A("v_lshl_add_u32 v%d, v%d, 3, v%d" % (rO, rL, rO))
        A("v_bfe_u32 v%d, v%d, 4, 1" % (rL, vLANE))
        A("v_lshl_add_u32 v%d, v%d, 1, v%d" % (rO, rL, rO))
        A("v_lshlrev_b32 v%d, 1, v%d" % (rO, rO))
        A("s_waitcnt vmcnt(0) lgkmcnt(0)")
        A("v_readfirstlane_b32 s%d, v%d" % (sTAG, rT + 1))
        A("s_nop 0")
        for r in range(4):
            A("s_bfe_u32 s%d, s%d, 0x%x" % (sT + r, sTAG, 0x80000 | (8 * r)))
        A("s_cmp_eq_u32 s%d, 7" % sKQ)
        A("s_barrier")
        A("s_cbranch_scc1 L_fin")
        stamp(6)
        A("s_mov_b32 s%d, %d" % (sSPIN, spin))
        ringpoll("L_rpoll", rk, rpad, 136 + 4 * ok, ya, rT, rV, sYA, slp2, "L_fin")
        A("s_mov_b64 exec, -1")
        stamp(5)
        A("v_permlane32_swap_b32 v%d, v%d" % (ya, ya + 1))
        A("v_permlane32_swap_b32 v%d, v%d" % (ya + 2, ya + 3))
        A("v_add_f32 v%d, v%d, v%d" % (ya, ya, ya + 1))
        A("v_add_f32 v%d, v%d, v%d" % (ya + 2, ya + 2, ya + 3))
        A("s_nop 1")
        A("v_permlane16_swap_b32 v%d, v%d" % (ya, ya + 2))
        A("v_add_f32 v%d, v%d, v%d" % (ya, ya, ya + 2))
        for c_ in ("row_ror:8", "row_ror:4", "quad_perm:[2,3,0,1]"):
            A("s_nop 1")
            A("v_add_f32_dpp v%d, v%d, v%d %s row_mask:0xf bank_mask:0xf" % (ya, ya, ya, c_))
        A("v_cvt_pk_bf16_f32 v%d, v%d, v%d" % (ya, ya, ya))
        A("s_mov_b32 exec_lo, 0x00030003")
        A("s_mov_b32 exec_hi, 0x00030003")
        A("buffer_store_short v%d, v%d, s[%d:%d], s%d offen %s" % (ya, rO, SR2, SR2 + 3, sOO, oflags))
    if diag >= 0:
        if dmask:
            A("s_cmp_ge_u32 s2, 8")
            A("s_cbranch_scc1 L_fin")
            A("s_bitcmp0_b32 0x%x, s2" % dmask)
        else:
            A("s_cmp_lg_u32 s2, %d" % dwg)
        A("s_cbranch_scc1 L_fin")
    if diag >= 0:
        C("DIAGNOSTIC ONLY")
        A("s_memrealtime s[%d:%d]" % (sST + 14, sST + 15))
        A("s_waitcnt lgkmcnt(0)")
        A("s_sub_u32 s%d, s%d, s%d" % (sTMP, sST + 2 * diag, sST))
        A("s_min_u32 s%d, s%d, 20000" % (sTMP, sTMP))
        A("s_mul_i32 s%d, s%d, %d" % (sTMP, sTMP, dk))
        if dfix:
            A("s_mov_b32 s%d, %d" % (sTMP, dfix))
        LB("L_diag")
        A("s_memrealtime s[%d:%d]" % (sST + 12, sST + 13))
        A("s_waitcnt lgkmcnt(0)")
        A("s_sub_u32 s%d, s%d, s%d" % (sTMP + 1, sST + 12, sST + 14))
        A("s_cmp_lt_u32 s%d, s%d" % (sTMP + 1, sTMP))
        A("s_cbranch_scc1 L_diag")
    A("s_branch L_fin0")
    LB("L_ysum")
    A("s_barrier")
    LB("L_ysum2")
    for w in range(1, 4):
        A("ds_read_b128 v[%d:%d], v%d offset:%d" % (ya + 4 * w, ya + 4 * w + 3, rL, L_Y + 512 * w))
    A("s_nop 1")
    for w in range(1, 4):
        A("s_waitcnt lgkmcnt(%d)" % (3 - w))
        for r in range(4):
            A("v_add_f32 v%d, v%d, v%d" % (hD + r, hD + r, ya + 4 * w + r))
    for r in range(4):
        A("v_perm_b32 v%d, v%d, v%d, s%d" % (hD + r, hD + r, hU + 9, sSEL + r))
    if not abl & 128:
        A("buffer_store_dwordx4 v[%d:%d], v%d, s[%d:%d], s%d offen sc1" % (hD, hD + 3, rL, WSR, WSR + 3, sYW))
    stamp(6)
    A("s_branch L_fin")

    LB("L_fin0")
    stamp(7)
    LB("L_fin")
    stamp_store()
    LB("L_end")
    A("s_endpgm")
    nv = max(vSL + 4 * LZ, 96 + 4 * NW, 136 + 4 * ok + 4 * rk)
    nv = (nv + 7) // 8 * 8
    L.append('.section .rodata,"a"')
    L.append(".p2align 6")
    L.append(".amdhsa_kernel " + KN)
    L.append("  .amdhsa_next_free_vgpr %d" % nv)
    L.append("  .amdhsa_next_free_sgpr 96")
    L.append("  .amdhsa_accum_offset %d" % nv)
    L.append("  .amdhsa_group_segment_fixed_size 0")
    L.append("  .amdhsa_kernarg_size 64")
    L.append("  .amdhsa_user_sgpr_count 2")
    L.append("  .amdhsa_user_sgpr_kernarg_segment_ptr 1")
    L.append("  .amdhsa_system_sgpr_workgroup_id_x 1")
    L.append("  .amdhsa_float_denorm_mode_32 3")
    L.append(".end_amdhsa_kernel")
    return "\n".join(L) + "\n"


def parse(spec):
    kw = {}
    for x in spec.split(","):
        if not x:
            continue
        k, v = x.split("=")
        if k in ("mapping", "kflags", "wflags", "cstf", "cld", "oflags", "o1f"):
            kw[k] = v.replace("+", " ").replace("def", "")
        else:
            kw[k] = int(v, 0)
    return kw


if __name__ == "__main__":
    names = []
    for spec in sys.argv[1:]:
        name = "k_" + spec.replace(",", "_").replace("=", "") + ".s"
        open(name, "w").write(gen(**parse(spec)))
        names.append(name)
    print(" ".join(names))
```

```python
import sys

KN = "standalone__mha_block_cached__decode_kernel"

HEADER = """; Kernarg layout for this problem (64 bytes, ptrs only, base s[0:1]):
"""

DOC = """;
"""

WS_EPOCH = 0
WS_Q = 0x1000
WS_STAT = 0x40000
WS_PROG = 0x60000
WS_O1 = 0x80000
WS_Y = 0x100000
WS_QP = 0x200000
WS_USED = 0x400000
STAMP_BASE = 0x10000000

L_Q = 0
L_CLR = 512
L_TAG = 512
L_FLAG = 516
L_MODE = 528
L_STAT = 576
L_PAR = 640
L_CNT = 768
L_PROG = 1536
L_O = 2560
L_Y = 6656
L_R = 8704
LDS = 9728


def pat(l, nf):
    p8 = lambda f: sum(1 << j for j in range(8) if ((j + 1) * f) // 8 != (j * f) // 8)
    w = 0
    for k in range(nf):
        w |= p8(min(max(l - 8 * k, 0), 8)) << (8 * k)
    return w


def gen(D=5, LZ=32, Dl=4, Dh=7, lv0=9, gain=4, wgain=2, margin=20, cper=4, pper=2, rotg=1, wsig=1,
        mapping="xg", stamps=0, spin=1 << 16, qtry=24, force_slow=0, cpf=64, pk=1, dup=0, wslp=1, rcls=0, wol=8, wearly=40, owait=0, wany=0, gx=0, xb=0x4c4c4c4c, lq=3):
    L = []
    def A(s): L.append("  " + s)
    def LB(s): L.append(s + ":")
    def C(s): L.append("  ; " + s)
    NW = NH = 4
    N = 128
    NB = 8
    LAG = Dh
    NF = Dh - Dl
    TOTAL = 2 * N - LZ
    assert LZ % 16 == 0 and NF <= 4 and D <= LAG
    lab = [0]
    L.append(HEADER.rstrip("\n"))
    L.append("; @launch grid=(256,1,1) block=(512,1,1) lds=%d" % LDS)
    L.append(DOC.rstrip("\n"))
    L.append('.amdgcn_target "amdgcn-amd-amdhsa--gfx950"')
    L.append(".text")
    L.append(".globl " + KN)
    L.append(".p2align 8")
    L.append(".type %s,@function" % KN)
    LB(KN)

    sX, sK, sV, sWQ, sWO, sOUT, sDBG, sWS = 4, 6, 8, 10, 12, 14, 16, 18
    SRD = 20
    WSR = 24
    SR2 = 28
    sGRP, sC, sB, sH = 32, 33, 34, 35
    sBASE, sOFF, sIT = 36, 37, 38
    sT = 40
    sSEL = 44
    sM2, sM1 = 48, 50
    sF = 52
    sTMP = 60
    sSPIN, sCS = 68, 69
    sST = 70
    sTAG, sSAME = 86, 89

    def stamp(k):
        if stamps:
            A("s_memrealtime s[%d:%d]" % (sST + 2 * k, sST + 2 * k + 1))

    def spin_dec():
        A("s_sub_u32 s%d, s%d, 1" % (sSPIN, sSPIN))
        A("s_cmp_eq_u32 s%d, 0" % sSPIN)

    def tagbytes(dst, src):
        for r in range(4):
            A("s_bfe_u32 s%d, s%d, 0x%x" % (dst + r, src, 0x80000 | (8 * r)))

    def selectors():
        for r in range(4):
            A("s_mov_b32 s%d, 0x%08x" % (sSEL + r, 0x07060500 | r))

    def dual_store(v, voff, soff):
        lab[0] += 1
        A("s_cbranch_scc1 L_wt%d" % lab[0])
        A("buffer_store_dwordx4 v[%d:%d], v%d, s[%d:%d], s%d offen" % (v, v + 3, voff, WSR, WSR + 3, soff))
        A("s_branch L_wd%d" % lab[0])
        LB("L_wt%d" % lab[0])
        A("buffer_store_dwordx4 v[%d:%d], v%d, s[%d:%d], s%d offen sc1" % (v, v + 3, voff, WSR, WSR + 3, soff))
        LB("L_wd%d" % lab[0])

    DPP = "row_mask:0xf bank_mask:0xf"
    def rowreduce(op, r):
        for c_ in ("quad_perm:[1,0,3,2]", "quad_perm:[2,3,0,1]", "row_half_mirror", "row_mirror"):
            A("s_nop 1")
            A("%s_dpp v%d, v%d, v%d %s %s" % (op, r, r, r, c_, DPP))
    def swapreduce(op, r, tmp, ins):
        A("v_mov_b32 v%d, v%d" % (tmp, r))
        A("s_nop 1")
        A("%s v%d, v%d" % (ins, r, tmp))
        A("%s v%d, v%d, v%d" % (op, r, r, tmp))

    if stamps:
        for k in range(1, 8):
            A("s_mov_b64 s[%d:%d], 0" % (sST + 2 * k, sST + 2 * k + 1))
    stamp(0)
    A("s_load_dwordx16 s[4:19], s[0:1], 0")
    A("s_cmp_ge_u32 s2, 256")
    A("s_cbranch_scc1 L_end")
    if cpf:
        C("pull this kernel's own code into L2: every workgroup of a wg&7 class touches 512 bytes of it")
        A("s_getpc_b64 s[92:93]")
        A("s_lshr_b32 s94, s2, 3")
        A("s_lshl_b32 s94, s94, 9")
        A("v_mul_u32_u24 v2, %d, v0" % cpf)
        A("v_add_u32 v2, s94, v2")
        A("v_min_u32 v2, (L_end - %s - 256), v2" % KN)
        A("v_cmp_gt_u32 vcc, %d, v0" % (512 // cpf))
        A("s_and_saveexec_b64 s[94:95], vcc")
        A("s_cbranch_execz L_nopf")
        A("global_load_dword v3, v2, s[92:93]")
        LB("L_nopf")
        A("s_mov_b64 exec, -1")
    A("v_lshrrev_b32 v1, 6, v0")
    A("v_and_b32 v0, 63, v0")
    A("v_readfirstlane_b32 s3, v1")
    if mapping == "lin":
        A("s_lshr_b32 s%d, s2, 3" % sGRP)
        A("s_and_b32 s%d, s2, 7" % sC)
    else:
        C("group = b*16+h = (wg&7) | ((wg>>3)&24), chunk c = (wg>>3)&7")
        A("s_lshr_b32 s%d, s2, 3" % sTMP)
        A("s_and_b32 s%d, s%d, 7" % (sC, sTMP))
        A("s_and_b32 s%d, s%d, 24" % (sTMP, sTMP))
        A("s_and_b32 s%d, s2, 7" % sGRP)
        A("s_or_b32 s%d, s%d, s%d" % (sGRP, sGRP, sTMP))
        if gx:
            A("s_xor_b32 s%d, s%d, %d" % (sGRP, sGRP, gx))
    A("s_mov_b32 s%d, 0x20000" % (SRD + 3))
    A("s_mov_b32 s%d, 0x20000" % (WSR + 3))
    A("s_mov_b32 s%d, 0x20000" % (SR2 + 3))
    A("s_mov_b32 s%d, %d" % (WSR + 2, WS_USED))
    A("s_cmp_ge_u32 s3, %d" % NW)
    A("s_cbranch_scc1 L_helper")

    vOFF, vQ, vMK, vA, vO, vT, vS, vU, vLANE = 0, 4, 8, 12, 16, 20, 36, 44, 52
    vMODE, vCNT, vPA, vMA = 53, 54, 55, 56
    vSL = 64
    slot = lambda i: vSL + 4 * i
    span, stride = 2 << 20, 64 << 10
    sREG, sPH, sMODE = 87, 39, 90
    C("==== stream waves: 4-KiB granules; four chunk-mates interleave inside a 2-MiB half of the (b,h) slab")
    A("v_mov_b32 v%d, v0" % vLANE)
    A("v_lshlrev_b32 v%d, 4, v0" % vOFF)
    A("s_lshl_b32 s%d, s%d, 1" % (sREG, sGRP))
    A("s_lshr_b32 s%d, s%d, 2" % (sTMP, sC))
    A("s_add_u32 s%d, s%d, s%d" % (sREG, sREG, sTMP))
    A("s_lshl_b32 s%d, s%d, 21" % (sREG, sREG))
    A("s_and_b32 s%d, s%d, 3" % (sTMP, sC))
    A("s_lshl_b32 s%d, s%d, 2" % (sTMP, sTMP))
    A("s_add_u32 s%d, s%d, s3" % (sTMP, sTMP))
    A("s_lshl_b32 s%d, s%d, 12" % (sPH, sTMP))
    A("s_mul_i32 s%d, s%d, %d" % (sTMP, sGRP, rotg * stride))
    A("s_add_u32 s%d, s%d, s%d" % (sPH, sPH, sTMP))
    A("s_and_b32 s%d, s%d, %d" % (sPH, sPH, span - 1))
    A("s_add_u32 s%d, s%d, s%d" % (sOFF, sPH, sREG))
    A("s_mov_b32 s%d, 0x8000000" % (SRD + 2))
    A("s_waitcnt lgkmcnt(0)")
    A("s_mov_b32 s%d, s%d" % (SRD, sK))
    A("s_mov_b32 s%d, s%d" % (SRD + 1, sK + 1))

    def advance():
        A("s_add_u32 s%d, s%d, %d" % (sPH, sPH, stride))
        A("s_and_b32 s%d, s%d, %d" % (sPH, sPH, span - 1))
        A("s_add_u32 s%d, s%d, s%d" % (sOFF, sPH, sREG))

    def issue(idx, sl):
        A("buffer_load_dwordx4 v[%d:%d], v%d, s[%d:%d], s%d offen offset:%d nt" %
          (slot(sl), slot(sl) + 3, vOFF, SRD, SRD + 3, sOFF, (idx % 4) * 1024))
        if idx % 4 == 3:
            advance()

    C("fill the landing zone (q is not known yet), D loads in flight")
    for i in range(D):
        issue(i, i)
    A("s_barrier")
    A("s_mov_b32 s%d, s%d" % (WSR, sWS))
    A("s_mov_b32 s%d, s%d" % (WSR + 1, sWS + 1))
    A("s_mov_b32 s%d, 0xcccccccc" % sM2)
    A("s_mov_b32 s%d, 0xcccccccc" % (sM2 + 1))
    A("s_mov_b32 s%d, 0xaaaaaaaa" % sM1)
    A("s_mov_b32 s%d, 0xaaaaaaaa" % (sM1 + 1))
    A("s_mov_b32 s%d, 0x3db8aa3b" % sCS)
    C("P.V operand masks: lane (rho,i) is active iff (i>>3)==(rho&1); register (i&7)>>1, half i&1")
    A("v_lshrrev_b32 v%d, 3, v%d" % (vU, vLANE))
    A("v_lshrrev_b32 v%d, 4, v%d" % (vU + 1, vLANE))
    A("v_xor_b32 v%d, v%d, v%d" % (vU, vU, vU + 1))
    A("v_and_b32 v%d, 1, v%d" % (vU, vU))
    A("v_lshlrev_b32 v%d, 2, v%d" % (vU, vU))
    A("v_bfe_u32 v%d, v%d, 1, 2" % (vU + 1, vLANE))
    A("v_or_b32 v%d, v%d, v%d" % (vU, vU, vU + 1))
    A("v_and_b32 v%d, 1, v%d" % (vU + 1, vLANE))
    A("v_lshlrev_b32 v%d, 4, v%d" % (vU + 1, vU + 1))
    A("v_mov_b32 v%d, 0xffff" % (vU + 2))
    A("v_lshlrev_b32 v%d, v%d, v%d" % (vU + 2, vU + 1, vU + 2))
    for r in range(4):
        A("v_cmp_eq_u32 vcc, %d, v%d" % (r, vU))
        A("v_mov_b32 v%d, 0" % (vO + r))
        A("s_nop 0")
        A("v_cndmask_b32 v%d, 0, v%d, vcc" % (vMK + r, vU + 2))
    A("v_and_b32 v%d, 31, v%d" % (vU + 3, vLANE))
    A("v_lshlrev_b32 v%d, 4, v%d" % (vU + 3, vU + 3))
    A("v_mov_b32 v%d, 0" % vCNT)
    A("s_mov_b32 s%d, 0x%x" % (sMODE, pat(lv0 + (lq + 2) // 4, NF)))
    A("s_lshl_b32 s%d, s3, 8" % sTMP)
    A("v_lshl_add_u32 v%d, v%d, 2, s%d" % (vPA, vLANE, sTMP))
    A("s_lshl_b32 s%d, s3, 2" % sTMP)
    A("v_mov_b32 v%d, s%d" % (vMA, sTMP))
    A("v_mov_b32 v%d, s%d" % (vMODE, sMODE))
    for i in range(D, LZ):
        A("s_waitcnt vmcnt(%d)" % (D - 1))
        issue(i, i)
    stamp(1)
    A("s_mov_b32 s%d, %d" % (sSPIN, spin * 16))
    LB("L_qwait")
    A("ds_read_b32 v%d, v%d offset:%d" % (vU + 5, vCNT, L_FLAG))
    A("ds_read_b128 v[%d:%d], v%d offset:%d" % (vQ, vQ + 3, vU + 3, L_Q))
    spin_dec()
    A("s_waitcnt lgkmcnt(0)")
    A("s_cbranch_scc1 L_qok")
    A("v_cmp_eq_u32 vcc, 0, v%d" % (vU + 5))
    A("s_cbranch_vccnz L_qwait")
    LB("L_qok")
    if stamps:
        A("s_getreg_b32 s%d, hwreg(HW_REG_XCC_ID, 0, 4)" % (sST + 4))

    def kdot(sl, n):
        b = slot(sl)
        A("v_dot2_f32_bf16 v%d, v%d, v%d, 0" % (vT + n, b, vQ))
        for r in range(1, 4):
            A("v_dot2_f32_bf16 v%d, v%d, v%d, v%d" % (vT + n, b + r, vQ + r, vT + n))

    def kreduce():
        t = lambda n: vT + n
        for k in range(NB - 1):
            A("v_mov_b32 v%d, v%d" % (vS + k, vS + k + 1))
        for n in range(8):
            A("v_add_f32_dpp v%d, v%d, v%d row_ror:8 row_mask:0xf bank_mask:0x3" % (t(n), t(n), t(n)))
        for n in range(8):
            A("v_add_f32_dpp v%d, v%d, v%d row_ror:8 row_mask:0xf bank_mask:0xc" % (t(n), t(n + 8), t(n + 8)))
        for n in range(4):
            A("v_add_f32_dpp v%d, v%d, v%d row_half_mirror row_mask:0xf bank_mask:0x5" % (t(n), t(n), t(n)))
        for n in range(4):
            A("v_add_f32_dpp v%d, v%d, v%d row_half_mirror row_mask:0xf bank_mask:0xa" % (t(n), t(n + 4), t(n + 4)))
        A("v_cndmask_b32 v%d, v%d, v%d, s[%d:%d]" % (t(9), t(2), t(0), sM2, sM2 + 1))
        A("v_cndmask_b32 v%d, v%d, v%d, s[%d:%d]" % (t(11), t(3), t(1), sM2, sM2 + 1))
        A("v_cndmask_b32 v%d, v%d, v%d, s[%d:%d]" % (t(8), t(0), t(2), sM2, sM2 + 1))
        A("v_cndmask_b32 v%d, v%d, v%d, s[%d:%d]" % (t(10), t(1), t(3), sM2, sM2 + 1))
        A("s_nop 0")
        A("v_add_f32_dpp v%d, v%d, v%d quad_perm:[2,3,0,1] %s" % (t(0), t(9), t(8), DPP))
        A("v_add_f32_dpp v%d, v%d, v%d quad_perm:[2,3,0,1] %s" % (t(1), t(11), t(10), DPP))
        A("v_cndmask_b32 v%d, v%d, v%d, s[%d:%d]" % (t(9), t(1), t(0), sM1, sM1 + 1))
        A("v_cndmask_b32 v%d, v%d, v%d, s[%d:%d]" % (t(8), t(0), t(1), sM1, sM1 + 1))
        A("s_nop 1")
        A("v_add_f32_dpp v%d, v%d, v%d quad_perm:[1,0,3,2] %s" % (t(0), t(9), t(8), DPP))
        swapreduce("v_add_f32", t(0), t(1), "v_permlane16_swap_b32")
        A("v_cvt_pk_bf16_f32 v%d, v%d, v%d" % (t(0), t(0), t(0)))
        A("v_and_b32 v%d, 0xffff0000, v%d" % (vS + NB - 1, t(0)))

    def pace(j):
        lab[0] += 1
        for k in range(NF - 1, -1, -1):
            A("s_bitcmp1_b32 s%d, %d" % (sMODE, 8 * k + j % 8))
            A("s_cbranch_scc1 L_p%d_%d" % (lab[0], k))
        A("s_waitcnt vmcnt(%d)" % (Dl - 1))
        for k in range(NF):
            LB("L_p%d_%d" % (lab[0], k))
            A("s_waitcnt vmcnt(%d)" % (Dl + k))

    def progress(j):
        if j % pper == pper - 1:
            A("v_add_u32 v%d, %d, v%d" % (vCNT, pper, vCNT))
            A("ds_write_b32 v%d, v%d offset:%d" % (vPA, vCNT, L_PROG))

    def checkpoint(j):
        if j % cper == 0:
            A("s_waitcnt lgkmcnt(0)")
            A("v_readfirstlane_b32 s%d, v%d" % (sMODE, vMODE))
            A("ds_read_b32 v%d, v%d offset:%d" % (vMODE, vMA, L_MODE))

    C("catch-up: consume the landing zone while keeping D loads in flight")
    free = LZ - D
    pts = [min(max(e, int(round((e + 0.5) * free / LAG)) - 1), free - 1 + e, LZ - 1) for e in range(LAG)]
    for e in range(LAG):
        assert e <= pts[e] < free + e
    for j in range(LZ):
        kdot(j, j % 16)
        for e in range(LAG):
            if pts[e] == j:
                A("s_waitcnt vmcnt(%d)" % (D - 1))
                issue(LZ + e, e)
        if j % 16 == 15:
            kreduce()

    C("steady K loop; its last pass already requests V")
    A("s_mov_b32 s%d, %d" % (sIT, (N - LZ) // 16))
    LB("L_kloop")
    for j in range(16):
        checkpoint(j)
        pace(j)
        issue(j + LAG, (j + LAG) % 16)
        if (j + LAG) % 16 == 15:
            A("s_cmp_eq_u32 s%d, 1" % sIT)
            A("s_cselect_b32 s%d, s%d, s%d" % (SRD, sV, SRD))
            A("s_cselect_b32 s%d, s%d, s%d" % (SRD + 1, sV + 1, SRD + 1))
        progress(j)
        kdot(j, j)
    kreduce()
    A("s_sub_u32 s%d, s%d, 1" % (sIT, sIT))
    A("s_cmp_lg_u32 s%d, 0" % sIT)
    A("s_cbranch_scc1 L_kloop")

    C("softmax over this wave's 256 keys: true max m, p = exp2(s*c - m*c), l = sum p")
    stamp(3)
    m, l = vU, vU + 6
    A("v_max3_f32 v%d, v%d, v%d, v%d" % (m, vS, vS + 1, vS + 2))
    A("v_max3_f32 v%d, v%d, v%d, v%d" % (m, m, vS + 3, vS + 4))
    A("v_max3_f32 v%d, v%d, v%d, v%d" % (m, m, vS + 5, vS + 6))
    A("v_max_f32 v%d, v%d, v%d" % (m, m, vS + 7))
    rowreduce("v_max_f32", m)
    swapreduce("v_max_f32", m, vU + 1, "v_permlane32_swap_b32")
    A("v_mul_f32 v%d, s%d, v%d" % (vU + 4, sCS, m))
    for k in range(NB):
        A("v_fma_f32 v%d, v%d, s%d, -v%d" % (vS + k, vS + k, sCS, vU + 4))
    for k in range(NB):
        A("v_exp_f32 v%d, v%d" % (vS + k, vS + k))
    A("v_add_f32 v%d, v%d, v%d" % (l, vS, vS + 1))
    for k in range(2, NB):
        A("v_add_f32 v%d, v%d, v%d" % (l, l, vS + k))
    for k in range(NB):
        A("v_cvt_pk_bf16_f32 v%d, v%d, v%d" % (vS + k, vS + k, vS + k))
    rowreduce("v_add_f32", l)
    swapreduce("v_add_f32", l, vU + 1, "v_permlane32_swap_b32")
    A("v_mov_b32 v%d, 1" % (vU + 5))
    A("v_mov_b32 v%d, 1" % (vU + 7))
    A("v_lshlrev_b32 v%d, 2, v%d" % (vU + 1, vMA))
    A("ds_write_b128 v%d, v[%d:%d] offset:%d" % (vU + 1, vU + 4, vU + 7, L_STAT))

    C("V loop: o += p.V, one 16x16x32 MFMA per KiB (A = p on a shifted diagonal)")
    JD = 16 - LAG
    mfma = lambda a, b: A("v_mfma_f32_16x16x32_bf16 v[%d:%d], v[%d:%d], v[%d:%d], v[%d:%d]" %
                          (vO, vO + 3, a, a + 3, b, b + 3, vO, vO + 3))
    def builda(dst, j):
        for r in range(4):
            A("v_and_b32_dpp v%d, v%d, v%d row_newbcast:%d %s" % (dst + r, vS, vMK + r, j, DPP))
    A("s_mov_b32 s%d, %d" % (sIT, NB))
    LB("L_vloop")
    for j in range(16):
        if j == JD:
            A("s_sub_u32 s%d, s%d, 1" % (sIT, sIT))
            A("s_cmp_eq_u32 s%d, 0" % sIT)
            A("s_cbranch_scc1 L_drain")
        checkpoint(j)
        builda(vA, j)
        pace(j)
        issue(j + LAG, (j + LAG) % 16)
        mfma(vA, slot(j))
        progress(j)
    for k in range(NB - 1):
        A("v_mov_b32 v%d, v%d" % (vS + k, vS + k + 1))
    A("s_branch L_vloop")

    AD, PAR, OR = 128, 160, 168
    rV, rO, rT, rCA, rW, vONE, vZ, vRET = 184, 185, 186, 187, 188, 189, 190, 191
    sO1W, sYA, sOO, sU = sTMP + 5, 91, 92, 93
    LB("L_drain")
    C("every load is issued: prepare everything the tail needs while the last ones land")
    def signal():
        A("v_mov_b32 v%d, %d" % (vCNT, TOTAL))
        A("ds_write_b32 v%d, v%d offset:%d" % (vPA, vCNT, L_PROG))
    A("v_mov_b32 v%d, 0" % vZ)
    if wsig:
        A("s_waitcnt vmcnt(%d)" % (LAG - wsig))
    signal()
    A("s_mov_b32 s%d, %d" % (sSPIN, spin * 16))
    LB("L_parw")
    A("ds_read_b128 v[%d:%d], v%d offset:%d" % (PAR + 4, PAR + 7, vZ, L_PAR + 16))
    A("ds_read_b128 v[%d:%d], v%d offset:%d" % (PAR, PAR + 3, vZ, L_PAR))
    spin_dec()
    A("s_waitcnt lgkmcnt(0)")
    A("s_cbranch_scc1 L_parok")
    A("v_cmp_eq_u32 vcc, 0, v%d" % (PAR + 6))
    A("s_cbranch_vccnz L_parw")
    LB("L_parok")
    A("v_readfirstlane_b32 s%d, v%d" % (sTAG, PAR + 4))
    A("v_readfirstlane_b32 s%d, v%d" % (sSAME, PAR + 5))
    for j in range(JD, 16):
        builda(AD + 4 * (j - JD), j)
    selectors()
    tagbytes(sT, sTAG)
    A("s_lshl_b32 s%d, s3, 10" % sTMP)
    A("v_add_u32 v%d, s%d, v%d" % (vU, sTMP, vOFF))
    A("v_lshlrev_b32 v%d, 2, v%d" % (rCA, vLANE))
    A("v_mov_b32 v%d, 1" % vONE)
    A("s_lshl_b32 s%d, s%d, 3" % (sO1W, sGRP))
    A("s_add_u32 s%d, s%d, s%d" % (sO1W, sO1W, sC))
    A("s_lshl_b32 s%d, s%d, 10" % (sO1W, sO1W))
    A("s_add_u32 s%d, s%d, %d" % (sO1W, sO1W, WS_O1))
    C("final reduction set-up (used by class %d only): unit wg>>3 = (b*7+cb, line); wave w sums producers 8w..8w+7" % rcls)
    A("s_lshr_b32 s%d, s2, 4" % sU)
    A("s_lshl_b32 s%d, s%d, 13" % (sYA, sU))
    A("s_bfe_u32 s%d, s2, 0x10003" % sIT)
    A("s_lshl_b32 s%d, s%d, 7" % (sIT, sIT))
    A("s_add_u32 s%d, s%d, s%d" % (sYA, sYA, sIT))
    A("s_lshl_b32 s%d, s3, 11" % sIT)
    A("s_add_u32 s%d, s%d, s%d" % (sYA, sYA, sIT))
    A("s_add_u32 s%d, s%d, %d" % (sYA, sYA, WS_Y))
    A("s_and_b32 s%d, s2, 7" % sIT)
    A("s_cmp_eq_u32 s%d, %d" % (sIT, rcls))
    A("s_cselect_b32 s%d, s%d, 99" % (sU, sU))
    A("v_lshrrev_b32 v%d, 3, v%d" % (rV, vLANE))
    A("v_lshlrev_b32 v%d, 8, v%d" % (rV, rV))
    A("v_and_b32 v%d, 7, v%d" % (rT, vLANE))
    A("v_lshl_add_u32 v%d, v%d, 4, v%d" % (rV, rT, rV))
    A("s_lshr_b32 s%d, s2, 3" % sOO)
    A("s_lshl_b32 s%d, s%d, 6" % (sOO, sOO))
    A("s_mov_b32 s%d, s%d" % (SR2, sOUT))
    A("s_mov_b32 s%d, s%d" % (SR2 + 1, sOUT + 1))
    A("s_mov_b32 s%d, 1792" % (SR2 + 2))
    A("v_lshrrev_b32 v%d, 5, v%d" % (rO, vLANE))
    A("v_lshl_add_u32 v%d, v%d, 2, v%d" % (rO, rT, rO))
    A("v_bfe_u32 v%d, v%d, 4, 1" % (rT, vLANE))
    A("v_lshl_add_u32 v%d, v%d, 1, v%d" % (rO, rT, rO))
    A("v_lshlrev_b32 v%d, 1, v%d" % (rO, rO))
    A("s_mov_b32 s%d, %d" % (sSPIN, spin))
    A("s_cmp_eq_u32 s%d, 0" % sSAME)
    for j in range(JD, 16):
        A("s_waitcnt vmcnt(%d)" % (15 - j))
        mfma(AD + 4 * (j - JD), slot(j))
    C("the last wave to arrive scales, sums and publishes the workgroup's o (one LDS round trip)")
    A("s_nop 7")
    A("ds_write_b128 v%d, v[%d:%d] offset:%d" % (vU, vO, vO + 3, L_O))
    A("ds_add_rtn_u32 v%d, v%d, v%d offset:%d" % (vRET, rCA, vONE, L_CNT))
    for w in range(NW):
        A("ds_read_b128 v[%d:%d], v%d offset:%d" % (OR + 4 * w, OR + 4 * w + 3, vOFF, L_O + 1024 * w))
    stamp(4)
    A("s_waitcnt lgkmcnt(4)")
    A("v_cmp_eq_u32 vcc, 3, v%d" % vRET)
    A("s_cbranch_vccz L_notlast")
    for w in range(NW):
        A("s_waitcnt lgkmcnt(%d)" % (NW - 1 - w))
        if pk:
            for q in range(2):
                d, o_ = vO + 2 * q, OR + 4 * w + 2 * q
                f = PAR + (w & ~1)
                sel = "op_sel:[0,%d%s] op_sel_hi:[1,%d%s]" % (w & 1, "" if w == 0 else ",0", w & 1, "" if w == 0 else ",1")
                if w == 0:
                    A("v_pk_mul_f32 v[%d:%d], v[%d:%d], v[%d:%d] %s" % (d, d + 1, o_, o_ + 1, f, f + 1, sel))
                else:
                    A("v_pk_fma_f32 v[%d:%d], v[%d:%d], v[%d:%d], v[%d:%d] %s" % (d, d + 1, o_, o_ + 1, f, f + 1, d, d + 1, sel))
        else:
            for r in range(4):
                A("%s v%d, v%d, v%d" % ("v_mul_f32" if w == 0 else "v_fmac_f32", vO + r, PAR + w, OR + 4 * w + r))
    for r in range(4):
        A("v_perm_b32 v%d, v%d, v%d, s%d" % (vO + r, vO + r, PAR + 4, sSEL + r))
    dual_store(vO, vOFF, sO1W)
    stamp(6)
    LB("L_notlast")
    A("s_cmp_eq_u32 s%d, 99" % sU)
    A("s_cbranch_scc1 L_fin")
    A("s_cmp_ge_u32 s%d, 14" % sU)
    A("s_barrier")
    A("s_cbranch_scc1 L_fin")
    ya, yr = vT, vT + 4
    LB("L_rpoll")
    A("buffer_load_dwordx4 v[%d:%d], v%d, s[%d:%d], s%d offen sc1" % (ya, ya + 3, rV, WSR, WSR + 3, sYA))
    spin_dec()
    A("s_cbranch_scc1 L_fin")
    A("s_waitcnt vmcnt(0)")
    for r in range(4):
        A("v_xor_b32 v%d, s%d, v%d" % (ya + r, sT + r, ya + r))
    A("v_or3_b32 v%d, v%d, v%d, v%d" % (rT, ya, ya + 1, ya + 2))
    A("v_or_b32 v%d, v%d, v%d" % (rT, rT, ya + 3))
    A("v_cmp_ne_u32_sdwa vcc, v%d, 0 src0_sel:BYTE_0 src1_sel:DWORD" % rT)
    A("s_and_b64 exec, exec, vcc")
    A("s_cbranch_scc1 L_rpoll")
    A("s_mov_b64 exec, -1")
    stamp(5)
    A("v_permlane32_swap_b32 v%d, v%d" % (ya, ya + 1))
    A("v_permlane32_swap_b32 v%d, v%d" % (ya + 2, ya + 3))
    A("v_add_f32 v%d, v%d, v%d" % (ya, ya, ya + 1))
    A("v_add_f32 v%d, v%d, v%d" % (ya + 2, ya + 2, ya + 3))
    A("s_nop 1")
    A("v_permlane16_swap_b32 v%d, v%d" % (ya, ya + 2))
    A("v_add_f32 v%d, v%d, v%d" % (ya, ya, ya + 2))
    A("ds_write_b32 v%d, v%d offset:%d" % (vPA, ya, L_R))
    A("ds_add_rtn_u32 v%d, v%d, v%d offset:%d" % (vRET, rCA, vONE, L_CNT + 512))
    for w in range(NW):
        A("ds_read_b32 v%d, v%d offset:%d" % (yr + w, rCA, L_R + 256 * w))
    A("s_waitcnt lgkmcnt(0)")
    A("v_cmp_eq_u32 vcc, 3, v%d" % vRET)
    A("v_add_f32 v%d, v%d, v%d" % (yr, yr, yr + 1))
    A("v_add_f32 v%d, v%d, v%d" % (yr + 2, yr + 2, yr + 3))
    A("v_add_f32 v%d, v%d, v%d" % (yr, yr, yr + 2))
    A("s_cbranch_vccz L_fin")
    A("s_nop 0")
    A("v_add_f32_dpp v%d, v%d, v%d row_ror:8 %s" % (yr, yr, yr, DPP))
    A("s_mov_b32 exec_lo, 0x00ff00ff")
    A("s_mov_b32 exec_hi, 0x00ff00ff")
    A("v_cvt_pk_bf16_f32 v%d, v%d, v%d" % (yr, yr, yr))
    A("buffer_store_short v%d, v%d, s[%d:%d], s%d offen" % (yr, rO, SR2, SR2 + 3, sOO))
    stamp(7)
    A("s_branch L_fin")

    LB("L_helper")
    C("==== helper waves")
    hL, hG, hJ = 0, 1, 2
    hU = 4
    hZ, hTAG = hU + 10, hU + 9
    hX = 16
    hSEL, hA, hD, hMK, hP, hW = 32, 36, 40, 44, 48, 64
    sHW = 39
    A("s_sub_u32 s%d, s3, %d" % (sHW, NW))
    A("v_lshrrev_b32 v%d, 4, v%d" % (hG, hL))
    A("v_and_b32 v%d, 15, v%d" % (hJ, hL))
    A("v_mov_b32 v%d, 0" % hZ)
    A("s_lshr_b32 s%d, s%d, 4" % (sB, sGRP))
    A("s_and_b32 s%d, s%d, 15" % (sH, sGRP))
    A("s_mov_b32 s%d, %d" % (SRD + 2, 448 * 8192))
    selectors()
    A("s_cmp_lg_u32 s%d, 0" % sHW)
    A("s_cbranch_scc1 L_h_other")

    C("helper 0: one 112-row x 64-column tile of q = x @ wq for this head, both batches")
    sTILE, sRQ, sCSL, sQW, sQR, sQT = 87, sTMP + 1, sTMP + 2, 94, 95, sF
    for r in range(4):
        A("v_mov_b32 v%d, 0" % (hD + r))
    A("v_lshlrev_b32 v%d, 4, v%d" % (hU + 8, hL))
    A("ds_write_b128 v%d, v[%d:%d] offset:%d" % (hU + 8, hD, hD + 3, L_CLR))
    A("ds_write_b128 v%d, v[%d:%d] offset:%d" % (hU + 8, hD, hD + 3, L_PROG))
    A("v_mul_u32_u24 v%d, %d, v%d" % (hU, 28 * 8192, hG))
    A("v_lshl_add_u32 v%d, v%d, 3, v%d" % (hU, hJ, hU))
    A("v_bfe_u32 v%d, v%d, 2, 1" % (hU + 1, hL))
    A("v_mul_u32_u24 v%d, 896, v%d" % (hU + 1, hU + 1))
    A("v_mul_u32_u24 v%d, 56, v%d" % (hU + 2, hG))
    A("v_add_u32 v%d, v%d, v%d" % (hU + 1, hU + 1, hU + 2))
    A("s_lshl_b32 s%d, s%d, 3" % (sTILE, sB))
    A("s_add_u32 s%d, s%d, s%d" % (sTILE, sTILE, sC))
    A("s_lshl_b32 s%d, s%d, 13" % (sQW, sH))
    A("s_add_u32 s%d, s%d, %d" % (sQW, sQW, WS_Q))
    A("s_mov_b32 s%d, 1" % sSAME)
    A("s_mov_b32 s%d, 1792" % (SR2 + 2))
    A("s_getreg_b32 s%d, hwreg(HW_REG_XCC_ID, 0, 4)" % (sTMP + 3))
    A("s_waitcnt lgkmcnt(0)")
    A("s_load_dword s%d, s[%d:%d], %d" % (sTAG, sWS, sWS + 1, WS_EPOCH))
    A("s_mov_b32 s%d, s%d" % (SR2, sX))
    A("s_mov_b32 s%d, s%d" % (SR2 + 1, sX + 1))
    A("s_mov_b32 s%d, s%d" % (SRD, sWQ))
    A("s_mov_b32 s%d, s%d" % (SRD + 1, sWQ + 1))
    A("s_mov_b32 s%d, s%d" % (WSR, sWS))
    A("s_mov_b32 s%d, s%d" % (WSR + 1, sWS + 1))
    A("s_barrier")
    LB("L_tile")
    A("s_lshr_b32 s%d, s%d, 2" % (sRQ, sTILE))
    A("s_and_b32 s%d, s%d, 3" % (sCSL, sTILE))
    A("s_mul_i32 s%d, s%d, %d" % (sOFF, sRQ, 112 * 8192))
    A("s_lshl_b32 s%d, s%d, 9" % (sIT, sH))
    A("s_add_u32 s%d, s%d, s%d" % (sOFF, sOFF, sIT))
    A("s_lshl_b32 s%d, s%d, 7" % (sIT, sCSL))
    A("s_add_u32 s%d, s%d, s%d" % (sOFF, sOFF, sIT))
    A("s_mul_i32 s%d, s%d, 224" % (sBASE, sRQ))
    for q in range(3):
        A("buffer_load_dwordx4 v[%d:%d], v%d, s[%d:%d], s%d offen offset:%d" % (hX + 4 * q, hX + 4 * q + 3, hU + 1, SR2, SR2 + 3, sBASE, 16 * q))
    A("buffer_load_dwordx2 v[%d:%d], v%d, s[%d:%d], s%d offen offset:48" % (hX + 12, hX + 13, hU + 1, SR2, SR2 + 3, sBASE))
    for n in range(28):
        A("buffer_load_dwordx2 v[%d:%d], v%d, s[%d:%d], s%d offen nt" % (hW + 2 * n, hW + 2 * n + 1, hU, SRD, SRD + 3, sOFF))
        if n < 27:
            A("s_add_u32 s%d, s%d, 8192" % (sOFF, sOFF))
    A("s_cmp_eq_u32 s%d, 0" % sSAME)
    A("s_cbranch_scc1 L_tile_go")
    C("first pass only: byte selectors (row i<8, element i&3), launch tag")
    A("v_and_b32 v%d, 1, v%d" % (hU + 2, hL))
    A("v_lshlrev_b32 v%d, 4, v%d" % (hU + 2, hU + 2))
    A("v_and_b32 v%d, 10, v%d" % (hU + 3, hL))
    A("v_mov_b32 v%d, 0x0c0c0c0c" % (hU + 6))
    for par, src in ((0, 0x0100), (1, 0x0302)):
        A("v_mov_b32 v%d, 0x%x" % (hU + 4, src ^ 0x0c0c))
        A("v_lshlrev_b32 v%d, v%d, v%d" % (hU + 4, hU + 2, hU + 4))
        A("v_xor_b32 v%d, v%d, v%d" % (hU + 4, hU + 6, hU + 4))
        for r in range(2):
            A("v_cmp_eq_u32 vcc, %d, v%d" % (2 * r, hU + 3))
            A("s_nop 1")
            A("v_cndmask_b32 v%d, v%d, v%d, vcc" % (hSEL + 2 * par + r, hU + 6, hU + 4))
    A("v_mov_b32 v%d, 0x%x" % (hU + 4, pat(lv0 + (lq + 2) // 4, NF)))
    A("v_and_b32 v%d, 12, v%d" % (hU + 2, hL))
    A("ds_write_b32 v%d, v%d offset:%d" % (hU + 2, hU + 4, L_MODE))
    A("s_waitcnt lgkmcnt(0)")
    A("s_add_u32 s%d, s%d, 0x01011001" % (sTAG, sTAG))
    A("v_mov_b32 v%d, s%d" % (hTAG, sTAG))
    A("ds_write_b32 v%d, v%d offset:%d" % (hZ, hTAG, L_TAG))
    tagbytes(sT, sTAG)
    A("s_lshl_b32 s%d, s%d, 8" % (sIT, sTMP + 3))
    A("s_xor_b32 s%d, s%d, s%d" % (sIT, sIT, sTAG))
    A("v_mov_b32 v%d, s%d" % (hU + 6, sIT))
    tagbytes(sQT, sIT)
    LB("L_tile_go")
    for r in range(4):
        A("v_mov_b32 v%d, 0" % (hD + r))
    A("s_lshl_b32 s%d, s%d, 8" % (sOFF, sTILE))
    A("s_add_u32 s%d, s%d, s%d" % (sOFF, sOFF, sQW))
    A("v_lshlrev_b32 v%d, 12, v%d" % (hU + 7, hG))
    A("v_lshl_add_u32 v%d, v%d, 4, v%d" % (hU + 7, hJ, hU + 7))
    A("s_lshl_b32 s%d, s%d, 12" % (sQR, sB))
    A("s_add_u32 s%d, s%d, s%d" % (sQR, sQR, sQW))
    A("s_waitcnt vmcnt(28)")
    for n in range(0, 28, 2):
        a = hA if n & 2 else hMK
        for e in range(2):
            for r in range(2):
                A("v_perm_b32 v%d, v%d, v%d, v%d" % (a + 2 * e + r, hX + (n >> 1), hX + (n >> 1), hSEL + 2 * e + r))
        A("s_waitcnt vmcnt(%d)" % (26 - n))
        A("s_nop 0")
        A("v_mfma_f32_16x16x32_bf16 v[%d:%d], v[%d:%d], v[%d:%d], v[%d:%d]" %
          (hD, hD + 3, a, a + 3, hW + 2 * n, hW + 2 * n + 3, hD, hD + 3))
    A("s_nop 7")
    for r in range(4):
        A("v_perm_b32 v%d, v%d, v%d, s%d" % (hMK + r, hD + r, hU + 6, sSEL + r))
    A("s_mov_b32 exec_hi, 0")
    A("buffer_store_dwordx4 v[%d:%d], v%d, s[%d:%d], s%d offen" % (hMK, hMK + 3, hU + 7, WSR, WSR + 3, sOFF))
    A("s_mov_b32 exec_hi, -1")
    stamp(1)
    A("s_mov_b32 s%d, %d" % (sSPIN, qtry))
    A("s_cmp_lg_u32 s%d, 0" % sSAME)
    A("s_cbranch_scc1 %s" % ("L_qfail" if force_slow else "L_qpoll"))
    A("s_waitcnt vmcnt(0)")
    A("s_add_u32 s%d, s%d, 1" % (sTILE, sTILE))
    A("s_cmp_lt_u32 s%d, 16" % sTILE)
    A("s_cbranch_scc1 L_tile")
    A("s_mov_b32 s%d, %d" % (sSPIN, spin))
    LB("L_qpoll")
    for q in range(4):
        A("buffer_load_dwordx4 v[%d:%d], v%d, s[%d:%d], s%d offen offset:%d sc1" % (hP + 4 * q, hP + 4 * q + 3, hU + 8, WSR, WSR + 3, sQR, 1024 * q))
    A("s_waitcnt vmcnt(0)")
    for q in range(4):
        for r in range(4):
            A("v_xor_b32 v%d, s%d, v%d" % (hP + 4 * q + r, sQT + r, hP + 4 * q + r))
    A("v_or3_b32 v%d, v%d, v%d, v%d" % (hU + 11, hP, hP + 1, hP + 2))
    for k in range(3, 15, 2):
        A("v_or3_b32 v%d, v%d, v%d, v%d" % (hU + 11, hU + 11, hP + k, hP + k + 1))
    A("v_or_b32 v%d, v%d, v%d" % (hU + 11, hU + 11, hP + 15))
    A("v_cmp_ne_u32_sdwa vcc, v%d, 0 src0_sel:BYTE_0 src1_sel:DWORD" % (hU + 11))
    A("s_cbranch_vccz L_qgo")
    spin_dec()
    A("s_cbranch_scc0 L_qpoll")
    A("s_cmp_eq_u32 s%d, 0" % sSAME)
    A("s_cbranch_scc1 L_qgo")
    LB("L_qfail")
    C("some producer of this head is not behind our L2 (or is very late): compute all 16 tiles here")
    A("s_waitcnt vmcnt(0)")
    A("s_mov_b32 s%d, 0" % sSAME)
    A("s_mov_b32 s%d, 0" % sTILE)
    A("s_lshl_b32 s%d, s2, 13" % sQW)
    A("s_add_u32 s%d, s%d, %d" % (sQW, sQW, WS_QP))
    A("s_branch L_tile")
    LB("L_qgo")
    for r in range(4):
        A("v_add_f32 v%d, v%d, v%d" % (hP + r, hP + r, hP + 4 + r))
        A("v_add_f32 v%d, v%d, v%d" % (hP + 8 + r, hP + 8 + r, hP + 12 + r))
    for r in range(4):
        A("v_add_f32 v%d, v%d, v%d" % (hP + r, hP + r, hP + 8 + r))
    A("v_cvt_pk_bf16_f32 v%d, v%d, v%d" % (hP, hP, hP + 1))
    A("v_cvt_pk_bf16_f32 v%d, v%d, v%d" % (hP + 1, hP + 2, hP + 3))
    A("v_lshlrev_b32 v%d, 3, v%d" % (hU + 11, hL))
    A("v_mov_b32 v%d, 1" % (hP + 2))
    A("ds_write_b64 v%d, v[%d:%d] offset:%d" % (hU + 11, hP, hP + 1, L_Q))
    A("s_waitcnt lgkmcnt(0)")
    A("ds_write_b32 v%d, v%d offset:%d" % (hZ, hP + 2, L_FLAG))
    stamp(2)

    C("helper 0: softmax statistics of the (b,h) group -> per-wave factor exp2(m_w - M) / L")
    sSR, sSW = sTMP, sTMP + 1
    A("v_and_b32 v%d, 3, v%d" % (hU + 3, hL))
    A("v_lshlrev_b32 v%d, 4, v%d" % (hU + 3, hU + 3))
    A("s_lshl_b32 s%d, s%d, 10" % (sSR, sGRP))
    A("s_add_u32 s%d, s%d, %d" % (sSR, sSR, WS_STAT))
    A("s_lshl_b32 s%d, s%d, 7" % (sSW, sC))
    A("s_add_u32 s%d, s%d, s%d" % (sSW, sSW, sSR))
    A("s_mov_b32 s%d, %d" % (sSPIN, spin * 4))
    LB("L_lpoll")
    A("s_sleep 4")
    A("ds_read_b128 v[%d:%d], v%d offset:%d" % (hP, hP + 3, hU + 3, L_STAT))
    spin_dec()
    A("s_waitcnt lgkmcnt(0)")
    A("s_cbranch_scc1 L_lgo")
    A("v_cmp_eq_u32 vcc, 0, v%d" % (hP + 3))
    A("s_cbranch_vccnz L_lpoll")
    LB("L_lgo")
    A("v_mov_b32 v%d, v%d" % (hP + 1, hTAG))
    A("v_mov_b32 v%d, v%d" % (hP + 3, hTAG))
    A("s_mov_b64 exec, 15")
    A("s_cmp_eq_u32 s%d, 0" % sSAME)
    dual_store(hP, hU + 3, sSW)
    A("s_mov_b64 exec, -1")
    A("v_bfe_u32 v%d, v%d, 2, 3" % (hU + 4, hL))
    A("v_lshl_add_u32 v%d, v%d, 7, v%d" % (hU + 4, hU + 4, hU + 3))
    A("s_mov_b32 s%d, %d" % (sSPIN, spin))
    LB("L_spoll")
    A("s_sleep 8")
    A("buffer_load_dwordx4 v[%d:%d], v%d, s[%d:%d], s%d offen sc1" % (hP + 4, hP + 7, hU + 4, WSR, WSR + 3, sSR))
    spin_dec()
    A("s_waitcnt vmcnt(0)")
    A("s_cbranch_scc1 L_sgo")
    A("v_xor_b32 v%d, v%d, v%d" % (hP + 8, hP + 5, hTAG))
    A("v_xor_b32 v%d, v%d, v%d" % (hP + 9, hP + 7, hTAG))
    A("v_or_b32 v%d, v%d, v%d" % (hP + 8, hP + 8, hP + 9))
    A("v_cmp_ne_u32 vcc, 0, v%d" % (hP + 8))
    A("s_cbranch_vccnz L_spoll")
    C("all 8 members of this group have read the epoch; the last of the 32 groups to get here advances it")
    A("s_cmp_lg_u32 s%d, 0" % sC)
    A("s_cbranch_scc1 L_sgo")
    A("s_mov_b32 s%d, 1" % sIT)
    A("s_atomic_add s%d, s[%d:%d], 0 glc" % (sIT, sDBG, sDBG + 1))
    A("s_waitcnt lgkmcnt(0)")
    A("s_cmp_lg_u32 s%d, 31" % sIT)
    A("s_cbranch_scc1 L_sgo")
    A("s_mov_b64 exec, 1")
    A("buffer_store_dword v%d, v%d, s[%d:%d], 0 offen" % (hTAG, hZ, WSR, WSR + 3))
    A("s_mov_b64 exec, -1")
    LB("L_sgo")
    stamp(3)
    A("v_mov_b32 v%d, v%d" % (hP + 8, hP + 4))
    rowreduce("v_max_f32", hP + 8)
    swapreduce("v_max_f32", hP + 8, hP + 9, "v_permlane16_swap_b32")
    A("v_sub_f32 v%d, v%d, v%d" % (hP + 8, hP + 4, hP + 8))
    A("v_exp_f32 v%d, v%d" % (hP + 8, hP + 8))
    A("s_nop 0")
    A("v_mul_f32 v%d, v%d, v%d" % (hP + 10, hP + 8, hP + 6))
    rowreduce("v_add_f32", hP + 10)
    swapreduce("v_add_f32", hP + 10, hP + 9, "v_permlane16_swap_b32")
    A("v_rcp_f32 v%d, v%d" % (hP + 10, hP + 10))
    A("v_lshrrev_b32 v%d, 2, v%d" % (hU + 3, hU + 3))
    A("v_mul_f32 v%d, v%d, v%d" % (hP + 8, hP + 8, hP + 10))
    A("s_lshl_b32 s%d, s%d, 2" % (sIT, sC))
    A("s_lshl_b64 exec, 15, s%d" % sIT)
    A("ds_write_b32 v%d, v%d offset:%d" % (hU + 3, hP + 8, L_PAR))
    A("s_mov_b64 exec, -1")
    A("v_mov_b32 v%d, v%d" % (hP + 12, hTAG))
    A("v_mov_b32 v%d, s%d" % (hP + 13, sSAME))
    A("v_mov_b32 v%d, 1" % (hP + 14))
    A("v_mov_b32 v%d, 1" % (hP + 15))
    A("s_waitcnt lgkmcnt(0)")
    A("ds_write_b128 v%d, v[%d:%d] offset:%d" % (hZ, hP + 12, hP + 15, L_PAR + 16))
    A("s_branch L_h_common")

    LB("L_h_other")
    A("s_waitcnt lgkmcnt(0)")
    A("s_mov_b32 s%d, s%d" % (WSR, sWS))
    A("s_mov_b32 s%d, s%d" % (WSR + 1, sWS + 1))
    A("s_barrier")
    A("s_mov_b32 s%d, %d" % (sSPIN, spin * 4))
    LB("L_hwait")
    A("s_sleep 8")
    A("ds_read_b64 v[%d:%d], v%d offset:%d" % (hP, hP + 1, hZ, L_TAG))
    spin_dec()
    A("s_waitcnt lgkmcnt(0)")
    A("s_cbranch_scc1 L_hok")
    A("v_cmp_eq_u32 vcc, 0, v%d" % (hP + 1))
    A("s_cbranch_vccnz L_hwait")
    LB("L_hok")
    A("v_readfirstlane_b32 s%d, v%d" % (sTAG, hP))
    A("v_mov_b32 v%d, v%d" % (hTAG, hP))
    tagbytes(sT, sTAG)
    A("s_cmp_eq_u32 s%d, 1" % sHW)
    A("s_cbranch_scc1 L_ctl0")
    C("helpers 2,3 read the hand-off lines once over the scalar path so the final polls find them in L2")
    A("s_cmp_eq_u32 s%d, 2" % sHW)
    A("s_cbranch_scc1 L_spt2")
    A("s_and_b32 s%d, s2, 7" % sIT)
    A("s_cmp_lg_u32 s%d, %d" % (sIT, rcls))
    A("s_cbranch_scc1 L_h_common")
    A("s_lshr_b32 s%d, s2, 4" % sIT)
    A("s_lshl_b32 s%d, s%d, 13" % (sTMP, sIT))
    A("s_bfe_u32 s%d, s2, 0x10003" % sIT)
    A("s_lshl_b32 s%d, s%d, 7" % (sIT, sIT))
    A("s_add_u32 s%d, s%d, s%d" % (sTMP, sTMP, sIT))
    A("s_add_u32 s%d, s%d, %d" % (sTMP, sTMP, WS_Y))
    A("s_mov_b32 s%d, 8" % sIT)
    LB("L_spt1")
    for k in range(8):
        A("s_add_u32 s%d, s%d, %d" % (sTMP + 1, sTMP, (k >> 1) * 256 + (k & 1) * 64))
        A("s_load_dword s%d, s[%d:%d], s%d" % (sF + k, sWS, sWS + 1, sTMP + 1))
    A("s_add_u32 s%d, s%d, 1024" % (sTMP, sTMP))
    A("s_sub_u32 s%d, s%d, 1" % (sIT, sIT))
    A("s_cmp_lg_u32 s%d, 0" % sIT)
    A("s_waitcnt lgkmcnt(0)")
    A("s_cbranch_scc1 L_spt1")
    A("s_branch L_h_common")
    LB("L_spt2")
    A("s_lshl_b32 s%d, s%d, 3" % (sTMP, sGRP))
    A("s_add_u32 s%d, s%d, s%d" % (sTMP, sTMP, sC))
    A("s_lshl_b32 s%d, s%d, 10" % (sTMP, sTMP))
    A("s_add_u32 s%d, s%d, %d" % (sTMP, sTMP, WS_O1))
    A("s_mov_b32 s%d, 2" % sIT)
    LB("L_spt3")
    for k in range(8):
        A("s_load_dword s%d, s[%d:%d], s%d" % (sF + k, sWS, sWS + 1, sTMP))
        A("s_add_u32 s%d, s%d, 64" % (sTMP, sTMP))
    A("s_sub_u32 s%d, s%d, 1" % (sIT, sIT))
    A("s_cmp_lg_u32 s%d, 0" % sIT)
    A("s_waitcnt lgkmcnt(0)")
    A("s_cbranch_scc1 L_spt3")
    A("s_branch L_h_common")

    LB("L_ctl0")
    C("helper 1: bandwidth-share feedback. Waves that trail their wg&7 class keep more loads in flight, leaders fewer,")
    C("so all workgroups finish together. It changes nothing but how many loads are outstanding.")
    cV = 96
    sPW, sPR, sTG, sPREV, sREF, sE = sF, sF + 1, sF + 2, sF + 3, sF + 4, sF + 5
    A("s_mov_b32 s%d, 0" % sPREV)
    sSET = sF + 6
    if xb:
        C("dies sit at different distances from the memory stacks: small fixed per-die trim of the set point")
        A("s_getreg_b32 s%d, hwreg(HW_REG_XCC_ID, 0, 3)" % sSET)
        A("s_lshl_b32 s%d, s%d, 2" % (sSET, sSET))
        A("s_lshr_b32 s%d, 0x%x, s%d" % (sSET, xb, sSET))
        A("s_and_b32 s%d, s%d, 15" % (sSET, sSET))
        A("s_lshl_b32 s%d, s%d, 6" % (sSET, sSET))
        A("s_add_u32 s%d, s%d, %d" % (sSET, sSET, lv0 * 512 + 256 + lq * 128 - 8 * 64))
    else:
        A("s_mov_b32 s%d, %d" % (sSET, lv0 * 512 + 256 + lq * 128))
    A("s_and_b32 s%d, s2, 7" % sPR)
    A("s_lshl_b32 s%d, s%d, 8" % (sPR, sPR))
    A("s_add_u32 s%d, s%d, %d" % (sPR, sPR, WS_PROG))
    A("s_lshr_b32 s%d, s2, 3" % sPW)
    A("s_lshl_b32 s%d, s%d, 2" % (sPW, sPW))
    A("s_add_u32 s%d, s%d, s%d" % (sPW, sPW, sPR))
    A("s_lshl_b32 s%d, s%d, 16" % (sTG, sTAG))
    A("v_and_b32 v%d, 31, v%d" % (cV, hL))
    A("v_lshlrev_b32 v%d, 2, v%d" % (cV, cV))
    A("v_and_b32 v%d, 3, v%d" % (cV + 7, hL))
    A("v_lshlrev_b32 v%d, 2, v%d" % (cV + 8, cV + 7))
    A("v_lshlrev_b32 v%d, 8, v%d" % (cV + 7, cV + 7))
    A("v_mov_b32 v%d, 0" % (cV + 2))
    for l_ in range(1, 8 * NF + 1):
        A("s_mov_b32 s%d, 0x%x" % (sIT, pat(l_, NF)))
        A("v_writelane_b32 v%d, s%d, %d" % (cV + 2, sIT, l_))
    A("s_mov_b32 s%d, %d" % (sSPIN, spin))
    LB("L_ctl")
    A("ds_read_b32 v%d, v%d offset:%d" % (cV + 9, cV + 7, L_PROG))
    spin_dec()
    A("s_waitcnt lgkmcnt(0)")
    A("s_cbranch_scc1 L_h_common")
    A("v_add_u32_dpp v%d, v%d, v%d quad_perm:[1,0,3,2] %s" % (cV + 4, cV + 9, cV + 9, DPP))
    A("s_nop 1")
    A("v_add_u32_dpp v%d, v%d, v%d quad_perm:[2,3,0,1] %s" % (cV + 4, cV + 4, cV + 4, DPP))
    A("s_nop 0")
    A("v_readfirstlane_b32 s%d, v%d" % (sIT, cV + 4))
    A("v_or_b32 v%d, s%d, v%d" % (cV + 4, sTG, cV + 4))
    A("s_add_u32 s%d, s%d, s%d" % (sREF, sIT, sPREV))
    A("s_mov_b32 s%d, s%d" % (sPREV, sIT))
    A("s_mov_b64 exec, 1")
    A("buffer_store_dword v%d, v%d, s[%d:%d], s%d offen" % (cV + 4, hZ, WSR, WSR + 3, sPW))
    A("s_mov_b64 exec, -1")
    A("s_cmp_ge_u32 s%d, %d" % (sIT, NW * (TOTAL - margin)))
    A("s_cbranch_scc1 L_h_common")
    A("buffer_load_dword v%d, v%d, s[%d:%d], s%d offen sc1" % (cV + 5, cV, WSR, WSR + 3, sPR))
    A("s_waitcnt vmcnt(0)")
    A("ds_read_b32 v%d, v%d offset:%d" % (cV + 9, cV + 7, L_PROG))
    A("v_xor_b32 v%d, s%d, v%d" % (cV + 5, sTG, cV + 5))
    A("v_cmp_le_u32 vcc, 0x10000, v%d" % (cV + 5))
    A("s_cbranch_vccnz L_ctl")
    rowreduce("v_add_u32", cV + 5)
    A("s_lshl_b32 s%d, s%d, 4" % (sREF, sREF))
    A("v_readlane_b32 s%d, v%d, 0" % (sE, cV + 5))
    A("v_readlane_b32 s%d, v%d, 16" % (sIT, cV + 5))
    A("s_add_u32 s%d, s%d, s%d" % (sE, sE, sIT))
    A("s_sub_u32 s%d, s%d, s%d" % (sE, sE, sREF))
    A("s_mul_i32 s%d, s%d, %d" % (sE, sE, gain))
    A("s_add_i32 s%d, s%d, s%d" % (sE, sE, sSET))
    A("s_waitcnt lgkmcnt(0)")
    A("v_add_u32_dpp v%d, v%d, v%d quad_perm:[1,0,3,2] %s" % (cV + 4, cV + 9, cV + 9, DPP))
    A("v_lshlrev_b32 v%d, 2, v%d" % (cV + 9, cV + 9))
    A("s_nop 0")
    A("v_add_u32_dpp v%d, v%d, v%d quad_perm:[2,3,0,1] %s" % (cV + 4, cV + 4, cV + 4, DPP))
    A("v_sub_u32 v%d, v%d, v%d" % (cV + 4, cV + 4, cV + 9))
    A("v_mul_i32_i24 v%d, %d, v%d" % (cV + 4, 32 * wgain, cV + 4))
    A("v_add_u32 v%d, s%d, v%d" % (cV + 4, sE, cV + 4))
    A("v_ashrrev_i32 v%d, 9, v%d" % (cV + 4, cV + 4))
    A("v_max_i32 v%d, 0, v%d" % (cV + 4, cV + 4))
    A("v_min_i32 v%d, %d, v%d" % (cV + 4, 8 * NF, cV + 4))
    A("v_lshlrev_b32 v%d, 2, v%d" % (cV + 4, cV + 4))
    A("ds_bpermute_b32 v%d, v%d, v%d" % (cV + 5, cV + 4, cV + 2))
    A("s_waitcnt lgkmcnt(0)")
    A("ds_write_b32 v%d, v%d offset:%d" % (cV + 8, cV + 5, L_MODE))
    A("s_branch L_ctl")

    LB("L_h_common")
    C("output-projection tile of this workgroup (14 of the head's 16): 128 rows x 64 columns, both batches")
    C("wave fragment: rows h*256+128*rh+64*(hw&1)+4*(hw>>1)+8n+(g>>1)+2(g&1), columns 64*cb+4j..")
    sRH, sCB, sTL, sO1R, sO1S, sYW = sTMP, sTMP + 1, sTMP + 2, sTMP + 4, sTMP + 5, sTMP + 6
    hLA, hLW, hCA, hONE, hRET, YR = 128, 129, 130, 131, 132, 100
    A("s_lshl_b32 s%d, s%d, 3" % (sTL, sB))
    A("s_add_u32 s%d, s%d, s%d" % (sTL, sTL, sC))
    A("s_cmp_ge_u32 s%d, 14" % sTL)
    A("s_cbranch_scc1 L_fin")
    A("s_mov_b32 s%d, s%d" % (SRD, sWO))
    A("s_mov_b32 s%d, s%d" % (SRD + 1, sWO + 1))
    A("v_lshrrev_b32 v%d, 1, v%d" % (hU + 1, hG))
    A("v_and_b32 v%d, 1, v%d" % (hU + 2, hG))
    A("v_lshl_add_u32 v%d, v%d, 1, v%d" % (hU + 1, hU + 2, hU + 1))
    A("v_mul_u32_u24 v%d, 896, v%d" % (hU + 1, hU + 1))
    A("v_lshl_add_u32 v%d, v%d, 3, v%d" % (hU, hJ, hU + 1))
    A("s_cmp_ge_u32 s%d, 7" % sTL)
    A("s_cselect_b32 s%d, 1, 0" % sRH)
    A("s_mul_i32 s%d, s%d, 7" % (sCB, sRH))
    A("s_sub_u32 s%d, s%d, s%d" % (sCB, sTL, sCB))
    A("s_lshl_b32 s%d, s%d, 1" % (sOFF, sH))
    A("s_add_u32 s%d, s%d, s%d" % (sOFF, sOFF, sRH))
    A("s_lshl_b32 s%d, s%d, 8" % (sYW, sOFF))
    A("s_lshl_b32 s%d, s%d, 13" % (sIT, sCB))
    A("s_add_u32 s%d, s%d, s%d" % (sYW, sYW, sIT))
    A("s_add_u32 s%d, s%d, %d" % (sYW, sYW, WS_Y))
    A("s_lshl_b32 s%d, s%d, 7" % (sOFF, sOFF))
    A("s_and_b32 s%d, s%d, 1" % (sIT, sHW))
    A("s_lshl_b32 s%d, s%d, 6" % (sIT, sIT))
    A("s_add_u32 s%d, s%d, s%d" % (sOFF, sOFF, sIT))
    A("s_lshr_b32 s%d, s%d, 1" % (sIT, sHW))
    A("s_lshl_b32 s%d, s%d, 2" % (sIT, sIT))
    A("s_add_u32 s%d, s%d, s%d" % (sOFF, sOFF, sIT))
    A("s_mul_i32 s%d, s%d, 896" % (sOFF, sOFF))
    A("s_lshl_b32 s%d, s%d, 7" % (sIT, sCB))
    A("s_add_u32 s%d, s%d, s%d" % (sOFF, sOFF, sIT))
    for n in range(8):
        A("s_add_u32 s%d, s%d, %d" % (sF + n, sOFF, n * 8 * 896))
    C("byte selectors for the A operand: row i<8, element e=i&3 (reg e>>1, half e&1) takes batch (i>>2)&1")
    A("v_bfe_u32 v%d, v%d, 2, 1" % (hU + 1, hL))
    A("v_mul_u32_u24 v%d, 0x0202, v%d" % (hU + 1, hU + 1))
    A("v_add_u32 v%d, 0x0100, v%d" % (hU + 1, hU + 1))
    A("v_xor_b32 v%d, 0x0c0c, v%d" % (hU + 1, hU + 1))
    A("v_and_b32 v%d, 1, v%d" % (hU + 2, hL))
    A("v_lshlrev_b32 v%d, 4, v%d" % (hU + 2, hU + 2))
    A("v_lshlrev_b32 v%d, v%d, v%d" % (hU + 1, hU + 2, hU + 1))
    A("v_mov_b32 v%d, 0x0c0c0c0c" % (hU + 3))
    A("v_xor_b32 v%d, v%d, v%d" % (hU + 1, hU + 3, hU + 1))
    A("v_and_b32 v%d, 10, v%d" % (hU + 2, hL))
    for r in range(2):
        A("v_cmp_eq_u32 vcc, %d, v%d" % (2 * r, hU + 2))
        A("s_nop 1")
        A("v_cndmask_b32 v%d, v%d, v%d, vcc" % (hMK + r, hU + 3, hU + 1))
    C("o gather: O1 + (b*16+h)*8192 + (l>>3)*1024 + (4rh+hw)*128 + (l&7)*16")
    A("v_lshrrev_b32 v%d, 3, v%d" % (hU + 1, hL))
    A("v_lshlrev_b32 v%d, 10, v%d" % (hU + 1, hU + 1))
    A("v_and_b32 v%d, 7, v%d" % (hU + 2, hL))
    A("v_lshl_add_u32 v%d, v%d, 4, v%d" % (hU + 1, hU + 2, hU + 1))
    A("s_lshl_b32 s%d, s%d, 2" % (sIT, sRH))
    A("s_add_u32 s%d, s%d, s%d" % (sIT, sIT, sHW))
    A("s_lshl_b32 s%d, s%d, 7" % (sIT, sIT))
    A("s_lshl_b32 s%d, s%d, 13" % (sO1R, sH))
    A("s_add_u32 s%d, s%d, s%d" % (sO1R, sO1R, sIT))
    A("s_add_u32 s%d, s%d, %d" % (sO1R, sO1R, WS_O1))
    A("s_add_u32 s%d, s%d, %d" % (sO1S, sO1R, 16 * 8192))
    A("v_mul_u32_u24 v%d, %d, v%d" % (hU + 2, 7 * 8192, hG))
    A("v_lshl_add_u32 v%d, v%d, 4, v%d" % (hU + 2, hJ, hU + 2))
    A("s_lshl_b32 s%d, s%d, 9" % (sIT, sHW))
    A("v_lshlrev_b32 v%d, 4, v%d" % (hLA, hL))
    A("v_add_u32 v%d, s%d, v%d" % (hLW, sIT, hLA))
    A("v_lshlrev_b32 v%d, 2, v%d" % (hCA, hL))
    A("v_mov_b32 v%d, 1" % hONE)
    A("v_and_b32 v%d, 3, v%d" % (hP + 1, hL))
    A("v_lshlrev_b32 v%d, 8, v%d" % (hP + 1, hP + 1))
    def wowait(tag, thr, anyw=0):
        A("s_mov_b32 s%d, %d" % (sSPIN, spin * 16))
        LB("L_wow" + tag)
        A("s_sleep %d" % wslp)
        A("ds_read_b32 v%d, v%d offset:%d" % (hP, hP + 1, L_PROG))
        spin_dec()
        A("s_waitcnt lgkmcnt(0)")
        A("s_cbranch_scc1 L_wog" + tag)
        if anyw:
            A("v_cmp_le_u32 vcc, %d, v%d" % (thr, hP))
            A("s_cbranch_vccz L_wow" + tag)
        else:
            A("v_cmp_gt_u32 vcc, %d, v%d" % (thr, hP))
            A("s_cbranch_vccnz L_wow" + tag)
        LB("L_wog" + tag)
    wld = lambda n: A("buffer_load_dwordx2 v[%d:%d], v%d, s[%d:%d], s%d offen nt" % (hW + 2 * n, hW + 2 * n + 1, hU, SRD, SRD + 3, sF + n))
    if wol < 8:
        wowait("e", TOTAL - wearly)
        for n in range(8 - wol):
            wld(n)
    C("the wo fragment is requested right behind this workgroup's last V loads")
    wowait("", TOTAL, wany)
    for n in range(8 - wol, 8):
        wld(n)
    A("s_mov_b32 s%d, %d" % (sSPIN, spin))
    A("s_waitcnt vmcnt(%d)" % owait)
    stamp(4)
    LB("L_opoll")
    A("buffer_load_dwordx4 v[%d:%d], v%d, s[%d:%d], s%d offen sc1" % (hP, hP + 3, hU + 1, WSR, WSR + 3, sO1R))
    A("buffer_load_dwordx4 v[%d:%d], v%d, s[%d:%d], s%d offen sc1" % (hP + 4, hP + 7, hU + 1, WSR, WSR + 3, sO1S))
    spin_dec()
    A("s_cbranch_scc1 L_fin")
    A("s_waitcnt vmcnt(1)")
    for r in range(4):
        A("v_xor_b32 v%d, s%d, v%d" % (hP + r, sT + r, hP + r))
    A("v_or3_b32 v%d, v%d, v%d, v%d" % (hP + 8, hP, hP + 1, hP + 2))
    A("s_waitcnt vmcnt(0)")
    for r in range(4):
        A("v_xor_b32 v%d, s%d, v%d" % (hP + 4 + r, sT + r, hP + 4 + r))
    A("v_or3_b32 v%d, v%d, v%d, v%d" % (hP + 8, hP + 8, hP + 3, hP + 4))
    A("v_or3_b32 v%d, v%d, v%d, v%d" % (hP + 8, hP + 8, hP + 5, hP + 6))
    A("v_or_b32 v%d, v%d, v%d" % (hP + 8, hP + 8, hP + 7))
    A("v_cmp_ne_u32_sdwa vcc, v%d, 0 src0_sel:BYTE_0 src1_sel:DWORD" % (hP + 8))
    A("s_and_b64 exec, exec, vcc")
    A("s_cbranch_scc1 L_opoll")
    A("s_mov_b64 exec, -1")
    stamp(5)
    C("sum the 8 chunk partials of both batches (transposing), round o to bf16, multiply with the tile")
    for q in range(4):
        A("v_permlane32_swap_b32 v%d, v%d" % (hP + 2 * q, hP + 2 * q + 1))
    for q in range(4):
        A("v_add_f32 v%d, v%d, v%d" % (hP + 2 * q, hP + 2 * q, hP + 2 * q + 1))
    A("v_permlane16_swap_b32 v%d, v%d" % (hP, hP + 2))
    A("s_and_b32 s%d, s2, 7" % sIT)
    A("v_permlane16_swap_b32 v%d, v%d" % (hP + 4, hP + 6))
    A("v_add_f32 v%d, v%d, v%d" % (hP, hP, hP + 2))
    A("v_add_f32 v%d, v%d, v%d" % (hP + 4, hP + 4, hP + 6))
    A("s_cmp_lg_u32 s%d, %d" % (sIT, rcls))
    A("v_add_f32_dpp v%d, v%d, v%d row_ror:8 %s" % (hP, hP, hP, DPP))
    A("v_add_f32_dpp v%d, v%d, v%d row_ror:8 %s" % (hP + 4, hP + 4, hP + 4, DPP))
    A("v_cvt_pk_bf16_f32 v%d, v%d, v%d" % (hP, hP, hP + 4))
    A("s_nop 1")
    BC, AA = hP + 8, 80
    for n in range(8):
        A("v_mov_b32_dpp v%d, v%d row_newbcast:%d %s" % (BC + n, hP, n, DPP))
    def mf(m_):
        A("v_mfma_f32_16x16x32_bf16 v[%d:%d], v[%d:%d], v[%d:%d], %s" %
          (hD, hD + 3, AA + 4 * m_, AA + 4 * m_ + 3, hW + 4 * m_, hW + 4 * m_ + 3, "0" if m_ == 0 else "v[%d:%d]" % (hD, hD + 3)))
    for n in range(8):
        for r in range(2):
            A("v_perm_b32 v%d, v%d, v%d, v%d" % (AA + 2 * n + r, BC + n, BC + n, hMK + r))
        if n in (2, 4, 6):
            mf(n // 2 - 1)
    A("s_nop 1")
    mf(3)
    C("the last helper to arrive sums the four row slices and writes the tile's y through")
    A("s_mov_b32 exec_hi, 0")
    A("s_nop 6")
    A("ds_write_b128 v%d, v[%d:%d] offset:%d" % (hLW, hD, hD + 3, L_Y))
    A("ds_add_rtn_u32 v%d, v%d, v%d offset:%d" % (hRET, hCA, hONE, L_CNT + 256))
    for w in range(4):
        A("ds_read_b128 v[%d:%d], v%d offset:%d" % (YR + 4 * w, YR + 4 * w + 3, hLA, L_Y + 512 * w))
    A("s_waitcnt lgkmcnt(2)")
    A("v_cmp_eq_u32 vcc, 3, v%d" % hRET)
    A("s_cbranch_vccz L_ynot")
    def add4(d, a, b):
        if pk:
            for q in (0, 2):
                A("v_pk_add_f32 v[%d:%d], v[%d:%d], v[%d:%d]" % (d + q, d + q + 1, a + q, a + q + 1, b + q, b + q + 1))
        else:
            for r in range(4):
                A("v_add_f32 v%d, v%d, v%d" % (d + r, a + r, b + r))
    add4(YR, YR, YR + 4)
    A("s_waitcnt lgkmcnt(1)")
    add4(YR, YR, YR + 8)
    A("s_waitcnt lgkmcnt(0)")
    add4(YR, YR, YR + 12)
    for r in range(4):
        A("v_perm_b32 v%d, v%d, v%d, s%d" % (YR + r, YR + r, hTAG, sSEL + r))
    A("buffer_store_dwordx4 v[%d:%d], v%d, s[%d:%d], s%d offen sc1" % (YR, YR + 3, hU + 2, WSR, WSR + 3, sYW))
    stamp(6)
    LB("L_ynot")
    A("s_cbranch_scc1 L_fin")
    A("s_barrier")

    LB("L_fin")
    if stamps:
        A("s_mov_b64 exec, -1")
        A("s_cmp_lt_u32 s3, 4")
        A("s_cbranch_scc1 L_stz")
        A("s_cmp_ge_u32 s%d, 14" % (sTMP + 2))
        A("s_cbranch_scc1 L_sts")
        LB("L_stz")
        for _ in range(3):
            A("s_sleep 127")
        LB("L_sts")
        A("s_lshl_b32 s%d, s2, 3" % sTMP)
        A("s_add_u32 s%d, s%d, s3" % (sTMP, sTMP))
        A("s_lshl_b32 s%d, s%d, 6" % (sTMP, sTMP))
        A("s_add_u32 s%d, s%d, %d" % (sTMP, sTMP, STAMP_BASE))
        A("s_mov_b32 s%d, 0x20000000" % (WSR + 2))
        A("s_waitcnt vmcnt(0) lgkmcnt(0)")
        A("s_mov_b64 exec, 1")
        A("v_mov_b32 v1, 0")
        for q in range(16):
            A("v_mov_b32 v%d, s%d" % (4 + q, sST + q))
        for q in range(4):
            A("buffer_store_dwordx4 v[%d:%d], v1, s[%d:%d], s%d offen offset:%d" % (4 + 4 * q, 7 + 4 * q, WSR, WSR + 3, sTMP, 16 * q))
    LB("L_end")
    A("s_endpgm")
    nv = max(vSL + 4 * LZ, 192)
    L.append('.section .rodata,"a"')
    L.append(".p2align 6")
    L.append(".amdhsa_kernel " + KN)
    L.append("  .amdhsa_next_free_vgpr %d" % nv)
    L.append("  .amdhsa_next_free_sgpr 96")
    L.append("  .amdhsa_accum_offset %d" % nv)
    L.append("  .amdhsa_group_segment_fixed_size 0")
    L.append("  .amdhsa_kernarg_size 64")
    L.append("  .amdhsa_user_sgpr_count 2")
    L.append("  .amdhsa_user_sgpr_kernarg_segment_ptr 1")
    L.append("  .amdhsa_system_sgpr_workgroup_id_x 1")
    L.append("  .amdhsa_float_denorm_mode_32 3")
    L.append(".end_amdhsa_kernel")
    return "\n".join(L) + "\n"


def parse(spec):
    kw = {}
    for x in spec.split(","):
        if x:
            k, v = x.split("=")
            kw[k] = v if k == "mapping" else int(v, 0)
    return kw


if __name__ == "__main__":
    names = []
    for spec in sys.argv[1:]:
        name = "k_" + spec.replace(",", "_").replace("=", "") + ".s"
        open(name, "w").write(gen(**parse(spec)))
        names.append(name)
    print(" ".join(names))
```

```python
import sys

KN = "standalone__mha_block_cached__decode_kernel"

HEADER = """; Kernarg layout for this problem (64 bytes, ptrs only, base s[0:1]):
"""

DOC = """;
"""

WS_EPOCH = 0
WS_Q = 0x1000
WS_STAT = 0x40000
WS_PROG = 0x60000
WS_RK = 0x180000
WS_O1 = 0x80000
WS_Y = 0x100000
WS_QP = 0x200000
WS_USED = 0x400000
STAMP_BASE = 0x10000000

L_Q = 0
L_CLR = 512
L_TAG = 512
L_FLAG = 516
L_MODE = 528
L_STAT = 576
L_PAR = 640
L_CNT = 768
L_PROG = 1536
L_O = 2560
L_Y = 6656
L_R = 8704
LDS = 9728


def pat(l, nf):
    p8 = lambda f: sum(1 << j for j in range(8) if ((j + 1) * f) // 8 != (j * f) // 8)
    w = 0
    for k in range(nf):
        w |= p8(min(max(l - 8 * k, 0), 8)) << (8 * k)
    return w


def gen(D=5, LZ=32, Dl=4, Dh=8, lv0=10, gain=5, wgain=3, margin=18, cper=2, pper=2, rotg=1, wsig=1,
        mapping="xg", stamps=0, spin=1 << 16, qtry=24, force_slow=0, cpf=64, pk=1, dup=0, wslp=1, rcls=0, wol=8, wearly=40, owait=0, wany=0, gx=0, xb=0, lq=1, tp=0, b2=0, pst=0, eb=-1, ebl=99, fm=1, rk=6, rm0=12, rm1=28, rend=30, rs=1, noep=0):
    L = []
    def A(s): L.append("  " + s)
    def LB(s): L.append(s + ":")
    def C(s): L.append("  ; " + s)
    NW = NH = 4
    N = 128
    NB = 8
    LAG = Dh
    NF = Dh - Dl
    TOTAL = 2 * N - LZ
    assert LZ % 16 == 0 and NF <= 4 and D <= LAG <= 8
    lab = [0]
    assert WS_RK + (TOTAL // rm1 + 2) * 4 * 4352 <= WS_QP
    L.append(HEADER.rstrip("\n"))
    L.append("; @launch grid=(256,1,1) block=(512,1,1) lds=%d" % LDS)
    L.append(DOC.rstrip("\n"))
    L.append('.amdgcn_target "amdgcn-amd-amdhsa--gfx950"')
    L.append(".text")
    L.append(".globl " + KN)
    L.append(".p2align 8")
    L.append(".type %s,@function" % KN)
    LB(KN)

    sX, sK, sV, sWQ, sWO, sOUT, sDBG, sWS = 4, 6, 8, 10, 12, 14, 16, 18
    SRD = 20
    WSR = 24
    SR2 = 28
    sGRP, sC, sB, sH = 32, 33, 34, 35
    sBASE, sOFF, sIT = 36, 37, 38
    sT = 40
    sSEL = 44
    sM2, sM1 = 48, 50
    sF = 52
    sTMP = 60
    sSPIN, sCS = 68, 69
    sST = 70
    sTAG, sSAME = 86, 89

    def stamp(k, force=False):
        if stamps and (force or k == 0 or not pst):
            A("s_memrealtime s[%d:%d]" % (sST + 2 * k, sST + 2 * k + 1))

    def spin_dec():
        A("s_sub_u32 s%d, s%d, 1" % (sSPIN, sSPIN))
        A("s_cmp_eq_u32 s%d, 0" % sSPIN)

    def tagbytes(dst, src):
        for r in range(4):
            A("s_bfe_u32 s%d, s%d, 0x%x" % (dst + r, src, 0x80000 | (8 * r)))

    def selectors():
        for r in range(4):
            A("s_mov_b32 s%d, 0x%08x" % (sSEL + r, 0x07060500 | r))

    def dual_store(v, voff, soff):
        lab[0] += 1
        A("s_cbranch_scc1 L_wt%d" % lab[0])
        A("buffer_store_dwordx4 v[%d:%d], v%d, s[%d:%d], s%d offen" % (v, v + 3, voff, WSR, WSR + 3, soff))
        A("s_branch L_wd%d" % lab[0])
        LB("L_wt%d" % lab[0])
        A("buffer_store_dwordx4 v[%d:%d], v%d, s[%d:%d], s%d offen sc1" % (v, v + 3, voff, WSR, WSR + 3, soff))
        LB("L_wd%d" % lab[0])

    DPP = "row_mask:0xf bank_mask:0xf"
    def rowreduce(op, r):
        for c_ in ("quad_perm:[1,0,3,2]", "quad_perm:[2,3,0,1]", "row_half_mirror", "row_mirror"):
            A("s_nop 1")
            A("%s_dpp v%d, v%d, v%d %s %s" % (op, r, r, r, c_, DPP))
    def swapreduce(op, r, tmp, ins):
        A("v_mov_b32 v%d, v%d" % (tmp, r))
        A("s_nop 1")
        A("%s v%d, v%d" % (ins, r, tmp))
        A("%s v%d, v%d, v%d" % (op, r, r, tmp))

    if stamps:
        for k in range(1, 8):
            A("s_mov_b64 s[%d:%d], 0" % (sST + 2 * k, sST + 2 * k + 1))
    stamp(0)
    A("s_load_dwordx16 s[4:19], s[0:1], 0")
    A("s_cmp_ge_u32 s2, 256")
    A("s_cbranch_scc1 L_end")
    if cpf:
        C("pull this kernel's own code into L2: every workgroup of a wg&7 class touches 512 bytes of it")
        A("s_getpc_b64 s[92:93]")
        A("s_lshr_b32 s94, s2, 3")
        A("s_lshl_b32 s94, s94, 9")
        A("v_mul_u32_u24 v2, %d, v0" % cpf)
        A("v_add_u32 v2, s94, v2")
        A("v_min_u32 v2, (L_end - %s - 256), v2" % KN)
        A("v_cmp_gt_u32 vcc, %d, v0" % (512 // cpf))
        A("s_and_saveexec_b64 s[94:95], vcc")
        A("s_cbranch_execz L_nopf")
        A("global_load_dword v3, v2, s[92:93]")
        LB("L_nopf")
        A("s_mov_b64 exec, -1")
    A("v_lshrrev_b32 v1, 6, v0")
    A("v_and_b32 v0, 63, v0")
    A("v_readfirstlane_b32 s3, v1")
    if mapping == "lin":
        A("s_lshr_b32 s%d, s2, 3" % sGRP)
        A("s_and_b32 s%d, s2, 7" % sC)
    else:
        C("group = b*16+h = (wg&7) | ((wg>>3)&24), chunk c = (wg>>3)&7")
        A("s_lshr_b32 s%d, s2, 3" % sTMP)
        A("s_and_b32 s%d, s%d, 7" % (sC, sTMP))
        A("s_and_b32 s%d, s%d, 24" % (sTMP, sTMP))
        A("s_and_b32 s%d, s2, 7" % sGRP)
        A("s_or_b32 s%d, s%d, s%d" % (sGRP, sGRP, sTMP))
        if gx:
            A("s_xor_b32 s%d, s%d, %d" % (sGRP, sGRP, gx))
    A("s_mov_b32 s%d, 0x20000" % (SRD + 3))
    A("s_mov_b32 s%d, 0x20000" % (WSR + 3))
    A("s_mov_b32 s%d, 0x20000" % (SR2 + 3))
    A("s_mov_b32 s%d, %d" % (WSR + 2, WS_USED))
    A("s_cmp_ge_u32 s3, %d" % NW)
    A("s_cbranch_scc1 L_helper")

    vOFF, vQ, vMK, vA, vO, vT, vS, vU, vLANE = 0, 4, 8, 12, 16, 20, 36, 44, 52
    vMODE, vCNT, vPA, vMA = 53, 54, 55, 56
    vSL = 64
    slot = lambda i: vSL + 4 * i
    span, stride = 2 << 20, 64 << 10
    sREG, sPH, sMODE = 87, 39, 90
    C("==== stream waves: 4-KiB granules; four chunk-mates interleave inside a 2-MiB half of the (b,h) slab")
    A("v_mov_b32 v%d, v0" % vLANE)
    A("v_lshlrev_b32 v%d, 4, v0" % vOFF)
    A("s_lshl_b32 s%d, s%d, 1" % (sREG, sGRP))
    A("s_lshr_b32 s%d, s%d, 2" % (sTMP, sC))
    A("s_add_u32 s%d, s%d, s%d" % (sREG, sREG, sTMP))
    A("s_lshl_b32 s%d, s%d, 21" % (sREG, sREG))
    A("s_and_b32 s%d, s%d, 3" % (sTMP, sC))
    A("s_lshl_b32 s%d, s%d, 2" % (sTMP, sTMP))
    A("s_add_u32 s%d, s%d, s3" % (sTMP, sTMP))
    A("s_lshl_b32 s%d, s%d, 12" % (sPH, sTMP))
    A("s_mul_i32 s%d, s%d, %d" % (sTMP, sGRP, rotg * stride))
    A("s_add_u32 s%d, s%d, s%d" % (sPH, sPH, sTMP))
    A("s_and_b32 s%d, s%d, %d" % (sPH, sPH, span - 1))
    A("s_add_u32 s%d, s%d, s%d" % (sOFF, sPH, sREG))
    A("s_mov_b32 s%d, 0x8000000" % (SRD + 2))
    if pst:
        stamp(1, True)
    A("s_waitcnt lgkmcnt(0)")
    if pst:
        stamp(3, True)
    A("s_mov_b32 s%d, s%d" % (SRD, sK))
    A("s_mov_b32 s%d, s%d" % (SRD + 1, sK + 1))

    def advance():
        A("s_add_u32 s%d, s%d, %d" % (sPH, sPH, stride))
        A("s_and_b32 s%d, s%d, %d" % (sPH, sPH, span - 1))
        A("s_add_u32 s%d, s%d, s%d" % (sOFF, sPH, sREG))

    def issue(idx, sl):
        A("buffer_load_dwordx4 v[%d:%d], v%d, s[%d:%d], s%d offen offset:%d nt" %
          (slot(sl), slot(sl) + 3, vOFF, SRD, SRD + 3, sOFF, (idx % 4) * 1024))
        if idx % 4 == 3:
            advance()

    C("fill the landing zone (q is not known yet), D loads in flight")
    for i in range(D):
        issue(i, i)
    if pst:
        stamp(4, True)
    A("s_barrier")
    if pst:
        stamp(5, True)
    A("s_mov_b32 s%d, s%d" % (WSR, sWS))
    A("s_mov_b32 s%d, s%d" % (WSR + 1, sWS + 1))
    A("s_mov_b32 s%d, 0xcccccccc" % sM2)
    A("s_mov_b32 s%d, 0xcccccccc" % (sM2 + 1))
    A("s_mov_b32 s%d, 0xaaaaaaaa" % sM1)
    A("s_mov_b32 s%d, 0xaaaaaaaa" % (sM1 + 1))
    A("s_mov_b32 s%d, 0x3db8aa3b" % sCS)
    C("P.V operand masks: lane (rho,i) is active iff (i>>3)==(rho&1); register (i&7)>>1, half i&1")
    A("v_lshrrev_b32 v%d, 3, v%d" % (vU, vLANE))
    A("v_lshrrev_b32 v%d, 4, v%d" % (vU + 1, vLANE))
    A("v_xor_b32 v%d, v%d, v%d" % (vU, vU, vU + 1))
    A("v_and_b32 v%d, 1, v%d" % (vU, vU))
    A("v_lshlrev_b32 v%d, 2, v%d" % (vU, vU))
    A("v_bfe_u32 v%d, v%d, 1, 2" % (vU + 1, vLANE))
    A("v_or_b32 v%d, v%d, v%d" % (vU, vU, vU + 1))
    A("v_and_b32 v%d, 1, v%d" % (vU + 1, vLANE))
    A("v_lshlrev_b32 v%d, 4, v%d" % (vU + 1, vU + 1))
    A("v_mov_b32 v%d, 0xffff" % (vU + 2))
    A("v_lshlrev_b32 v%d, v%d, v%d" % (vU + 2, vU + 1, vU + 2))
    for r in range(4):
        A("v_cmp_eq_u32 vcc, %d, v%d" % (r, vU))
        A("v_mov_b32 v%d, 0" % (vO + r))
        A("s_nop 0")
        A("v_cndmask_b32 v%d, 0, v%d, vcc" % (vMK + r, vU + 2))
    A("v_and_b32 v%d, 31, v%d" % (vU + 3, vLANE))
    A("v_lshlrev_b32 v%d, 4, v%d" % (vU + 3, vU + 3))
    A("v_mov_b32 v%d, 0" % vCNT)
    A("s_mov_b32 s%d, 0x%x" % (sMODE, pat(lv0 + (lq + 2) // 4, NF)))
    A("s_lshl_b32 s%d, s3, 8" % sTMP)
    A("v_lshl_add_u32 v%d, v%d, 2, s%d" % (vPA, vLANE, sTMP))
    A("s_lshl_b32 s%d, s3, 2" % sTMP)
    A("v_mov_b32 v%d, s%d" % (vMA, sTMP))
    A("v_mov_b32 v%d, s%d" % (vMODE, sMODE))
    for i in range(D, LZ):
        A("s_waitcnt vmcnt(%d)" % (D - 1))
        if pst and i == D:
            stamp(6, True)
        issue(i, i)
    stamp(1)
    A("s_mov_b32 s%d, %d" % (sSPIN, spin * 16))
    LB("L_qwait")
    A("ds_read_b32 v%d, v%d offset:%d" % (vU + 5, vCNT, L_FLAG))
    A("ds_read_b128 v[%d:%d], v%d offset:%d" % (vQ, vQ + 3, vU + 3, L_Q))
    spin_dec()
    A("s_waitcnt lgkmcnt(0)")
    A("s_cbranch_scc1 L_qok")
    A("v_cmp_eq_u32 vcc, 0, v%d" % (vU + 5))
    A("s_cbranch_vccnz L_qwait")
    LB("L_qok")
    if stamps:
        A("s_getreg_b32 s%d, hwreg(HW_REG_XCC_ID, 0, 4)" % (sST + 4))

    def kdot(sl, n):
        b = slot(sl)
        A("v_dot2_f32_bf16 v%d, v%d, v%d, 0" % (vT + n, b, vQ))
        for r in range(1, 4):
            A("v_dot2_f32_bf16 v%d, v%d, v%d, v%d" % (vT + n, b + r, vQ + r, vT + n))

    def kreduce():
        t = lambda n: vT + n
        for k in range(NB - 1):
            A("v_mov_b32 v%d, v%d" % (vS + k, vS + k + 1))
        for n in range(8):
            A("v_add_f32_dpp v%d, v%d, v%d row_ror:8 row_mask:0xf bank_mask:0x3" % (t(n), t(n), t(n)))
        for n in range(8):
            A("v_add_f32_dpp v%d, v%d, v%d row_ror:8 row_mask:0xf bank_mask:0xc" % (t(n), t(n + 8), t(n + 8)))
        for n in range(4):
            A("v_add_f32_dpp v%d, v%d, v%d row_half_mirror row_mask:0xf bank_mask:0x5" % (t(n), t(n), t(n)))
        for n in range(4):
            A("v_add_f32_dpp v%d, v%d, v%d row_half_mirror row_mask:0xf bank_mask:0xa" % (t(n), t(n + 4), t(n + 4)))
        A("v_cndmask_b32 v%d, v%d, v%d, s[%d:%d]" % (t(9), t(2), t(0), sM2, sM2 + 1))
        A("v_cndmask_b32 v%d, v%d, v%d, s[%d:%d]" % (t(11), t(3), t(1), sM2, sM2 + 1))
        A("v_cndmask_b32 v%d, v%d, v%d, s[%d:%d]" % (t(8), t(0), t(2), sM2, sM2 + 1))
        A("v_cndmask_b32 v%d, v%d, v%d, s[%d:%d]" % (t(10), t(1), t(3), sM2, sM2 + 1))
        A("s_nop 0")
        A("v_add_f32_dpp v%d, v%d, v%d quad_perm:[2,3,0,1] %s" % (t(0), t(9), t(8), DPP))
        A("v_add_f32_dpp v%d, v%d, v%d quad_perm:[2,3,0,1] %s" % (t(1), t(11), t(10), DPP))
        A("v_cndmask_b32 v%d, v%d, v%d, s[%d:%d]" % (t(9), t(1), t(0), sM1, sM1 + 1))
        A("v_cndmask_b32 v%d, v%d, v%d, s[%d:%d]" % (t(8), t(0), t(1), sM1, sM1 + 1))
        A("s_nop 1")
        A("v_add_f32_dpp v%d, v%d, v%d quad_perm:[1,0,3,2] %s" % (t(0), t(9), t(8), DPP))
        swapreduce("v_add_f32", t(0), t(1), "v_permlane16_swap_b32")
        A("v_cvt_pk_bf16_f32 v%d, v%d, v%d" % (t(0), t(0), t(0)))
        A("v_and_b32 v%d, 0xffff0000, v%d" % (vS + NB - 1, t(0)))

    def pace(j):
        lab[0] += 1
        for k in range(NF - 1, -1, -1):
            A("s_bitcmp1_b32 s%d, %d" % (sMODE, 8 * k + j % 8))
            A("s_cbranch_scc1 L_p%d_%d" % (lab[0], k))
        A("s_waitcnt vmcnt(%d)" % (Dl - 1))
        for k in range(NF):
            LB("L_p%d_%d" % (lab[0], k))
            A("s_waitcnt vmcnt(%d)" % (Dl + k))

    def progress(j):
        if j % pper == pper - 1:
            A("v_add_u32 v%d, %d, v%d" % (vCNT, pper, vCNT))
            A("ds_write_b32 v%d, v%d offset:%d" % (vPA, vCNT, L_PROG))
        if fm and j % cper == cper - 1:
            A("ds_read_b32 v%d, v%d offset:%d" % (vMODE, vMA, L_MODE))

    def checkpoint(j):
        if j % cper == 0:
            A("s_waitcnt lgkmcnt(0)")
            A("v_readfirstlane_b32 s%d, v%d" % (sMODE, vMODE))
            if not fm:
                A("ds_read_b32 v%d, v%d offset:%d" % (vMODE, vMA, L_MODE))

    C("catch-up: consume the landing zone while keeping D loads in flight")
    free = LZ - D
    pts = [min(max(e, int(round((e + 0.5) * free / LAG)) - 1), free - 1 + e, LZ - 1) for e in range(LAG)]
    for e in range(LAG):
        assert e <= pts[e] < free + e
    for j in range(LZ):
        kdot(j, j % 16)
        for e in range(LAG):
            if pts[e] == j:
                A("s_waitcnt vmcnt(%d)" % (D - 1))
                issue(LZ + e, e)
        if j % 16 == 15:
            kreduce()

    C("steady K loop; its last pass already requests V")
    A("s_mov_b32 s%d, %d" % (sIT, (N - LZ) // 16))
    LB("L_kloop")
    for j in range(16):
        checkpoint(j)
        pace(j)
        issue(j + LAG, (j + LAG) % 16)
        if (j + LAG) % 16 == 15:
            A("s_cmp_eq_u32 s%d, 1" % sIT)
            A("s_cselect_b32 s%d, s%d, s%d" % (SRD, sV, SRD))
            A("s_cselect_b32 s%d, s%d, s%d" % (SRD + 1, sV + 1, SRD + 1))
        progress(j)
        kdot(j, j)
    kreduce()
    A("s_sub_u32 s%d, s%d, 1" % (sIT, sIT))
    A("s_cmp_lg_u32 s%d, 0" % sIT)
    A("s_cbranch_scc1 L_kloop")

    C("softmax over this wave's 256 keys: true max m, p = exp2(s*c - m*c), l = sum p")
    stamp(3)
    m, l = vU, vU + 6
    A("v_max3_f32 v%d, v%d, v%d, v%d" % (m, vS, vS + 1, vS + 2))
    A("v_max3_f32 v%d, v%d, v%d, v%d" % (m, m, vS + 3, vS + 4))
    A("v_max3_f32 v%d, v%d, v%d, v%d" % (m, m, vS + 5, vS + 6))
    A("v_max_f32 v%d, v%d, v%d" % (m, m, vS + 7))
    rowreduce("v_max_f32", m)
    swapreduce("v_max_f32", m, vU + 1, "v_permlane32_swap_b32")
    A("v_mul_f32 v%d, s%d, v%d" % (vU + 4, sCS, m))
    for k in range(NB):
        A("v_fma_f32 v%d, v%d, s%d, -v%d" % (vS + k, vS + k, sCS, vU + 4))
    for k in range(NB):
        A("v_exp_f32 v%d, v%d" % (vS + k, vS + k))
    A("v_add_f32 v%d, v%d, v%d" % (l, vS, vS + 1))
    for k in range(2, NB):
        A("v_add_f32 v%d, v%d, v%d" % (l, l, vS + k))
    for k in range(NB):
        A("v_cvt_pk_bf16_f32 v%d, v%d, v%d" % (vS + k, vS + k, vS + k))
    rowreduce("v_add_f32", l)
    swapreduce("v_add_f32", l, vU + 1, "v_permlane32_swap_b32")
    A("v_mov_b32 v%d, 1" % (vU + 5))
    A("v_mov_b32 v%d, 1" % (vU + 7))
    A("v_lshlrev_b32 v%d, 2, v%d" % (vU + 1, vMA))
    A("ds_write_b128 v%d, v[%d:%d] offset:%d" % (vU + 1, vU + 4, vU + 7, L_STAT))

    C("V loop: o += p.V, one 16x16x32 MFMA per KiB (A = p on a shifted diagonal)")
    JD = 16 - LAG
    mfma = lambda a, b: A("v_mfma_f32_16x16x32_bf16 v[%d:%d], v[%d:%d], v[%d:%d], v[%d:%d]" %
                          (vO, vO + 3, a, a + 3, b, b + 3, vO, vO + 3))
    def builda(dst, j):
        for r in range(4):
            A("v_and_b32_dpp v%d, v%d, v%d row_newbcast:%d %s" % (dst + r, vS, vMK + r, j, DPP))
    A("s_mov_b32 s%d, %d" % (sIT, NB))
    LB("L_vloop")
    for j in range(16):
        if j == JD:
            A("s_sub_u32 s%d, s%d, 1" % (sIT, sIT))
            A("s_cmp_eq_u32 s%d, 0" % sIT)
            A("s_cbranch_scc1 L_drain")
        builda(vA, j)
        checkpoint(j)
        if eb >= 0 and j % cper == 0 and eb <= j < JD:
            A("s_cmp_eq_u32 s%d, 1" % sIT)
            A("s_cselect_b32 s%d, 0x%x, 0" % (sTMP, pat(ebl, NF)))
            A("s_or_b32 s%d, s%d, s%d" % (sMODE, sMODE, sTMP))
        pace(j)
        issue(j + LAG, (j + LAG) % 16)
        mfma(vA, slot(j))
        progress(j)
    for k in range(NB - 1):
        A("v_mov_b32 v%d, v%d" % (vS + k, vS + k + 1))
    A("s_branch L_vloop")

    AD, PAR, OR = 128, 160, 168
    rV, rO, rT, rCA, rW, vONE, vZ, vRET = 184, 185, 186, 187, 188, 189, 190, 191
    sO1W, sYA, sOO, sU = sTMP + 5, 91, 92, 93
    LB("L_drain")
    C("every load is issued: prepare everything the tail needs while the last ones land")
    def signal():
        A("v_mov_b32 v%d, %d" % (vCNT, TOTAL))
        A("ds_write_b32 v%d, v%d offset:%d" % (vPA, vCNT, L_PROG))
    A("v_mov_b32 v%d, 0" % vZ)
    if wsig:
        A("s_waitcnt vmcnt(%d)" % (LAG - wsig))
    signal()
    A("s_mov_b32 s%d, %d" % (sSPIN, spin * 16))
    LB("L_parw")
    A("ds_read_b128 v[%d:%d], v%d offset:%d" % (PAR + 4, PAR + 7, vZ, L_PAR + 16))
    A("ds_read_b128 v[%d:%d], v%d offset:%d" % (PAR, PAR + 3, vZ, L_PAR))
    spin_dec()
    A("s_waitcnt lgkmcnt(0)")
    A("s_cbranch_scc1 L_parok")
    A("v_cmp_eq_u32 vcc, 0, v%d" % (PAR + 6))
    A("s_cbranch_vccnz L_parw")
    LB("L_parok")
    A("v_readfirstlane_b32 s%d, v%d" % (sTAG, PAR + 4))
    A("v_readfirstlane_b32 s%d, v%d" % (sSAME, PAR + 5))
    for j in range(JD, 16):
        builda(AD + 4 * (j - JD), j)
    selectors()
    tagbytes(sT, sTAG)
    A("s_lshl_b32 s%d, s3, 10" % sTMP)
    A("v_add_u32 v%d, s%d, v%d" % (vU, sTMP, vOFF))
    A("v_lshlrev_b32 v%d, 2, v%d" % (rCA, vLANE))
    A("v_mov_b32 v%d, 1" % vONE)
    A("s_lshl_b32 s%d, s%d, 3" % (sO1W, sGRP))
    A("s_add_u32 s%d, s%d, s%d" % (sO1W, sO1W, sC))
    A("s_lshl_b32 s%d, s%d, 10" % (sO1W, sO1W))
    A("s_add_u32 s%d, s%d, %d" % (sO1W, sO1W, WS_O1))
    C("final reduction set-up (used by class %d only): unit wg>>3 = (b*7+cb, line); wave w sums producers 8w..8w+7" % rcls)
    A("s_lshr_b32 s%d, s2, 4" % sU)
    A("s_lshl_b32 s%d, s%d, 13" % (sYA, sU))
    A("s_bfe_u32 s%d, s2, 0x10003" % sIT)
    A("s_lshl_b32 s%d, s%d, 7" % (sIT, sIT))
    A("s_add_u32 s%d, s%d, s%d" % (sYA, sYA, sIT))
    A("s_lshl_b32 s%d, s3, 11" % sIT)
    A("s_add_u32 s%d, s%d, s%d" % (sYA, sYA, sIT))
    A("s_add_u32 s%d, s%d, %d" % (sYA, sYA, WS_Y))
    A("s_and_b32 s%d, s2, 7" % sIT)
    A("s_cmp_eq_u32 s%d, %d" % (sIT, rcls))
    A("s_cselect_b32 s%d, s%d, 99" % (sU, sU))
    A("v_lshrrev_b32 v%d, 3, v%d" % (rV, vLANE))
    A("v_lshlrev_b32 v%d, 8, v%d" % (rV, rV))
    A("v_and_b32 v%d, 7, v%d" % (rT, vLANE))
    A("v_lshl_add_u32 v%d, v%d, 4, v%d" % (rV, rT, rV))
    A("s_lshr_b32 s%d, s2, 3" % sOO)
    A("s_lshl_b32 s%d, s%d, 6" % (sOO, sOO))
    A("s_mov_b32 s%d, s%d" % (SR2, sOUT))
    A("s_mov_b32 s%d, s%d" % (SR2 + 1, sOUT + 1))
    A("s_mov_b32 s%d, 1792" % (SR2 + 2))
    A("v_lshrrev_b32 v%d, 5, v%d" % (rO, vLANE))
    A("v_lshl_add_u32 v%d, v%d, 2, v%d" % (rO, rT, rO))
    A("v_bfe_u32 v%d, v%d, 4, 1" % (rT, vLANE))
    A("v_lshl_add_u32 v%d, v%d, 1, v%d" % (rO, rT, rO))
    A("v_lshlrev_b32 v%d, 1, v%d" % (rO, rO))
    A("s_mov_b32 s%d, %d" % (sSPIN, spin))
    A("s_cmp_eq_u32 s%d, 0" % sSAME)
    for j in range(JD, 16):
        A("s_waitcnt vmcnt(%d)" % (15 - j))
        mfma(AD + 4 * (j - JD), slot(j))
    C("the last wave to arrive scales, sums and publishes the workgroup's o (one LDS round trip)")
    A("s_nop 7")
    A("ds_write_b128 v%d, v[%d:%d] offset:%d" % (vU, vO, vO + 3, L_O))
    A("ds_add_rtn_u32 v%d, v%d, v%d offset:%d" % (vRET, rCA, vONE, L_CNT))
    for w in range(NW):
        A("ds_read_b128 v[%d:%d], v%d offset:%d" % (OR + 4 * w, OR + 4 * w + 3, vOFF, L_O + 1024 * w))
    stamp(4)
    A("s_waitcnt lgkmcnt(4)")
    A("v_cmp_eq_u32 vcc, 3, v%d" % vRET)
    A("s_cbranch_vccz L_notlast")
    for w in range(NW):
        A("s_waitcnt lgkmcnt(%d)" % (NW - 1 - w))
        if pk:
            for q in range(2):
                d, o_ = vO + 2 * q, OR + 4 * w + 2 * q
                f = PAR + (w & ~1)
                sel = "op_sel:[0,%d%s] op_sel_hi:[1,%d%s]" % (w & 1, "" if w == 0 else ",0", w & 1, "" if w == 0 else ",1")
                if w == 0:
                    A("v_pk_mul_f32 v[%d:%d], v[%d:%d], v[%d:%d] %s" % (d, d + 1, o_, o_ + 1, f, f + 1, sel))
                else:
                    A("v_pk_fma_f32 v[%d:%d], v[%d:%d], v[%d:%d], v[%d:%d] %s" % (d, d + 1, o_, o_ + 1, f, f + 1, d, d + 1, sel))
        else:
            for r in range(4):
                A("%s v%d, v%d, v%d" % ("v_mul_f32" if w == 0 else "v_fmac_f32", vO + r, PAR + w, OR + 4 * w + r))
    for r in range(4):
        A("v_perm_b32 v%d, v%d, v%d, s%d" % (vO + r, vO + r, PAR + 4, sSEL + r))
    dual_store(vO, vOFF, sO1W)
    stamp(6)
    LB("L_notlast")
    if b2:
        A("s_barrier")
    A("s_cmp_eq_u32 s%d, 99" % sU)
    A("s_cbranch_scc1 L_fin")
    A("s_cmp_ge_u32 s%d, 14" % sU)
    A("s_barrier")
    A("s_cbranch_scc1 L_fin")
    ya, yr = vT, vT + 4
    LB("L_rpoll")
    A("buffer_load_dwordx4 v[%d:%d], v%d, s[%d:%d], s%d offen sc1" % (ya, ya + 3, rV, WSR, WSR + 3, sYA))
    spin_dec()
    A("s_cbranch_scc1 L_fin")
    A("s_waitcnt vmcnt(0)")
    for r in range(4):
        A("v_xor_b32 v%d, s%d, v%d" % (ya + r, sT + r, ya + r))
    A("v_or3_b32 v%d, v%d, v%d, v%d" % (rT, ya, ya + 1, ya + 2))
    A("v_or_b32 v%d, v%d, v%d" % (rT, rT, ya + 3))
    A("v_cmp_ne_u32_sdwa vcc, v%d, 0 src0_sel:BYTE_0 src1_sel:DWORD" % rT)
    A("s_and_b64 exec, exec, vcc")
    A("s_cbranch_scc1 L_rpoll")
    A("s_mov_b64 exec, -1")
    stamp(5)
    A("v_permlane32_swap_b32 v%d, v%d" % (ya, ya + 1))
    A("v_permlane32_swap_b32 v%d, v%d" % (ya + 2, ya + 3))
    A("v_add_f32 v%d, v%d, v%d" % (ya, ya, ya + 1))
    A("v_add_f32 v%d, v%d, v%d" % (ya + 2, ya + 2, ya + 3))
    A("s_nop 1")
    A("v_permlane16_swap_b32 v%d, v%d" % (ya, ya + 2))
    A("v_add_f32 v%d, v%d, v%d" % (ya, ya, ya + 2))
    A("ds_write_b32 v%d, v%d offset:%d" % (vPA, ya, L_R))
    A("ds_add_rtn_u32 v%d, v%d, v%d offset:%d" % (vRET, rCA, vONE, L_CNT + 512))
    for w in range(NW):
        A("ds_read_b32 v%d, v%d offset:%d" % (yr + w, rCA, L_R + 256 * w))
    A("s_waitcnt lgkmcnt(0)")
    A("v_cmp_eq_u32 vcc, 3, v%d" % vRET)
    A("v_add_f32 v%d, v%d, v%d" % (yr, yr, yr + 1))
    A("v_add_f32 v%d, v%d, v%d" % (yr + 2, yr + 2, yr + 3))
    A("v_add_f32 v%d, v%d, v%d" % (yr, yr, yr + 2))
    A("s_cbranch_vccz L_fin")
    A("s_nop 0")
    A("v_add_f32_dpp v%d, v%d, v%d row_ror:8 %s" % (yr, yr, yr, DPP))
    A("s_mov_b32 exec_lo, 0x00ff00ff")
    A("s_mov_b32 exec_hi, 0x00ff00ff")
    A("v_cvt_pk_bf16_f32 v%d, v%d, v%d" % (yr, yr, yr))
    A("buffer_store_short v%d, v%d, s[%d:%d], s%d offen" % (yr, rO, SR2, SR2 + 3, sOO))
    stamp(7)
    A("s_branch L_fin")

    LB("L_helper")
    C("==== helper waves")
    hL, hG, hJ = 0, 1, 2
    hU = 4
    hZ, hTAG = hU + 10, hU + 9
    hX = 16
    hSEL, hA, hD, hMK, hP, hW = 32, 36, 40, 44, 48, 64
    sHW = 39
    A("s_sub_u32 s%d, s3, %d" % (sHW, NW))
    A("v_lshrrev_b32 v%d, 4, v%d" % (hG, hL))
    A("v_and_b32 v%d, 15, v%d" % (hJ, hL))
    A("v_mov_b32 v%d, 0" % hZ)
    A("s_lshr_b32 s%d, s%d, 4" % (sB, sGRP))
    A("s_and_b32 s%d, s%d, 15" % (sH, sGRP))
    A("s_mov_b32 s%d, %d" % (SRD + 2, 448 * 8192))
    selectors()
    A("s_cmp_lg_u32 s%d, 0" % sHW)
    A("s_cbranch_scc1 L_h_other")

    C("helper 0: one 112-row x 64-column tile of q = x @ wq for this head, both batches")
    sTILE, sRQ, sCSL, sQW, sQR, sQT = 87, sTMP + 1, sTMP + 2, 94, 95, sF
    for r in range(4):
        A("v_mov_b32 v%d, 0" % (hD + r))
    A("v_lshlrev_b32 v%d, 4, v%d" % (hU + 8, hL))
    A("ds_write_b128 v%d, v[%d:%d] offset:%d" % (hU + 8, hD, hD + 3, L_CLR))
    A("ds_write_b128 v%d, v[%d:%d] offset:%d" % (hU + 8, hD, hD + 3, L_PROG))
    A("v_mul_u32_u24 v%d, %d, v%d" % (hU, 28 * 8192, hG))
    A("v_lshl_add_u32 v%d, v%d, 3, v%d" % (hU, hJ, hU))
    A("v_bfe_u32 v%d, v%d, 2, 1" % (hU + 1, hL))
    A("v_mul_u32_u24 v%d, 896, v%d" % (hU + 1, hU + 1))
    A("v_mul_u32_u24 v%d, 56, v%d" % (hU + 2, hG))
    A("v_add_u32 v%d, v%d, v%d" % (hU + 1, hU + 1, hU + 2))
    A("s_lshl_b32 s%d, s%d, 3" % (sTILE, sB))
    A("s_add_u32 s%d, s%d, s%d" % (sTILE, sTILE, sC))
    A("s_lshl_b32 s%d, s%d, 13" % (sQW, sH))
    A("s_add_u32 s%d, s%d, %d" % (sQW, sQW, WS_Q))
    A("s_mov_b32 s%d, 1" % sSAME)
    A("s_mov_b32 s%d, 1792" % (SR2 + 2))
    A("s_getreg_b32 s%d, hwreg(HW_REG_XCC_ID, 0, 4)" % (sTMP + 3))
    A("s_waitcnt lgkmcnt(0)")
    A("s_load_dword s%d, s[%d:%d], %d" % (sTAG, sWS, sWS + 1, WS_EPOCH))
    A("s_mov_b32 s%d, s%d" % (SR2, sX))
    A("s_mov_b32 s%d, s%d" % (SR2 + 1, sX + 1))
    A("s_mov_b32 s%d, s%d" % (SRD, sWQ))
    A("s_mov_b32 s%d, s%d" % (SRD + 1, sWQ + 1))
    A("s_mov_b32 s%d, s%d" % (WSR, sWS))
    A("s_mov_b32 s%d, s%d" % (WSR + 1, sWS + 1))
    A("s_barrier")
    LB("L_tile")
    A("s_lshr_b32 s%d, s%d, 2" % (sRQ, sTILE))
    A("s_and_b32 s%d, s%d, 3" % (sCSL, sTILE))
    A("s_mul_i32 s%d, s%d, %d" % (sOFF, sRQ, 112 * 8192))
    A("s_lshl_b32 s%d, s%d, 9" % (sIT, sH))
    A("s_add_u32 s%d, s%d, s%d" % (sOFF, sOFF, sIT))
    A("s_lshl_b32 s%d, s%d, 7" % (sIT, sCSL))
    A("s_add_u32 s%d, s%d, s%d" % (sOFF, sOFF, sIT))
    A("s_mul_i32 s%d, s%d, 224" % (sBASE, sRQ))
    for q in range(3):
        A("buffer_load_dwordx4 v[%d:%d], v%d, s[%d:%d], s%d offen offset:%d" % (hX + 4 * q, hX + 4 * q + 3, hU + 1, SR2, SR2 + 3, sBASE, 16 * q))
    A("buffer_load_dwordx2 v[%d:%d], v%d, s[%d:%d], s%d offen offset:48" % (hX + 12, hX + 13, hU + 1, SR2, SR2 + 3, sBASE))
    for n in range(28):
        A("buffer_load_dwordx2 v[%d:%d], v%d, s[%d:%d], s%d offen nt" % (hW + 2 * n, hW + 2 * n + 1, hU, SRD, SRD + 3, sOFF))
        if n < 27:
            A("s_add_u32 s%d, s%d, 8192" % (sOFF, sOFF))
    A("s_cmp_eq_u32 s%d, 0" % sSAME)
    A("s_cbranch_scc1 L_tile_go")
    C("first pass only: byte selectors (row i<8, element i&3), launch tag")
    A("v_and_b32 v%d, 1, v%d" % (hU + 2, hL))
    A("v_lshlrev_b32 v%d, 4, v%d" % (hU + 2, hU + 2))
    A("v_and_b32 v%d, 10, v%d" % (hU + 3, hL))
    A("v_mov_b32 v%d, 0x0c0c0c0c" % (hU + 6))
    for par, src in ((0, 0x0100), (1, 0x0302)):
        A("v_mov_b32 v%d, 0x%x" % (hU + 4, src ^ 0x0c0c))
        A("v_lshlrev_b32 v%d, v%d, v%d" % (hU + 4, hU + 2, hU + 4))
        A("v_xor_b32 v%d, v%d, v%d" % (hU + 4, hU + 6, hU + 4))
        for r in range(2):
            A("v_cmp_eq_u32 vcc, %d, v%d" % (2 * r, hU + 3))
            A("s_nop 1")
            A("v_cndmask_b32 v%d, v%d, v%d, vcc" % (hSEL + 2 * par + r, hU + 6, hU + 4))
    A("v_mov_b32 v%d, 0x%x" % (hU + 4, pat(lv0 + (lq + 2) // 4, NF)))
    A("v_and_b32 v%d, 12, v%d" % (hU + 2, hL))
    A("ds_write_b32 v%d, v%d offset:%d" % (hU + 2, hU + 4, L_MODE))
    A("s_waitcnt lgkmcnt(0)")
    A("s_add_u32 s%d, s%d, 0x01011001" % (sTAG, sTAG))
    A("v_mov_b32 v%d, s%d" % (hTAG, sTAG))
    A("ds_write_b32 v%d, v%d offset:%d" % (hZ, hTAG, L_TAG))
    tagbytes(sT, sTAG)
    A("s_lshl_b32 s%d, s%d, 8" % (sIT, sTMP + 3))
    A("s_xor_b32 s%d, s%d, s%d" % (sIT, sIT, sTAG))
    A("v_mov_b32 v%d, s%d" % (hU + 6, sIT))
    tagbytes(sQT, sIT)
    LB("L_tile_go")
    for r in range(4):
        A("v_mov_b32 v%d, 0" % (hD + r))
    A("s_lshl_b32 s%d, s%d, 8" % (sOFF, sTILE))
    A("s_add_u32 s%d, s%d, s%d" % (sOFF, sOFF, sQW))
    A("v_lshlrev_b32 v%d, 12, v%d" % (hU + 7, hG))
    A("v_lshl_add_u32 v%d, v%d, 4, v%d" % (hU + 7, hJ, hU + 7))
    A("s_lshl_b32 s%d, s%d, 12" % (sQR, sB))
    A("s_add_u32 s%d, s%d, s%d" % (sQR, sQR, sQW))
    A("s_waitcnt vmcnt(28)")
    for n in range(0, 28, 2):
        a = hA if n & 2 else hMK
        for e in range(2):
            for r in range(2):
                A("v_perm_b32 v%d, v%d, v%d, v%d" % (a + 2 * e + r, hX + (n >> 1), hX + (n >> 1), hSEL + 2 * e + r))
        A("s_waitcnt vmcnt(%d)" % (26 - n))
        A("s_nop 0")
        A("v_mfma_f32_16x16x32_bf16 v[%d:%d], v[%d:%d], v[%d:%d], v[%d:%d]" %
          (hD, hD + 3, a, a + 3, hW + 2 * n, hW + 2 * n + 3, hD, hD + 3))
    A("s_nop 7")
    for r in range(4):
        A("v_perm_b32 v%d, v%d, v%d, s%d" % (hMK + r, hD + r, hU + 6, sSEL + r))
    A("s_mov_b32 exec_hi, 0")
    A("buffer_store_dwordx4 v[%d:%d], v%d, s[%d:%d], s%d offen" % (hMK, hMK + 3, hU + 7, WSR, WSR + 3, sOFF))
    A("s_mov_b32 exec_hi, -1")
    stamp(1)
    A("s_mov_b32 s%d, %d" % (sSPIN, qtry))
    A("s_cmp_lg_u32 s%d, 0" % sSAME)
    A("s_cbranch_scc1 %s" % ("L_qfail" if force_slow else "L_qpoll"))
    A("s_waitcnt vmcnt(0)")
    A("s_add_u32 s%d, s%d, 1" % (sTILE, sTILE))
    A("s_cmp_lt_u32 s%d, 16" % sTILE)
    A("s_cbranch_scc1 L_tile")
    A("s_mov_b32 s%d, %d" % (sSPIN, spin))
    LB("L_qpoll")
    for q in range(4):
        A("buffer_load_dwordx4 v[%d:%d], v%d, s[%d:%d], s%d offen offset:%d sc1" % (hP + 4 * q, hP + 4 * q + 3, hU + 8, WSR, WSR + 3, sQR, 1024 * q))
    A("s_waitcnt vmcnt(0)")
    for q in range(4):
        for r in range(4):
            A("v_xor_b32 v%d, s%d, v%d" % (hP + 4 * q + r, sQT + r, hP + 4 * q + r))
    A("v_or3_b32 v%d, v%d, v%d, v%d" % (hU + 11, hP, hP + 1, hP + 2))
    for k in range(3, 15, 2):
        A("v_or3_b32 v%d, v%d, v%d, v%d" % (hU + 11, hU + 11, hP + k, hP + k + 1))
    A("v_or_b32 v%d, v%d, v%d" % (hU + 11, hU + 11, hP + 15))
    A("v_cmp_ne_u32_sdwa vcc, v%d, 0 src0_sel:BYTE_0 src1_sel:DWORD" % (hU + 11))
    A("s_cbranch_vccz L_qgo")
    spin_dec()
    A("s_cbranch_scc0 L_qpoll")
    A("s_cmp_eq_u32 s%d, 0" % sSAME)
    A("s_cbranch_scc1 L_qgo")
    LB("L_qfail")
    C("some producer of this head is not behind our L2 (or is very late): compute all 16 tiles here")
    A("s_waitcnt vmcnt(0)")
    A("s_mov_b32 s%d, 0" % sSAME)
    A("s_mov_b32 s%d, 0" % sTILE)
    A("s_lshl_b32 s%d, s2, 13" % sQW)
    A("s_add_u32 s%d, s%d, %d" % (sQW, sQW, WS_QP))
    A("s_branch L_tile")
    LB("L_qgo")
    for r in range(4):
        A("v_add_f32 v%d, v%d, v%d" % (hP + r, hP + r, hP + 4 + r))
        A("v_add_f32 v%d, v%d, v%d" % (hP + 8 + r, hP + 8 + r, hP + 12 + r))
    for r in range(4):
        A("v_add_f32 v%d, v%d, v%d" % (hP + r, hP + r, hP + 8 + r))
    A("v_cvt_pk_bf16_f32 v%d, v%d, v%d" % (hP, hP, hP + 1))
    A("v_cvt_pk_bf16_f32 v%d, v%d, v%d" % (hP + 1, hP + 2, hP + 3))
    A("v_lshlrev_b32 v%d, 3, v%d" % (hU + 11, hL))
    A("v_mov_b32 v%d, 1" % (hP + 2))
    A("ds_write_b64 v%d, v[%d:%d] offset:%d" % (hU + 11, hP, hP + 1, L_Q))
    A("s_waitcnt lgkmcnt(0)")
    A("ds_write_b32 v%d, v%d offset:%d" % (hZ, hP + 2, L_FLAG))
    stamp(2)

    C("helper 0: softmax statistics of the (b,h) group -> per-wave factor exp2(m_w - M) / L")
    sSR, sSW = sTMP, sTMP + 1
    A("v_and_b32 v%d, 3, v%d" % (hU + 3, hL))
    A("v_lshlrev_b32 v%d, 4, v%d" % (hU + 3, hU + 3))
    A("s_lshl_b32 s%d, s%d, 10" % (sSR, sGRP))
    A("s_add_u32 s%d, s%d, %d" % (sSR, sSR, WS_STAT))
    A("s_lshl_b32 s%d, s%d, 7" % (sSW, sC))
    A("s_add_u32 s%d, s%d, s%d" % (sSW, sSW, sSR))
    A("s_mov_b32 s%d, %d" % (sSPIN, spin * 4))
    LB("L_lpoll")
    A("s_sleep 4")
    A("ds_read_b128 v[%d:%d], v%d offset:%d" % (hP, hP + 3, hU + 3, L_STAT))
    spin_dec()
    A("s_waitcnt lgkmcnt(0)")
    A("s_cbranch_scc1 L_lgo")
    A("v_cmp_eq_u32 vcc, 0, v%d" % (hP + 3))
    A("s_cbranch_vccnz L_lpoll")
    LB("L_lgo")
    A("v_mov_b32 v%d, v%d" % (hP + 1, hTAG))
    A("v_mov_b32 v%d, v%d" % (hP + 3, hTAG))
    A("s_mov_b64 exec, 15")
    A("s_cmp_eq_u32 s%d, 0" % sSAME)
    dual_store(hP, hU + 3, sSW)
    A("s_mov_b64 exec, -1")
    A("v_bfe_u32 v%d, v%d, 2, 3" % (hU + 4, hL))
    A("v_lshl_add_u32 v%d, v%d, 7, v%d" % (hU + 4, hU + 4, hU + 3))
    A("s_mov_b32 s%d, %d" % (sSPIN, spin))
    LB("L_spoll")
    A("s_sleep 8")
    A("buffer_load_dwordx4 v[%d:%d], v%d, s[%d:%d], s%d offen sc1" % (hP + 4, hP + 7, hU + 4, WSR, WSR + 3, sSR))
    spin_dec()
    A("s_waitcnt vmcnt(0)")
    A("s_cbranch_scc1 L_sgo")
    A("v_xor_b32 v%d, v%d, v%d" % (hP + 8, hP + 5, hTAG))
    A("v_xor_b32 v%d, v%d, v%d" % (hP + 9, hP + 7, hTAG))
    A("v_or_b32 v%d, v%d, v%d" % (hP + 8, hP + 8, hP + 9))
    A("v_cmp_ne_u32 vcc, 0, v%d" % (hP + 8))
    A("s_cbranch_vccnz L_spoll")
    C("all 8 members of this group have read the epoch; the last of the 32 groups to get here advances it")
    A("s_cmp_lg_u32 s%d, %d" % (sC, 99 if noep else 0))
    A("s_cbranch_scc1 L_sgo")
    A("s_mov_b32 s%d, 1" % sIT)
    A("s_atomic_add s%d, s[%d:%d], 0 glc" % (sIT, sDBG, sDBG + 1))
    A("s_waitcnt lgkmcnt(0)")
    A("s_cmp_lg_u32 s%d, 31" % sIT)
    A("s_cbranch_scc1 L_sgo")
    A("s_mov_b64 exec, 1")
    A("buffer_store_dword v%d, v%d, s[%d:%d], 0 offen" % (hTAG, hZ, WSR, WSR + 3))
    A("s_mov_b64 exec, -1")
    LB("L_sgo")
    stamp(3)
    A("v_mov_b32 v%d, v%d" % (hP + 8, hP + 4))
    rowreduce("v_max_f32", hP + 8)
    swapreduce("v_max_f32", hP + 8, hP + 9, "v_permlane16_swap_b32")
    A("v_sub_f32 v%d, v%d, v%d" % (hP + 8, hP + 4, hP + 8))
    A("v_exp_f32 v%d, v%d" % (hP + 8, hP + 8))
    A("s_nop 0")
    A("v_mul_f32 v%d, v%d, v%d" % (hP + 10, hP + 8, hP + 6))
    rowreduce("v_add_f32", hP + 10)
    swapreduce("v_add_f32", hP + 10, hP + 9, "v_permlane16_swap_b32")
    A("v_rcp_f32 v%d, v%d" % (hP + 10, hP + 10))
    A("v_lshrrev_b32 v%d, 2, v%d" % (hU + 3, hU + 3))
    A("v_mul_f32 v%d, v%d, v%d" % (hP + 8, hP + 8, hP + 10))
    A("s_lshl_b32 s%d, s%d, 2" % (sIT, sC))
    A("s_lshl_b64 exec, 15, s%d" % sIT)
    A("ds_write_b32 v%d, v%d offset:%d" % (hU + 3, hP + 8, L_PAR))
    A("s_mov_b64 exec, -1")
    A("v_mov_b32 v%d, v%d" % (hP + 12, hTAG))
    A("v_mov_b32 v%d, s%d" % (hP + 13, sSAME))
    A("v_mov_b32 v%d, 1" % (hP + 14))
    A("v_mov_b32 v%d, 1" % (hP + 15))
    A("s_waitcnt lgkmcnt(0)")
    A("ds_write_b128 v%d, v[%d:%d] offset:%d" % (hZ, hP + 12, hP + 15, L_PAR + 16))
    A("s_branch L_h_common")

    LB("L_h_other")
    A("s_waitcnt lgkmcnt(0)")
    A("s_mov_b32 s%d, s%d" % (WSR, sWS))
    A("s_mov_b32 s%d, s%d" % (WSR + 1, sWS + 1))
    A("s_barrier")
    A("s_mov_b32 s%d, %d" % (sSPIN, spin * 4))
    LB("L_hwait")
    A("s_sleep 8")
    A("ds_read_b64 v[%d:%d], v%d offset:%d" % (hP, hP + 1, hZ, L_TAG))
    spin_dec()
    A("s_waitcnt lgkmcnt(0)")
    A("s_cbranch_scc1 L_hok")
    A("v_cmp_eq_u32 vcc, 0, v%d" % (hP + 1))
    A("s_cbranch_vccnz L_hwait")
    LB("L_hok")
    A("v_readfirstlane_b32 s%d, v%d" % (sTAG, hP))
    A("v_mov_b32 v%d, v%d" % (hTAG, hP))
    tagbytes(sT, sTAG)
    A("s_cmp_eq_u32 s%d, 1" % sHW)
    A("s_cbranch_scc1 L_ctl0")
    C("helpers 2,3 read the hand-off lines once over the scalar path so the final polls find them in L2")
    A("s_cmp_eq_u32 s%d, 2" % sHW)
    A("s_cbranch_scc1 L_spt2")
    A("s_and_b32 s%d, s2, 7" % sIT)
    A("s_cmp_lg_u32 s%d, %d" % (sIT, rcls))
    A("s_cbranch_scc1 L_h_common")
    A("s_lshr_b32 s%d, s2, 4" % sIT)
    A("s_lshl_b32 s%d, s%d, 13" % (sTMP, sIT))
    A("s_bfe_u32 s%d, s2, 0x10003" % sIT)
    A("s_lshl_b32 s%d, s%d, 7" % (sIT, sIT))
    A("s_add_u32 s%d, s%d, s%d" % (sTMP, sTMP, sIT))
    A("s_add_u32 s%d, s%d, %d" % (sTMP, sTMP, WS_Y))
    A("s_mov_b32 s%d, 8" % sIT)
    LB("L_spt1")
    for k in range(8):
        A("s_add_u32 s%d, s%d, %d" % (sTMP + 1, sTMP, (k >> 1) * 256 + (k & 1) * 64))
        A("s_load_dword s%d, s[%d:%d], s%d" % (sF + k, sWS, sWS + 1, sTMP + 1))
    A("s_add_u32 s%d, s%d, 1024" % (sTMP, sTMP))
    A("s_sub_u32 s%d, s%d, 1" % (sIT, sIT))
    A("s_cmp_lg_u32 s%d, 0" % sIT)
    A("s_waitcnt lgkmcnt(0)")
    A("s_cbranch_scc1 L_spt1")
    A("s_branch L_h_common")
    LB("L_spt2")
    if tp:
        C("first touch of the V / wo / out pages over the scalar path, long before the vector path needs them")
        A("s_lshl_b32 s%d, s%d, 1" % (sTMP, sGRP))
        A("s_lshr_b32 s%d, s%d, 2" % (sIT, sC))
        A("s_add_u32 s%d, s%d, s%d" % (sTMP, sTMP, sIT))
        A("s_lshl_b32 s%d, s%d, 21" % (sTMP, sTMP))
        A("s_load_dword s%d, s[%d:%d], s%d" % (sF, sV, sV + 1, sTMP))
        A("s_mul_i32 s%d, s%d, %d" % (sTMP + 1, sH, 256 * 896))
        A("s_load_dword s%d, s[%d:%d], s%d" % (sF + 1, sWO, sWO + 1, sTMP + 1))
        A("s_add_u32 s%d, s%d, %d" % (sTMP + 2, sTMP + 1, 256 * 896 - 4))
        A("s_load_dword s%d, s[%d:%d], s%d" % (sF + 2, sWO, sWO + 1, sTMP + 2))
        A("s_load_dword s%d, s[%d:%d], 0" % (sF + 3, sOUT, sOUT + 1))
        A("s_waitcnt lgkmcnt(0)")
    A("s_lshl_b32 s%d, s%d, 3" % (sTMP, sGRP))
    A("s_add_u32 s%d, s%d, s%d" % (sTMP, sTMP, sC))
    A("s_lshl_b32 s%d, s%d, 10" % (sTMP, sTMP))
    A("s_add_u32 s%d, s%d, %d" % (sTMP, sTMP, WS_O1))
    A("s_mov_b32 s%d, 2" % sIT)
    LB("L_spt3")
    for k in range(8):
        A("s_load_dword s%d, s[%d:%d], s%d" % (sF + k, sWS, sWS + 1, sTMP))
        A("s_add_u32 s%d, s%d, 64" % (sTMP, sTMP))
    A("s_sub_u32 s%d, s%d, 1" % (sIT, sIT))
    A("s_cmp_lg_u32 s%d, 0" % sIT)
    A("s_waitcnt lgkmcnt(0)")
    A("s_cbranch_scc1 L_spt3")
    if rk:
        C("four workgroups per class take a ticket at their own progress marks; a ticket is the arrival rank among the")
        C("8 classes (counted from the value found before the round, every round on a line of its own) and trims the set point")
        RST = 4096 + 256
        sBD, sTG2, sMK, sCA, sBS = sTMP, sTMP + 1, sTMP + 2, sTMP + 3, sTMP + 4
        A("s_cmp_lg_u32 s%d, 0" % sC)
        A("s_cbranch_scc1 L_h_common")
        A("v_and_b32 v%d, 3, v%d" % (hP + 1, hL))
        A("v_lshlrev_b32 v%d, 8, v%d" % (hP + 1, hP + 1))
        A("s_lshr_b32 s%d, s2, 6" % sIT)
        A("s_mul_i32 s%d, s%d, %d" % (sMK, sIT, rm1 if rs else 0))
        A("s_add_u32 s%d, s%d, %d" % (sMK, sMK, 4 * rm0))
        A("s_mul_i32 s%d, s%d, %d" % (sCA, sIT, RST if rs else 0))
        A("s_add_u32 s%d, s%d, %d" % (sCA, sCA, WS_RK))
        A("s_and_b32 s%d, s2, 7" % sBD)
        A("s_lshl_b32 s%d, s%d, 6" % (sBD, sBD))
        A("s_add_u32 s%d, s%d, s%d" % (sBD, sBD, sIT))
        A("s_lshl_b32 s%d, s%d, 2" % (sBD, sBD))
        A("s_add_u32 s%d, s%d, %d" % (sBD, sBD, WS_PROG + 128))
        A("s_lshl_b32 s%d, s%d, 16" % (sTG2, sTAG))
        A("s_mov_b32 s%d, %d" % (sSPIN, spin * 16))
        LB("L_rk")
        A("s_load_dword s%d, s[%d:%d], s%d" % (sBS, sWS, sWS + 1, sCA))
        LB("L_rkw")
        A("s_sleep 1")
        A("ds_read_b32 v%d, v%d offset:%d" % (hP, hP + 1, L_PROG))
        spin_dec()
        A("s_waitcnt lgkmcnt(0)")
        A("s_cbranch_scc1 L_h_common")
        A("v_add_u32_dpp v%d, v%d, v%d quad_perm:[1,0,3,2] %s" % (hP, hP, hP, DPP))
        A("s_nop 1")
        A("v_add_u32_dpp v%d, v%d, v%d quad_perm:[2,3,0,1] %s" % (hP, hP, hP, DPP))
        A("v_cmp_gt_u32 vcc, s%d, v%d" % (sMK, hP))
        A("s_cbranch_vccnz L_rkw")
        A("s_mov_b32 s%d, 1" % sIT)
        A("s_atomic_add s%d, s[%d:%d], s%d glc" % (sIT, sWS, sWS + 1, sCA))
        A("s_waitcnt lgkmcnt(0)")
        A("s_sub_u32 s%d, s%d, s%d" % (sIT, sIT, sBS))
        A("s_and_b32 s%d, s%d, %d" % (sIT, sIT, 7 if rs else 31))
        if rs:
            A("s_lshl_b32 s%d, s%d, 2" % (sIT, sIT))
        A("s_or_b32 s%d, s%d, s%d" % (sIT, sIT, sTG2))
        A("v_mov_b32 v%d, s%d" % (hP + 2, sIT))
        A("s_mov_b64 exec, 1")
        A("buffer_store_dword v%d, v%d, s[%d:%d], s%d offen" % (hP + 2, hZ, WSR, WSR + 3, sBD))
        A("s_mov_b64 exec, -1")
        A("s_add_u32 s%d, s%d, %d" % (sCA, sCA, 4 * RST))
        A("s_add_u32 s%d, s%d, %d" % (sMK, sMK, 4 * rm1))
        A("s_cmp_lt_u32 s%d, %d" % (sMK, 4 * (TOTAL - rend)))
        A("s_cbranch_scc1 L_rk")
    A("s_branch L_h_common")

    LB("L_ctl0")
    C("helper 1: bandwidth-share feedback. Waves that trail their wg&7 class keep more loads in flight, leaders fewer,")
    C("so all workgroups finish together. It changes nothing but how many loads are outstanding.")
    cV = 96
    sPW, sPR, sTG, sPREV, sREF, sE = sF, sF + 1, sF + 2, sF + 3, sF + 4, sF + 5
    A("s_mov_b32 s%d, 0" % sPREV)
    sSET = sF + 6
    if xb:
        C("dies sit at different distances from the memory stacks: small fixed per-die trim of the set point")
        A("s_getreg_b32 s%d, hwreg(HW_REG_XCC_ID, 0, 3)" % sSET)
        A("s_lshl_b32 s%d, s%d, 2" % (sSET, sSET))
        A("s_lshr_b32 s%d, 0x%x, s%d" % (sSET, xb, sSET))
        A("s_and_b32 s%d, s%d, 15" % (sSET, sSET))
        A("s_lshl_b32 s%d, s%d, 6" % (sSET, sSET))
        A("s_add_u32 s%d, s%d, %d" % (sSET, sSET, lv0 * 512 + 256 + lq * 128 - 8 * 64))
    else:
        A("s_mov_b32 s%d, %d" % (sSET, lv0 * 512 + 256 + lq * 128))
    A("s_and_b32 s%d, s2, 7" % sPR)
    A("s_lshl_b32 s%d, s%d, 8" % (sPR, sPR))
    A("s_add_u32 s%d, s%d, %d" % (sPR, sPR, WS_PROG))
    A("s_lshr_b32 s%d, s2, 3" % sPW)
    A("s_lshl_b32 s%d, s%d, 2" % (sPW, sPW))
    A("s_add_u32 s%d, s%d, s%d" % (sPW, sPW, sPR))
    A("s_lshl_b32 s%d, s%d, 16" % (sTG, sTAG))
    if rk:
        A("v_and_b32 v%d, 35, v%d" % (cV + 1, hL))
        A("v_cmp_gt_u32 vcc, 32, v%d" % hL)
        A("s_nop 1")
        A("v_cndmask_b32 v%d, v%d, v%d, vcc" % (cV, cV + 1, hL))
    else:
        A("v_and_b32 v%d, 31, v%d" % (cV, hL))
    A("v_lshlrev_b32 v%d, 2, v%d" % (cV, cV))
    A("v_and_b32 v%d, 3, v%d" % (cV + 7, hL))
    A("v_lshlrev_b32 v%d, 2, v%d" % (cV + 8, cV + 7))
    A("v_lshlrev_b32 v%d, 8, v%d" % (cV + 7, cV + 7))
    A("v_mov_b32 v%d, 0" % (cV + 2))
    for l_ in range(1, 8 * NF + 1):
        A("s_mov_b32 s%d, 0x%x" % (sIT, pat(l_, NF)))
        A("v_writelane_b32 v%d, s%d, %d" % (cV + 2, sIT, l_))
    A("s_mov_b32 s%d, %d" % (sSPIN, spin))
    LB("L_ctl")
    A("ds_read_b32 v%d, v%d offset:%d" % (cV + 9, cV + 7, L_PROG))
    spin_dec()
    A("s_waitcnt lgkmcnt(0)")
    A("s_cbranch_scc1 L_h_common")
    A("v_add_u32_dpp v%d, v%d, v%d quad_perm:[1,0,3,2] %s" % (cV + 4, cV + 9, cV + 9, DPP))
    A("s_nop 1")
    A("v_add_u32_dpp v%d, v%d, v%d quad_perm:[2,3,0,1] %s" % (cV + 4, cV + 4, cV + 4, DPP))
    A("s_nop 0")
    A("v_readfirstlane_b32 s%d, v%d" % (sIT, cV + 4))
    A("v_or_b32 v%d, s%d, v%d" % (cV + 4, sTG, cV + 4))
    A("s_add_u32 s%d, s%d, s%d" % (sREF, sIT, sPREV))
    A("s_mov_b32 s%d, s%d" % (sPREV, sIT))
    A("s_mov_b64 exec, 1")
    A("buffer_store_dword v%d, v%d, s[%d:%d], s%d offen" % (cV + 4, hZ, WSR, WSR + 3, sPW))
    A("s_mov_b64 exec, -1")
    A("s_cmp_ge_u32 s%d, %d" % (sIT, NW * (TOTAL - margin)))
    A("s_cbranch_scc1 L_h_common")
    A("buffer_load_dword v%d, v%d, s[%d:%d], s%d offen sc1" % (cV + 5, cV, WSR, WSR + 3, sPR))
    A("s_waitcnt vmcnt(0)")
    A("ds_read_b32 v%d, v%d offset:%d" % (cV + 9, cV + 7, L_PROG))
    A("v_xor_b32 v%d, s%d, v%d" % (cV + 5, sTG, cV + 5))
    A("v_cmp_le_u32 vcc, 0x10000, v%d" % (cV + 5))
    if rk:
        A("s_cmp_lg_u32 vcc_lo, 0")
        A("s_cbranch_scc1 L_ctl")
        A("s_mov_b32 s%d, vcc_hi" % (sF + 7))
    else:
        A("s_cbranch_vccnz L_ctl")
    rowreduce("v_add_u32", cV + 5)
    A("s_lshl_b32 s%d, s%d, 4" % (sREF, sREF))
    A("v_readlane_b32 s%d, v%d, 0" % (sE, cV + 5))
    A("v_readlane_b32 s%d, v%d, 16" % (sIT, cV + 5))
    A("s_add_u32 s%d, s%d, s%d" % (sE, sE, sIT))
    A("s_sub_u32 s%d, s%d, s%d" % (sE, sE, sREF))
    A("s_mul_i32 s%d, s%d, %d" % (sE, sE, gain))
    A("s_add_i32 s%d, s%d, s%d" % (sE, sE, sSET))
    if rk:
        A("v_readlane_b32 s%d, v%d, 32" % (sIT, cV + 5))
        A("s_sub_u32 s%d, s%d, %d" % (sIT, sIT, 224 if rs else 248))
        A("s_mul_i32 s%d, s%d, %d" % (sIT, sIT, rk))
        A("s_cmp_eq_u32 s%d, 0" % (sF + 7))
        A("s_cselect_b32 s%d, s%d, 0" % (sIT, sIT))
        A("s_add_i32 s%d, s%d, s%d" % (sE, sE, sIT))
    A("s_waitcnt lgkmcnt(0)")
    A("v_add_u32_dpp v%d, v%d, v%d quad_perm:[1,0,3,2] %s" % (cV + 4, cV + 9, cV + 9, DPP))
    A("v_lshlrev_b32 v%d, 2, v%d" % (cV + 9, cV + 9))
    A("s_nop 0")
    A("v_add_u32_dpp v%d, v%d, v%d quad_perm:[2,3,0,1] %s" % (cV + 4, cV + 4, cV + 4, DPP))
    A("v_sub_u32 v%d, v%d, v%d" % (cV + 4, cV + 4, cV + 9))
    A("v_mul_i32_i24 v%d, %d, v%d" % (cV + 4, 32 * wgain, cV + 4))
    A("v_add_u32 v%d, s%d, v%d" % (cV + 4, sE, cV + 4))
    A("v_ashrrev_i32 v%d, 9, v%d" % (cV + 4, cV + 4))
    A("v_max_i32 v%d, 0, v%d" % (cV + 4, cV + 4))
    A("v_min_i32 v%d, %d, v%d" % (cV + 4, 8 * NF, cV + 4))
    A("v_lshlrev_b32 v%d, 2, v%d" % (cV + 4, cV + 4))
    A("ds_bpermute_b32 v%d, v%d, v%d" % (cV + 5, cV + 4, cV + 2))
    A("s_waitcnt lgkmcnt(0)")
    A("ds_write_b32 v%d, v%d offset:%d" % (cV + 8, cV + 5, L_MODE))
    A("s_branch L_ctl")

    LB("L_h_common")
    C("output-projection tile of this workgroup (14 of the head's 16): 128 rows x 64 columns, both batches")
    C("wave fragment: rows h*256+128*rh+64*(hw&1)+4*(hw>>1)+8n+(g>>1)+2(g&1), columns 64*cb+4j..")
    sRH, sCB, sTL, sO1R, sO1S, sYW = sTMP, sTMP + 1, sTMP + 2, sTMP + 4, sTMP + 5, sTMP + 6
    hLA, hLW, hCA, hONE, hRET, YR = 128, 129, 130, 131, 132, 100
    A("s_lshl_b32 s%d, s%d, 3" % (sTL, sB))
    A("s_add_u32 s%d, s%d, s%d" % (sTL, sTL, sC))
    A("s_cmp_ge_u32 s%d, 14" % sTL)
    A("s_cbranch_scc1 L_fin")
    A("s_mov_b32 s%d, s%d" % (SRD, sWO))
    A("s_mov_b32 s%d, s%d" % (SRD + 1, sWO + 1))
    A("v_lshrrev_b32 v%d, 1, v%d" % (hU + 1, hG))
    A("v_and_b32 v%d, 1, v%d" % (hU + 2, hG))
    A("v_lshl_add_u32 v%d, v%d, 1, v%d" % (hU + 1, hU + 2, hU + 1))
    A("v_mul_u32_u24 v%d, 896, v%d" % (hU + 1, hU + 1))
    A("v_lshl_add_u32 v%d, v%d, 3, v%d" % (hU, hJ, hU + 1))
    A("s_cmp_ge_u32 s%d, 7" % sTL)
    A("s_cselect_b32 s%d, 1, 0" % sRH)
    A("s_mul_i32 s%d, s%d, 7" % (sCB, sRH))
    A("s_sub_u32 s%d, s%d, s%d" % (sCB, sTL, sCB))
    A("s_lshl_b32 s%d, s%d, 1" % (sOFF, sH))
    A("s_add_u32 s%d, s%d, s%d" % (sOFF, sOFF, sRH))
    A("s_lshl_b32 s%d, s%d, 8" % (sYW, sOFF))
    A("s_lshl_b32 s%d, s%d, 13" % (sIT, sCB))
    A("s_add_u32 s%d, s%d, s%d" % (sYW, sYW, sIT))
    A("s_add_u32 s%d, s%d, %d" % (sYW, sYW, WS_Y))
    A("s_lshl_b32 s%d, s%d, 7" % (sOFF, sOFF))
    A("s_and_b32 s%d, s%d, 1" % (sIT, sHW))
    A("s_lshl_b32 s%d, s%d, 6" % (sIT, sIT))
    A("s_add_u32 s%d, s%d, s%d" % (sOFF, sOFF, sIT))
    A("s_lshr_b32 s%d, s%d, 1" % (sIT, sHW))
    A("s_lshl_b32 s%d, s%d, 2" % (sIT, sIT))
    A("s_add_u32 s%d, s%d, s%d" % (sOFF, sOFF, sIT))
    A("s_mul_i32 s%d, s%d, 896" % (sOFF, sOFF))
    A("s_lshl_b32 s%d, s%d, 7" % (sIT, sCB))
    A("s_add_u32 s%d, s%d, s%d" % (sOFF, sOFF, sIT))
    for n in range(8):
        A("s_add_u32 s%d, s%d, %d" % (sF + n, sOFF, n * 8 * 896))
    C("byte selectors for the A operand: row i<8, element e=i&3 (reg e>>1, half e&1) takes batch (i>>2)&1")
    A("v_bfe_u32 v%d, v%d, 2, 1" % (hU + 1, hL))
    A("v_mul_u32_u24 v%d, 0x0202, v%d" % (hU + 1, hU + 1))
    A("v_add_u32 v%d, 0x0100, v%d" % (hU + 1, hU + 1))
    A("v_xor_b32 v%d, 0x0c0c, v%d" % (hU + 1, hU + 1))
    A("v_and_b32 v%d, 1, v%d" % (hU + 2, hL))
    A("v_lshlrev_b32 v%d, 4, v%d" % (hU + 2, hU + 2))
    A("v_lshlrev_b32 v%d, v%d, v%d" % (hU + 1, hU + 2, hU + 1))
    A("v_mov_b32 v%d, 0x0c0c0c0c" % (hU + 3))
    A("v_xor_b32 v%d, v%d, v%d" % (hU + 1, hU + 3, hU + 1))
    A("v_and_b32 v%d, 10, v%d" % (hU + 2, hL))
    for r in range(2):
        A("v_cmp_eq_u32 vcc, %d, v%d" % (2 * r, hU + 2))
        A("s_nop 1")
        A("v_cndmask_b32 v%d, v%d, v%d, vcc" % (hMK + r, hU + 3, hU + 1))
    C("o gather: O1 + (b*16+h)*8192 + (l>>3)*1024 + (4rh+hw)*128 + (l&7)*16")
    A("v_lshrrev_b32 v%d, 3, v%d" % (hU + 1, hL))
    A("v_lshlrev_b32 v%d, 10, v%d" % (hU + 1, hU + 1))
    A("v_and_b32 v%d, 7, v%d" % (hU + 2, hL))
    A("v_lshl_add_u32 v%d, v%d, 4, v%d" % (hU + 1, hU + 2, hU + 1))
    A("s_lshl_b32 s%d, s%d, 2" % (sIT, sRH))
    A("s_add_u32 s%d, s%d, s%d" % (sIT, sIT, sHW))
    A("s_lshl_b32 s%d, s%d, 7" % (sIT, sIT))
    A("s_lshl_b32 s%d, s%d, 13" % (sO1R, sH))
    A("s_add_u32 s%d, s%d, s%d" % (sO1R, sO1R, sIT))
    A("s_add_u32 s%d, s%d, %d" % (sO1R, sO1R, WS_O1))
    A("s_add_u32 s%d, s%d, %d" % (sO1S, sO1R, 16 * 8192))
    A("v_mul_u32_u24 v%d, %d, v%d" % (hU + 2, 7 * 8192, hG))
    A("v_lshl_add_u32 v%d, v%d, 4, v%d" % (hU + 2, hJ, hU + 2))
    A("s_lshl_b32 s%d, s%d, 9" % (sIT, sHW))
    A("v_lshlrev_b32 v%d, 4, v%d" % (hLA, hL))
    A("v_add_u32 v%d, s%d, v%d" % (hLW, sIT, hLA))
    A("v_lshlrev_b32 v%d, 2, v%d" % (hCA, hL))
    A("v_mov_b32 v%d, 1" % hONE)
    A("v_and_b32 v%d, 3, v%d" % (hP + 1, hL))
    A("v_lshlrev_b32 v%d, 8, v%d" % (hP + 1, hP + 1))
    def wowait(tag, thr, anyw=0):
        A("s_mov_b32 s%d, %d" % (sSPIN, spin * 16))
        LB("L_wow" + tag)
        A("s_sleep %d" % wslp)
        A("ds_read_b32 v%d, v%d offset:%d" % (hP, hP + 1, L_PROG))
        spin_dec()
        A("s_waitcnt lgkmcnt(0)")
        A("s_cbranch_scc1 L_wog" + tag)
        if anyw:
            A("v_cmp_le_u32 vcc, %d, v%d" % (thr, hP))
            A("s_cbranch_vccz L_wow" + tag)
        else:
            A("v_cmp_gt_u32 vcc, %d, v%d" % (thr, hP))
            A("s_cbranch_vccnz L_wow" + tag)
        LB("L_wog" + tag)
    wld = lambda n: A("buffer_load_dwordx2 v[%d:%d], v%d, s[%d:%d], s%d offen nt" % (hW + 2 * n, hW + 2 * n + 1, hU, SRD, SRD + 3, sF + n))
    if wol < 8:
        wowait("e", TOTAL - wearly)
        for n in range(8 - wol):
            wld(n)
    C("the wo fragment is requested right behind this workgroup's last V loads")
    wowait("", TOTAL, wany)
    for n in range(8 - wol, 8):
        wld(n)
    A("s_mov_b32 s%d, %d" % (sSPIN, spin))
    if b2:
        A("s_barrier")
    else:
        A("s_waitcnt vmcnt(%d)" % owait)
    stamp(4)
    LB("L_opoll")
    A("buffer_load_dwordx4 v[%d:%d], v%d, s[%d:%d], s%d offen sc1" % (hP, hP + 3, hU + 1, WSR, WSR + 3, sO1R))
    A("buffer_load_dwordx4 v[%d:%d], v%d, s[%d:%d], s%d offen sc1" % (hP + 4, hP + 7, hU + 1, WSR, WSR + 3, sO1S))
    spin_dec()
    A("s_cbranch_scc1 L_fin")
    A("s_waitcnt vmcnt(1)")
    for r in range(4):
        A("v_xor_b32 v%d, s%d, v%d" % (hP + r, sT + r, hP + r))
    A("v_or3_b32 v%d, v%d, v%d, v%d" % (hP + 8, hP, hP + 1, hP + 2))
    A("s_waitcnt vmcnt(0)")
    for r in range(4):
        A("v_xor_b32 v%d, s%d, v%d" % (hP + 4 + r, sT + r, hP + 4 + r))
    A("v_or3_b32 v%d, v%d, v%d, v%d" % (hP + 8, hP + 8, hP + 3, hP + 4))
    A("v_or3_b32 v%d, v%d, v%d, v%d" % (hP + 8, hP + 8, hP + 5, hP + 6))
    A("v_or_b32 v%d, v%d, v%d" % (hP + 8, hP + 8, hP + 7))
    A("v_cmp_ne_u32_sdwa vcc, v%d, 0 src0_sel:BYTE_0 src1_sel:DWORD" % (hP + 8))
    A("s_and_b64 exec, exec, vcc")
    A("s_cbranch_scc1 L_opoll")
    A("s_mov_b64 exec, -1")
    stamp(5)
    C("sum the 8 chunk partials of both batches (transposing), round o to bf16, multiply with the tile")
    for q in range(4):
        A("v_permlane32_swap_b32 v%d, v%d" % (hP + 2 * q, hP + 2 * q + 1))
    for q in range(4):
        A("v_add_f32 v%d, v%d, v%d" % (hP + 2 * q, hP + 2 * q, hP + 2 * q + 1))
    A("v_permlane16_swap_b32 v%d, v%d" % (hP, hP + 2))
    A("s_and_b32 s%d, s2, 7" % sIT)
    A("v_permlane16_swap_b32 v%d, v%d" % (hP + 4, hP + 6))
    A("v_add_f32 v%d, v%d, v%d" % (hP, hP, hP + 2))
    A("v_add_f32 v%d, v%d, v%d" % (hP + 4, hP + 4, hP + 6))
    A("s_cmp_lg_u32 s%d, %d" % (sIT, rcls))
    A("v_add_f32_dpp v%d, v%d, v%d row_ror:8 %s" % (hP, hP, hP, DPP))
    A("v_add_f32_dpp v%d, v%d, v%d row_ror:8 %s" % (hP + 4, hP + 4, hP + 4, DPP))
    A("v_cvt_pk_bf16_f32 v%d, v%d, v%d" % (hP, hP, hP + 4))
    A("s_nop 1")
    BC, AA = hP + 8, 80
    for n in range(8):
        A("v_mov_b32_dpp v%d, v%d row_newbcast:%d %s" % (BC + n, hP, n, DPP))
    def mf(m_):
        A("v_mfma_f32_16x16x32_bf16 v[%d:%d], v[%d:%d], v[%d:%d], %s" %
          (hD, hD + 3, AA + 4 * m_, AA + 4 * m_ + 3, hW + 4 * m_, hW + 4 * m_ + 3, "0" if m_ == 0 else "v[%d:%d]" % (hD, hD + 3)))
    for n in range(8):
        for r in range(2):
            A("v_perm_b32 v%d, v%d, v%d, v%d" % (AA + 2 * n + r, BC + n, BC + n, hMK + r))
        if n in (2, 4, 6):
            mf(n // 2 - 1)
    A("s_nop 1")
    mf(3)
    C("the last helper to arrive sums the four row slices and writes the tile's y through")
    A("s_mov_b32 exec_hi, 0")
    A("s_nop 6")
    A("ds_write_b128 v%d, v[%d:%d] offset:%d" % (hLW, hD, hD + 3, L_Y))
    A("ds_add_rtn_u32 v%d, v%d, v%d offset:%d" % (hRET, hCA, hONE, L_CNT + 256))
    for w in range(4):
        A("ds_read_b128 v[%d:%d], v%d offset:%d" % (YR + 4 * w, YR + 4 * w + 3, hLA, L_Y + 512 * w))
    A("s_waitcnt lgkmcnt(2)")
    A("v_cmp_eq_u32 vcc, 3, v%d" % hRET)
    A("s_cbranch_vccz L_ynot")
    def add4(d, a, b):
        if pk:
            for q in (0, 2):
                A("v_pk_add_f32 v[%d:%d], v[%d:%d], v[%d:%d]" % (d + q, d + q + 1, a + q, a + q + 1, b + q, b + q + 1))
        else:
            for r in range(4):
                A("v_add_f32 v%d, v%d, v%d" % (d + r, a + r, b + r))
    add4(YR, YR, YR + 4)
    A("s_waitcnt lgkmcnt(1)")
    add4(YR, YR, YR + 8)
    A("s_waitcnt lgkmcnt(0)")
    add4(YR, YR, YR + 12)
    for r in range(4):
        A("v_perm_b32 v%d, v%d, v%d, s%d" % (YR + r, YR + r, hTAG, sSEL + r))
    A("buffer_store_dwordx4 v[%d:%d], v%d, s[%d:%d], s%d offen sc1" % (YR, YR + 3, hU + 2, WSR, WSR + 3, sYW))
    stamp(6)
    LB("L_ynot")
    A("s_cbranch_scc1 L_fin")
    A("s_barrier")

    LB("L_fin")
    if stamps:
        A("s_mov_b64 exec, -1")
        A("s_cmp_lt_u32 s3, 4")
        A("s_cbranch_scc1 L_stz")
        A("s_cmp_ge_u32 s%d, 14" % (sTMP + 2))
        A("s_cbranch_scc1 L_sts")
        LB("L_stz")
        for _ in range(3):
            A("s_sleep 127")
        LB("L_sts")
        A("s_lshl_b32 s%d, s2, 3" % sTMP)
        A("s_add_u32 s%d, s%d, s3" % (sTMP, sTMP))
        A("s_lshl_b32 s%d, s%d, 6" % (sTMP, sTMP))
        A("s_add_u32 s%d, s%d, %d" % (sTMP, sTMP, STAMP_BASE))
        A("s_mov_b32 s%d, 0x20000000" % (WSR + 2))
        A("s_waitcnt vmcnt(0) lgkmcnt(0)")
        A("s_mov_b64 exec, 1")
        A("v_mov_b32 v1, 0")
        for q in range(16):
            A("v_mov_b32 v%d, s%d" % (4 + q, sST + q))
        for q in range(4):
            A("buffer_store_dwordx4 v[%d:%d], v1, s[%d:%d], s%d offen offset:%d" % (4 + 4 * q, 7 + 4 * q, WSR, WSR + 3, sTMP, 16 * q))
    LB("L_end")
    A("s_endpgm")
    nv = max(vSL + 4 * LZ, 192)
    L.append('.section .rodata,"a"')
    L.append(".p2align 6")
    L.append(".amdhsa_kernel " + KN)
    L.append("  .amdhsa_next_free_vgpr %d" % nv)
    L.append("  .amdhsa_next_free_sgpr 96")
    L.append("  .amdhsa_accum_offset %d" % nv)
    L.append("  .amdhsa_group_segment_fixed_size 0")
    L.append("  .amdhsa_kernarg_size 64")
    L.append("  .amdhsa_user_sgpr_count 2")
    L.append("  .amdhsa_user_sgpr_kernarg_segment_ptr 1")
    L.append("  .amdhsa_system_sgpr_workgroup_id_x 1")
    L.append("  .amdhsa_float_denorm_mode_32 3")
    L.append(".end_amdhsa_kernel")
    return "\n".join(L) + "\n"


def parse(spec):
    kw = {}
    for x in spec.split(","):
        if x:
            k, v = x.split("=")
            kw[k] = v if k == "mapping" else int(v, 0)
    return kw


if __name__ == "__main__":
    names = []
    for spec in sys.argv[1:]:
        name = "k_" + spec.replace(",", "_").replace("=", "") + ".s"
        open(name, "w").write(gen(**parse(spec)))
        names.append(name)
    print(" ".join(names))
```

```python
import sys

KN = "standalone__mha_block_cached__decode_kernel"

HEADER = """; Kernarg layout for this problem (64 bytes, ptrs only, base s[0:1]):
"""

DOC = """;
"""

WS_EPOCH = 0
WS_Q = 0x1000
WS_STAT = 0x40000
WS_PROG = 0x60000
WS_RK = 0x180000
WS_O1 = 0x80000
WS_YP = 0x70000
WS_Y = 0x100000
WS_QP = 0x200000
WS_USED = 0x400000
STAMP_BASE = 0x10000000

L_Q = 0
L_CLR = 512
L_TAG = 512
L_FLAG = 516
L_MODE = 528
L_STAT = 576
L_PAR = 640
L_CNT = 768
L_PROG = 1536
L_O = 2560
L_Y = 6656
L_R = 8704
LDS = 9728


def pat(l, nf):
    p8 = lambda f: sum(1 << j for j in range(8) if ((j + 1) * f) // 8 != (j * f) // 8)
    w = 0
    for k in range(nf):
        w |= p8(min(max(l - 8 * k, 0), 8)) << (8 * k)
    return w


def gen(D=5, LZ=32, Dl=4, Dh=8, lv0=10, gain=5, wgain=3, margin=18, cper=2, pper=2, rotg=1, wsig=1,
        mapping="xg", stamps=0, spin=1 << 16, qtry=24, force_slow=0, cpf=64, pk=1, dup=0, wslp=1, rcls=0, wol=8, wearly=40, owait=0, wany=0, gx=0, xb=0, lq=1, tp=0, b2=0, pst=0, eb=-1, ebl=99, fm=1, rk=6, rm0=12, rm1=28, rend=30, rs=1, noep=0, now=0, wpf=0, pair=0, yk=1, yc=0, ydual=0, yp=1, ypn=6, ydbg=0, diag=-1, dk=1):
    L = []
    def A(s): L.append("  " + s)
    def LB(s): L.append(s + ":")
    def C(s): L.append("  ; " + s)
    NW = NH = 4
    N = 128
    NB = 8
    LAG = Dh
    NF = Dh - Dl
    TOTAL = 2 * N - LZ
    assert LZ % 16 == 0 and NF <= 4 and D <= LAG <= 8
    lab = [0]
    assert WS_RK + (TOTAL // rm1 + 2) * 4 * 4352 <= WS_QP
    L.append(HEADER.rstrip("\n"))
    L.append("; @launch grid=(256,1,1) block=(512,1,1) lds=%d" % LDS)
    L.append(DOC.rstrip("\n"))
    L.append('.amdgcn_target "amdgcn-amd-amdhsa--gfx950"')
    L.append(".text")
    L.append(".globl " + KN)
    L.append(".p2align 8")
    L.append(".type %s,@function" % KN)
    LB(KN)

    sX, sK, sV, sWQ, sWO, sOUT, sDBG, sWS = 4, 6, 8, 10, 12, 14, 16, 18
    SRD = 20
    WSR = 24
    SR2 = 28
    sGRP, sC, sB, sH = 32, 33, 34, 35
    sBASE, sOFF, sIT = 36, 37, 38
    sT = 40
    sSEL = 44
    sM2, sM1 = 48, 50
    sF = 52
    sTMP = 60
    sSPIN, sCS = 68, 69
    sST = 70
    sTAG, sSAME = 86, 89

    def stamp(k, force=False):
        if (stamps or (diag >= 0 and k in (0, diag))) and (force or k == 0 or not pst):
            A("s_memrealtime s[%d:%d]" % (sST + 2 * k, sST + 2 * k + 1))

    def spin_dec():
        A("s_sub_u32 s%d, s%d, 1" % (sSPIN, sSPIN))
        A("s_cmp_eq_u32 s%d, 0" % sSPIN)

    def tagbytes(dst, src):
        for r in range(4):
            A("s_bfe_u32 s%d, s%d, 0x%x" % (dst + r, src, 0x80000 | (8 * r)))

    def selectors():
        for r in range(4):
            A("s_mov_b32 s%d, 0x%08x" % (sSEL + r, 0x07060500 | r))

    def dual_store(v, voff, soff):
        lab[0] += 1
        A("s_cbranch_scc1 L_wt%d" % lab[0])
        A("buffer_store_dwordx4 v[%d:%d], v%d, s[%d:%d], s%d offen" % (v, v + 3, voff, WSR, WSR + 3, soff))
        A("s_branch L_wd%d" % lab[0])
        LB("L_wt%d" % lab[0])
        A("buffer_store_dwordx4 v[%d:%d], v%d, s[%d:%d], s%d offen sc1" % (v, v + 3, voff, WSR, WSR + 3, soff))
        LB("L_wd%d" % lab[0])

    DPP = "row_mask:0xf bank_mask:0xf"
    def rowreduce(op, r):
        for c_ in ("quad_perm:[1,0,3,2]", "quad_perm:[2,3,0,1]", "row_half_mirror", "row_mirror"):
            A("s_nop 1")
            A("%s_dpp v%d, v%d, v%d %s %s" % (op, r, r, r, c_, DPP))
    def swapreduce(op, r, tmp, ins):
        A("v_mov_b32 v%d, v%d" % (tmp, r))
        A("s_nop 1")
        A("%s v%d, v%d" % (ins, r, tmp))
        A("%s v%d, v%d, v%d" % (op, r, r, tmp))

    if stamps:
        for k in range(1, 8):
            A("s_mov_b64 s[%d:%d], 0" % (sST + 2 * k, sST + 2 * k + 1))
    stamp(0)
    A("s_load_dwordx16 s[4:19], s[0:1], 0")
    A("s_cmp_ge_u32 s2, 256")
    A("s_cbranch_scc1 L_end")
    if cpf:
        C("pull this kernel's own code into L2: every workgroup of a wg&7 class touches 512 bytes of it")
        A("s_getpc_b64 s[92:93]")
        A("s_lshr_b32 s94, s2, 3")
        A("s_lshl_b32 s94, s94, 9")
        A("v_mul_u32_u24 v2, %d, v0" % cpf)
        A("v_add_u32 v2, s94, v2")
        A("v_min_u32 v2, (L_end - %s - 256), v2" % KN)
        A("v_cmp_gt_u32 vcc, %d, v0" % (512 // cpf))
        A("s_and_saveexec_b64 s[94:95], vcc")
        A("s_cbranch_execz L_nopf")
        A("global_load_dword v3, v2, s[92:93]")
        LB("L_nopf")
        A("s_mov_b64 exec, -1")
    A("v_lshrrev_b32 v1, 6, v0")
    A("v_and_b32 v0, 63, v0")
    A("v_readfirstlane_b32 s3, v1")
    if mapping == "lin":
        A("s_lshr_b32 s%d, s2, 3" % sGRP)
        A("s_and_b32 s%d, s2, 7" % sC)
    else:
        C("group = b*16+h = (wg&7) | ((wg>>3)&24), chunk c = (wg>>3)&7")
        A("s_lshr_b32 s%d, s2, 3" % sTMP)
        A("s_and_b32 s%d, s%d, 7" % (sC, sTMP))
        A("s_and_b32 s%d, s%d, 24" % (sTMP, sTMP))
        A("s_and_b32 s%d, s2, 7" % sGRP)
        A("s_or_b32 s%d, s%d, s%d" % (sGRP, sGRP, sTMP))
        if gx:
            A("s_xor_b32 s%d, s%d, %d" % (sGRP, sGRP, gx))
    A("s_mov_b32 s%d, 0x20000" % (SRD + 3))
    A("s_mov_b32 s%d, 0x20000" % (WSR + 3))
    A("s_mov_b32 s%d, 0x20000" % (SR2 + 3))
    A("s_mov_b32 s%d, %d" % (WSR + 2, WS_USED))
    A("s_cmp_ge_u32 s3, %d" % NW)
    A("s_cbranch_scc1 L_helper")

    vOFF, vQ, vMK, vA, vO, vT, vS, vU, vLANE = 0, 4, 8, 12, 16, 20, 36, 44, 52
    vMODE, vCNT, vPA, vMA = 53, 54, 55, 56
    vSL = 64
    slot = lambda i: vSL + 4 * i
    span, stride = 2 << 20, 64 << 10
    sREG, sPH, sMODE = 87, 39, 90
    C("==== stream waves: 4-KiB granules; four chunk-mates interleave inside a 2-MiB half of the (b,h) slab")
    A("v_mov_b32 v%d, v0" % vLANE)
    A("v_lshlrev_b32 v%d, 4, v0" % vOFF)
    A("s_lshl_b32 s%d, s%d, 1" % (sREG, sGRP))
    A("s_lshr_b32 s%d, s%d, 2" % (sTMP, sC))
    A("s_add_u32 s%d, s%d, s%d" % (sREG, sREG, sTMP))
    A("s_lshl_b32 s%d, s%d, 21" % (sREG, sREG))
    A("s_and_b32 s%d, s%d, 3" % (sTMP, sC))
    A("s_lshl_b32 s%d, s%d, 2" % (sTMP, sTMP))
    A("s_add_u32 s%d, s%d, s3" % (sTMP, sTMP))
    A("s_lshl_b32 s%d, s%d, 12" % (sPH, sTMP))
    A("s_mul_i32 s%d, s%d, %d" % (sTMP, sGRP, rotg * stride))
    A("s_add_u32 s%d, s%d, s%d" % (sPH, sPH, sTMP))
    A("s_and_b32 s%d, s%d, %d" % (sPH, sPH, span - 1))
    A("s_add_u32 s%d, s%d, s%d" % (sOFF, sPH, sREG))
    A("s_mov_b32 s%d, 0x8000000" % (SRD + 2))
    if pst:
        stamp(1, True)
    A("s_waitcnt lgkmcnt(0)")
    if pst:
        stamp(3, True)
    A("s_mov_b32 s%d, s%d" % (SRD, sK))
    A("s_mov_b32 s%d, s%d" % (SRD + 1, sK + 1))

    def advance():
        A("s_add_u32 s%d, s%d, %d" % (sPH, sPH, stride))
        A("s_and_b32 s%d, s%d, %d" % (sPH, sPH, span - 1))
        A("s_add_u32 s%d, s%d, s%d" % (sOFF, sPH, sREG))

    def issue(idx, sl):
        A("buffer_load_dwordx4 v[%d:%d], v%d, s[%d:%d], s%d offen offset:%d nt" %
          (slot(sl), slot(sl) + 3, vOFF, SRD, SRD + 3, sOFF, (idx % 4) * 1024))
        if idx % 4 == 3:
            advance()

    C("fill the landing zone (q is not known yet), D loads in flight")
    for i in range(D):
        issue(i, i)
    if pst:
        stamp(4, True)
    A("s_barrier")
    if pst:
        stamp(5, True)
    A("s_mov_b32 s%d, s%d" % (WSR, sWS))
    A("s_mov_b32 s%d, s%d" % (WSR + 1, sWS + 1))
    A("s_mov_b32 s%d, 0xcccccccc" % sM2)
    A("s_mov_b32 s%d, 0xcccccccc" % (sM2 + 1))
    A("s_mov_b32 s%d, 0xaaaaaaaa" % sM1)
    A("s_mov_b32 s%d, 0xaaaaaaaa" % (sM1 + 1))
    A("s_mov_b32 s%d, 0x3db8aa3b" % sCS)
    C("P.V operand masks: lane (rho,i) is active iff (i>>3)==(rho&1); register (i&7)>>1, half i&1")
    A("v_lshrrev_b32 v%d, 3, v%d" % (vU, vLANE))
    A("v_lshrrev_b32 v%d, 4, v%d" % (vU + 1, vLANE))
    A("v_xor_b32 v%d, v%d, v%d" % (vU, vU, vU + 1))
    A("v_and_b32 v%d, 1, v%d" % (vU, vU))
    A("v_lshlrev_b32 v%d, 2, v%d" % (vU, vU))
    A("v_bfe_u32 v%d, v%d, 1, 2" % (vU + 1, vLANE))
    A("v_or_b32 v%d, v%d, v%d" % (vU, vU, vU + 1))
    A("v_and_b32 v%d, 1, v%d" % (vU + 1, vLANE))
    A("v_lshlrev_b32 v%d, 4, v%d" % (vU + 1, vU + 1))
    A("v_mov_b32 v%d, 0xffff" % (vU + 2))
    A("v_lshlrev_b32 v%d, v%d, v%d" % (vU + 2, vU + 1, vU + 2))
    for r in range(4):
        A("v_cmp_eq_u32 vcc, %d, v%d" % (r, vU))
        A("v_mov_b32 v%d, 0" % (vO + r))
        A("s_nop 0")
        A("v_cndmask_b32 v%d, 0, v%d, vcc" % (vMK + r, vU + 2))
    A("v_and_b32 v%d, 31, v%d" % (vU + 3, vLANE))
    A("v_lshlrev_b32 v%d, 4, v%d" % (vU + 3, vU + 3))
    A("v_mov_b32 v%d, 0" % vCNT)
    A("s_mov_b32 s%d, 0x%x" % (sMODE, pat(lv0 + (lq + 2) // 4, NF)))
    A("s_lshl_b32 s%d, s3, 8" % sTMP)
    A("v_lshl_add_u32 v%d, v%d, 2, s%d" % (vPA, vLANE, sTMP))
    A("s_lshl_b32 s%d, s3, 2" % sTMP)
    A("v_mov_b32 v%d, s%d" % (vMA, sTMP))
    A("v_mov_b32 v%d, s%d" % (vMODE, sMODE))
    for i in range(D, LZ):
        A("s_waitcnt vmcnt(%d)" % (D - 1))
        if pst and i == D:
            stamp(6, True)
        issue(i, i)
    stamp(1)
    A("s_mov_b32 s%d, %d" % (sSPIN, spin * 16))
    LB("L_qwait")
    A("ds_read_b32 v%d, v%d offset:%d" % (vU + 5, vCNT, L_FLAG))
    A("ds_read_b128 v[%d:%d], v%d offset:%d" % (vQ, vQ + 3, vU + 3, L_Q))
    spin_dec()
    A("s_waitcnt lgkmcnt(0)")
    A("s_cbranch_scc1 L_qok")
    A("v_cmp_eq_u32 vcc, 0, v%d" % (vU + 5))
    A("s_cbranch_vccnz L_qwait")
    LB("L_qok")
    if stamps:
        A("s_getreg_b32 s%d, hwreg(HW_REG_XCC_ID, 0, 4)" % (sST + 4))

    def kdot(sl, n):
        b = slot(sl)
        A("v_dot2_f32_bf16 v%d, v%d, v%d, 0" % (vT + n, b, vQ))
        for r in range(1, 4):
            A("v_dot2_f32_bf16 v%d, v%d, v%d, v%d" % (vT + n, b + r, vQ + r, vT + n))

    def kreduce():
        t = lambda n: vT + n
        for k in range(NB - 1):
            A("v_mov_b32 v%d, v%d" % (vS + k, vS + k + 1))
        for n in range(8):
            A("v_add_f32_dpp v%d, v%d, v%d row_ror:8 row_mask:0xf bank_mask:0x3" % (t(n), t(n), t(n)))
        for n in range(8):
            A("v_add_f32_dpp v%d, v%d, v%d row_ror:8 row_mask:0xf bank_mask:0xc" % (t(n), t(n + 8), t(n + 8)))
        for n in range(4):
            A("v_add_f32_dpp v%d, v%d, v%d row_half_mirror row_mask:0xf bank_mask:0x5" % (t(n), t(n), t(n)))
        for n in range(4):
            A("v_add_f32_dpp v%d, v%d, v%d row_half_mirror row_mask:0xf bank_mask:0xa" % (t(n), t(n + 4), t(n + 4)))
        A("v_cndmask_b32 v%d, v%d, v%d, s[%d:%d]" % (t(9), t(2), t(0), sM2, sM2 + 1))
        A("v_cndmask_b32 v%d, v%d, v%d, s[%d:%d]" % (t(11), t(3), t(1), sM2, sM2 + 1))
        A("v_cndmask_b32 v%d, v%d, v%d, s[%d:%d]" % (t(8), t(0), t(2), sM2, sM2 + 1))
        A("v_cndmask_b32 v%d, v%d, v%d, s[%d:%d]" % (t(10), t(1), t(3), sM2, sM2 + 1))
        A("s_nop 0")
        A("v_add_f32_dpp v%d, v%d, v%d quad_perm:[2,3,0,1] %s" % (t(0), t(9), t(8), DPP))
        A("v_add_f32_dpp v%d, v%d, v%d quad_perm:[2,3,0,1] %s" % (t(1), t(11), t(10), DPP))
        A("v_cndmask_b32 v%d, v%d, v%d, s[%d:%d]" % (t(9), t(1), t(0), sM1, sM1 + 1))
        A("v_cndmask_b32 v%d, v%d, v%d, s[%d:%d]" % (t(8), t(0), t(1), sM1, sM1 + 1))
        A("s_nop 1")
        A("v_add_f32_dpp v%d, v%d, v%d quad_perm:[1,0,3,2] %s" % (t(0), t(9), t(8), DPP))
        swapreduce("v_add_f32", t(0), t(1), "v_permlane16_swap_b32")
        A("v_cvt_pk_bf16_f32 v%d, v%d, v%d" % (t(0), t(0), t(0)))
        A("v_and_b32 v%d, 0xffff0000, v%d" % (vS + NB - 1, t(0)))

    def pace(j):
        lab[0] += 1
        for k in range(NF - 1, -1, -1):
            A("s_bitcmp1_b32 s%d, %d" % (sMODE, 8 * k + j % 8))
            A("s_cbranch_scc1 L_p%d_%d" % (lab[0], k))
        A("s_waitcnt vmcnt(%d)" % (Dl - 1))
        for k in range(NF):
            LB("L_p%d_%d" % (lab[0], k))
            A("s_waitcnt vmcnt(%d)" % (Dl + k))

    def progress(j):
        if j % pper == pper - 1:
            A("v_add_u32 v%d, %d, v%d" % (vCNT, pper, vCNT))
            A("ds_write_b32 v%d, v%d offset:%d" % (vPA, vCNT, L_PROG))
        if fm and j % cper == cper - 1:
            A("ds_read_b32 v%d, v%d offset:%d" % (vMODE, vMA, L_MODE))

    def checkpoint(j):
        if j % cper == 0:
            A("s_waitcnt lgkmcnt(0)")
            A("v_readfirstlane_b32 s%d, v%d" % (sMODE, vMODE))
            if not fm:
                A("ds_read_b32 v%d, v%d offset:%d" % (vMODE, vMA, L_MODE))

    C("catch-up: consume the landing zone while keeping D loads in flight")
    free = LZ - D
    pts = [min(max(e, int(round((e + 0.5) * free / LAG)) - 1), free - 1 + e, LZ - 1) for e in range(LAG)]
    for e in range(LAG):
        assert e <= pts[e] < free + e
    for j in range(LZ):
        kdot(j, j % 16)
        for e in range(LAG):
            if pts[e] == j:
                A("s_waitcnt vmcnt(%d)" % (D - 1))
                issue(LZ + e, e)
        if j % 16 == 15:
            kreduce()

    C("steady K loop; its last pass already requests V")
    A("s_mov_b32 s%d, %d" % (sIT, (N - LZ) // 16))
    LB("L_kloop")
    for j in range(16):
        checkpoint(j)
        pace(j)
        issue(j + LAG, (j + LAG) % 16)
        if (j + LAG) % 16 == 15:
            A("s_cmp_eq_u32 s%d, 1" % sIT)
            A("s_cselect_b32 s%d, s%d, s%d" % (SRD, sV, SRD))
            A("s_cselect_b32 s%d, s%d, s%d" % (SRD + 1, sV + 1, SRD + 1))
        progress(j)
        kdot(j, j)
    kreduce()
    A("s_sub_u32 s%d, s%d, 1" % (sIT, sIT))
    A("s_cmp_lg_u32 s%d, 0" % sIT)
    A("s_cbranch_scc1 L_kloop")

    C("softmax over this wave's 256 keys: true max m, p = exp2(s*c - m*c), l = sum p")
    stamp(3)
    m, l = vU, vU + 6
    A("v_max3_f32 v%d, v%d, v%d, v%d" % (m, vS, vS + 1, vS + 2))
    A("v_max3_f32 v%d, v%d, v%d, v%d" % (m, m, vS + 3, vS + 4))
    A("v_max3_f32 v%d, v%d, v%d, v%d" % (m, m, vS + 5, vS + 6))
    A("v_max_f32 v%d, v%d, v%d" % (m, m, vS + 7))
    rowreduce("v_max_f32", m)
    swapreduce("v_max_f32", m, vU + 1, "v_permlane32_swap_b32")
    A("v_mul_f32 v%d, s%d, v%d" % (vU + 4, sCS, m))
    for k in range(NB):
        A("v_fma_f32 v%d, v%d, s%d, -v%d" % (vS + k, vS + k, sCS, vU + 4))
    for k in range(NB):
        A("v_exp_f32 v%d, v%d" % (vS + k, vS + k))
    A("v_add_f32 v%d, v%d, v%d" % (l, vS, vS + 1))
    for k in range(2, NB):
        A("v_add_f32 v%d, v%d, v%d" % (l, l, vS + k))
    for k in range(NB):
        A("v_cvt_pk_bf16_f32 v%d, v%d, v%d" % (vS + k, vS + k, vS + k))
    rowreduce("v_add_f32", l)
    swapreduce("v_add_f32", l, vU + 1, "v_permlane32_swap_b32")
    A("v_mov_b32 v%d, 1" % (vU + 5))
    A("v_mov_b32 v%d, 1" % (vU + 7))
    A("v_lshlrev_b32 v%d, 2, v%d" % (vU + 1, vMA))
    A("ds_write_b128 v%d, v[%d:%d] offset:%d" % (vU + 1, vU + 4, vU + 7, L_STAT))

    C("V loop: o += p.V, one 16x16x32 MFMA per KiB (A = p on a shifted diagonal)")
    JD = 16 - LAG
    mfma = lambda a, b: A("v_mfma_f32_16x16x32_bf16 v[%d:%d], v[%d:%d], v[%d:%d], v[%d:%d]" %
                          (vO, vO + 3, a, a + 3, b, b + 3, vO, vO + 3))
    def builda(dst, j):
        for r in range(4):
            A("v_and_b32_dpp v%d, v%d, v%d row_newbcast:%d %s" % (dst + r, vS, vMK + r, j, DPP))
    if wpf:
        A("s_lshr_b32 s%d, s%d, 4" % (sBASE, sGRP))
        A("s_lshl_b32 s%d, s%d, 3" % (sBASE, sBASE))
        A("s_add_u32 s%d, s%d, s%d" % (sBASE, sBASE, sC))
        A("s_lshl_b32 s%d, s%d, 2" % (sBASE, sBASE))
        A("s_add_u32 s%d, s%d, s3" % (sBASE, sBASE))
        A("s_and_b32 s%d, s%d, 15" % (sTMP, sGRP))
        A("s_lshl_b32 s%d, s%d, 6" % (sTMP, sTMP))
        A("s_add_u32 s%d, s%d, s%d" % (sBASE, sBASE, sTMP))
        A("s_mul_i32 s%d, s%d, 3584" % (sBASE, sBASE))
    A("s_mov_b32 s%d, %d" % (sIT, NB))
    LB("L_vloop")
    for j in range(16):
        if j == JD:
            A("s_sub_u32 s%d, s%d, 1" % (sIT, sIT))
            A("s_cmp_eq_u32 s%d, 0" % sIT)
            A("s_cbranch_scc1 L_drain")
        builda(vA, j)
        checkpoint(j)
        if eb >= 0 and j % cper == 0 and eb <= j < JD:
            A("s_cmp_eq_u32 s%d, 1" % sIT)
            A("s_cselect_b32 s%d, 0x%x, 0" % (sTMP, pat(ebl, NF)))
            A("s_or_b32 s%d, s%d, s%d" % (sMODE, sMODE, sTMP))
        pace(j)
        issue(j + LAG, (j + LAG) % 16)
        mfma(vA, slot(j))
        progress(j)
    for k in range(NB - 1):
        A("v_mov_b32 v%d, v%d" % (vS + k, vS + k + 1))
    A("s_branch L_vloop")

    AD, PAR, OR = 128, 160, 168
    rV, rO, rT, rCA, rW, vONE, vZ, vRET = 184, 185, 186, 187, 188, 189, 190, 191
    sO1W, sYA, sOO, sU = sTMP + 5, 91, 92, 93
    LB("L_drain")
    C("every load is issued: prepare everything the tail needs while the last ones land")
    def signal():
        A("v_mov_b32 v%d, %d" % (vCNT, TOTAL))
        A("ds_write_b32 v%d, v%d offset:%d" % (vPA, vCNT, L_PROG))
    A("v_mov_b32 v%d, 0" % vZ)
    PF = 4 if wpf else 0
    if wpf:
        C("pull this wave's 1/64 of the head's wo rows into L2 with contiguous reads")
        A("s_mov_b32 s%d, s%d" % (SRD, sWO))
        A("s_mov_b32 s%d, s%d" % (SRD + 1, sWO + 1))
        A("s_mov_b32 s%d, %d" % (SRD + 2, 4096 * 896))
        for i in range(4):
            if wpf > 1:
                A("s_waitcnt vmcnt(%d)" % (wpf - 1))
            if i == 3:
                A("s_mov_b32 exec_hi, 0")
            A("buffer_load_dwordx4 v[%d:%d], v%d, s[%d:%d], s%d offen offset:%d nt" % (slot(i), slot(i) + 3, vOFF, SRD, SRD + 3, sBASE, 1024 * i))
        A("s_mov_b32 exec_hi, -1")
    if wsig:
        A("s_waitcnt vmcnt(%d)" % (LAG - wsig + PF))
    signal()
    A("s_mov_b32 s%d, %d" % (sSPIN, spin * 16))
    LB("L_parw")
    A("ds_read_b128 v[%d:%d], v%d offset:%d" % (PAR + 4, PAR + 7, vZ, L_PAR + 16))
    A("ds_read_b128 v[%d:%d], v%d offset:%d" % (PAR, PAR + 3, vZ, L_PAR))
    spin_dec()
    A("s_waitcnt lgkmcnt(0)")
    A("s_cbranch_scc1 L_parok")
    A("v_cmp_eq_u32 vcc, 0, v%d" % (PAR + 6))
    A("s_cbranch_vccnz L_parw")
    LB("L_parok")
    A("v_readfirstlane_b32 s%d, v%d" % (sTAG, PAR + 4))
    A("v_readfirstlane_b32 s%d, v%d" % (sSAME, PAR + 5))
    for j in range(JD, 16):
        builda(AD + 4 * (j - JD), j)
    selectors()
    tagbytes(sT, sTAG)
    A("s_lshl_b32 s%d, s3, 10" % sTMP)
    A("v_add_u32 v%d, s%d, v%d" % (vU, sTMP, vOFF))
    A("v_lshlrev_b32 v%d, 2, v%d" % (rCA, vLANE))
    A("v_mov_b32 v%d, 1" % vONE)
    A("s_lshl_b32 s%d, s%d, 3" % (sO1W, sGRP))
    A("s_add_u32 s%d, s%d, s%d" % (sO1W, sO1W, sC))
    A("s_lshl_b32 s%d, s%d, 10" % (sO1W, sO1W))
    A("s_add_u32 s%d, s%d, %d" % (sO1W, sO1W, WS_O1))
    C("final reduction set-up (used by class %d only): unit wg>>3 = (b*7+cb, line); wave w sums producers 8w..8w+7" % rcls)
    A("s_lshr_b32 s%d, s2, 4" % sU)
    A("s_lshl_b32 s%d, s%d, %d" % (sYA, sU, 13 + yk))
    A("s_bfe_u32 s%d, s2, 0x10003" % sIT)
    A("s_lshl_b32 s%d, s%d, 7" % (sIT, sIT))
    A("s_add_u32 s%d, s%d, s%d" % (sYA, sYA, sIT))
    A("s_lshl_b32 s%d, s3, 11" % sIT)
    A("s_add_u32 s%d, s%d, s%d" % (sYA, sYA, sIT))
    A("s_add_u32 s%d, s%d, %d" % (sYA, sYA, WS_Y + yc * 8192))
    A("s_and_b32 s%d, s2, 7" % sIT)
    A("s_cmp_eq_u32 s%d, %d" % (sIT, rcls))
    A("s_cselect_b32 s%d, s%d, 99" % (sU, sU))
    A("v_lshrrev_b32 v%d, 3, v%d" % (rV, vLANE))
    A("v_lshlrev_b32 v%d, 8, v%d" % (rV, rV))
    A("v_and_b32 v%d, 7, v%d" % (rT, vLANE))
    A("v_lshl_add_u32 v%d, v%d, 4, v%d" % (rV, rT, rV))
    A("v_add_u32 v%d, v%d, v%d" % (rV, rV, PAR + 7))
    A("s_lshr_b32 s%d, s2, 3" % sOO)
    A("s_lshl_b32 s%d, s%d, 6" % (sOO, sOO))
    A("s_mov_b32 s%d, s%d" % (SR2, sOUT))
    A("s_mov_b32 s%d, s%d" % (SR2 + 1, sOUT + 1))
    A("s_mov_b32 s%d, 1792" % (SR2 + 2))
    A("v_lshrrev_b32 v%d, 5, v%d" % (rO, vLANE))
    A("v_lshl_add_u32 v%d, v%d, 2, v%d" % (rO, rT, rO))
    A("v_bfe_u32 v%d, v%d, 4, 1" % (rT, vLANE))
    A("v_lshl_add_u32 v%d, v%d, 1, v%d" % (rO, rT, rO))
    A("v_lshlrev_b32 v%d, 1, v%d" % (rO, rO))
    A("s_mov_b32 s%d, %d" % (sSPIN, spin))
    A("s_cmp_eq_u32 s%d, 0" % sSAME)
    for j in range(JD, 16):
        A("s_waitcnt vmcnt(%d)" % (15 - j + PF))
        mfma(AD + 4 * (j - JD), slot(j))
    C("the last wave to arrive scales, sums and publishes the workgroup's o (one LDS round trip)")
    A("s_nop 7")
    A("ds_write_b128 v%d, v[%d:%d] offset:%d" % (vU, vO, vO + 3, L_O))
    A("ds_add_rtn_u32 v%d, v%d, v%d offset:%d" % (vRET, rCA, vONE, L_CNT))
    for w in range(NW):
        A("ds_read_b128 v[%d:%d], v%d offset:%d" % (OR + 4 * w, OR + 4 * w + 3, vOFF, L_O + 1024 * w))
    stamp(4)
    A("s_waitcnt lgkmcnt(4)")
    A("v_cmp_eq_u32 vcc, 3, v%d" % vRET)
    A("s_cbranch_vccz L_notlast")
    for w in range(NW):
        A("s_waitcnt lgkmcnt(%d)" % (NW - 1 - w))
        if pk:
            for q in range(2):
                d, o_ = vO + 2 * q, OR + 4 * w + 2 * q
                f = PAR + (w & ~1)
                sel = "op_sel:[0,%d%s] op_sel_hi:[1,%d%s]" % (w & 1, "" if w == 0 else ",0", w & 1, "" if w == 0 else ",1")
                if w == 0:
                    A("v_pk_mul_f32 v[%d:%d], v[%d:%d], v[%d:%d] %s" % (d, d + 1, o_, o_ + 1, f, f + 1, sel))
                else:
                    A("v_pk_fma_f32 v[%d:%d], v[%d:%d], v[%d:%d], v[%d:%d] %s" % (d, d + 1, o_, o_ + 1, f, f + 1, d, d + 1, sel))
        else:
            for r in range(4):
                A("%s v%d, v%d, v%d" % ("v_mul_f32" if w == 0 else "v_fmac_f32", vO + r, PAR + w, OR + 4 * w + r))
    for r in range(4):
        A("v_perm_b32 v%d, v%d, v%d, s%d" % (vO + r, vO + r, PAR + 4, sSEL + r))
    dual_store(vO, vOFF, sO1W)
    stamp(6)
    LB("L_notlast")
    if b2:
        A("s_barrier")
    A("s_cmp_eq_u32 s%d, 99" % sU)
    A("s_cbranch_scc1 L_fin")
    A("s_cmp_ge_u32 s%d, 14" % sU)
    A("s_barrier")
    A("s_cbranch_scc1 L_fin")
    ya, yr = vT, vT + 4
    LB("L_rpoll")
    A("buffer_load_dwordx4 v[%d:%d], v%d, s[%d:%d], s%d offen sc1" % (ya, ya + 3, rV, WSR, WSR + 3, sYA))
    spin_dec()
    A("s_cbranch_scc1 L_fin")
    A("s_waitcnt vmcnt(0)")
    for r in range(4):
        A("v_xor_b32 v%d, s%d, v%d" % (ya + r, sT + r, ya + r))
    A("v_or3_b32 v%d, v%d, v%d, v%d" % (rT, ya, ya + 1, ya + 2))
    A("v_or_b32 v%d, v%d, v%d" % (rT, rT, ya + 3))
    A("v_cmp_ne_u32_sdwa vcc, v%d, 0 src0_sel:BYTE_0 src1_sel:DWORD" % rT)
    A("s_and_b64 exec, exec, vcc")
    A("s_cbranch_scc1 L_rpoll")
    A("s_mov_b64 exec, -1")
    stamp(5)
    A("v_permlane32_swap_b32 v%d, v%d" % (ya, ya + 1))
    A("v_permlane32_swap_b32 v%d, v%d" % (ya + 2, ya + 3))
    A("v_add_f32 v%d, v%d, v%d" % (ya, ya, ya + 1))
    A("v_add_f32 v%d, v%d, v%d" % (ya + 2, ya + 2, ya + 3))
    A("s_nop 1")
    A("v_permlane16_swap_b32 v%d, v%d" % (ya, ya + 2))
    A("v_add_f32 v%d, v%d, v%d" % (ya, ya, ya + 2))
    A("ds_write_b32 v%d, v%d offset:%d" % (vPA, ya, L_R))
    A("ds_add_rtn_u32 v%d, v%d, v%d offset:%d" % (vRET, rCA, vONE, L_CNT + 512))
    for w in range(NW):
        A("ds_read_b32 v%d, v%d offset:%d" % (yr + w, rCA, L_R + 256 * w))
    A("s_waitcnt lgkmcnt(0)")
    A("v_cmp_eq_u32 vcc, 3, v%d" % vRET)
    A("v_add_f32 v%d, v%d, v%d" % (yr, yr, yr + 1))
    A("v_add_f32 v%d, v%d, v%d" % (yr + 2, yr + 2, yr + 3))
    A("v_add_f32 v%d, v%d, v%d" % (yr, yr, yr + 2))
    A("s_cbranch_vccz L_fin")
    A("s_nop 0")
    A("v_add_f32_dpp v%d, v%d, v%d row_ror:8 %s" % (yr, yr, yr, DPP))
    A("s_mov_b32 exec_lo, 0x00ff00ff")
    A("s_mov_b32 exec_hi, 0x00ff00ff")
    A("v_cvt_pk_bf16_f32 v%d, v%d, v%d" % (yr, yr, yr))
    A("buffer_store_short v%d, v%d, s[%d:%d], s%d offen" % (yr, rO, SR2, SR2 + 3, sOO))
    stamp(7)
    A("s_branch L_fin")

    LB("L_helper")
    C("==== helper waves")
    hL, hG, hJ = 0, 1, 2
    hU = 4
    hZ, hTAG = hU + 10, hU + 9
    hX = 16
    hSEL, hA, hD, hMK, hP, hW = 32, 36, 40, 44, 48, 64
    sHW = 39
    A("s_sub_u32 s%d, s3, %d" % (sHW, NW))
    A("v_lshrrev_b32 v%d, 4, v%d" % (hG, hL))
    A("v_and_b32 v%d, 15, v%d" % (hJ, hL))
    A("v_mov_b32 v%d, 0" % hZ)
    A("s_lshr_b32 s%d, s%d, 4" % (sB, sGRP))
    A("s_and_b32 s%d, s%d, 15" % (sH, sGRP))
    A("s_mov_b32 s%d, %d" % (SRD + 2, 448 * 8192))
    selectors()
    A("s_cmp_lg_u32 s%d, 0" % sHW)
    A("s_cbranch_scc1 L_h_other")

    C("helper 0: one 112-row x 64-column tile of q = x @ wq for this head, both batches")
    sTILE, sRQ, sCSL, sQW, sQR, sQT = 87, sTMP + 1, sTMP + 2, 94, 95, sF
    for r in range(4):
        A("v_mov_b32 v%d, 0" % (hD + r))
    A("v_lshlrev_b32 v%d, 4, v%d" % (hU + 8, hL))
    A("ds_write_b128 v%d, v[%d:%d] offset:%d" % (hU + 8, hD, hD + 3, L_CLR))
    A("ds_write_b128 v%d, v[%d:%d] offset:%d" % (hU + 8, hD, hD + 3, L_PROG))
    A("v_mul_u32_u24 v%d, %d, v%d" % (hU, 28 * 8192, hG))
    A("v_lshl_add_u32 v%d, v%d, 3, v%d" % (hU, hJ, hU))
    A("v_bfe_u32 v%d, v%d, 2, 1" % (hU + 1, hL))
    A("v_mul_u32_u24 v%d, 896, v%d" % (hU + 1, hU + 1))
    A("v_mul_u32_u24 v%d, 56, v%d" % (hU + 2, hG))
    A("v_add_u32 v%d, v%d, v%d" % (hU + 1, hU + 1, hU + 2))
    A("s_lshl_b32 s%d, s%d, 3" % (sTILE, sB))
    A("s_add_u32 s%d, s%d, s%d" % (sTILE, sTILE, sC))
    A("s_lshl_b32 s%d, s%d, 13" % (sQW, sH))
    A("s_add_u32 s%d, s%d, %d" % (sQW, sQW, WS_Q))
    A("s_mov_b32 s%d, 1" % sSAME)
    A("s_mov_b32 s%d, 1792" % (SR2 + 2))
    A("s_getreg_b32 s%d, hwreg(HW_REG_XCC_ID, 0, 4)" % (sTMP + 3))
    A("s_waitcnt lgkmcnt(0)")
    A("s_load_dword s%d, s[%d:%d], %d" % (sTAG, sWS, sWS + 1, WS_EPOCH))
    A("s_mov_b32 s%d, s%d" % (SR2, sX))
    A("s_mov_b32 s%d, s%d" % (SR2 + 1, sX + 1))
    if now & 1:
        A("s_mov_b32 s%d, 0" % (SRD + 2))
    A("s_mov_b32 s%d, s%d" % (SRD, sWQ))
    A("s_mov_b32 s%d, s%d" % (SRD + 1, sWQ + 1))
    A("s_mov_b32 s%d, s%d" % (WSR, sWS))
    A("s_mov_b32 s%d, s%d" % (WSR + 1, sWS + 1))
    A("s_barrier")
    LB("L_tile")
    A("s_lshr_b32 s%d, s%d, 2" % (sRQ, sTILE))
    A("s_and_b32 s%d, s%d, 3" % (sCSL, sTILE))
    A("s_mul_i32 s%d, s%d, %d" % (sOFF, sRQ, 112 * 8192))
    A("s_lshl_b32 s%d, s%d, 9" % (sIT, sH))
    A("s_add_u32 s%d, s%d, s%d" % (sOFF, sOFF, sIT))
    A("s_lshl_b32 s%d, s%d, 7" % (sIT, sCSL))
    A("s_add_u32 s%d, s%d, s%d" % (sOFF, sOFF, sIT))
    A("s_mul_i32 s%d, s%d, 224" % (sBASE, sRQ))
    for q in range(3):
        A("buffer_load_dwordx4 v[%d:%d], v%d, s[%d:%d], s%d offen offset:%d" % (hX + 4 * q, hX + 4 * q + 3, hU + 1, SR2, SR2 + 3, sBASE, 16 * q))
    A("buffer_load_dwordx2 v[%d:%d], v%d, s[%d:%d], s%d offen offset:48" % (hX + 12, hX + 13, hU + 1, SR2, SR2 + 3, sBASE))
    for n in range(28):
        A("buffer_load_dwordx2 v[%d:%d], v%d, s[%d:%d], s%d offen nt" % (hW + 2 * n, hW + 2 * n + 1, hU, SRD, SRD + 3, sOFF))
        if n < 27:
            A("s_add_u32 s%d, s%d, 8192" % (sOFF, sOFF))
    A("s_cmp_eq_u32 s%d, 0" % sSAME)
    A("s_cbranch_scc1 L_tile_go")
    C("first pass only: byte selectors (row i<8, element i&3), launch tag")
    A("v_and_b32 v%d, 1, v%d" % (hU + 2, hL))
    A("v_lshlrev_b32 v%d, 4, v%d" % (hU + 2, hU + 2))
    A("v_and_b32 v%d, 10, v%d" % (hU + 3, hL))
    A("v_mov_b32 v%d, 0x0c0c0c0c" % (hU + 6))
    for par, src in ((0, 0x0100), (1, 0x0302)):
        A("v_mov_b32 v%d, 0x%x" % (hU + 4, src ^ 0x0c0c))
        A("v_lshlrev_b32 v%d, v%d, v%d" % (hU + 4, hU + 2, hU + 4))
        A("v_xor_b32 v%d, v%d, v%d" % (hU + 4, hU + 6, hU + 4))
        for r in range(2):
            A("v_cmp_eq_u32 vcc, %d, v%d" % (2 * r, hU + 3))
            A("s_nop 1")
            A("v_cndmask_b32 v%d, v%d, v%d, vcc" % (hSEL + 2 * par + r, hU + 6, hU + 4))
    A("v_mov_b32 v%d, 0x%x" % (hU + 4, pat(lv0 + (lq + 2) // 4, NF)))
    A("v_and_b32 v%d, 12, v%d" % (hU + 2, hL))
    A("ds_write_b32 v%d, v%d offset:%d" % (hU + 2, hU + 4, L_MODE))
    A("s_waitcnt lgkmcnt(0)")
    A("s_add_u32 s%d, s%d, 0x01011001" % (sTAG, sTAG))
    A("v_mov_b32 v%d, s%d" % (hTAG, sTAG))
    A("ds_write_b32 v%d, v%d offset:%d" % (hZ, hTAG, L_TAG))
    tagbytes(sT, sTAG)
    A("s_lshl_b32 s%d, s%d, 8" % (sIT, sTMP + 3))
    A("s_xor_b32 s%d, s%d, s%d" % (sIT, sIT, sTAG))
    A("v_mov_b32 v%d, s%d" % (hU + 6, sIT))
    tagbytes(sQT, sIT)
    LB("L_tile_go")
    for r in range(4):
        A("v_mov_b32 v%d, 0" % (hD + r))
    A("s_lshl_b32 s%d, s%d, 8" % (sOFF, sTILE))
    A("s_add_u32 s%d, s%d, s%d" % (sOFF, sOFF, sQW))
    A("v_lshlrev_b32 v%d, 12, v%d" % (hU + 7, hG))
    A("v_lshl_add_u32 v%d, v%d, 4, v%d" % (hU + 7, hJ, hU + 7))
    A("s_lshl_b32 s%d, s%d, 12" % (sQR, sB))
    A("s_add_u32 s%d, s%d, s%d" % (sQR, sQR, sQW))
    A("s_waitcnt vmcnt(28)")
    for n in range(0, 28, 2):
        a = hA if n & 2 else hMK
        for e in range(2):
            for r in range(2):
                A("v_perm_b32 v%d, v%d, v%d, v%d" % (a + 2 * e + r, hX + (n >> 1), hX + (n >> 1), hSEL + 2 * e + r))
        A("s_waitcnt vmcnt(%d)" % (26 - n))
        A("s_nop 0")
        A("v_mfma_f32_16x16x32_bf16 v[%d:%d], v[%d:%d], v[%d:%d], v[%d:%d]" %
          (hD, hD + 3, a, a + 3, hW + 2 * n, hW + 2 * n + 3, hD, hD + 3))
    A("s_nop 7")
    for r in range(4):
        A("v_perm_b32 v%d, v%d, v%d, s%d" % (hMK + r, hD + r, hU + 6, sSEL + r))
    A("s_mov_b32 exec_hi, 0")
    A("buffer_store_dwordx4 v[%d:%d], v%d, s[%d:%d], s%d offen" % (hMK, hMK + 3, hU + 7, WSR, WSR + 3, sOFF))
    A("s_mov_b32 exec_hi, -1")
    stamp(1)
    A("s_mov_b32 s%d, %d" % (sSPIN, qtry))
    A("s_cmp_lg_u32 s%d, 0" % sSAME)
    A("s_cbranch_scc1 %s" % ("L_qfail" if force_slow else "L_qpoll"))
    A("s_waitcnt vmcnt(0)")
    A("s_add_u32 s%d, s%d, 1" % (sTILE, sTILE))
    A("s_cmp_lt_u32 s%d, 16" % sTILE)
    A("s_cbranch_scc1 L_tile")
    A("s_mov_b32 s%d, %d" % (sSPIN, spin))
    LB("L_qpoll")
    for q in range(4):
        A("buffer_load_dwordx4 v[%d:%d], v%d, s[%d:%d], s%d offen offset:%d sc1" % (hP + 4 * q, hP + 4 * q + 3, hU + 8, WSR, WSR + 3, sQR, 1024 * q))
    A("s_waitcnt vmcnt(0)")
    for q in range(4):
        for r in range(4):
            A("v_xor_b32 v%d, s%d, v%d" % (hP + 4 * q + r, sQT + r, hP + 4 * q + r))
    A("v_or3_b32 v%d, v%d, v%d, v%d" % (hU + 11, hP, hP + 1, hP + 2))
    for k in range(3, 15, 2):
        A("v_or3_b32 v%d, v%d, v%d, v%d" % (hU + 11, hU + 11, hP + k, hP + k + 1))
    A("v_or_b32 v%d, v%d, v%d" % (hU + 11, hU + 11, hP + 15))
    A("v_cmp_ne_u32_sdwa vcc, v%d, 0 src0_sel:BYTE_0 src1_sel:DWORD" % (hU + 11))
    A("s_cbranch_vccz L_qgo")
    spin_dec()
    A("s_cbranch_scc0 L_qpoll")
    A("s_cmp_eq_u32 s%d, 0" % sSAME)
    A("s_cbranch_scc1 L_qgo")
    LB("L_qfail")
    C("some producer of this head is not behind our L2 (or is very late): compute all 16 tiles here")
    A("s_waitcnt vmcnt(0)")
    A("s_mov_b32 s%d, 0" % sSAME)
    A("s_mov_b32 s%d, 0" % sTILE)
    A("s_lshl_b32 s%d, s2, 13" % sQW)
    A("s_add_u32 s%d, s%d, %d" % (sQW, sQW, WS_QP))
    A("s_branch L_tile")
    LB("L_qgo")
    for r in range(4):
        A("v_add_f32 v%d, v%d, v%d" % (hP + r, hP + r, hP + 4 + r))
        A("v_add_f32 v%d, v%d, v%d" % (hP + 8 + r, hP + 8 + r, hP + 12 + r))
    for r in range(4):
        A("v_add_f32 v%d, v%d, v%d" % (hP + r, hP + r, hP + 8 + r))
    A("v_cvt_pk_bf16_f32 v%d, v%d, v%d" % (hP, hP, hP + 1))
    A("v_cvt_pk_bf16_f32 v%d, v%d, v%d" % (hP + 1, hP + 2, hP + 3))
    A("v_lshlrev_b32 v%d, 3, v%d" % (hU + 11, hL))
    A("v_mov_b32 v%d, 1" % (hP + 2))
    A("ds_write_b64 v%d, v[%d:%d] offset:%d" % (hU + 11, hP, hP + 1, L_Q))
    A("s_waitcnt lgkmcnt(0)")
    A("ds_write_b32 v%d, v%d offset:%d" % (hZ, hP + 2, L_FLAG))
    stamp(2)

    C("helper 0: softmax statistics of the (b,h) group -> per-wave factor exp2(m_w - M) / L")
    sSR, sSW = sTMP, sTMP + 1
    A("v_and_b32 v%d, 3, v%d" % (hU + 3, hL))
    A("v_lshlrev_b32 v%d, 4, v%d" % (hU + 3, hU + 3))
    A("s_lshl_b32 s%d, s%d, 10" % (sSR, sGRP))
    A("s_add_u32 s%d, s%d, %d" % (sSR, sSR, WS_STAT))
    A("s_lshl_b32 s%d, s%d, 7" % (sSW, sC))
    A("s_add_u32 s%d, s%d, s%d" % (sSW, sSW, sSR))
    A("s_mov_b32 s%d, %d" % (sSPIN, spin * 4))
    LB("L_lpoll")
    A("s_sleep 4")
    A("ds_read_b128 v[%d:%d], v%d offset:%d" % (hP, hP + 3, hU + 3, L_STAT))
    spin_dec()
    A("s_waitcnt lgkmcnt(0)")
    A("s_cbranch_scc1 L_lgo")
    A("v_cmp_eq_u32 vcc, 0, v%d" % (hP + 3))
    A("s_cbranch_vccnz L_lpoll")
    LB("L_lgo")
    A("v_mov_b32 v%d, v%d" % (hP + 1, hTAG))
    A("v_mov_b32 v%d, v%d" % (hP + 3, hTAG))
    A("s_mov_b64 exec, 15")
    A("s_cmp_eq_u32 s%d, 0" % sSAME)
    dual_store(hP, hU + 3, sSW)
    A("s_mov_b64 exec, -1")
    A("v_bfe_u32 v%d, v%d, 2, 3" % (hU + 4, hL))
    A("v_lshl_add_u32 v%d, v%d, 7, v%d" % (hU + 4, hU + 4, hU + 3))
    A("s_mov_b32 s%d, %d" % (sSPIN, spin))
    LB("L_spoll")
    A("s_sleep 8")
    A("buffer_load_dwordx4 v[%d:%d], v%d, s[%d:%d], s%d offen sc1" % (hP + 4, hP + 7, hU + 4, WSR, WSR + 3, sSR))
    spin_dec()
    A("s_waitcnt vmcnt(0)")
    A("s_cbranch_scc1 L_sgo")
    A("v_xor_b32 v%d, v%d, v%d" % (hP + 8, hP + 5, hTAG))
    A("v_xor_b32 v%d, v%d, v%d" % (hP + 9, hP + 7, hTAG))
    A("v_or_b32 v%d, v%d, v%d" % (hP + 8, hP + 8, hP + 9))
    A("v_cmp_ne_u32 vcc, 0, v%d" % (hP + 8))
    A("s_cbranch_vccnz L_spoll")
    C("all 8 members of this group have read the epoch; the last of the 32 groups to get here advances it")
    A("s_cmp_lg_u32 s%d, %d" % (sC, 99 if noep else 0))
    A("s_cbranch_scc1 L_sgo")
    A("s_mov_b32 s%d, 1" % sIT)
    A("s_atomic_add s%d, s[%d:%d], 0 glc" % (sIT, sDBG, sDBG + 1))
    A("s_waitcnt lgkmcnt(0)")
    A("s_cmp_lg_u32 s%d, 31" % sIT)
    A("s_cbranch_scc1 L_sgo")
    A("s_mov_b64 exec, 1")
    A("buffer_store_dword v%d, v%d, s[%d:%d], 0 offen" % (hTAG, hZ, WSR, WSR + 3))
    A("s_mov_b64 exec, -1")
    LB("L_sgo")
    stamp(3)
    A("v_mov_b32 v%d, v%d" % (hP + 8, hP + 4))
    rowreduce("v_max_f32", hP + 8)
    swapreduce("v_max_f32", hP + 8, hP + 9, "v_permlane16_swap_b32")
    A("v_sub_f32 v%d, v%d, v%d" % (hP + 8, hP + 4, hP + 8))
    A("v_exp_f32 v%d, v%d" % (hP + 8, hP + 8))
    A("s_nop 0")
    A("v_mul_f32 v%d, v%d, v%d" % (hP + 10, hP + 8, hP + 6))
    rowreduce("v_add_f32", hP + 10)
    swapreduce("v_add_f32", hP + 10, hP + 9, "v_permlane16_swap_b32")
    A("v_rcp_f32 v%d, v%d" % (hP + 10, hP + 10))
    A("v_lshrrev_b32 v%d, 2, v%d" % (hU + 3, hU + 3))
    A("v_mul_f32 v%d, v%d, v%d" % (hP + 8, hP + 8, hP + 10))
    A("s_lshl_b32 s%d, s%d, 2" % (sIT, sC))
    A("s_lshl_b64 exec, 15, s%d" % sIT)
    A("ds_write_b32 v%d, v%d offset:%d" % (hU + 3, hP + 8, L_PAR))
    A("s_mov_b64 exec, -1")
    A("v_mov_b32 v%d, v%d" % (hP + 12, hTAG))
    A("v_mov_b32 v%d, s%d" % (hP + 13, sSAME))
    A("v_mov_b32 v%d, 1" % (hP + 14))
    if yp:
        A("s_load_dword s%d, s[%d:%d], %d" % (sIT, sWS, sWS + 1, WS_YP))
        A("s_mov_b32 s%d, %d" % (sSPIN, spin))
        LB("L_ypw")
        A("s_waitcnt lgkmcnt(0)")
        A("s_xor_b32 s%d, s%d, s%d" % (sTMP, sIT, sTAG))
        A("s_andn2_b32 s%d, s%d, 0x100" % (sTMP + 1, sTMP))
        A("s_cbranch_scc0 L_ypok")
        spin_dec()
        A("s_cbranch_scc1 L_ypok")
        A("s_sleep 32")
        A("s_mov_b32 s%d, %d" % (sTMP, WS_YP))
        A("buffer_load_dword v%d, v%d, s[%d:%d], s%d offen sc1" % (hP + 15, hZ, WSR, WSR + 3, sTMP))
        A("s_waitcnt vmcnt(0)")
        A("v_readfirstlane_b32 s%d, v%d" % (sIT, hP + 15))
        A("s_branch L_ypw")
        LB("L_ypok")
        A("s_and_b32 s%d, s%d, 0x100" % (sTMP, sTMP))
        A("s_lshl_b32 s%d, s%d, 5" % (sTMP, sTMP))
        A("v_mov_b32 v%d, s%d" % (hP + 15, sTMP))
    else:
        A("v_mov_b32 v%d, 0" % (hP + 15))
    A("s_waitcnt lgkmcnt(0)")
    A("ds_write_b128 v%d, v[%d:%d] offset:%d" % (hZ, hP + 12, hP + 15, L_PAR + 16))
    A("s_branch L_h_common")

    LB("L_h_other")
    A("s_waitcnt lgkmcnt(0)")
    A("s_mov_b32 s%d, s%d" % (WSR, sWS))
    A("s_mov_b32 s%d, s%d" % (WSR + 1, sWS + 1))
    A("s_barrier")
    if yp:
        C("workgroup %d: which half of the y blocks answers this die first? (race of two uncached loads, majority vote)" % rcls)
        A("s_lshl_b32 s%d, s2, 2" % sIT)
        A("s_add_u32 s%d, s%d, s%d" % (sIT, sIT, sHW))
        A("s_cmp_lg_u32 s%d, %d" % (sIT, 4 * rcls + 3))
        A("s_cbranch_scc1 L_norace")
        sA0, sA1, sV0, sV1, sN0, sN1, sVT = sTMP, sTMP + 1, sF, sF + 1, sF + 2, sF + 3, sF + 4
        A("s_mov_b32 s%d, %d" % (sA0, WS_Y + 14 * 16384))
        A("s_mov_b32 s%d, 0" % sVT)
        A("s_mov_b32 s%d, %d" % (sIT, ypn // 2))
        LB("L_race")
        A("s_xor_b32 s%d, s%d, 8192" % (sA1, sA0))
        A("s_load_dword s%d, s[%d:%d], s%d glc" % (sN0, sWS, sWS + 1, sA0))
        A("s_load_dword s%d, s[%d:%d], s%d glc" % (sN1, sWS, sWS + 1, sA1))
        A("s_waitcnt lgkmcnt(0)")
        for first in (0, 1):
            A("s_not_b32 s%d, s%d" % (sV0, sN0))
            A("s_not_b32 s%d, s%d" % (sV1, sN1))
            for e in (first, 1 - first):
                A("s_load_dword s%d, s[%d:%d], s%d glc" % ((sV0, sV1)[e], sWS, sWS + 1, (sA0, sA1)[e]))
            A("s_waitcnt lgkmcnt(1)")
            A("s_cmp_lg_u32 s%d, s%d" % (sV0, sN0))
            A("s_addc_u32 s%d, s%d, 0" % (sVT, sVT))
            A("s_cmp_lg_u32 s%d, s%d" % (sV1, sN1))
            A("s_subb_u32 s%d, s%d, 0" % (sVT, sVT))
            A("s_waitcnt lgkmcnt(0)")
        A("s_add_u32 s%d, s%d, %d" % (sA0, sA0, 4096 + 256))
        A("s_and_b32 s%d, s%d, %d" % (sA0, sA0, ~8192 & 0xffffffff))
        A("s_sub_u32 s%d, s%d, 1" % (sIT, sIT))
        A("s_cmp_lg_u32 s%d, 0" % sIT)
        A("s_cbranch_scc1 L_race")
        LB("L_norace")
    A("s_mov_b32 s%d, %d" % (sSPIN, spin * 4))
    LB("L_hwait")
    A("s_sleep 8")
    A("ds_read_b64 v[%d:%d], v%d offset:%d" % (hP, hP + 1, hZ, L_TAG))
    spin_dec()
    A("s_waitcnt lgkmcnt(0)")
    A("s_cbranch_scc1 L_hok")
    A("v_cmp_eq_u32 vcc, 0, v%d" % (hP + 1))
    A("s_cbranch_vccnz L_hwait")
    LB("L_hok")
    A("v_readfirstlane_b32 s%d, v%d" % (sTAG, hP))
    A("v_mov_b32 v%d, v%d" % (hTAG, hP))
    tagbytes(sT, sTAG)
    A("s_cmp_eq_u32 s%d, 1" % sHW)
    A("s_cbranch_scc1 L_ctl0")
    C("helpers 2,3 read the hand-off lines once over the scalar path so the final polls find them in L2")
    A("s_cmp_eq_u32 s%d, 2" % sHW)
    A("s_cbranch_scc1 L_spt2")
    A("s_and_b32 s%d, s2, 7" % sIT)
    A("s_cmp_lg_u32 s%d, %d" % (sIT, rcls))
    A("s_cbranch_scc1 L_h_common")
    if yp:
        A("s_cmp_lg_u32 s2, %d" % rcls)
        A("s_cbranch_scc1 L_nopub")
        A("s_cmp_gt_i32 s%d, 0" % sVT)
        A("s_cselect_b32 s%d, 0x100, 0" % sIT)
        A("s_xor_b32 s%d, s%d, s%d" % (sIT, sIT, sTAG))
        A("v_mov_b32 v%d, s%d" % (hP, sIT))
        A("s_mov_b32 s%d, %d" % (sIT, WS_YP))
        A("s_mov_b64 exec, 1")
        A("buffer_store_dword v%d, v%d, s[%d:%d], s%d offen sc1" % (hP, hZ, WSR, WSR + 3, sIT))
        if ydbg:
            A("v_mov_b32 v%d, s%d" % (hP + 1, sVT))
            A("global_store_dword v%d, v%d, s[%d:%d] offset:8" % (hZ, hP + 1, sDBG, sDBG + 1))
        A("s_mov_b64 exec, -1")
        LB("L_nopub")
    A("s_lshr_b32 s%d, s2, 4" % sIT)
    A("s_lshl_b32 s%d, s%d, %d" % (sTMP, sIT, 13 + yk))
    A("s_bfe_u32 s%d, s2, 0x10003" % sIT)
    A("s_lshl_b32 s%d, s%d, 7" % (sIT, sIT))
    A("s_add_u32 s%d, s%d, s%d" % (sTMP, sTMP, sIT))
    A("s_add_u32 s%d, s%d, %d" % (sTMP, sTMP, WS_Y + yc * 8192))
    A("s_mov_b32 s%d, %d" % (sIT, 16 if yp else 8))
    LB("L_spt1")
    for k in range(8):
        A("s_add_u32 s%d, s%d, %d" % (sTMP + 1, sTMP, (k >> 1) * 256 + (k & 1) * 64))
        A("s_load_dword s%d, s[%d:%d], s%d" % (sF + k, sWS, sWS + 1, sTMP + 1))
    A("s_add_u32 s%d, s%d, 1024" % (sTMP, sTMP))
    A("s_sub_u32 s%d, s%d, 1" % (sIT, sIT))
    A("s_cmp_lg_u32 s%d, 0" % sIT)
    A("s_waitcnt lgkmcnt(0)")
    A("s_cbranch_scc1 L_spt1")
    A("s_branch L_h_common")
    LB("L_spt2")
    if tp:
        C("first touch of the V / wo / out pages over the scalar path, long before the vector path needs them")
        A("s_lshl_b32 s%d, s%d, 1" % (sTMP, sGRP))
        A("s_lshr_b32 s%d, s%d, 2" % (sIT, sC))
        A("s_add_u32 s%d, s%d, s%d" % (sTMP, sTMP, sIT))
        A("s_lshl_b32 s%d, s%d, 21" % (sTMP, sTMP))
        A("s_load_dword s%d, s[%d:%d], s%d" % (sF, sV, sV + 1, sTMP))
        A("s_mul_i32 s%d, s%d, %d" % (sTMP + 1, sH, 256 * 896))
        A("s_load_dword s%d, s[%d:%d], s%d" % (sF + 1, sWO, sWO + 1, sTMP + 1))
        A("s_add_u32 s%d, s%d, %d" % (sTMP + 2, sTMP + 1, 256 * 896 - 4))
        A("s_load_dword s%d, s[%d:%d], s%d" % (sF + 2, sWO, sWO + 1, sTMP + 2))
        A("s_load_dword s%d, s[%d:%d], 0" % (sF + 3, sOUT, sOUT + 1))
        A("s_waitcnt lgkmcnt(0)")
    A("s_lshl_b32 s%d, s%d, 3" % (sTMP, sGRP))
    A("s_add_u32 s%d, s%d, s%d" % (sTMP, sTMP, sC))
    A("s_lshl_b32 s%d, s%d, 10" % (sTMP, sTMP))
    A("s_add_u32 s%d, s%d, %d" % (sTMP, sTMP, WS_O1))
    A("s_mov_b32 s%d, 2" % sIT)
    LB("L_spt3")
    for k in range(8):
        A("s_load_dword s%d, s[%d:%d], s%d" % (sF + k, sWS, sWS + 1, sTMP))
        A("s_add_u32 s%d, s%d, 64" % (sTMP, sTMP))
    A("s_sub_u32 s%d, s%d, 1" % (sIT, sIT))
    A("s_cmp_lg_u32 s%d, 0" % sIT)
    A("s_waitcnt lgkmcnt(0)")
    A("s_cbranch_scc1 L_spt3")
    if rk:
        C("four workgroups per class take a ticket at their own progress marks; a ticket is the arrival rank among the")
        C("8 classes (counted from the value found before the round, every round on a line of its own) and trims the set point")
        RST = 4096 + 256
        sBD, sTG2, sMK, sCA, sBS = sTMP, sTMP + 1, sTMP + 2, sTMP + 3, sTMP + 4
        A("s_cmp_lg_u32 s%d, 0" % sC)
        A("s_cbranch_scc1 L_h_common")
        A("v_and_b32 v%d, 3, v%d" % (hP + 1, hL))
        A("v_mul_u32_u24 v%d, 260, v%d" % (hP + 1, hP + 1))
        A("s_lshr_b32 s%d, s2, 6" % sIT)
        A("s_mul_i32 s%d, s%d, %d" % (sMK, sIT, rm1 if rs else 0))
        A("s_add_u32 s%d, s%d, %d" % (sMK, sMK, 4 * rm0))
        A("s_mul_i32 s%d, s%d, %d" % (sCA, sIT, RST if rs else 0))
        A("s_add_u32 s%d, s%d, %d" % (sCA, sCA, WS_RK))
        A("s_and_b32 s%d, s2, 7" % sBD)
        A("s_lshl_b32 s%d, s%d, 6" % (sBD, sBD))
        A("s_add_u32 s%d, s%d, s%d" % (sBD, sBD, sIT))
        A("s_lshl_b32 s%d, s%d, 2" % (sBD, sBD))
        A("s_add_u32 s%d, s%d, %d" % (sBD, sBD, WS_PROG + 128))
        A("s_lshl_b32 s%d, s%d, 16" % (sTG2, sTAG))
        A("s_mov_b32 s%d, %d" % (sSPIN, spin * 16))
        LB("L_rk")
        A("s_load_dword s%d, s[%d:%d], s%d" % (sBS, sWS, sWS + 1, sCA))
        LB("L_rkw")
        A("s_sleep 1")
        A("ds_read_b32 v%d, v%d offset:%d" % (hP, hP + 1, L_PROG))
        spin_dec()
        A("s_waitcnt lgkmcnt(0)")
        A("s_cbranch_scc1 L_h_common")
        A("v_add_u32_dpp v%d, v%d, v%d quad_perm:[1,0,3,2] %s" % (hP, hP, hP, DPP))
        A("s_nop 1")
        A("v_add_u32_dpp v%d, v%d, v%d quad_perm:[2,3,0,1] %s" % (hP, hP, hP, DPP))
        A("v_cmp_gt_u32 vcc, s%d, v%d" % (sMK, hP))
        A("s_cbranch_vccnz L_rkw")
        A("s_mov_b32 s%d, 1" % sIT)
        A("s_atomic_add s%d, s[%d:%d], s%d glc" % (sIT, sWS, sWS + 1, sCA))
        A("s_waitcnt lgkmcnt(0)")
        A("s_sub_u32 s%d, s%d, s%d" % (sIT, sIT, sBS))
        A("s_and_b32 s%d, s%d, %d" % (sIT, sIT, 7 if rs else 31))
        if rs:
            A("s_lshl_b32 s%d, s%d, 2" % (sIT, sIT))
        A("s_or_b32 s%d, s%d, s%d" % (sIT, sIT, sTG2))
        A("v_mov_b32 v%d, s%d" % (hP + 2, sIT))
        A("s_mov_b64 exec, 1")
        A("buffer_store_dword v%d, v%d, s[%d:%d], s%d offen" % (hP + 2, hZ, WSR, WSR + 3, sBD))
        A("s_mov_b64 exec, -1")
        A("s_add_u32 s%d, s%d, %d" % (sCA, sCA, 4 * RST))
        A("s_add_u32 s%d, s%d, %d" % (sMK, sMK, 4 * rm1))
        A("s_cmp_lt_u32 s%d, %d" % (sMK, 4 * (TOTAL - rend)))
        A("s_cbranch_scc1 L_rk")
    A("s_branch L_h_common")

    LB("L_ctl0")
    C("helper 1: bandwidth-share feedback. Waves that trail their wg&7 class keep more loads in flight, leaders fewer,")
    C("so all workgroups finish together. It changes nothing but how many loads are outstanding.")
    cV = 96
    sPW, sPR, sTG, sPREV, sREF, sE = sF, sF + 1, sF + 2, sF + 3, sF + 4, sF + 5
    A("s_mov_b32 s%d, 0" % sPREV)
    sSET = sF + 6
    if xb:
        C("dies sit at different distances from the memory stacks: small fixed per-die trim of the set point")
        A("s_getreg_b32 s%d, hwreg(HW_REG_XCC_ID, 0, 3)" % sSET)
        A("s_lshl_b32 s%d, s%d, 2" % (sSET, sSET))
        A("s_lshr_b32 s%d, 0x%x, s%d" % (sSET, xb, sSET))
        A("s_and_b32 s%d, s%d, 15" % (sSET, sSET))
        A("s_lshl_b32 s%d, s%d, 6" % (sSET, sSET))
        A("s_add_u32 s%d, s%d, %d" % (sSET, sSET, lv0 * 512 + 256 + lq * 128 - 8 * 64))
    else:
        A("s_mov_b32 s%d, %d" % (sSET, lv0 * 512 + 256 + lq * 128))
    A("s_and_b32 s%d, s2, 7" % sPR)
    A("s_lshl_b32 s%d, s%d, 8" % (sPR, sPR))
    A("s_add_u32 s%d, s%d, %d" % (sPR, sPR, WS_PROG))
    A("s_lshr_b32 s%d, s2, 3" % sPW)
    A("s_lshl_b32 s%d, s%d, 2" % (sPW, sPW))
    A("s_add_u32 s%d, s%d, s%d" % (sPW, sPW, sPR))
    A("s_lshl_b32 s%d, s%d, 16" % (sTG, sTAG))
    if rk:
        A("v_and_b32 v%d, 35, v%d" % (cV + 1, hL))
        A("v_cmp_gt_u32 vcc, 32, v%d" % hL)
        A("s_nop 1")
        A("v_cndmask_b32 v%d, v%d, v%d, vcc" % (cV, cV + 1, hL))
    else:
        A("v_and_b32 v%d, 31, v%d" % (cV, hL))
    A("v_lshlrev_b32 v%d, 2, v%d" % (cV, cV))
    A("v_and_b32 v%d, 3, v%d" % (cV + 7, hL))
    A("v_lshlrev_b32 v%d, 2, v%d" % (cV + 8, cV + 7))
    A("v_mul_u32_u24 v%d, 260, v%d" % (cV + 7, cV + 7))
    A("v_mov_b32 v%d, 0" % (cV + 2))
    for l_ in range(1, 8 * NF + 1):
        A("s_mov_b32 s%d, 0x%x" % (sIT, pat(l_, NF)))
        A("v_writelane_b32 v%d, s%d, %d" % (cV + 2, sIT, l_))
    A("s_mov_b32 s%d, %d" % (sSPIN, spin))
    LB("L_ctl")
    A("ds_read_b32 v%d, v%d offset:%d" % (cV + 9, cV + 7, L_PROG))
    spin_dec()
    A("s_waitcnt lgkmcnt(0)")
    A("s_cbranch_scc1 L_h_common")
    A("v_add_u32_dpp v%d, v%d, v%d quad_perm:[1,0,3,2] %s" % (cV + 4, cV + 9, cV + 9, DPP))
    A("s_nop 1")
    A("v_add_u32_dpp v%d, v%d, v%d quad_perm:[2,3,0,1] %s" % (cV + 4, cV + 4, cV + 4, DPP))
    A("s_nop 0")
    A("v_readfirstlane_b32 s%d, v%d" % (sIT, cV + 4))
    A("v_or_b32 v%d, s%d, v%d" % (cV + 4, sTG, cV + 4))
    A("s_add_u32 s%d, s%d, s%d" % (sREF, sIT, sPREV))
    A("s_mov_b32 s%d, s%d" % (sPREV, sIT))
    A("s_mov_b64 exec, 1")
    A("buffer_store_dword v%d, v%d, s[%d:%d], s%d offen" % (cV + 4, hZ, WSR, WSR + 3, sPW))
    A("s_mov_b64 exec, -1")
    A("s_cmp_ge_u32 s%d, %d" % (sIT, NW * (TOTAL - margin)))
    A("s_cbranch_scc1 L_h_common")
    A("buffer_load_dword v%d, v%d, s[%d:%d], s%d offen sc1" % (cV + 5, cV, WSR, WSR + 3, sPR))
    A("s_waitcnt vmcnt(0)")
    A("ds_read_b32 v%d, v%d offset:%d" % (cV + 9, cV + 7, L_PROG))
    A("v_xor_b32 v%d, s%d, v%d" % (cV + 5, sTG, cV + 5))
    A("v_cmp_le_u32 vcc, 0x10000, v%d" % (cV + 5))
    if rk:
        A("s_cmp_lg_u32 vcc_lo, 0")
        A("s_cbranch_scc1 L_ctl")
        A("s_mov_b32 s%d, vcc_hi" % (sF + 7))
    else:
        A("s_cbranch_vccnz L_ctl")
    rowreduce("v_add_u32", cV + 5)
    A("s_lshl_b32 s%d, s%d, 4" % (sREF, sREF))
    A("v_readlane_b32 s%d, v%d, 0" % (sE, cV + 5))
    A("v_readlane_b32 s%d, v%d, 16" % (sIT, cV + 5))
    A("s_add_u32 s%d, s%d, s%d" % (sE, sE, sIT))
    A("s_sub_u32 s%d, s%d, s%d" % (sE, sE, sREF))
    A("s_mul_i32 s%d, s%d, %d" % (sE, sE, gain))
    A("s_add_i32 s%d, s%d, s%d" % (sE, sE, sSET))
    if rk:
        A("v_readlane_b32 s%d, v%d, 32" % (sIT, cV + 5))
        A("s_sub_u32 s%d, s%d, %d" % (sIT, sIT, 224 if rs else 248))
        A("s_mul_i32 s%d, s%d, %d" % (sIT, sIT, rk))
        A("s_cmp_eq_u32 s%d, 0" % (sF + 7))
        A("s_cselect_b32 s%d, s%d, 0" % (sIT, sIT))
        A("s_add_i32 s%d, s%d, s%d" % (sE, sE, sIT))
    A("s_waitcnt lgkmcnt(0)")
    A("v_add_u32_dpp v%d, v%d, v%d quad_perm:[1,0,3,2] %s" % (cV + 4, cV + 9, cV + 9, DPP))
    A("v_lshlrev_b32 v%d, 2, v%d" % (cV + 9, cV + 9))
    A("s_nop 0")
    A("v_add_u32_dpp v%d, v%d, v%d quad_perm:[2,3,0,1] %s" % (cV + 4, cV + 4, cV + 4, DPP))
    A("v_sub_u32 v%d, v%d, v%d" % (cV + 4, cV + 4, cV + 9))
    A("v_mul_i32_i24 v%d, %d, v%d" % (cV + 4, 32 * wgain, cV + 4))
    A("v_add_u32 v%d, s%d, v%d" % (cV + 4, sE, cV + 4))
    A("v_ashrrev_i32 v%d, 9, v%d" % (cV + 4, cV + 4))
    A("v_max_i32 v%d, 0, v%d" % (cV + 4, cV + 4))
    A("v_min_i32 v%d, %d, v%d" % (cV + 4, 8 * NF, cV + 4))
    A("v_lshlrev_b32 v%d, 2, v%d" % (cV + 4, cV + 4))
    A("ds_bpermute_b32 v%d, v%d, v%d" % (cV + 5, cV + 4, cV + 2))
    A("s_waitcnt lgkmcnt(0)")
    A("ds_write_b32 v%d, v%d offset:%d" % (cV + 8, cV + 5, L_MODE))
    A("s_branch L_ctl")

    LB("L_h_common")
    C("output-projection tile of this workgroup (14 of the head's 16): 128 rows x 64 columns, both batches")
    C("wave fragment: rows h*256+128*rh+64*(hw&1)+4*(hw>>1)+8n+(g>>1)+2(g&1), columns 64*cb+4j..")
    sRH, sCB, sTL, sO1R, sO1S, sYW = sTMP, sTMP + 1, sTMP + 2, sTMP + 4, sTMP + 5, sTMP + 6
    hLA, hLW, hCA, hONE, hRET, YR = 128, 129, 130, 131, 132, 100
    A("s_lshl_b32 s%d, s%d, 3" % (sTL, sB))
    A("s_add_u32 s%d, s%d, s%d" % (sTL, sTL, sC))
    A("s_cmp_ge_u32 s%d, 14" % sTL)
    A("s_cbranch_scc1 L_fin")
    if now:
        A("s_mov_b32 s%d, %d" % (SRD + 2, 0 if now & 2 else 448 * 8192))
    A("s_mov_b32 s%d, s%d" % (SRD, sWO))
    A("s_mov_b32 s%d, s%d" % (SRD + 1, sWO + 1))
    A("v_lshrrev_b32 v%d, 1, v%d" % (hU + 1, hG))
    A("v_and_b32 v%d, 1, v%d" % (hU + 2, hG))
    A("v_lshl_add_u32 v%d, v%d, 1, v%d" % (hU + 1, hU + 2, hU + 1))
    A("v_mul_u32_u24 v%d, 896, v%d" % (hU + 1, hU + 1))
    A("v_lshl_add_u32 v%d, v%d, 3, v%d" % (hU, hJ, hU + 1))
    A("s_cmp_ge_u32 s%d, 7" % sTL)
    A("s_cselect_b32 s%d, 1, 0" % sRH)
    A("s_mul_i32 s%d, s%d, 7" % (sCB, sRH))
    A("s_sub_u32 s%d, s%d, s%d" % (sCB, sTL, sCB))
    A("s_lshl_b32 s%d, s%d, 1" % (sOFF, sH))
    A("s_add_u32 s%d, s%d, s%d" % (sOFF, sOFF, sRH))
    A("s_lshl_b32 s%d, s%d, 8" % (sYW, sOFF))
    A("s_lshl_b32 s%d, s%d, %d" % (sIT, sCB, 13 + yk))
    A("s_add_u32 s%d, s%d, s%d" % (sYW, sYW, sIT))
    A("s_add_u32 s%d, s%d, %d" % (sYW, sYW, WS_Y + yc * 8192))
    if ydual:
        A("s_xor_b32 s%d, s%d, 8192" % (sTMP + 7, sYW))
    A("s_lshl_b32 s%d, s%d, 7" % (sOFF, sOFF))
    A("s_and_b32 s%d, s%d, 1" % (sIT, sHW))
    A("s_lshl_b32 s%d, s%d, 6" % (sIT, sIT))
    A("s_add_u32 s%d, s%d, s%d" % (sOFF, sOFF, sIT))
    A("s_lshr_b32 s%d, s%d, 1" % (sIT, sHW))
    A("s_lshl_b32 s%d, s%d, 2" % (sIT, sIT))
    A("s_add_u32 s%d, s%d, s%d" % (sOFF, sOFF, sIT))
    A("s_mul_i32 s%d, s%d, 896" % (sOFF, sOFF))
    A("s_lshl_b32 s%d, s%d, 7" % (sIT, sCB))
    A("s_add_u32 s%d, s%d, s%d" % (sOFF, sOFF, sIT))
    for n in range(8):
        A("s_add_u32 s%d, s%d, %d" % (sF + n, sOFF, n * 8 * 896))
    C("byte selectors for the A operand: row i<8, element e=i&3 (reg e>>1, half e&1) takes batch (i>>2)&1")
    A("v_bfe_u32 v%d, v%d, 2, 1" % (hU + 1, hL))
    A("v_mul_u32_u24 v%d, 0x0202, v%d" % (hU + 1, hU + 1))
    A("v_add_u32 v%d, 0x0100, v%d" % (hU + 1, hU + 1))
    A("v_xor_b32 v%d, 0x0c0c, v%d" % (hU + 1, hU + 1))
    A("v_and_b32 v%d, 1, v%d" % (hU + 2, hL))
    A("v_lshlrev_b32 v%d, 4, v%d" % (hU + 2, hU + 2))
    A("v_lshlrev_b32 v%d, v%d, v%d" % (hU + 1, hU + 2, hU + 1))
    A("v_mov_b32 v%d, 0x0c0c0c0c" % (hU + 3))
    A("v_xor_b32 v%d, v%d, v%d" % (hU + 1, hU + 3, hU + 1))
    A("v_and_b32 v%d, 10, v%d" % (hU + 2, hL))
    for r in range(2):
        A("v_cmp_eq_u32 vcc, %d, v%d" % (2 * r, hU + 2))
        A("s_nop 1")
        A("v_cndmask_b32 v%d, v%d, v%d, vcc" % (hMK + r, hU + 3, hU + 1))
    C("o gather: O1 + (b*16+h)*8192 + (l>>3)*1024 + (4rh+hw)*128 + (l&7)*16")
    A("v_lshrrev_b32 v%d, 3, v%d" % (hU + 1, hL))
    A("v_lshlrev_b32 v%d, 10, v%d" % (hU + 1, hU + 1))
    A("v_and_b32 v%d, 7, v%d" % (hU + 2, hL))
    A("v_lshl_add_u32 v%d, v%d, 4, v%d" % (hU + 1, hU + 2, hU + 1))
    A("s_lshl_b32 s%d, s%d, 2" % (sIT, sRH))
    A("s_add_u32 s%d, s%d, s%d" % (sIT, sIT, sHW))
    A("s_lshl_b32 s%d, s%d, 7" % (sIT, sIT))
    A("s_lshl_b32 s%d, s%d, 13" % (sO1R, sH))
    A("s_add_u32 s%d, s%d, s%d" % (sO1R, sO1R, sIT))
    A("s_add_u32 s%d, s%d, %d" % (sO1R, sO1R, WS_O1))
    A("s_add_u32 s%d, s%d, %d" % (sO1S, sO1R, 16 * 8192))
    A("v_mul_u32_u24 v%d, %d, v%d" % (hU + 2, (7 * 8192) << yk, hG))
    A("v_lshl_add_u32 v%d, v%d, 4, v%d" % (hU + 2, hJ, hU + 2))
    A("s_lshl_b32 s%d, s%d, 9" % (sIT, sHW))
    A("v_lshlrev_b32 v%d, 4, v%d" % (hLA, hL))
    A("v_add_u32 v%d, s%d, v%d" % (hLW, sIT, hLA))
    A("v_lshlrev_b32 v%d, 2, v%d" % (hCA, hL))
    A("v_mov_b32 v%d, 1" % hONE)
    if pair:
        A("s_lshl_b32 s%d, s%d, 8" % (sIT, sHW))
        A("v_mov_b32 v%d, s%d" % (hP + 1, sIT))
    else:
        A("v_and_b32 v%d, 3, v%d" % (hP + 1, hL))
        A("v_mul_u32_u24 v%d, 260, v%d" % (hP + 1, hP + 1))
    def wowait(tag, thr, anyw=0):
        A("s_mov_b32 s%d, %d" % (sSPIN, spin * 16))
        LB("L_wow" + tag)
        if wslp:
            A("s_sleep %d" % wslp)
        A("ds_read_b32 v%d, v%d offset:%d" % (hP, hP + 1, L_PROG))
        spin_dec()
        A("s_waitcnt lgkmcnt(0)")
        A("s_cbranch_scc1 L_wog" + tag)
        if anyw:
            A("v_cmp_le_u32 vcc, %d, v%d" % (thr, hP))
            A("s_cbranch_vccz L_wow" + tag)
        else:
            A("v_cmp_gt_u32 vcc, %d, v%d" % (thr, hP))
            A("s_cbranch_vccnz L_wow" + tag)
        LB("L_wog" + tag)
    wld = lambda n: A("buffer_load_dwordx2 v[%d:%d], v%d, s[%d:%d], s%d offen nt" % (hW + 2 * n, hW + 2 * n + 1, hU, SRD, SRD + 3, sF + n))
    if wol < 8:
        wowait("e", TOTAL - wearly)
        for n in range(8 - wol):
            wld(n)
    C("the wo fragment is requested right behind this workgroup's last V loads")
    wowait("", TOTAL, wany)
    for n in range(8 - wol, 8):
        wld(n)
    A("s_mov_b32 s%d, %d" % (sSPIN, spin * 16))
    LB("L_hpar")
    A("ds_read_b64 v[%d:%d], v%d offset:%d" % (hP, hP + 1, hZ, L_PAR + 24))
    spin_dec()
    A("s_waitcnt lgkmcnt(0)")
    A("s_cbranch_scc1 L_fin")
    A("v_cmp_eq_u32 vcc, 0, v%d" % hP)
    A("s_cbranch_vccnz L_hpar")
    A("v_add_u32 v%d, v%d, v%d" % (hU + 2, hU + 2, hP + 1))
    A("s_mov_b32 s%d, %d" % (sSPIN, spin))
    if b2:
        A("s_barrier")
    else:
        A("s_waitcnt vmcnt(%d)" % owait)
    stamp(4)
    LB("L_opoll")
    A("buffer_load_dwordx4 v[%d:%d], v%d, s[%d:%d], s%d offen sc1" % (hP, hP + 3, hU + 1, WSR, WSR + 3, sO1R))
    A("buffer_load_dwordx4 v[%d:%d], v%d, s[%d:%d], s%d offen sc1" % (hP + 4, hP + 7, hU + 1, WSR, WSR + 3, sO1S))
    spin_dec()
    A("s_cbranch_scc1 L_fin")
    A("s_waitcnt vmcnt(1)")
    for r in range(4):
        A("v_xor_b32 v%d, s%d, v%d" % (hP + r, sT + r, hP + r))
    A("v_or3_b32 v%d, v%d, v%d, v%d" % (hP + 8, hP, hP + 1, hP + 2))
    A("s_waitcnt vmcnt(0)")
    for r in range(4):
        A("v_xor_b32 v%d, s%d, v%d" % (hP + 4 + r, sT + r, hP + 4 + r))
    A("v_or3_b32 v%d, v%d, v%d, v%d" % (hP + 8, hP + 8, hP + 3, hP + 4))
    A("v_or3_b32 v%d, v%d, v%d, v%d" % (hP + 8, hP + 8, hP + 5, hP + 6))
    A("v_or_b32 v%d, v%d, v%d" % (hP + 8, hP + 8, hP + 7))
    A("v_cmp_ne_u32_sdwa vcc, v%d, 0 src0_sel:BYTE_0 src1_sel:DWORD" % (hP + 8))
    A("s_and_b64 exec, exec, vcc")
    A("s_cbranch_scc1 L_opoll")
    A("s_mov_b64 exec, -1")
    stamp(5)
    C("sum the 8 chunk partials of both batches (transposing), round o to bf16, multiply with the tile")
    for q in range(4):
        A("v_permlane32_swap_b32 v%d, v%d" % (hP + 2 * q, hP + 2 * q + 1))
    for q in range(4):
        A("v_add_f32 v%d, v%d, v%d" % (hP + 2 * q, hP + 2 * q, hP + 2 * q + 1))
    A("v_permlane16_swap_b32 v%d, v%d" % (hP, hP + 2))
    A("s_and_b32 s%d, s2, 7" % sIT)
    A("v_permlane16_swap_b32 v%d, v%d" % (hP + 4, hP + 6))
    A("v_add_f32 v%d, v%d, v%d" % (hP, hP, hP + 2))
    A("v_add_f32 v%d, v%d, v%d" % (hP + 4, hP + 4, hP + 6))
    A("s_cmp_lg_u32 s%d, %d" % (sIT, rcls))
    A("v_add_f32_dpp v%d, v%d, v%d row_ror:8 %s" % (hP, hP, hP, DPP))
    A("v_add_f32_dpp v%d, v%d, v%d row_ror:8 %s" % (hP + 4, hP + 4, hP + 4, DPP))
    A("v_cvt_pk_bf16_f32 v%d, v%d, v%d" % (hP, hP, hP + 4))
    A("s_nop 1")
    BC, AA = hP + 8, 80
    for n in range(8):
        A("v_mov_b32_dpp v%d, v%d row_newbcast:%d %s" % (BC + n, hP, n, DPP))
    def mf(m_):
        A("v_mfma_f32_16x16x32_bf16 v[%d:%d], v[%d:%d], v[%d:%d], %s" %
          (hD, hD + 3, AA + 4 * m_, AA + 4 * m_ + 3, hW + 4 * m_, hW + 4 * m_ + 3, "0" if m_ == 0 else "v[%d:%d]" % (hD, hD + 3)))
    for n in range(8):
        for r in range(2):
            A("v_perm_b32 v%d, v%d, v%d, v%d" % (AA + 2 * n + r, BC + n, BC + n, hMK + r))
        if n in (2, 4, 6):
            mf(n // 2 - 1)
    A("s_nop 1")
    mf(3)
    C("the last helper to arrive sums the four row slices and writes the tile's y through")
    A("s_mov_b32 exec_hi, 0")
    A("s_nop 6")
    A("ds_write_b128 v%d, v[%d:%d] offset:%d" % (hLW, hD, hD + 3, L_Y))
    A("ds_add_rtn_u32 v%d, v%d, v%d offset:%d" % (hRET, hCA, hONE, L_CNT + 256))
    for w in range(4):
        A("ds_read_b128 v[%d:%d], v%d offset:%d" % (YR + 4 * w, YR + 4 * w + 3, hLA, L_Y + 512 * w))
    A("s_waitcnt lgkmcnt(2)")
    A("v_cmp_eq_u32 vcc, 3, v%d" % hRET)
    A("s_cbranch_vccz L_ynot")
    def add4(d, a, b):
        if pk:
            for q in (0, 2):
                A("v_pk_add_f32 v[%d:%d], v[%d:%d], v[%d:%d]" % (d + q, d + q + 1, a + q, a + q + 1, b + q, b + q + 1))
        else:
            for r in range(4):
                A("v_add_f32 v%d, v%d, v%d" % (d + r, a + r, b + r))
    add4(YR, YR, YR + 4)
    A("s_waitcnt lgkmcnt(1)")
    add4(YR, YR, YR + 8)
    A("s_waitcnt lgkmcnt(0)")
    add4(YR, YR, YR + 12)
    for r in range(4):
        A("v_perm_b32 v%d, v%d, v%d, s%d" % (YR + r, YR + r, hTAG, sSEL + r))
    A("buffer_store_dwordx4 v[%d:%d], v%d, s[%d:%d], s%d offen sc1" % (YR, YR + 3, hU + 2, WSR, WSR + 3, sYW))
    if ydual:
        A("buffer_store_dwordx4 v[%d:%d], v%d, s[%d:%d], s%d offen sc1" % (YR, YR + 3, hU + 2, WSR, WSR + 3, sTMP + 7))
    stamp(6)
    LB("L_ynot")
    A("s_cbranch_scc1 L_fin")
    A("s_barrier")

    LB("L_fin")
    if diag >= 0:
        C("DIAGNOSTIC ONLY")
        A("s_or_b32 s%d, s2, s3" % sTMP)
        A("s_cbranch_scc1 L_end")
        A("s_memrealtime s[%d:%d]" % (sST + 14, sST + 15))
        A("s_waitcnt lgkmcnt(0)")
        A("s_sub_u32 s%d, s%d, s%d" % (sTMP, sST + 2 * diag, sST))
        A("s_min_u32 s%d, s%d, 20000" % (sTMP, sTMP))
        A("s_mul_i32 s%d, s%d, %d" % (sTMP, sTMP, dk))
        A("s_add_u32 s%d, s%d, 500" % (sTMP, sTMP))
        LB("L_diag")
        A("s_memrealtime s[%d:%d]" % (sST + 2, sST + 3))
        A("s_waitcnt lgkmcnt(0)")
        A("s_sub_u32 s%d, s%d, s%d" % (sTMP + 1, sST + 2, sST + 14))
        A("s_cmp_lt_u32 s%d, s%d" % (sTMP + 1, sTMP))
        A("s_cbranch_scc1 L_diag")
    if stamps:
        A("s_mov_b64 exec, -1")
        A("s_cmp_lt_u32 s3, 4")
        A("s_cbranch_scc1 L_stz")
        A("s_cmp_ge_u32 s%d, 14" % (sTMP + 2))
        A("s_cbranch_scc1 L_sts")
        LB("L_stz")
        for _ in range(3):
            A("s_sleep 127")
        LB("L_sts")
        A("s_lshl_b32 s%d, s2, 3" % sTMP)
        A("s_add_u32 s%d, s%d, s3" % (sTMP, sTMP))
        A("s_lshl_b32 s%d, s%d, 6" % (sTMP, sTMP))
        A("s_add_u32 s%d, s%d, %d" % (sTMP, sTMP, STAMP_BASE))
        A("s_mov_b32 s%d, 0x20000000" % (WSR + 2))
        A("s_waitcnt vmcnt(0) lgkmcnt(0)")
        A("s_mov_b64 exec, 1")
        A("v_mov_b32 v1, 0")
        for q in range(16):
            A("v_mov_b32 v%d, s%d" % (4 + q, sST + q))
        for q in range(4):
            A("buffer_store_dwordx4 v[%d:%d], v1, s[%d:%d], s%d offen offset:%d" % (4 + 4 * q, 7 + 4 * q, WSR, WSR + 3, sTMP, 16 * q))
    LB("L_end")
    A("s_endpgm")
    nv = max(vSL + 4 * LZ, 192)
    L.append('.section .rodata,"a"')
    L.append(".p2align 6")
    L.append(".amdhsa_kernel " + KN)
    L.append("  .amdhsa_next_free_vgpr %d" % nv)
    L.append("  .amdhsa_next_free_sgpr 96")
    L.append("  .amdhsa_accum_offset %d" % nv)
    L.append("  .amdhsa_group_segment_fixed_size 0")
    L.append("  .amdhsa_kernarg_size 64")
    L.append("  .amdhsa_user_sgpr_count 2")
    L.append("  .amdhsa_user_sgpr_kernarg_segment_ptr 1")
    L.append("  .amdhsa_system_sgpr_workgroup_id_x 1")
    L.append("  .amdhsa_float_denorm_mode_32 3")
    L.append(".end_amdhsa_kernel")
    return "\n".join(L) + "\n"


def parse(spec):
    kw = {}
    for x in spec.split(","):
        if x:
            k, v = x.split("=")
            kw[k] = v if k == "mapping" else int(v, 0)
    return kw


if __name__ == "__main__":
    names = []
    for spec in sys.argv[1:]:
        name = "k_" + spec.replace(",", "_").replace("=", "") + ".s"
        open(name, "w").write(gen(**parse(spec)))
        names.append(name)
    print(" ".join(names))
```

```python
import sys

KN = "standalone__mha_block_cached__decode_kernel"

HEADER = """; Kernarg layout for this problem (64 bytes, ptrs only, base s[0:1]):
"""

DOC = """;
"""

WS_EPOCH = 0
WS_Q = 0x1000
WS_STAT = 0x40000
WS_PROG = 0x60000
WS_RK = 0x180000
WS_O1 = 0x80000
WS_YP = 0x70000
WS_Y = 0x100000
WS_QP = 0x200000
WS_USED = 0x400000
STAMP_BASE = 0x10000000

L_Q = 0
L_CLR = 512
L_TAG = 512
L_FLAG = 516
L_MODE = 528
L_STAT = 576
L_PAR = 640
L_CNT = 768
L_PROG = 1536
L_O = 2560
L_Y = 6656
L_R = 8704
LDS = 9728


def pat(l, nf):
    p8 = lambda f: sum(1 << j for j in range(8) if ((j + 1) * f) // 8 != (j * f) // 8)
    w = 0
    for k in range(nf):
        w |= p8(min(max(l - 8 * k, 0), 8)) << (8 * k)
    return w


def gen(D=5, LZ=32, Dl=4, Dh=8, lv0=10, gain=5, wgain=3, margin=18, cper=2, pper=2, rotg=1, wsig=1,
        mapping="xg", stamps=0, spin=1 << 16, qtry=48, force_slow=0, cpf=64, pk=1, dup=0, wslp=1, rcls=0, wol=8, wearly=40, owait=0, wany=0, gx=0, xb=0, lq=1, tp=0, b2=0, pst=0, eb=-1, ebl=99, fm=1, rk=6, rm0=12, rm1=28, rend=30, rs=1, noep=0, now=0, wpf=0, pair=0, yk=1, yc=0, ydual=0, yp=1, ypn=6, ydbg=0, diag=-1, dk=1, wqm=1, peek=-1, jit=0, nd=0, md=0, es=1, spf=2):
    L = []
    def A(s): L.append("  " + s)
    def LB(s): L.append(s + ":")
    def C(s): L.append("  ; " + s)
    NW = NH = 4
    N = 128
    NB = 8
    LAG = Dh
    NF = Dh - Dl
    TOTAL = 2 * N - LZ
    assert LZ % 16 == 0 and NF <= 4 and D <= LAG <= 8
    lab = [0]
    assert WS_RK + (TOTAL // rm1 + 2) * 4 * 4352 <= WS_QP
    L.append(HEADER.rstrip("\n"))
    L.append("; @launch grid=(256,1,1) block=(512,1,1) lds=%d" % LDS)
    L.append(DOC.rstrip("\n"))
    L.append('.amdgcn_target "amdgcn-amd-amdhsa--gfx950"')
    L.append(".text")
    L.append(".globl " + KN)
    L.append(".p2align 8")
    L.append(".type %s,@function" % KN)
    LB(KN)

    sX, sK, sV, sWQ, sWO, sOUT, sDBG, sWS = 4, 6, 8, 10, 12, 14, 16, 18
    SRD = 20
    WSR = 24
    SR2 = 28
    sGRP, sC, sB, sH = 32, 33, 34, 35
    sBASE, sOFF, sIT = 36, 37, 38
    sT = 40
    sSEL = 44
    sM2, sM1 = 48, 50
    sF = 52
    sTMP = 60
    sSPIN, sCS = 68, 69
    sST = 70
    sTAG, sSAME = 86, 89

    def stamp(k, force=False):
        if (stamps or (diag >= 0 and k in (0, diag))) and (force or k == 0 or not pst):
            A("s_memrealtime s[%d:%d]" % (sST + 2 * k, sST + 2 * k + 1))

    def jitter():
        if not jit:
            return
        lab[0] += 1
        A("s_cselect_b32 s85, 1, 0")
        A("s_memtime s[82:83]")
        A("s_waitcnt lgkmcnt(0)")
        A("s_mul_i32 s82, s82, 0x9e3779b1")
        A("s_lshr_b32 s83, s82, %d" % (32 - jit))
        A("s_cbranch_scc1 L_j%d" % lab[0])
        A("s_bfe_u32 s82, s82, 0x5000a")
        LB("L_jl%d" % lab[0])
        A("s_sleep 64")
        A("s_sub_u32 s82, s82, 1")
        A("s_cbranch_scc0 L_jl%d" % lab[0])
        LB("L_j%d" % lab[0])
        A("s_cmp_eq_u32 s85, 1")

    def spin_dec():
        A("s_sub_u32 s%d, s%d, 1" % (sSPIN, sSPIN))
        A("s_cmp_eq_u32 s%d, 0" % sSPIN)

    def tagbytes(dst, src):
        for r in range(4):
            A("s_bfe_u32 s%d, s%d, 0x%x" % (dst + r, src, 0x80000 | (8 * r)))

    def selectors():
        for r in range(4):
            A("s_mov_b32 s%d, 0x%08x" % (sSEL + r, 0x07060500 | r))

    def dual_store(v, voff, soff):
        lab[0] += 1
        A("s_cbranch_scc1 L_wt%d" % lab[0])
        A("buffer_store_dwordx4 v[%d:%d], v%d, s[%d:%d], s%d offen" % (v, v + 3, voff, WSR, WSR + 3, soff))
        A("s_branch L_wd%d" % lab[0])
        LB("L_wt%d" % lab[0])
        A("buffer_store_dwordx4 v[%d:%d], v%d, s[%d:%d], s%d offen sc1" % (v, v + 3, voff, WSR, WSR + 3, soff))
        LB("L_wd%d" % lab[0])

    DPP = "row_mask:0xf bank_mask:0xf"
    def rowreduce(op, r):
        for c_ in ("quad_perm:[1,0,3,2]", "quad_perm:[2,3,0,1]", "row_half_mirror", "row_mirror"):
            A("s_nop 1")
            A("%s_dpp v%d, v%d, v%d %s %s" % (op, r, r, r, c_, DPP))
    def swapreduce(op, r, tmp, ins):
        A("v_mov_b32 v%d, v%d" % (tmp, r))
        A("s_nop 1")
        A("%s v%d, v%d" % (ins, r, tmp))
        A("%s v%d, v%d, v%d" % (op, r, r, tmp))

    if stamps:
        for k in range(1, 8):
            A("s_mov_b64 s[%d:%d], 0" % (sST + 2 * k, sST + 2 * k + 1))
    stamp(0)
    A("s_load_dwordx16 s[4:19], s[0:1], 0")
    A("s_cmp_ge_u32 s2, 256")
    A("s_cbranch_scc1 L_end")
    if cpf and not spf:
        C("pull this kernel's own code into L2: every workgroup of a wg&7 class touches 512 bytes of it")
        A("s_getpc_b64 s[92:93]")
        A("s_lshr_b32 s94, s2, 3")
        A("s_lshl_b32 s94, s94, 9")
        A("v_mul_u32_u24 v2, %d, v0" % cpf)
        A("v_add_u32 v2, s94, v2")
        A("v_min_u32 v2, (L_end - %s - 256), v2" % KN)
        A("v_cmp_gt_u32 vcc, %d, v0" % (512 // cpf))
        A("s_and_saveexec_b64 s[94:95], vcc")
        A("s_cbranch_execz L_nopf")
        A("global_load_dword v3, v2, s[92:93]")
        LB("L_nopf")
        A("s_mov_b64 exec, -1")
    A("v_lshrrev_b32 v1, 6, v0")
    A("v_and_b32 v0, 63, v0")
    A("v_readfirstlane_b32 s3, v1")
    if mapping == "lin":
        A("s_lshr_b32 s%d, s2, 3" % sGRP)
        A("s_and_b32 s%d, s2, 7" % sC)
    else:
        C("group = b*16+h = (wg&7) | ((wg>>3)&24), chunk c = (wg>>3)&7")
        A("s_lshr_b32 s%d, s2, 3" % sTMP)
        A("s_and_b32 s%d, s%d, 7" % (sC, sTMP))
        A("s_and_b32 s%d, s%d, 24" % (sTMP, sTMP))
        A("s_and_b32 s%d, s2, 7" % sGRP)
        A("s_or_b32 s%d, s%d, s%d" % (sGRP, sGRP, sTMP))
        if gx:
            A("s_xor_b32 s%d, s%d, %d" % (sGRP, sGRP, gx))
    if cpf and spf:
        A("s_cmp_lg_u32 s3, 7")
        A("s_cbranch_scc1 L_nopf")
        C("wave 7 pulls this kernel's own code into L2: every workgroup of a wg&7 class reads 512 bytes of it")
        A("s_getpc_b64 s[92:93]")
        A("s_lshr_b32 s94, s2, 3")
        A("s_lshl_b32 s94, s94, 9")
        A("s_min_u32 s94, s94, (L_end - %s - 640)" % KN)
        if spf == 1:
            A("s_add_u32 s92, s92, s94")
            A("s_addc_u32 s93, s93, 0")
            for k in range(8):
                A("s_load_dword s%d, s[92:93], %d" % (sF + k, 64 * k))
        else:
            A("v_lshl_add_u32 v2, v0, 3, s94")
            A("v_mov_b32 v3, s93")
            A("v_add_co_u32 v2, vcc, s92, v2")
            A("s_nop 1")
            A("v_addc_co_u32 v3, vcc, 0, v3, vcc")
            A("global_load_dword v127, v[2:3], off")
        LB("L_nopf")
    A("s_mov_b32 s%d, 0x20000" % (SRD + 3))
    A("s_mov_b32 s%d, 0x20000" % (WSR + 3))
    A("s_mov_b32 s%d, 0x20000" % (SR2 + 3))
    A("s_mov_b32 s%d, %d" % (WSR + 2, WS_USED))
    jitter()
    A("s_cmp_ge_u32 s3, %d" % NW)
    A("s_cbranch_scc1 L_helper")

    vOFF, vQ, vMK, vA, vO, vT, vS, vU, vLANE = 0, 4, 8, 12, 16, 20, 36, 44, 52
    vMODE, vCNT, vPA, vMA = 53, 54, 55, 56
    vSL = 64
    slot = lambda i: vSL + 4 * i
    span, stride = 2 << 20, 64 << 10
    sREG, sPH, sMODE = 87, 39, 90
    C("==== stream waves: 4-KiB granules; four chunk-mates interleave inside a 2-MiB half of the (b,h) slab")
    A("v_mov_b32 v%d, v0" % vLANE)
    A("v_lshlrev_b32 v%d, 4, v0" % vOFF)
    A("s_lshl_b32 s%d, s%d, 1" % (sREG, sGRP))
    A("s_lshr_b32 s%d, s%d, 2" % (sTMP, sC))
    A("s_add_u32 s%d, s%d, s%d" % (sREG, sREG, sTMP))
    A("s_lshl_b32 s%d, s%d, 21" % (sREG, sREG))
    A("s_and_b32 s%d, s%d, 3" % (sTMP, sC))
    A("s_lshl_b32 s%d, s%d, 2" % (sTMP, sTMP))
    A("s_add_u32 s%d, s%d, s3" % (sTMP, sTMP))
    A("s_lshl_b32 s%d, s%d, 12" % (sPH, sTMP))
    A("s_mul_i32 s%d, s%d, %d" % (sTMP, sGRP, rotg * stride))
    A("s_add_u32 s%d, s%d, s%d" % (sPH, sPH, sTMP))
    A("s_and_b32 s%d, s%d, %d" % (sPH, sPH, span - 1))
    A("s_add_u32 s%d, s%d, s%d" % (sOFF, sPH, sREG))
    A("s_mov_b32 s%d, 0x8000000" % (SRD + 2))
    if pst:
        stamp(1, True)
    A("s_waitcnt lgkmcnt(0)")
    if pst:
        stamp(3, True)
    A("s_mov_b32 s%d, s%d" % (SRD, sK))
    A("s_mov_b32 s%d, s%d" % (SRD + 1, sK + 1))

    def advance():
        A("s_add_u32 s%d, s%d, %d" % (sPH, sPH, stride))
        A("s_and_b32 s%d, s%d, %d" % (sPH, sPH, span - 1))
        A("s_add_u32 s%d, s%d, s%d" % (sOFF, sPH, sREG))

    def issue(idx, sl):
        A("buffer_load_dwordx4 v[%d:%d], v%d, s[%d:%d], s%d offen offset:%d nt" %
          (slot(sl), slot(sl) + 3, vOFF, SRD, SRD + 3, sOFF, (idx % 4) * 1024))
        if idx % 4 == 3:
            advance()

    C("fill the landing zone (q is not known yet), D loads in flight")
    for i in range(D):
        issue(i, i)
    if pst:
        stamp(4, True)
    A("s_barrier")
    if pst:
        stamp(5, True)
    A("s_mov_b32 s%d, s%d" % (WSR, sWS))
    A("s_mov_b32 s%d, s%d" % (WSR + 1, sWS + 1))
    A("s_mov_b32 s%d, 0xcccccccc" % sM2)
    A("s_mov_b32 s%d, 0xcccccccc" % (sM2 + 1))
    A("s_mov_b32 s%d, 0xaaaaaaaa" % sM1)
    A("s_mov_b32 s%d, 0xaaaaaaaa" % (sM1 + 1))
    A("s_mov_b32 s%d, 0x3db8aa3b" % sCS)
    C("P.V operand masks: lane (rho,i) is active iff (i>>3)==(rho&1); register (i&7)>>1, half i&1")
    A("v_lshrrev_b32 v%d, 3, v%d" % (vU, vLANE))
    A("v_lshrrev_b32 v%d, 4, v%d" % (vU + 1, vLANE))
    A("v_xor_b32 v%d, v%d, v%d" % (vU, vU, vU + 1))
    A("v_and_b32 v%d, 1, v%d" % (vU, vU))
    A("v_lshlrev_b32 v%d, 2, v%d" % (vU, vU))
    A("v_bfe_u32 v%d, v%d, 1, 2" % (vU + 1, vLANE))
    A("v_or_b32 v%d, v%d, v%d" % (vU, vU, vU + 1))
    A("v_and_b32 v%d, 1, v%d" % (vU + 1, vLANE))
    A("v_lshlrev_b32 v%d, 4, v%d" % (vU + 1, vU + 1))
    A("v_mov_b32 v%d, 0xffff" % (vU + 2))
    A("v_lshlrev_b32 v%d, v%d, v%d" % (vU + 2, vU + 1, vU + 2))
    for r in range(4):
        A("v_cmp_eq_u32 vcc, %d, v%d" % (r, vU))
        A("v_mov_b32 v%d, 0" % (vO + r))
        A("s_nop 0")
        A("v_cndmask_b32 v%d, 0, v%d, vcc" % (vMK + r, vU + 2))
    A("v_and_b32 v%d, 31, v%d" % (vU + 3, vLANE))
    A("v_lshlrev_b32 v%d, 4, v%d" % (vU + 3, vU + 3))
    A("v_mov_b32 v%d, 0" % vCNT)
    A("s_mov_b32 s%d, 0x%x" % (sMODE, pat(lv0 + (lq + 2) // 4, NF)))
    A("s_lshl_b32 s%d, s3, 8" % sTMP)
    A("v_lshl_add_u32 v%d, v%d, 2, s%d" % (vPA, vLANE, sTMP))
    A("s_lshl_b32 s%d, s3, 2" % sTMP)
    A("v_mov_b32 v%d, s%d" % (vMA, sTMP))
    A("v_mov_b32 v%d, s%d" % (vMODE, sMODE))
    AD, PAR, OR = 128, 160, 168
    rV, rO, rT, rCA, rW, vONE, vZ, vRET = 57, 58, 59, 60, 61, 62, 63, 191
    sO1W, sYA, sOO, sU = sTMP + 5, 91, 92, 93
    def tail_setup():
        selectors()
        A("s_lshl_b32 s%d, s3, 10" % sTMP)
        A("v_add_u32 v%d, s%d, v%d" % (rW, sTMP, vOFF))
        A("v_lshlrev_b32 v%d, 2, v%d" % (rCA, vLANE))
        A("v_mov_b32 v%d, 1" % vONE)
        A("s_lshl_b32 s%d, s%d, 3" % (sO1W, sGRP))
        A("s_add_u32 s%d, s%d, s%d" % (sO1W, sO1W, sC))
        A("s_lshl_b32 s%d, s%d, 10" % (sO1W, sO1W))
        A("s_add_u32 s%d, s%d, %d" % (sO1W, sO1W, WS_O1))
        C("final reduction set-up (used by class %d only): unit wg>>3 = (b*7+cb, line); wave w sums producers 8w..8w+7" % rcls)
        A("s_lshr_b32 s%d, s2, 4" % sU)
        A("s_lshl_b32 s%d, s%d, %d" % (sYA, sU, 13 + yk))
        A("s_bfe_u32 s%d, s2, 0x10003" % sIT)
        A("s_lshl_b32 s%d, s%d, 7" % (sIT, sIT))
        A("s_add_u32 s%d, s%d, s%d" % (sYA, sYA, sIT))
        A("s_lshl_b32 s%d, s3, 11" % sIT)
        A("s_add_u32 s%d, s%d, s%d" % (sYA, sYA, sIT))
        A("s_add_u32 s%d, s%d, %d" % (sYA, sYA, WS_Y + yc * 8192))
        A("s_and_b32 s%d, s2, 7" % sIT)
        A("s_cmp_eq_u32 s%d, %d" % (sIT, rcls))
        A("s_cselect_b32 s%d, s%d, 99" % (sU, sU))
        A("v_lshrrev_b32 v%d, 3, v%d" % (rV, vLANE))
        A("v_lshlrev_b32 v%d, 8, v%d" % (rV, rV))
        A("v_and_b32 v%d, 7, v%d" % (rT, vLANE))
        A("v_lshl_add_u32 v%d, v%d, 4, v%d" % (rV, rT, rV))
        A("s_lshr_b32 s%d, s2, 3" % sOO)
        A("s_lshl_b32 s%d, s%d, 6" % (sOO, sOO))
        A("s_mov_b32 s%d, s%d" % (SR2, sOUT))
        A("s_mov_b32 s%d, s%d" % (SR2 + 1, sOUT + 1))
        A("s_mov_b32 s%d, 1792" % (SR2 + 2))
        A("v_lshrrev_b32 v%d, 5, v%d" % (rO, vLANE))
        A("v_lshl_add_u32 v%d, v%d, 2, v%d" % (rO, rT, rO))
        A("v_bfe_u32 v%d, v%d, 4, 1" % (rT, vLANE))
        A("v_lshl_add_u32 v%d, v%d, 1, v%d" % (rO, rT, rO))
        A("v_lshlrev_b32 v%d, 1, v%d" % (rO, rO))
    for i in range(D, LZ):
        if es and i == 2 * D:
            tail_setup()
        A("s_waitcnt vmcnt(%d)" % (D - 1))
        if pst and i == D:
            stamp(6, True)
        issue(i, i)
    stamp(1)
    jitter()
    A("s_mov_b32 s%d, %d" % (sSPIN, spin * 16))
    LB("L_qwait")
    A("ds_read_b32 v%d, v%d offset:%d" % (vU + 5, vCNT, L_FLAG))
    A("ds_read_b128 v[%d:%d], v%d offset:%d" % (vQ, vQ + 3, vU + 3, L_Q))
    spin_dec()
    A("s_waitcnt lgkmcnt(0)")
    A("s_cbranch_scc1 L_qok")
    A("v_cmp_eq_u32 vcc, 0, v%d" % (vU + 5))
    A("s_cbranch_vccnz L_qwait")
    LB("L_qok")
    if stamps:
        A("s_getreg_b32 s%d, hwreg(HW_REG_XCC_ID, 0, 4)" % (sST + 4))

    def kdot(sl, n):
        b = slot(sl)
        A("v_dot2_f32_bf16 v%d, v%d, v%d, 0" % (vT + n, b, vQ))
        for r in range(1, 4):
            A("v_dot2_f32_bf16 v%d, v%d, v%d, v%d" % (vT + n, b + r, vQ + r, vT + n))

    def kreduce():
        t = lambda n: vT + n
        for k in range(NB - 1):
            A("v_mov_b32 v%d, v%d" % (vS + k, vS + k + 1))
        for n in range(8):
            A("v_add_f32_dpp v%d, v%d, v%d row_ror:8 row_mask:0xf bank_mask:0x3" % (t(n), t(n), t(n)))
        for n in range(8):
            A("v_add_f32_dpp v%d, v%d, v%d row_ror:8 row_mask:0xf bank_mask:0xc" % (t(n), t(n + 8), t(n + 8)))
        for n in range(4):
            A("v_add_f32_dpp v%d, v%d, v%d row_half_mirror row_mask:0xf bank_mask:0x5" % (t(n), t(n), t(n)))
        for n in range(4):
            A("v_add_f32_dpp v%d, v%d, v%d row_half_mirror row_mask:0xf bank_mask:0xa" % (t(n), t(n + 4), t(n + 4)))
        A("v_cndmask_b32 v%d, v%d, v%d, s[%d:%d]" % (t(9), t(2), t(0), sM2, sM2 + 1))
        A("v_cndmask_b32 v%d, v%d, v%d, s[%d:%d]" % (t(11), t(3), t(1), sM2, sM2 + 1))
        A("v_cndmask_b32 v%d, v%d, v%d, s[%d:%d]" % (t(8), t(0), t(2), sM2, sM2 + 1))
        A("v_cndmask_b32 v%d, v%d, v%d, s[%d:%d]" % (t(10), t(1), t(3), sM2, sM2 + 1))
        A("s_nop 0")
        A("v_add_f32_dpp v%d, v%d, v%d quad_perm:[2,3,0,1] %s" % (t(0), t(9), t(8), DPP))
        A("v_add_f32_dpp v%d, v%d, v%d quad_perm:[2,3,0,1] %s" % (t(1), t(11), t(10), DPP))
        A("v_cndmask_b32 v%d, v%d, v%d, s[%d:%d]" % (t(9), t(1), t(0), sM1, sM1 + 1))
        A("v_cndmask_b32 v%d, v%d, v%d, s[%d:%d]" % (t(8), t(0), t(1), sM1, sM1 + 1))
        A("s_nop 1")
        A("v_add_f32_dpp v%d, v%d, v%d quad_perm:[1,0,3,2] %s" % (t(0), t(9), t(8), DPP))
        swapreduce("v_add_f32", t(0), t(1), "v_permlane16_swap_b32")
        A("v_cvt_pk_bf16_f32 v%d, v%d, v%d" % (t(0), t(0), t(0)))
        A("v_and_b32 v%d, 0xffff0000, v%d" % (vS + NB - 1, t(0)))

    def pace(j):
        lab[0] += 1
        for k in range(NF - 1, -1, -1):
            A("s_bitcmp1_b32 s%d, %d" % (sMODE, 8 * k + j % 8))
            A("s_cbranch_scc1 L_p%d_%d" % (lab[0], k))
        A("s_waitcnt vmcnt(%d)" % (Dl - 1))
        for k in range(NF):
            LB("L_p%d_%d" % (lab[0], k))
            A("s_waitcnt vmcnt(%d)" % (Dl + k))

    def progress(j):
        if j % pper == pper - 1:
            A("v_add_u32 v%d, %d, v%d" % (vCNT, pper, vCNT))
            A("ds_write_b32 v%d, v%d offset:%d" % (vPA, vCNT, L_PROG))
        if fm and j % cper == cper - 1:
            A("ds_read_b32 v%d, v%d offset:%d" % (vMODE, vMA, L_MODE))

    def checkpoint(j):
        if j % cper == 0:
            A("s_waitcnt lgkmcnt(0)")
            A("v_readfirstlane_b32 s%d, v%d" % (sMODE, vMODE))
            if not fm:
                A("ds_read_b32 v%d, v%d offset:%d" % (vMODE, vMA, L_MODE))

    C("catch-up: consume the landing zone while keeping D loads in flight")
    free = LZ - D
    pts = [min(max(e, int(round((e + 0.5) * free / LAG)) - 1), free - 1 + e, LZ - 1) for e in range(LAG)]
    for e in range(LAG):
        assert e <= pts[e] < free + e
    for j in range(LZ):
        kdot(j, j % 16)
        for e in range(LAG):
            if pts[e] == j:
                A("s_waitcnt vmcnt(%d)" % (D - 1))
                issue(LZ + e, e)
        if j % 16 == 15:
            kreduce()

    C("steady K loop; its last pass already requests V")
    A("s_mov_b32 s%d, %d" % (sIT, (N - LZ) // 16))
    LB("L_kloop")
    for j in range(16):
        checkpoint(j)
        pace(j)
        issue(j + LAG, (j + LAG) % 16)
        if (j + LAG) % 16 == 15:
            A("s_cmp_eq_u32 s%d, 1" % sIT)
            A("s_cselect_b32 s%d, s%d, s%d" % (SRD, sV, SRD))
            A("s_cselect_b32 s%d, s%d, s%d" % (SRD + 1, sV + 1, SRD + 1))
        progress(j)
        kdot(j, j)
    kreduce()
    A("s_sub_u32 s%d, s%d, 1" % (sIT, sIT))
    A("s_cmp_lg_u32 s%d, 0" % sIT)
    A("s_cbranch_scc1 L_kloop")

    C("softmax over this wave's 256 keys: true max m, p = exp2(s*c - m*c), l = sum p")
    stamp(3)
    jitter()
    m, l = vU, vU + 6
    A("v_max3_f32 v%d, v%d, v%d, v%d" % (m, vS, vS + 1, vS + 2))
    A("v_max3_f32 v%d, v%d, v%d, v%d" % (m, m, vS + 3, vS + 4))
    A("v_max3_f32 v%d, v%d, v%d, v%d" % (m, m, vS + 5, vS + 6))
    A("v_max_f32 v%d, v%d, v%d" % (m, m, vS + 7))
    rowreduce("v_max_f32", m)
    swapreduce("v_max_f32", m, vU + 1, "v_permlane32_swap_b32")
    A("v_mul_f32 v%d, s%d, v%d" % (vU + 4, sCS, m))
    for k in range(NB):
        A("v_fma_f32 v%d, v%d, s%d, -v%d" % (vS + k, vS + k, sCS, vU + 4))
    for k in range(NB):
        A("v_exp_f32 v%d, v%d" % (vS + k, vS + k))
    A("v_add_f32 v%d, v%d, v%d" % (l, vS, vS + 1))
    for k in range(2, NB):
        A("v_add_f32 v%d, v%d, v%d" % (l, l, vS + k))
    for k in range(NB):
        A("v_cvt_pk_bf16_f32 v%d, v%d, v%d" % (vS + k, vS + k, vS + k))
    rowreduce("v_add_f32", l)
    swapreduce("v_add_f32", l, vU + 1, "v_permlane32_swap_b32")
    A("v_mov_b32 v%d, 1" % (vU + 5))
    A("v_mov_b32 v%d, 1" % (vU + 7))
    A("v_lshlrev_b32 v%d, 2, v%d" % (vU + 1, vMA))
    A("ds_write_b128 v%d, v[%d:%d] offset:%d" % (vU + 1, vU + 4, vU + 7, L_STAT))

    C("V loop: o += p.V, one 16x16x32 MFMA per KiB (A = p on a shifted diagonal)")
    JD = 16 - LAG
    mfma = lambda a, b: A("v_mfma_f32_16x16x32_bf16 v[%d:%d], v[%d:%d], v[%d:%d], v[%d:%d]" %
                          (vO, vO + 3, a, a + 3, b, b + 3, vO, vO + 3))
    def builda(dst, j):
        for r in range(4):
            A("v_and_b32_dpp v%d, v%d, v%d row_newbcast:%d %s" % (dst + r, vS, vMK + r, j, DPP))
    if wpf:
        A("s_lshr_b32 s%d, s%d, 4" % (sBASE, sGRP))
        A("s_lshl_b32 s%d, s%d, 3" % (sBASE, sBASE))
        A("s_add_u32 s%d, s%d, s%d" % (sBASE, sBASE, sC))
        A("s_lshl_b32 s%d, s%d, 2" % (sBASE, sBASE))
        A("s_add_u32 s%d, s%d, s3" % (sBASE, sBASE))
        A("s_and_b32 s%d, s%d, 15" % (sTMP, sGRP))
        A("s_lshl_b32 s%d, s%d, 6" % (sTMP, sTMP))
        A("s_add_u32 s%d, s%d, s%d" % (sBASE, sBASE, sTMP))
        A("s_mul_i32 s%d, s%d, 3584" % (sBASE, sBASE))
    A("s_mov_b32 s%d, %d" % (sIT, NB))
    LB("L_vloop")
    for j in range(16):
        if j == JD:
            A("s_sub_u32 s%d, s%d, 1" % (sIT, sIT))
            A("s_cmp_eq_u32 s%d, 0" % sIT)
            A("s_cbranch_scc1 L_drain")
        builda(vA, j)
        checkpoint(j)
        if eb >= 0 and j % cper == 0 and eb <= j < JD:
            A("s_cmp_eq_u32 s%d, 1" % sIT)
            A("s_cselect_b32 s%d, 0x%x, 0" % (sTMP, pat(ebl, NF)))
            A("s_or_b32 s%d, s%d, s%d" % (sMODE, sMODE, sTMP))
        pace(j)
        issue(j + LAG, (j + LAG) % 16)
        mfma(vA, slot(j))
        progress(j)
    for k in range(NB - 1):
        A("v_mov_b32 v%d, v%d" % (vS + k, vS + k + 1))
    A("s_branch L_vloop")

    LB("L_drain")
    C("every load is issued: prepare everything the tail needs while the last ones land")
    def signal():
        A("v_mov_b32 v%d, %d" % (vCNT, TOTAL))
        A("ds_write_b32 v%d, v%d offset:%d" % (vPA, vCNT, L_PROG))
    jitter()
    A("v_mov_b32 v%d, 0" % vZ)
    PF = 4 if wpf else 0
    if wpf:
        C("pull this wave's 1/64 of the head's wo rows into L2 with contiguous reads")
        A("s_mov_b32 s%d, s%d" % (SRD, sWO))
        A("s_mov_b32 s%d, s%d" % (SRD + 1, sWO + 1))
        A("s_mov_b32 s%d, %d" % (SRD + 2, 4096 * 896))
        for i in range(4):
            if wpf > 1:
                A("s_waitcnt vmcnt(%d)" % (wpf - 1))
            if i == 3:
                A("s_mov_b32 exec_hi, 0")
            A("buffer_load_dwordx4 v[%d:%d], v%d, s[%d:%d], s%d offen offset:%d nt" % (slot(i), slot(i) + 3, vOFF, SRD, SRD + 3, sBASE, 1024 * i))
        A("s_mov_b32 exec_hi, -1")
    if wsig:
        A("s_waitcnt vmcnt(%d)" % (LAG - wsig + PF))
    signal()
    A("s_mov_b32 s%d, %d" % (sSPIN, spin * 16))
    LB("L_parw")
    A("ds_read_b128 v[%d:%d], v%d offset:%d" % (PAR + 4, PAR + 7, vZ, L_PAR + 16))
    A("ds_read_b128 v[%d:%d], v%d offset:%d" % (PAR, PAR + 3, vZ, L_PAR))
    spin_dec()
    A("s_waitcnt lgkmcnt(0)")
    A("s_cbranch_scc1 L_parok")
    A("v_cmp_eq_u32 vcc, 0, v%d" % (PAR + 6))
    A("s_cbranch_vccnz L_parw")
    LB("L_parok")
    A("v_readfirstlane_b32 s%d, v%d" % (sTAG, PAR + 4))
    A("v_readfirstlane_b32 s%d, v%d" % (sSAME, PAR + 5))
    for j in range(JD, 16):
        builda(AD + 4 * (j - JD), j)
    if not es:
        tail_setup()
    tagbytes(sT, sTAG)
    A("v_add_u32 v%d, v%d, v%d" % (rV, rV, PAR + 7))
    A("s_mov_b32 s%d, %d" % (sSPIN, spin))
    A("s_cmp_eq_u32 s%d, 0" % sSAME)
    for j in range(JD, 16):
        A("s_waitcnt vmcnt(%d)" % (15 - j + PF))
        mfma(AD + 4 * (j - JD), slot(j))
    C("the last wave to arrive scales, sums and publishes the workgroup's o (one LDS round trip)")
    A("s_nop 7")
    jitter()
    A("ds_write_b128 v%d, v[%d:%d] offset:%d" % (rW, vO, vO + 3, L_O))
    A("ds_add_rtn_u32 v%d, v%d, v%d offset:%d" % (vRET, rCA, vONE, L_CNT))
    for w in range(NW):
        A("ds_read_b128 v[%d:%d], v%d offset:%d" % (OR + 4 * w, OR + 4 * w + 3, vOFF, L_O + 1024 * w))
    stamp(4)
    A("s_waitcnt lgkmcnt(4)")
    A("v_cmp_eq_u32 vcc, 3, v%d" % vRET)
    A("s_cbranch_vccz L_notlast")
    for w in range(NW):
        A("s_waitcnt lgkmcnt(%d)" % (NW - 1 - w))
        if pk:
            for q in range(2):
                d, o_ = vO + 2 * q, OR + 4 * w + 2 * q
                f = PAR + (w & ~1)
                sel = "op_sel:[0,%d%s] op_sel_hi:[1,%d%s]" % (w & 1, "" if w == 0 else ",0", w & 1, "" if w == 0 else ",1")
                if w == 0:
                    A("v_pk_mul_f32 v[%d:%d], v[%d:%d], v[%d:%d] %s" % (d, d + 1, o_, o_ + 1, f, f + 1, sel))
                else:
                    A("v_pk_fma_f32 v[%d:%d], v[%d:%d], v[%d:%d], v[%d:%d] %s" % (d, d + 1, o_, o_ + 1, f, f + 1, d, d + 1, sel))
        else:
            for r in range(4):
                A("%s v%d, v%d, v%d" % ("v_mul_f32" if w == 0 else "v_fmac_f32", vO + r, PAR + w, OR + 4 * w + r))
    for r in range(4):
        A("v_perm_b32 v%d, v%d, v%d, s%d" % (vO + r, vO + r, PAR + 4, sSEL + r))
    jitter()
    dual_store(vO, vOFF, sO1W)
    stamp(6)
    LB("L_notlast")
    if b2:
        A("s_barrier")
    A("s_cmp_eq_u32 s%d, 99" % sU)
    A("s_cbranch_scc1 L_fin")
    A("s_cmp_ge_u32 s%d, 14" % sU)
    A("s_barrier")
    A("s_cbranch_scc1 L_fin")
    jitter()
    ya, yr = vT, vT + 4
    LB("L_rpoll")
    A("buffer_load_dwordx4 v[%d:%d], v%d, s[%d:%d], s%d offen sc1" % (ya, ya + 3, rV, WSR, WSR + 3, sYA))
    spin_dec()
    A("s_cbranch_scc1 L_fin")
    A("s_waitcnt vmcnt(0)")
    for r in range(4):
        A("v_xor_b32 v%d, s%d, v%d" % (ya + r, sT + r, ya + r))
    A("v_or3_b32 v%d, v%d, v%d, v%d" % (rT, ya, ya + 1, ya + 2))
    A("v_or_b32 v%d, v%d, v%d" % (rT, rT, ya + 3))
    A("v_cmp_ne_u32_sdwa vcc, v%d, 0 src0_sel:BYTE_0 src1_sel:DWORD" % rT)
    A("s_wqm_b64 exec, vcc" if wqm else "s_and_b64 exec, exec, vcc")
    A("s_cbranch_scc1 L_rpoll")
    A("s_mov_b64 exec, -1")
    stamp(5)
    A("v_permlane32_swap_b32 v%d, v%d" % (ya, ya + 1))
    A("v_permlane32_swap_b32 v%d, v%d" % (ya + 2, ya + 3))
    A("v_add_f32 v%d, v%d, v%d" % (ya, ya, ya + 1))
    A("v_add_f32 v%d, v%d, v%d" % (ya + 2, ya + 2, ya + 3))
    A("s_nop 1")
    A("v_permlane16_swap_b32 v%d, v%d" % (ya, ya + 2))
    A("v_add_f32 v%d, v%d, v%d" % (ya, ya, ya + 2))
    jitter()
    A("ds_write_b32 v%d, v%d offset:%d" % (vPA, ya, L_R))
    A("ds_add_rtn_u32 v%d, v%d, v%d offset:%d" % (vRET, rCA, vONE, L_CNT + 512))
    for w in range(NW):
        A("ds_read_b32 v%d, v%d offset:%d" % (yr + w, rCA, L_R + 256 * w))
    A("s_waitcnt lgkmcnt(0)")
    A("v_cmp_eq_u32 vcc, 3, v%d" % vRET)
    A("v_add_f32 v%d, v%d, v%d" % (yr, yr, yr + 1))
    A("v_add_f32 v%d, v%d, v%d" % (yr + 2, yr + 2, yr + 3))
    A("v_add_f32 v%d, v%d, v%d" % (yr, yr, yr + 2))
    A("s_cbranch_vccz L_fin")
    A("s_nop 0")
    A("v_add_f32_dpp v%d, v%d, v%d row_ror:8 %s" % (yr, yr, yr, DPP))
    A("s_mov_b32 exec_lo, 0x00ff00ff")
    A("s_mov_b32 exec_hi, 0x00ff00ff")
    A("v_cvt_pk_bf16_f32 v%d, v%d, v%d" % (yr, yr, yr))
    A("buffer_store_short v%d, v%d, s[%d:%d], s%d offen" % (yr, rO, SR2, SR2 + 3, sOO))
    stamp(7)
    if md:
        A("s_waitcnt vmcnt(0)")
        A("s_sleep %d" % md)
    A("s_branch L_fin")

    LB("L_helper")
    C("==== helper waves")
    hL, hG, hJ = 0, 1, 2
    hU = 4
    hZ, hTAG = hU + 10, hU + 9
    hX = 16
    hSEL, hA, hD, hMK, hP, hW = 32, 36, 40, 44, 48, 64
    sHW = 39
    A("s_sub_u32 s%d, s3, %d" % (sHW, NW))
    A("v_lshrrev_b32 v%d, 4, v%d" % (hG, hL))
    A("v_and_b32 v%d, 15, v%d" % (hJ, hL))
    A("v_mov_b32 v%d, 0" % hZ)
    A("s_lshr_b32 s%d, s%d, 4" % (sB, sGRP))
    A("s_and_b32 s%d, s%d, 15" % (sH, sGRP))
    A("s_mov_b32 s%d, %d" % (SRD + 2, 448 * 8192))
    selectors()
    A("s_cmp_lg_u32 s%d, 0" % sHW)
    A("s_cbranch_scc1 L_h_other")

    C("helper 0: one 112-row x 64-column tile of q = x @ wq for this head, both batches")
    sTILE, sRQ, sCSL, sQW, sQR, sQT = 87, sTMP + 1, sTMP + 2, 94, 95, sF
    for r in range(4):
        A("v_mov_b32 v%d, 0" % (hD + r))
    A("v_lshlrev_b32 v%d, 4, v%d" % (hU + 8, hL))
    A("ds_write_b128 v%d, v[%d:%d] offset:%d" % (hU + 8, hD, hD + 3, L_CLR))
    A("ds_write_b128 v%d, v[%d:%d] offset:%d" % (hU + 8, hD, hD + 3, L_PROG))
    A("v_mul_u32_u24 v%d, %d, v%d" % (hU, 28 * 8192, hG))
    A("v_lshl_add_u32 v%d, v%d, 3, v%d" % (hU, hJ, hU))
    A("v_bfe_u32 v%d, v%d, 2, 1" % (hU + 1, hL))
    A("v_mul_u32_u24 v%d, 896, v%d" % (hU + 1, hU + 1))
    A("v_mul_u32_u24 v%d, 56, v%d" % (hU + 2, hG))
    A("v_add_u32 v%d, v%d, v%d" % (hU + 1, hU + 1, hU + 2))
    A("s_lshl_b32 s%d, s%d, 3" % (sTILE, sB))
    A("s_add_u32 s%d, s%d, s%d" % (sTILE, sTILE, sC))
    A("s_lshl_b32 s%d, s%d, 13" % (sQW, sH))
    A("s_add_u32 s%d, s%d, %d" % (sQW, sQW, WS_Q))
    A("s_mov_b32 s%d, 1" % sSAME)
    A("s_mov_b32 s%d, 1792" % (SR2 + 2))
    A("s_getreg_b32 s%d, hwreg(HW_REG_XCC_ID, 0, 4)" % (sTMP + 3))
    A("s_waitcnt lgkmcnt(0)")
    A("s_load_dword s%d, s[%d:%d], %d" % (sTAG, sWS, sWS + 1, WS_EPOCH))
    A("s_mov_b32 s%d, s%d" % (SR2, sX))
    A("s_mov_b32 s%d, s%d" % (SR2 + 1, sX + 1))
    if now & 1:
        A("s_mov_b32 s%d, 0" % (SRD + 2))
    A("s_mov_b32 s%d, s%d" % (SRD, sWQ))
    A("s_mov_b32 s%d, s%d" % (SRD + 1, sWQ + 1))
    A("s_mov_b32 s%d, s%d" % (WSR, sWS))
    A("s_mov_b32 s%d, s%d" % (WSR + 1, sWS + 1))
    A("s_barrier")
    LB("L_tile")
    A("s_lshr_b32 s%d, s%d, 2" % (sRQ, sTILE))
    A("s_and_b32 s%d, s%d, 3" % (sCSL, sTILE))
    A("s_mul_i32 s%d, s%d, %d" % (sOFF, sRQ, 112 * 8192))
    A("s_lshl_b32 s%d, s%d, 9" % (sIT, sH))
    A("s_add_u32 s%d, s%d, s%d" % (sOFF, sOFF, sIT))
    A("s_lshl_b32 s%d, s%d, 7" % (sIT, sCSL))
    A("s_add_u32 s%d, s%d, s%d" % (sOFF, sOFF, sIT))
    A("s_mul_i32 s%d, s%d, 224" % (sBASE, sRQ))
    for q in range(3):
        A("buffer_load_dwordx4 v[%d:%d], v%d, s[%d:%d], s%d offen offset:%d" % (hX + 4 * q, hX + 4 * q + 3, hU + 1, SR2, SR2 + 3, sBASE, 16 * q))
    A("buffer_load_dwordx2 v[%d:%d], v%d, s[%d:%d], s%d offen offset:48" % (hX + 12, hX + 13, hU + 1, SR2, SR2 + 3, sBASE))
    for n in range(28):
        A("buffer_load_dwordx2 v[%d:%d], v%d, s[%d:%d], s%d offen nt" % (hW + 2 * n, hW + 2 * n + 1, hU, SRD, SRD + 3, sOFF))
        if n < 27:
            A("s_add_u32 s%d, s%d, 8192" % (sOFF, sOFF))
    A("s_cmp_eq_u32 s%d, 0" % sSAME)
    A("s_cbranch_scc1 L_tile_go")
    C("first pass only: byte selectors (row i<8, element i&3), launch tag")
    A("v_and_b32 v%d, 1, v%d" % (hU + 2, hL))
    A("v_lshlrev_b32 v%d, 4, v%d" % (hU + 2, hU + 2))
    A("v_and_b32 v%d, 10, v%d" % (hU + 3, hL))
    A("v_mov_b32 v%d, 0x0c0c0c0c" % (hU + 6))
    for par, src in ((0, 0x0100), (1, 0x0302)):
        A("v_mov_b32 v%d, 0x%x" % (hU + 4, src ^ 0x0c0c))
        A("v_lshlrev_b32 v%d, v%d, v%d" % (hU + 4, hU + 2, hU + 4))
        A("v_xor_b32 v%d, v%d, v%d" % (hU + 4, hU + 6, hU + 4))
        for r in range(2):
            A("v_cmp_eq_u32 vcc, %d, v%d" % (2 * r, hU + 3))
            A("s_nop 1")
            A("v_cndmask_b32 v%d, v%d, v%d, vcc" % (hSEL + 2 * par + r, hU + 6, hU + 4))
    A("v_mov_b32 v%d, 0x%x" % (hU + 4, pat(lv0 + (lq + 2) // 4, NF)))
    A("v_and_b32 v%d, 12, v%d" % (hU + 2, hL))
    A("ds_write_b32 v%d, v%d offset:%d" % (hU + 2, hU + 4, L_MODE))
    A("s_waitcnt lgkmcnt(0)")
    A("s_add_u32 s%d, s%d, 0x01011001" % (sTAG, sTAG))
    A("v_mov_b32 v%d, s%d" % (hTAG, sTAG))
    A("ds_write_b32 v%d, v%d offset:%d" % (hZ, hTAG, L_TAG))
    tagbytes(sT, sTAG)
    A("s_lshl_b32 s%d, s%d, 8" % (sIT, sTMP + 3))
    A("s_xor_b32 s%d, s%d, s%d" % (sIT, sIT, sTAG))
    A("v_mov_b32 v%d, s%d" % (hU + 6, sIT))
    tagbytes(sQT, sIT)
    LB("L_tile_go")
    for r in range(4):
        A("v_mov_b32 v%d, 0" % (hD + r))
    A("s_lshl_b32 s%d, s%d, 8" % (sOFF, sTILE))
    A("s_add_u32 s%d, s%d, s%d" % (sOFF, sOFF, sQW))
    A("v_lshlrev_b32 v%d, 12, v%d" % (hU + 7, hG))
    A("v_lshl_add_u32 v%d, v%d, 4, v%d" % (hU + 7, hJ, hU + 7))
    A("s_lshl_b32 s%d, s%d, 12" % (sQR, sB))
    A("s_add_u32 s%d, s%d, s%d" % (sQR, sQR, sQW))
    A("s_waitcnt vmcnt(28)")
    for n in range(0, 28, 2):
        a = hA if n & 2 else hMK
        for e in range(2):
            for r in range(2):
                A("v_perm_b32 v%d, v%d, v%d, v%d" % (a + 2 * e + r, hX + (n >> 1), hX + (n >> 1), hSEL + 2 * e + r))
        A("s_waitcnt vmcnt(%d)" % (26 - n))
        A("s_nop 0")
        A("v_mfma_f32_16x16x32_bf16 v[%d:%d], v[%d:%d], v[%d:%d], v[%d:%d]" %
          (hD, hD + 3, a, a + 3, hW + 2 * n, hW + 2 * n + 3, hD, hD + 3))
    A("s_nop 7")
    for r in range(4):
        A("v_perm_b32 v%d, v%d, v%d, s%d" % (hMK + r, hD + r, hU + 6, sSEL + r))
    jitter()
    A("s_mov_b32 exec_hi, 0")
    A("buffer_store_dwordx4 v[%d:%d], v%d, s[%d:%d], s%d offen" % (hMK, hMK + 3, hU + 7, WSR, WSR + 3, sOFF))
    A("s_mov_b32 exec_hi, -1")
    stamp(1)
    A("s_mov_b32 s%d, %d" % (sSPIN, qtry))
    A("s_cmp_lg_u32 s%d, 0" % sSAME)
    A("s_cbranch_scc1 %s" % ("L_qfail" if force_slow else "L_qpoll"))
    A("s_waitcnt vmcnt(0)")
    A("s_add_u32 s%d, s%d, 1" % (sTILE, sTILE))
    A("s_cmp_lt_u32 s%d, 16" % sTILE)
    A("s_cbranch_scc1 L_tile")
    A("s_mov_b32 s%d, %d" % (sSPIN, spin))
    LB("L_qpoll")
    for q in range(4):
        A("buffer_load_dwordx4 v[%d:%d], v%d, s[%d:%d], s%d offen offset:%d sc1" % (hP + 4 * q, hP + 4 * q + 3, hU + 8, WSR, WSR + 3, sQR, 1024 * q))
    A("s_waitcnt vmcnt(0)")
    for q in range(4):
        for r in range(4):
            A("v_xor_b32 v%d, s%d, v%d" % (hP + 4 * q + r, sQT + r, hP + 4 * q + r))
    A("v_or3_b32 v%d, v%d, v%d, v%d" % (hU + 11, hP, hP + 1, hP + 2))
    for k in range(3, 15, 2):
        A("v_or3_b32 v%d, v%d, v%d, v%d" % (hU + 11, hU + 11, hP + k, hP + k + 1))
    A("v_or_b32 v%d, v%d, v%d" % (hU + 11, hU + 11, hP + 15))
    A("v_cmp_ne_u32_sdwa vcc, v%d, 0 src0_sel:BYTE_0 src1_sel:DWORD" % (hU + 11))
    A("s_cbranch_vccz L_qgo")
    spin_dec()
    A("s_cbranch_scc0 L_qpoll")
    A("s_cmp_eq_u32 s%d, 0" % sSAME)
    A("s_cbranch_scc1 L_qgo")
    LB("L_qfail")
    C("some producer of this head is not behind our L2 (or is very late): compute all 16 tiles here")
    A("s_waitcnt vmcnt(0)")
    A("s_mov_b32 s%d, 0" % sSAME)
    A("s_mov_b32 s%d, 0" % sTILE)
    A("s_lshl_b32 s%d, s2, 13" % sQW)
    A("s_add_u32 s%d, s%d, %d" % (sQW, sQW, WS_QP))
    A("s_branch L_tile")
    LB("L_qgo")
    for r in range(4):
        A("v_add_f32 v%d, v%d, v%d" % (hP + r, hP + r, hP + 4 + r))
        A("v_add_f32 v%d, v%d, v%d" % (hP + 8 + r, hP + 8 + r, hP + 12 + r))
    for r in range(4):
        A("v_add_f32 v%d, v%d, v%d" % (hP + r, hP + r, hP + 8 + r))
    A("v_cvt_pk_bf16_f32 v%d, v%d, v%d" % (hP, hP, hP + 1))
    A("v_cvt_pk_bf16_f32 v%d, v%d, v%d" % (hP + 1, hP + 2, hP + 3))
    A("v_lshlrev_b32 v%d, 3, v%d" % (hU + 11, hL))
    A("v_mov_b32 v%d, 1" % (hP + 2))
    A("ds_write_b64 v%d, v[%d:%d] offset:%d" % (hU + 11, hP, hP + 1, L_Q))
    A("s_waitcnt lgkmcnt(0)")
    jitter()
    A("ds_write_b32 v%d, v%d offset:%d" % (hZ, hP + 2, L_FLAG))
    stamp(2)

    C("helper 0: softmax statistics of the (b,h) group -> per-wave factor exp2(m_w - M) / L")
    sSR, sSW = sTMP, sTMP + 1
    A("v_and_b32 v%d, 3, v%d" % (hU + 3, hL))
    A("v_lshlrev_b32 v%d, 4, v%d" % (hU + 3, hU + 3))
    A("s_lshl_b32 s%d, s%d, 10" % (sSR, sGRP))
    A("s_add_u32 s%d, s%d, %d" % (sSR, sSR, WS_STAT))
    A("s_lshl_b32 s%d, s%d, 7" % (sSW, sC))
    A("s_add_u32 s%d, s%d, s%d" % (sSW, sSW, sSR))
    A("s_mov_b32 s%d, %d" % (sSPIN, spin * 4))
    LB("L_lpoll")
    A("s_sleep 4")
    A("ds_read_b128 v[%d:%d], v%d offset:%d" % (hP, hP + 3, hU + 3, L_STAT))
    spin_dec()
    A("s_waitcnt lgkmcnt(0)")
    A("s_cbranch_scc1 L_lgo")
    A("v_cmp_eq_u32 vcc, 0, v%d" % (hP + 3))
    A("s_cbranch_vccnz L_lpoll")
    LB("L_lgo")
    A("v_mov_b32 v%d, v%d" % (hP + 1, hTAG))
    A("v_mov_b32 v%d, v%d" % (hP + 3, hTAG))
    A("s_mov_b64 exec, 15")
    A("s_cmp_eq_u32 s%d, 0" % sSAME)
    jitter()
    dual_store(hP, hU + 3, sSW)
    A("s_mov_b64 exec, -1")
    A("v_bfe_u32 v%d, v%d, 2, 3" % (hU + 4, hL))
    A("v_lshl_add_u32 v%d, v%d, 7, v%d" % (hU + 4, hU + 4, hU + 3))
    A("s_mov_b32 s%d, %d" % (sSPIN, spin))
    LB("L_spoll")
    A("s_sleep 8")
    A("buffer_load_dwordx4 v[%d:%d], v%d, s[%d:%d], s%d offen sc1" % (hP + 4, hP + 7, hU + 4, WSR, WSR + 3, sSR))
    spin_dec()
    A("s_waitcnt vmcnt(0)")
    A("s_cbranch_scc1 L_sgo")
    A("v_xor_b32 v%d, v%d, v%d" % (hP + 8, hP + 5, hTAG))
    A("v_xor_b32 v%d, v%d, v%d" % (hP + 9, hP + 7, hTAG))
    A("v_or_b32 v%d, v%d, v%d" % (hP + 8, hP + 8, hP + 9))
    A("v_cmp_ne_u32 vcc, 0, v%d" % (hP + 8))
    A("s_cbranch_vccnz L_spoll")
    C("all 8 members of this group have read the epoch; the last of the 32 groups to get here advances it")
    A("s_cmp_lg_u32 s%d, %d" % (sC, 99 if noep else 0))
    A("s_cbranch_scc1 L_sgo")
    A("s_mov_b32 s%d, 1" % sIT)
    A("s_atomic_add s%d, s[%d:%d], 0 glc" % (sIT, sDBG, sDBG + 1))
    A("s_waitcnt lgkmcnt(0)")
    A("s_cmp_lg_u32 s%d, 31" % sIT)
    A("s_cbranch_scc1 L_sgo")
    A("s_mov_b64 exec, 1")
    A("buffer_store_dword v%d, v%d, s[%d:%d], 0 offen" % (hTAG, hZ, WSR, WSR + 3))
    A("s_mov_b64 exec, -1")
    LB("L_sgo")
    stamp(3)
    A("v_mov_b32 v%d, v%d" % (hP + 8, hP + 4))
    rowreduce("v_max_f32", hP + 8)
    swapreduce("v_max_f32", hP + 8, hP + 9, "v_permlane16_swap_b32")
    A("v_sub_f32 v%d, v%d, v%d" % (hP + 8, hP + 4, hP + 8))
    A("v_exp_f32 v%d, v%d" % (hP + 8, hP + 8))
    A("s_nop 0")
    A("v_mul_f32 v%d, v%d, v%d" % (hP + 10, hP + 8, hP + 6))
    rowreduce("v_add_f32", hP + 10)
    swapreduce("v_add_f32", hP + 10, hP + 9, "v_permlane16_swap_b32")
    A("v_rcp_f32 v%d, v%d" % (hP + 10, hP + 10))
    A("v_lshrrev_b32 v%d, 2, v%d" % (hU + 3, hU + 3))
    A("v_mul_f32 v%d, v%d, v%d" % (hP + 8, hP + 8, hP + 10))
    A("s_lshl_b32 s%d, s%d, 2" % (sIT, sC))
    A("s_lshl_b64 exec, 15, s%d" % sIT)
    A("ds_write_b32 v%d, v%d offset:%d" % (hU + 3, hP + 8, L_PAR))
    A("s_mov_b64 exec, -1")
    A("v_mov_b32 v%d, v%d" % (hP + 12, hTAG))
    A("v_mov_b32 v%d, s%d" % (hP + 13, sSAME))
    A("v_mov_b32 v%d, 1" % (hP + 14))
    if yp:
        A("s_load_dword s%d, s[%d:%d], %d" % (sIT, sWS, sWS + 1, WS_YP))
        A("s_mov_b32 s%d, %d" % (sSPIN, spin))
        LB("L_ypw")
        A("s_waitcnt lgkmcnt(0)")
        A("s_xor_b32 s%d, s%d, s%d" % (sTMP, sIT, sTAG))
        A("s_andn2_b32 s%d, s%d, 0x100" % (sTMP + 1, sTMP))
        A("s_cbranch_scc0 L_ypok")
        spin_dec()
        A("s_cbranch_scc1 L_ypok")
        A("s_sleep 32")
        A("s_mov_b32 s%d, %d" % (sTMP, WS_YP))
        A("buffer_load_dword v%d, v%d, s[%d:%d], s%d offen sc1" % (hP + 15, hZ, WSR, WSR + 3, sTMP))
        A("s_waitcnt vmcnt(0)")
        A("v_readfirstlane_b32 s%d, v%d" % (sIT, hP + 15))
        A("s_branch L_ypw")
        LB("L_ypok")
        A("s_and_b32 s%d, s%d, 0x100" % (sTMP, sTMP))
        A("s_lshl_b32 s%d, s%d, 5" % (sTMP, sTMP))
        A("v_mov_b32 v%d, s%d" % (hP + 15, sTMP))
    else:
        A("v_mov_b32 v%d, 0" % (hP + 15))
    A("s_waitcnt lgkmcnt(0)")
    jitter()
    A("ds_write_b128 v%d, v[%d:%d] offset:%d" % (hZ, hP + 12, hP + 15, L_PAR + 16))
    A("s_branch L_h_common")

    LB("L_h_other")
    A("s_barrier")
    A("s_waitcnt lgkmcnt(0)")
    A("s_mov_b32 s%d, s%d" % (WSR, sWS))
    A("s_mov_b32 s%d, s%d" % (WSR + 1, sWS + 1))
    if peek >= 0:
        C("DIAGNOSTIC ONLY: show entry contents of d_ws")
        A("s_lshl_b32 s%d, s2, 2" % sIT)
        A("s_add_u32 s%d, s%d, s%d" % (sIT, sIT, sHW))
        A("s_cmp_lg_u32 s%d, 2" % sIT)
        A("s_cbranch_scc1 L_nopeek")
        A("v_lshlrev_b32 v%d, 2, v%d" % (hP, hL))
        A("s_mov_b32 s%d, %d" % (sIT, peek))
        A("s_mov_b64 exec, 0x7fff")
        A("buffer_load_dword v%d, v%d, s[%d:%d], s%d offen" % (hP + 1, hP, WSR, WSR + 3, sIT))
        A("s_waitcnt vmcnt(0)")
        A("global_store_dword v%d, v%d, s[%d:%d] offset:4" % (hP, hP + 1, sDBG, sDBG + 1))
        A("s_mov_b64 exec, -1")
        LB("L_nopeek")
    if yp:
        C("workgroup %d: which half of the y blocks answers this die first? (race of two uncached loads, majority vote)" % rcls)
        A("s_lshl_b32 s%d, s2, 2" % sIT)
        A("s_add_u32 s%d, s%d, s%d" % (sIT, sIT, sHW))
        A("s_cmp_lg_u32 s%d, %d" % (sIT, 4 * rcls + 3))
        A("s_cbranch_scc1 L_norace")
        sA0, sA1, sV0, sV1, sN0, sN1, sVT = sTMP, sTMP + 1, sF, sF + 1, sF + 2, sF + 3, sF + 4
        A("s_mov_b32 s%d, %d" % (sA0, WS_Y + 14 * 16384))
        A("s_mov_b32 s%d, 0" % sVT)
        A("s_mov_b32 s%d, %d" % (sIT, ypn // 2))
        LB("L_race")
        A("s_xor_b32 s%d, s%d, 8192" % (sA1, sA0))
        A("s_load_dword s%d, s[%d:%d], s%d glc" % (sN0, sWS, sWS + 1, sA0))
        A("s_load_dword s%d, s[%d:%d], s%d glc" % (sN1, sWS, sWS + 1, sA1))
        A("s_waitcnt lgkmcnt(0)")
        for first in (0, 1):
            A("s_not_b32 s%d, s%d" % (sV0, sN0))
            A("s_not_b32 s%d, s%d" % (sV1, sN1))
            for e in (first, 1 - first):
                A("s_load_dword s%d, s[%d:%d], s%d glc" % ((sV0, sV1)[e], sWS, sWS + 1, (sA0, sA1)[e]))
            A("s_waitcnt lgkmcnt(1)")
            A("s_cmp_lg_u32 s%d, s%d" % (sV0, sN0))
            A("s_addc_u32 s%d, s%d, 0" % (sVT, sVT))
            A("s_cmp_lg_u32 s%d, s%d" % (sV1, sN1))
            A("s_subb_u32 s%d, s%d, 0" % (sVT, sVT))
            A("s_waitcnt lgkmcnt(0)")
        A("s_add_u32 s%d, s%d, %d" % (sA0, sA0, 4096 + 256))
        A("s_and_b32 s%d, s%d, %d" % (sA0, sA0, ~8192 & 0xffffffff))
        A("s_sub_u32 s%d, s%d, 1" % (sIT, sIT))
        A("s_cmp_lg_u32 s%d, 0" % sIT)
        A("s_cbranch_scc1 L_race")
        LB("L_norace")
    A("s_mov_b32 s%d, %d" % (sSPIN, spin * 4))
    LB("L_hwait")
    A("s_sleep 8")
    A("ds_read_b64 v[%d:%d], v%d offset:%d" % (hP, hP + 1, hZ, L_TAG))
    spin_dec()
    A("s_waitcnt lgkmcnt(0)")
    A("s_cbranch_scc1 L_hok")
    A("v_cmp_eq_u32 vcc, 0, v%d" % (hP + 1))
    A("s_cbranch_vccnz L_hwait")
    LB("L_hok")
    A("v_readfirstlane_b32 s%d, v%d" % (sTAG, hP))
    A("v_mov_b32 v%d, v%d" % (hTAG, hP))
    tagbytes(sT, sTAG)
    jitter()
    A("s_cmp_eq_u32 s%d, 1" % sHW)
    A("s_cbranch_scc1 L_ctl0")
    C("helpers 2,3 read the hand-off lines once over the scalar path so the final polls find them in L2")
    A("s_cmp_eq_u32 s%d, 2" % sHW)
    A("s_cbranch_scc1 L_spt2")
    A("s_and_b32 s%d, s2, 7" % sIT)
    A("s_cmp_lg_u32 s%d, %d" % (sIT, rcls))
    A("s_cbranch_scc1 L_h_common")
    if yp:
        A("s_cmp_lg_u32 s2, %d" % rcls)
        A("s_cbranch_scc1 L_nopub")
        A("s_cmp_gt_i32 s%d, 0" % sVT)
        A("s_cselect_b32 s%d, 0x100, 0" % sIT)
        A("s_xor_b32 s%d, s%d, s%d" % (sIT, sIT, sTAG))
        A("v_mov_b32 v%d, s%d" % (hP, sIT))
        A("s_mov_b32 s%d, %d" % (sIT, WS_YP))
        A("s_mov_b64 exec, 1")
        A("buffer_store_dword v%d, v%d, s[%d:%d], s%d offen sc1" % (hP, hZ, WSR, WSR + 3, sIT))
        if ydbg:
            A("v_mov_b32 v%d, s%d" % (hP + 1, sVT))
            A("global_store_dword v%d, v%d, s[%d:%d] offset:8" % (hZ, hP + 1, sDBG, sDBG + 1))
        A("s_mov_b64 exec, -1")
        LB("L_nopub")
    A("s_lshr_b32 s%d, s2, 4" % sIT)
    A("s_lshl_b32 s%d, s%d, %d" % (sTMP, sIT, 13 + yk))
    A("s_bfe_u32 s%d, s2, 0x10003" % sIT)
    A("s_lshl_b32 s%d, s%d, 7" % (sIT, sIT))
    A("s_add_u32 s%d, s%d, s%d" % (sTMP, sTMP, sIT))
    A("s_add_u32 s%d, s%d, %d" % (sTMP, sTMP, WS_Y + yc * 8192))
    A("s_mov_b32 s%d, %d" % (sIT, 16 if yp else 8))
    LB("L_spt1")
    for k in range(8):
        A("s_add_u32 s%d, s%d, %d" % (sTMP + 1, sTMP, (k >> 1) * 256 + (k & 1) * 64))
        A("s_load_dword s%d, s[%d:%d], s%d" % (sF + k, sWS, sWS + 1, sTMP + 1))
    A("s_add_u32 s%d, s%d, 1024" % (sTMP, sTMP))
    A("s_sub_u32 s%d, s%d, 1" % (sIT, sIT))
    A("s_cmp_lg_u32 s%d, 0" % sIT)
    A("s_waitcnt lgkmcnt(0)")
    A("s_cbranch_scc1 L_spt1")
    A("s_branch L_h_common")
    LB("L_spt2")
    if tp:
        C("first touch of the V / wo / out pages over the scalar path, long before the vector path needs them")
        A("s_lshl_b32 s%d, s%d, 1" % (sTMP, sGRP))
        A("s_lshr_b32 s%d, s%d, 2" % (sIT, sC))
        A("s_add_u32 s%d, s%d, s%d" % (sTMP, sTMP, sIT))
        A("s_lshl_b32 s%d, s%d, 21" % (sTMP, sTMP))
        A("s_load_dword s%d, s[%d:%d], s%d" % (sF, sV, sV + 1, sTMP))
        A("s_mul_i32 s%d, s%d, %d" % (sTMP + 1, sH, 256 * 896))
        A("s_load_dword s%d, s[%d:%d], s%d" % (sF + 1, sWO, sWO + 1, sTMP + 1))
        A("s_add_u32 s%d, s%d, %d" % (sTMP + 2, sTMP + 1, 256 * 896 - 4))
        A("s_load_dword s%d, s[%d:%d], s%d" % (sF + 2, sWO, sWO + 1, sTMP + 2))
        A("s_load_dword s%d, s[%d:%d], 0" % (sF + 3, sOUT, sOUT + 1))
        A("s_waitcnt lgkmcnt(0)")
    A("s_lshl_b32 s%d, s%d, 3" % (sTMP, sGRP))
    A("s_add_u32 s%d, s%d, s%d" % (sTMP, sTMP, sC))
    A("s_lshl_b32 s%d, s%d, 10" % (sTMP, sTMP))
    A("s_add_u32 s%d, s%d, %d" % (sTMP, sTMP, WS_O1))
    A("s_mov_b32 s%d, 2" % sIT)
    LB("L_spt3")
    for k in range(8):
        A("s_load_dword s%d, s[%d:%d], s%d" % (sF + k, sWS, sWS + 1, sTMP))
        A("s_add_u32 s%d, s%d, 64" % (sTMP, sTMP))
    A("s_sub_u32 s%d, s%d, 1" % (sIT, sIT))
    A("s_cmp_lg_u32 s%d, 0" % sIT)
    A("s_waitcnt lgkmcnt(0)")
    A("s_cbranch_scc1 L_spt3")
    if rk:
        C("four workgroups per class take a ticket at their own progress marks; a ticket is the arrival rank among the")
        C("8 classes (counted from the value found before the round, every round on a line of its own) and trims the set point")
        RST = 4096 + 256
        sBD, sTG2, sMK, sCA, sBS = sTMP, sTMP + 1, sTMP + 2, sTMP + 3, sTMP + 4
        A("s_cmp_lg_u32 s%d, 0" % sC)
        A("s_cbranch_scc1 L_h_common")
        A("v_and_b32 v%d, 3, v%d" % (hP + 1, hL))
        A("v_mul_u32_u24 v%d, 260, v%d" % (hP + 1, hP + 1))
        A("s_lshr_b32 s%d, s2, 6" % sIT)
        A("s_mul_i32 s%d, s%d, %d" % (sMK, sIT, rm1 if rs else 0))
        A("s_add_u32 s%d, s%d, %d" % (sMK, sMK, 4 * rm0))
        A("s_mul_i32 s%d, s%d, %d" % (sCA, sIT, RST if rs else 0))
        A("s_add_u32 s%d, s%d, %d" % (sCA, sCA, WS_RK))
        A("s_and_b32 s%d, s2, 7" % sBD)
        A("s_lshl_b32 s%d, s%d, 6" % (sBD, sBD))
        A("s_add_u32 s%d, s%d, s%d" % (sBD, sBD, sIT))
        A("s_lshl_b32 s%d, s%d, 2" % (sBD, sBD))
        A("s_add_u32 s%d, s%d, %d" % (sBD, sBD, WS_PROG + 128))
        A("s_lshl_b32 s%d, s%d, 16" % (sTG2, sTAG))
        A("s_mov_b32 s%d, %d" % (sSPIN, spin * 16))
        LB("L_rk")
        A("s_load_dword s%d, s[%d:%d], s%d" % (sBS, sWS, sWS + 1, sCA))
        LB("L_rkw")
        A("s_sleep 1")
        A("ds_read_b32 v%d, v%d offset:%d" % (hP, hP + 1, L_PROG))
        spin_dec()
        A("s_waitcnt lgkmcnt(0)")
        A("s_cbranch_scc1 L_h_common")
        A("v_add_u32_dpp v%d, v%d, v%d quad_perm:[1,0,3,2] %s" % (hP, hP, hP, DPP))
        A("s_nop 1")
        A("v_add_u32_dpp v%d, v%d, v%d quad_perm:[2,3,0,1] %s" % (hP, hP, hP, DPP))
        A("v_cmp_gt_u32 vcc, s%d, v%d" % (sMK, hP))
        A("s_cbranch_vccnz L_rkw")
        A("s_mov_b32 s%d, 1" % sIT)
        A("s_atomic_add s%d, s[%d:%d], s%d glc" % (sIT, sWS, sWS + 1, sCA))
        A("s_waitcnt lgkmcnt(0)")
        A("s_sub_u32 s%d, s%d, s%d" % (sIT, sIT, sBS))
        A("s_and_b32 s%d, s%d, %d" % (sIT, sIT, 7 if rs else 31))
        if rs:
            A("s_lshl_b32 s%d, s%d, 2" % (sIT, sIT))
        A("s_or_b32 s%d, s%d, s%d" % (sIT, sIT, sTG2))
        A("v_mov_b32 v%d, s%d" % (hP + 2, sIT))
        A("s_mov_b64 exec, 1")
        A("buffer_store_dword v%d, v%d, s[%d:%d], s%d offen" % (hP + 2, hZ, WSR, WSR + 3, sBD))
        A("s_mov_b64 exec, -1")
        A("s_add_u32 s%d, s%d, %d" % (sCA, sCA, 4 * RST))
        A("s_add_u32 s%d, s%d, %d" % (sMK, sMK, 4 * rm1))
        A("s_cmp_lt_u32 s%d, %d" % (sMK, 4 * (TOTAL - rend)))
        A("s_cbranch_scc1 L_rk")
    A("s_branch L_h_common")

    LB("L_ctl0")
    C("helper 1: bandwidth-share feedback. Waves that trail their wg&7 class keep more loads in flight, leaders fewer,")
    C("so all workgroups finish together. It changes nothing but how many loads are outstanding.")
    cV = 96
    sPW, sPR, sTG, sPREV, sREF, sE = sF, sF + 1, sF + 2, sF + 3, sF + 4, sF + 5
    A("s_mov_b32 s%d, 0" % sPREV)
    sSET = sF + 6
    if xb:
        C("dies sit at different distances from the memory stacks: small fixed per-die trim of the set point")
        A("s_getreg_b32 s%d, hwreg(HW_REG_XCC_ID, 0, 3)" % sSET)
        A("s_lshl_b32 s%d, s%d, 2" % (sSET, sSET))
        A("s_lshr_b32 s%d, 0x%x, s%d" % (sSET, xb, sSET))
        A("s_and_b32 s%d, s%d, 15" % (sSET, sSET))
        A("s_lshl_b32 s%d, s%d, 6" % (sSET, sSET))
        A("s_add_u32 s%d, s%d, %d" % (sSET, sSET, lv0 * 512 + 256 + lq * 128 - 8 * 64))
    else:
        A("s_mov_b32 s%d, %d" % (sSET, lv0 * 512 + 256 + lq * 128))
    A("s_and_b32 s%d, s2, 7" % sPR)
    A("s_lshl_b32 s%d, s%d, 8" % (sPR, sPR))
    A("s_add_u32 s%d, s%d, %d" % (sPR, sPR, WS_PROG))
    A("s_lshr_b32 s%d, s2, 3" % sPW)
    A("s_lshl_b32 s%d, s%d, 2" % (sPW, sPW))
    A("s_add_u32 s%d, s%d, s%d" % (sPW, sPW, sPR))
    A("s_lshl_b32 s%d, s%d, 16" % (sTG, sTAG))
    if rk:
        A("v_and_b32 v%d, 35, v%d" % (cV + 1, hL))
        A("v_cmp_gt_u32 vcc, 32, v%d" % hL)
        A("s_nop 1")
        A("v_cndmask_b32 v%d, v%d, v%d, vcc" % (cV, cV + 1, hL))
    else:
        A("v_and_b32 v%d, 31, v%d" % (cV, hL))
    A("v_lshlrev_b32 v%d, 2, v%d" % (cV, cV))
    A("v_and_b32 v%d, 3, v%d" % (cV + 7, hL))
    A("v_lshlrev_b32 v%d, 2, v%d" % (cV + 8, cV + 7))
    A("v_mul_u32_u24 v%d, 260, v%d" % (cV + 7, cV + 7))
    A("v_mov_b32 v%d, 0" % (cV + 2))
    for l_ in range(1, 8 * NF + 1):
        A("s_mov_b32 s%d, 0x%x" % (sIT, pat(l_, NF)))
        A("v_writelane_b32 v%d, s%d, %d" % (cV + 2, sIT, l_))
    A("s_mov_b32 s%d, %d" % (sSPIN, spin))
    LB("L_ctl")
    A("ds_read_b32 v%d, v%d offset:%d" % (cV + 9, cV + 7, L_PROG))
    spin_dec()
    A("s_waitcnt lgkmcnt(0)")
    A("s_cbranch_scc1 L_h_common")
    A("v_add_u32_dpp v%d, v%d, v%d quad_perm:[1,0,3,2] %s" % (cV + 4, cV + 9, cV + 9, DPP))
    A("s_nop 1")
    A("v_add_u32_dpp v%d, v%d, v%d quad_perm:[2,3,0,1] %s" % (cV + 4, cV + 4, cV + 4, DPP))
    A("s_nop 0")
    A("v_readfirstlane_b32 s%d, v%d" % (sIT, cV + 4))
    A("v_or_b32 v%d, s%d, v%d" % (cV + 4, sTG, cV + 4))
    A("s_add_u32 s%d, s%d, s%d" % (sREF, sIT, sPREV))
    A("s_mov_b32 s%d, s%d" % (sPREV, sIT))
    A("s_mov_b64 exec, 1")
    A("buffer_store_dword v%d, v%d, s[%d:%d], s%d offen" % (cV + 4, hZ, WSR, WSR + 3, sPW))
    A("s_mov_b64 exec, -1")
    A("s_cmp_ge_u32 s%d, %d" % (sIT, NW * (TOTAL - margin)))
    A("s_cbranch_scc1 L_h_common")
    A("buffer_load_dword v%d, v%d, s[%d:%d], s%d offen sc1" % (cV + 5, cV, WSR, WSR + 3, sPR))
    A("s_waitcnt vmcnt(0)")
    A("ds_read_b32 v%d, v%d offset:%d" % (cV + 9, cV + 7, L_PROG))
    A("v_xor_b32 v%d, s%d, v%d" % (cV + 5, sTG, cV + 5))
    A("v_cmp_le_u32 vcc, 0x10000, v%d" % (cV + 5))
    if rk:
        A("s_cmp_lg_u32 vcc_lo, 0")
        A("s_cbranch_scc1 L_ctl")
        A("s_mov_b32 s%d, vcc_hi" % (sF + 7))
    else:
        A("s_cbranch_vccnz L_ctl")
    rowreduce("v_add_u32", cV + 5)
    A("s_lshl_b32 s%d, s%d, 4" % (sREF, sREF))
    A("v_readlane_b32 s%d, v%d, 0" % (sE, cV + 5))
    A("v_readlane_b32 s%d, v%d, 16" % (sIT, cV + 5))
    A("s_add_u32 s%d, s%d, s%d" % (sE, sE, sIT))
    A("s_sub_u32 s%d, s%d, s%d" % (sE, sE, sREF))
    A("s_mul_i32 s%d, s%d, %d" % (sE, sE, gain))
    A("s_add_i32 s%d, s%d, s%d" % (sE, sE, sSET))
    if rk:
        A("v_readlane_b32 s%d, v%d, 32" % (sIT, cV + 5))
        A("s_sub_u32 s%d, s%d, %d" % (sIT, sIT, 224 if rs else 248))
        A("s_mul_i32 s%d, s%d, %d" % (sIT, sIT, rk))
        A("s_cmp_eq_u32 s%d, 0" % (sF + 7))
        A("s_cselect_b32 s%d, s%d, 0" % (sIT, sIT))
        A("s_add_i32 s%d, s%d, s%d" % (sE, sE, sIT))
    A("s_waitcnt lgkmcnt(0)")
    A("v_add_u32_dpp v%d, v%d, v%d quad_perm:[1,0,3,2] %s" % (cV + 4, cV + 9, cV + 9, DPP))
    A("v_lshlrev_b32 v%d, 2, v%d" % (cV + 9, cV + 9))
    A("s_nop 0")
    A("v_add_u32_dpp v%d, v%d, v%d quad_perm:[2,3,0,1] %s" % (cV + 4, cV + 4, cV + 4, DPP))
    A("v_sub_u32 v%d, v%d, v%d" % (cV + 4, cV + 4, cV + 9))
    A("v_mul_i32_i24 v%d, %d, v%d" % (cV + 4, 32 * wgain, cV + 4))
    A("v_add_u32 v%d, s%d, v%d" % (cV + 4, sE, cV + 4))
    A("v_ashrrev_i32 v%d, 9, v%d" % (cV + 4, cV + 4))
    A("v_max_i32 v%d, 0, v%d" % (cV + 4, cV + 4))
    A("v_min_i32 v%d, %d, v%d" % (cV + 4, 8 * NF, cV + 4))
    A("v_lshlrev_b32 v%d, 2, v%d" % (cV + 4, cV + 4))
    A("ds_bpermute_b32 v%d, v%d, v%d" % (cV + 5, cV + 4, cV + 2))
    A("s_waitcnt lgkmcnt(0)")
    A("ds_write_b32 v%d, v%d offset:%d" % (cV + 8, cV + 5, L_MODE))
    A("s_branch L_ctl")

    LB("L_h_common")
    C("output-projection tile of this workgroup (14 of the head's 16): 128 rows x 64 columns, both batches")
    C("wave fragment: rows h*256+128*rh+64*(hw&1)+4*(hw>>1)+8n+(g>>1)+2(g&1), columns 64*cb+4j..")
    sRH, sCB, sTL, sO1R, sO1S, sYW = sTMP, sTMP + 1, sTMP + 2, sTMP + 4, sTMP + 5, sTMP + 6
    hLA, hLW, hCA, hONE, hRET, YR = 128, 129, 130, 131, 132, 100
    A("s_lshl_b32 s%d, s%d, 3" % (sTL, sB))
    A("s_add_u32 s%d, s%d, s%d" % (sTL, sTL, sC))
    A("s_cmp_ge_u32 s%d, 14" % sTL)
    A("s_cbranch_scc1 L_fin")
    if now:
        A("s_mov_b32 s%d, %d" % (SRD + 2, 0 if now & 2 else 448 * 8192))
    A("s_mov_b32 s%d, s%d" % (SRD, sWO))
    A("s_mov_b32 s%d, s%d" % (SRD + 1, sWO + 1))
    A("v_lshrrev_b32 v%d, 1, v%d" % (hU + 1, hG))
    A("v_and_b32 v%d, 1, v%d" % (hU + 2, hG))
    A("v_lshl_add_u32 v%d, v%d, 1, v%d" % (hU + 1, hU + 2, hU + 1))
    A("v_mul_u32_u24 v%d, 896, v%d" % (hU + 1, hU + 1))
    A("v_lshl_add_u32 v%d, v%d, 3, v%d" % (hU, hJ, hU + 1))
    A("s_cmp_ge_u32 s%d, 7" % sTL)
    A("s_cselect_b32 s%d, 1, 0" % sRH)
    A("s_mul_i32 s%d, s%d, 7" % (sCB, sRH))
    A("s_sub_u32 s%d, s%d, s%d" % (sCB, sTL, sCB))
    A("s_lshl_b32 s%d, s%d, 1" % (sOFF, sH))
    A("s_add_u32 s%d, s%d, s%d" % (sOFF, sOFF, sRH))
    A("s_lshl_b32 s%d, s%d, 8" % (sYW, sOFF))
    A("s_lshl_b32 s%d, s%d, %d" % (sIT, sCB, 13 + yk))
    A("s_add_u32 s%d, s%d, s%d" % (sYW, sYW, sIT))
    A("s_add_u32 s%d, s%d, %d" % (sYW, sYW, WS_Y + yc * 8192))
    if ydual:
        A("s_xor_b32 s%d, s%d, 8192" % (sTMP + 7, sYW))
    A("s_lshl_b32 s%d, s%d, 7" % (sOFF, sOFF))
    A("s_and_b32 s%d, s%d, 1" % (sIT, sHW))
    A("s_lshl_b32 s%d, s%d, 6" % (sIT, sIT))
    A("s_add_u32 s%d, s%d, s%d" % (sOFF, sOFF, sIT))
    A("s_lshr_b32 s%d, s%d, 1" % (sIT, sHW))
    A("s_lshl_b32 s%d, s%d, 2" % (sIT, sIT))
    A("s_add_u32 s%d, s%d, s%d" % (sOFF, sOFF, sIT))
    A("s_mul_i32 s%d, s%d, 896" % (sOFF, sOFF))
    A("s_lshl_b32 s%d, s%d, 7" % (sIT, sCB))
    A("s_add_u32 s%d, s%d, s%d" % (sOFF, sOFF, sIT))
    for n in range(8):
        A("s_add_u32 s%d, s%d, %d" % (sF + n, sOFF, n * 8 * 896))
    C("byte selectors for the A operand: row i<8, element e=i&3 (reg e>>1, half e&1) takes batch (i>>2)&1")
    A("v_bfe_u32 v%d, v%d, 2, 1" % (hU + 1, hL))
    A("v_mul_u32_u24 v%d, 0x0202, v%d" % (hU + 1, hU + 1))
    A("v_add_u32 v%d, 0x0100, v%d" % (hU + 1, hU + 1))
    A("v_xor_b32 v%d, 0x0c0c, v%d" % (hU + 1, hU + 1))
    A("v_and_b32 v%d, 1, v%d" % (hU + 2, hL))
    A("v_lshlrev_b32 v%d, 4, v%d" % (hU + 2, hU + 2))
    A("v_lshlrev_b32 v%d, v%d, v%d" % (hU + 1, hU + 2, hU + 1))
    A("v_mov_b32 v%d, 0x0c0c0c0c" % (hU + 3))
    A("v_xor_b32 v%d, v%d, v%d" % (hU + 1, hU + 3, hU + 1))
    A("v_and_b32 v%d, 10, v%d" % (hU + 2, hL))
    for r in range(2):
        A("v_cmp_eq_u32 vcc, %d, v%d" % (2 * r, hU + 2))
        A("s_nop 1")
        A("v_cndmask_b32 v%d, v%d, v%d, vcc" % (hMK + r, hU + 3, hU + 1))
    C("o gather: O1 + (b*16+h)*8192 + (l>>3)*1024 + (4rh+hw)*128 + (l&7)*16")
    A("v_lshrrev_b32 v%d, 3, v%d" % (hU + 1, hL))
    A("v_lshlrev_b32 v%d, 10, v%d" % (hU + 1, hU + 1))
    A("v_and_b32 v%d, 7, v%d" % (hU + 2, hL))
    A("v_lshl_add_u32 v%d, v%d, 4, v%d" % (hU + 1, hU + 2, hU + 1))
    A("s_lshl_b32 s%d, s%d, 2" % (sIT, sRH))
    A("s_add_u32 s%d, s%d, s%d" % (sIT, sIT, sHW))
    A("s_lshl_b32 s%d, s%d, 7" % (sIT, sIT))
    A("s_lshl_b32 s%d, s%d, 13" % (sO1R, sH))
    A("s_add_u32 s%d, s%d, s%d" % (sO1R, sO1R, sIT))
    A("s_add_u32 s%d, s%d, %d" % (sO1R, sO1R, WS_O1))
    A("s_add_u32 s%d, s%d, %d" % (sO1S, sO1R, 16 * 8192))
    A("v_mul_u32_u24 v%d, %d, v%d" % (hU + 2, (7 * 8192) << yk, hG))
    A("v_lshl_add_u32 v%d, v%d, 4, v%d" % (hU + 2, hJ, hU + 2))
    A("s_lshl_b32 s%d, s%d, 9" % (sIT, sHW))
    A("v_lshlrev_b32 v%d, 4, v%d" % (hLA, hL))
    A("v_add_u32 v%d, s%d, v%d" % (hLW, sIT, hLA))
    A("v_lshlrev_b32 v%d, 2, v%d" % (hCA, hL))
    A("v_mov_b32 v%d, 1" % hONE)
    if pair:
        A("s_lshl_b32 s%d, s%d, 8" % (sIT, sHW))
        A("v_mov_b32 v%d, s%d" % (hP + 1, sIT))
    else:
        A("v_and_b32 v%d, 3, v%d" % (hP + 1, hL))
        A("v_mul_u32_u24 v%d, 260, v%d" % (hP + 1, hP + 1))
    def wowait(tag, thr, anyw=0):
        A("s_mov_b32 s%d, %d" % (sSPIN, spin * 16))
        LB("L_wow" + tag)
        if wslp:
            A("s_sleep %d" % wslp)
        A("ds_read_b32 v%d, v%d offset:%d" % (hP, hP + 1, L_PROG))
        spin_dec()
        A("s_waitcnt lgkmcnt(0)")
        A("s_cbranch_scc1 L_wog" + tag)
        if anyw:
            A("v_cmp_le_u32 vcc, %d, v%d" % (thr, hP))
            A("s_cbranch_vccz L_wow" + tag)
        else:
            A("v_cmp_gt_u32 vcc, %d, v%d" % (thr, hP))
            A("s_cbranch_vccnz L_wow" + tag)
        LB("L_wog" + tag)
    wld = lambda n: A("buffer_load_dwordx2 v[%d:%d], v%d, s[%d:%d], s%d offen nt" % (hW + 2 * n, hW + 2 * n + 1, hU, SRD, SRD + 3, sF + n))
    if wol < 8:
        wowait("e", TOTAL - wearly)
        for n in range(8 - wol):
            wld(n)
    jitter()
    C("the wo fragment is requested right behind this workgroup's last V loads")
    wowait("", TOTAL, wany)
    for n in range(8 - wol, 8):
        wld(n)
    A("s_mov_b32 s%d, %d" % (sSPIN, spin * 16))
    LB("L_hpar")
    A("ds_read_b64 v[%d:%d], v%d offset:%d" % (hP, hP + 1, hZ, L_PAR + 24))
    spin_dec()
    A("s_waitcnt lgkmcnt(0)")
    A("s_cbranch_scc1 L_fin")
    A("v_cmp_eq_u32 vcc, 0, v%d" % hP)
    A("s_cbranch_vccnz L_hpar")
    A("v_add_u32 v%d, v%d, v%d" % (hU + 2, hU + 2, hP + 1))
    A("s_mov_b32 s%d, %d" % (sSPIN, spin))
    if b2:
        A("s_barrier")
    else:
        A("s_waitcnt vmcnt(%d)" % owait)
    jitter()
    stamp(4)
    LB("L_opoll")
    A("buffer_load_dwordx4 v[%d:%d], v%d, s[%d:%d], s%d offen sc1" % (hP, hP + 3, hU + 1, WSR, WSR + 3, sO1R))
    A("buffer_load_dwordx4 v[%d:%d], v%d, s[%d:%d], s%d offen sc1" % (hP + 4, hP + 7, hU + 1, WSR, WSR + 3, sO1S))
    spin_dec()
    A("s_cbranch_scc1 L_fin")
    A("s_waitcnt vmcnt(1)")
    for r in range(4):
        A("v_xor_b32 v%d, s%d, v%d" % (hP + r, sT + r, hP + r))
    A("v_or3_b32 v%d, v%d, v%d, v%d" % (hP + 8, hP, hP + 1, hP + 2))
    A("s_waitcnt vmcnt(0)")
    for r in range(4):
        A("v_xor_b32 v%d, s%d, v%d" % (hP + 4 + r, sT + r, hP + 4 + r))
    A("v_or3_b32 v%d, v%d, v%d, v%d" % (hP + 8, hP + 8, hP + 3, hP + 4))
    A("v_or3_b32 v%d, v%d, v%d, v%d" % (hP + 8, hP + 8, hP + 5, hP + 6))
    A("v_or_b32 v%d, v%d, v%d" % (hP + 8, hP + 8, hP + 7))
    A("v_cmp_ne_u32_sdwa vcc, v%d, 0 src0_sel:BYTE_0 src1_sel:DWORD" % (hP + 8))
    A("s_wqm_b64 exec, vcc" if wqm else "s_and_b64 exec, exec, vcc")
    A("s_cbranch_scc1 L_opoll")
    A("s_mov_b64 exec, -1")
    stamp(5)
    C("sum the 8 chunk partials of both batches (transposing), round o to bf16, multiply with the tile")
    for q in range(4):
        A("v_permlane32_swap_b32 v%d, v%d" % (hP + 2 * q, hP + 2 * q + 1))
    for q in range(4):
        A("v_add_f32 v%d, v%d, v%d" % (hP + 2 * q, hP + 2 * q, hP + 2 * q + 1))
    A("v_permlane16_swap_b32 v%d, v%d" % (hP, hP + 2))
    A("s_and_b32 s%d, s2, 7" % sIT)
    A("v_permlane16_swap_b32 v%d, v%d" % (hP + 4, hP + 6))
    A("v_add_f32 v%d, v%d, v%d" % (hP, hP, hP + 2))
    A("v_add_f32 v%d, v%d, v%d" % (hP + 4, hP + 4, hP + 6))
    A("s_cmp_lg_u32 s%d, %d" % (sIT, rcls))
    A("v_add_f32_dpp v%d, v%d, v%d row_ror:8 %s" % (hP, hP, hP, DPP))
    A("v_add_f32_dpp v%d, v%d, v%d row_ror:8 %s" % (hP + 4, hP + 4, hP + 4, DPP))
    A("v_cvt_pk_bf16_f32 v%d, v%d, v%d" % (hP, hP, hP + 4))
    A("s_nop 1")
    BC, AA = hP + 8, 80
    for n in range(8):
        A("v_mov_b32_dpp v%d, v%d row_newbcast:%d %s" % (BC + n, hP, n, DPP))
    def mf(m_):
        A("v_mfma_f32_16x16x32_bf16 v[%d:%d], v[%d:%d], v[%d:%d], %s" %
          (hD, hD + 3, AA + 4 * m_, AA + 4 * m_ + 3, hW + 4 * m_, hW + 4 * m_ + 3, "0" if m_ == 0 else "v[%d:%d]" % (hD, hD + 3)))
    for n in range(8):
        for r in range(2):
            A("v_perm_b32 v%d, v%d, v%d, v%d" % (AA + 2 * n + r, BC + n, BC + n, hMK + r))
        if n in (2, 4, 6):
            mf(n // 2 - 1)
    A("s_nop 1")
    mf(3)
    C("the last helper to arrive sums the four row slices and writes the tile's y through")
    A("s_mov_b32 exec_hi, 0")
    A("s_nop 6")
    jitter()
    A("ds_write_b128 v%d, v[%d:%d] offset:%d" % (hLW, hD, hD + 3, L_Y))
    A("ds_add_rtn_u32 v%d, v%d, v%d offset:%d" % (hRET, hCA, hONE, L_CNT + 256))
    for w in range(4):
        A("ds_read_b128 v[%d:%d], v%d offset:%d" % (YR + 4 * w, YR + 4 * w + 3, hLA, L_Y + 512 * w))
    A("s_waitcnt lgkmcnt(2)")
    A("v_cmp_eq_u32 vcc, 3, v%d" % hRET)
    A("s_cbranch_vccz L_ynot")
    def add4(d, a, b):
        if pk:
            for q in (0, 2):
                A("v_pk_add_f32 v[%d:%d], v[%d:%d], v[%d:%d]" % (d + q, d + q + 1, a + q, a + q + 1, b + q, b + q + 1))
        else:
            for r in range(4):
                A("v_add_f32 v%d, v%d, v%d" % (d + r, a + r, b + r))
    add4(YR, YR, YR + 4)
    A("s_waitcnt lgkmcnt(1)")
    add4(YR, YR, YR + 8)
    A("s_waitcnt lgkmcnt(0)")
    add4(YR, YR, YR + 12)
    for r in range(4):
        A("v_perm_b32 v%d, v%d, v%d, s%d" % (YR + r, YR + r, hTAG, sSEL + r))
    jitter()
    A("buffer_store_dwordx4 v[%d:%d], v%d, s[%d:%d], s%d offen sc1" % (YR, YR + 3, hU + 2, WSR, WSR + 3, sYW))
    if ydual:
        A("buffer_store_dwordx4 v[%d:%d], v%d, s[%d:%d], s%d offen sc1" % (YR, YR + 3, hU + 2, WSR, WSR + 3, sTMP + 7))
    stamp(6)
    if nd:
        A("s_cbranch_scc0 L_ynot")
        A("s_waitcnt vmcnt(0)")
        A("s_sleep %d" % nd)
    LB("L_ynot")
    A("s_cbranch_scc1 L_fin")
    A("s_barrier")

    LB("L_fin")
    if diag >= 0:
        C("DIAGNOSTIC ONLY")
        A("s_or_b32 s%d, s2, s3" % sTMP)
        A("s_cbranch_scc1 L_end")
        A("s_memrealtime s[%d:%d]" % (sST + 14, sST + 15))
        A("s_waitcnt lgkmcnt(0)")
        A("s_sub_u32 s%d, s%d, s%d" % (sTMP, sST + 2 * diag, sST))
        A("s_min_u32 s%d, s%d, 20000" % (sTMP, sTMP))
        A("s_mul_i32 s%d, s%d, %d" % (sTMP, sTMP, dk))
        A("s_add_u32 s%d, s%d, 500" % (sTMP, sTMP))
        LB("L_diag")
        A("s_memrealtime s[%d:%d]" % (sST + 2, sST + 3))
        A("s_waitcnt lgkmcnt(0)")
        A("s_sub_u32 s%d, s%d, s%d" % (sTMP + 1, sST + 2, sST + 14))
        A("s_cmp_lt_u32 s%d, s%d" % (sTMP + 1, sTMP))
        A("s_cbranch_scc1 L_diag")
    if stamps:
        A("s_mov_b64 exec, -1")
        A("s_cmp_lt_u32 s3, 4")
        A("s_cbranch_scc1 L_stz")
        A("s_cmp_ge_u32 s%d, 14" % (sTMP + 2))
        A("s_cbranch_scc1 L_sts")
        LB("L_stz")
        for _ in range(3):
            A("s_sleep 127")
        LB("L_sts")
        A("s_lshl_b32 s%d, s2, 3" % sTMP)
        A("s_add_u32 s%d, s%d, s3" % (sTMP, sTMP))
        A("s_lshl_b32 s%d, s%d, 6" % (sTMP, sTMP))
        A("s_add_u32 s%d, s%d, %d" % (sTMP, sTMP, STAMP_BASE))
        A("s_mov_b32 s%d, 0x20000000" % (WSR + 2))
        A("s_waitcnt vmcnt(0) lgkmcnt(0)")
        A("s_mov_b64 exec, 1")
        A("v_mov_b32 v1, 0")
        for q in range(16):
            A("v_mov_b32 v%d, s%d" % (4 + q, sST + q))
        for q in range(4):
            A("buffer_store_dwordx4 v[%d:%d], v1, s[%d:%d], s%d offen offset:%d" % (4 + 4 * q, 7 + 4 * q, WSR, WSR + 3, sTMP, 16 * q))
    LB("L_end")
    A("s_endpgm")
    nv = max(vSL + 4 * LZ, 192)
    L.append('.section .rodata,"a"')
    L.append(".p2align 6")
    L.append(".amdhsa_kernel " + KN)
    L.append("  .amdhsa_next_free_vgpr %d" % nv)
    L.append("  .amdhsa_next_free_sgpr 96")
    L.append("  .amdhsa_accum_offset %d" % nv)
    L.append("  .amdhsa_group_segment_fixed_size 0")
    L.append("  .amdhsa_kernarg_size 64")
    L.append("  .amdhsa_user_sgpr_count 2")
    L.append("  .amdhsa_user_sgpr_kernarg_segment_ptr 1")
    L.append("  .amdhsa_system_sgpr_workgroup_id_x 1")
    L.append("  .amdhsa_float_denorm_mode_32 3")
    L.append(".end_amdhsa_kernel")
    return "\n".join(L) + "\n"


def parse(spec):
    kw = {}
    for x in spec.split(","):
        if x:
            k, v = x.split("=")
            kw[k] = v if k == "mapping" else int(v, 0)
    return kw


if __name__ == "__main__":
    names = []
    for spec in sys.argv[1:]:
        name = "k_" + spec.replace(",", "_").replace("=", "") + ".s"
        open(name, "w").write(gen(**parse(spec)))
        names.append(name)
    print(" ".join(names))
```

```python
import sys
HDR = '''.amdgcn_target "amdgcn-amd-amdhsa--gfx950"
.text
.globl standalone__mha_block_cached__decode_kernel
.p2align 8
.type standalone__mha_block_cached__decode_kernel,@function
standalone__mha_block_cached__decode_kernel:'''
def ftr(nv, acc=None, ns=102):
    nv = (nv + 3)//4*4
    return '''.section .rodata,"a"
.p2align 6
.amdhsa_kernel standalone__mha_block_cached__decode_kernel
  .amdhsa_next_free_vgpr %d
  .amdhsa_next_free_sgpr %d
  .amdhsa_accum_offset %d
  .amdhsa_group_segment_fixed_size 0
  .amdhsa_kernarg_size 64
  .amdhsa_user_sgpr_count 2
  .amdhsa_user_sgpr_kernarg_segment_ptr 1
  .amdhsa_system_sgpr_workgroup_id_x 1
.end_amdhsa_kernel
''' % (nv, ns, acc if acc else min(nv, 256))

def gen(NW=4, R=16, D=8, flags="nt", gran=1, xmask=0xff, vg=None, prog=1, mapping="lin", nwg=256, G=1, rot=0, WW=0, WD=16, wflags="", wo=0, hmap="x"):
    L = []; A = L.append
    N = 512 // NW * 256 // nwg
    A("; @launch grid=(%d,1,1) block=(%d,1,1) lds=0" % (nwg, (NW+WW)*64))
    A(HDR)
    A("  s_memrealtime s[40:41]")
    A("  s_cmp_ge_u32 s2, %d" % nwg)
    A("  s_cbranch_scc1 L_end")
    A("  s_load_dwordx4 s[4:7], s[0:1], 8")
    A("  s_load_dwordx2 s[20:21], s[0:1], 56")
    A("  s_load_dwordx4 s[48:51], s[0:1], 24")
    A("  v_lshrrev_b32 v1, 6, v0")
    A("  v_and_b32 v0, 63, v0")
    A("  v_readfirstlane_b32 s3, v1")
    A("  v_lshlrev_b32 v0, 4, v0")
    A("  v_mov_b32 v3, 0")
    chunk = 512*1024*256//nwg
    if mapping == "lin":
        A("  s_mov_b32 s28, s2")
    elif mapping == "xcd":
        A("  s_and_b32 s28, s2, 7"); A("  s_lshr_b32 s29, s2, 3"); A("  s_mul_i32 s28, s28, %d" % (nwg//8)); A("  s_add_u32 s28, s28, s29")
    elif mapping == "xg":
        import math
        lg = int(math.log2(G))
        A("  s_and_b32 s28, s2, 7"); A("  s_lshr_b32 s29, s2, 3")
        A("  s_and_b32 s27, s29, %d" % (G-1)); A("  s_lshr_b32 s29, s29, %d" % lg)
        A("  s_lshl_b32 s29, s29, 3"); A("  s_add_u32 s28, s28, s29"); A("  s_lshl_b32 s28, s28, %d" % lg); A("  s_add_u32 s28, s28, s27")
    import math
    lg = int(math.log2(G))
    A("  s_lshr_b32 s29, s28, %d" % lg); A("  s_and_b32 s27, s28, %d" % (G-1))
    A("  s_mul_i32 s30, s29, %d" % (chunk*G))
    if gran == 0:
        A("  s_mul_i32 s31, s3, %d" % (N*1024))
    else:
        A("  s_mul_i32 s27, s27, %d" % NW); A("  s_add_u32 s27, s27, s3")
        A("  s_mul_i32 s31, s27, %d" % (gran*1024))
    if rot:
        A("  s_mul_i32 s26, s29, %d" % (rot*gran*NW*G*1024))
        A("  s_add_u32 s31, s31, s26")
        A("  s_and_b32 s31, s31, %d" % (chunk*G-1))
    def step(i):
        if gran == 0: return 1024
        return 1024 if (i+1) % gran else 1024 + (NW*G-1)*gran*1024
    def adv(i):
        A("  s_add_u32 s45, s45, %d" % step(i))
        A("  s_and_b32 s45, s45, %d" % (chunk*G-1))
        A("  s_add_u32 s44, s45, s46")
    assert gran == 0 or R % gran == 0
    A("  s_waitcnt lgkmcnt(0)")
    A("  s_mov_b32 s22, 0x20000000"); A("  s_mov_b32 s23, 0x20000")
    A("  s_mov_b32 s16, s4"); A("  s_mov_b32 s17, s5"); A("  s_mov_b32 s18, 0x8000000"); A("  s_mov_b32 s19, 0x20000")
    if xmask != 0xff:
        A("  s_and_b32 s28, s2, 7"); A("  s_lshr_b32 s28, %d, s28" % xmask); A("  s_and_b32 s28, s28, 1")
        A("  s_cmp_eq_u32 s28, 0"); A("  s_cbranch_scc1 L_fin")
    base = 8
    if WW:
        A("  s_cmp_ge_u32 s3, %d" % NW)
        A("  s_cbranch_scc1 L_wgt")
    A("  s_mov_b32 s45, s31"); A("  s_mov_b32 s46, s30"); A("  s_add_u32 s44, s45, s46")
    for i in range(D):
        A("  buffer_load_dwordx4 v[%d:%d], v0, s[16:19], s44 offen %s" % (base+4*i, base+4*i+3, flags))
        adv(i)
    A("  s_mov_b32 s32, 0")
    nblk = 2*N // R
    bsw, jsw = divmod(N - D, R)
    A("L_loop:")
    if prog:
        A("  s_memrealtime s[38:39]")
    for j in range(R):
        if j == jsw:
            A("  s_cmp_eq_u32 s32, %d" % bsw)
            A("  s_cselect_b32 s16, s6, s16"); A("  s_cselect_b32 s17, s7, s17"); A("  s_cselect_b32 s45, s31, s45")
            A("  s_cmp_eq_u32 s32, %d" % (bsw + N//R))
            A("  s_cselect_b32 s46, 0x10000000, s46")
            A("  s_add_u32 s44, s45, s46")
        A("  s_waitcnt vmcnt(%d)" % (D-1))
        A("  v_xor_b32 v2, v2, v%d" % (base+4*j))
        s = (j + D) % R
        A("  buffer_load_dwordx4 v[%d:%d], v0, s[16:19], s44 offen %s" % (base+4*s, base+4*s+3, flags))
        adv(j + D)
        if prog and j == 1:
            A("  s_waitcnt lgkmcnt(0)")
            A("  s_mov_b32 m0, s32")
            A("  v_writelane_b32 v3, s38, m0")
    A("  s_add_u32 s32, s32, 1")
    A("  s_cmp_lt_u32 s32, %d" % nblk)
    A("  s_cbranch_scc1 L_loop")
    if WW:
        A("  s_branch L_fin")
        A("L_wgt:")
        if hmap == "x":
            A("  s_and_b32 s52, s2, 7"); A("  s_lshl_b32 s52, s52, 1"); A("  s_lshr_b32 s53, s2, 3"); A("  s_and_b32 s53, s53, 1"); A("  s_add_u32 s52, s52, s53")
        else:
            A("  s_lshr_b32 s52, s2, 3"); A("  s_and_b32 s52, s52, 15")
        A("  s_sub_u32 s53, s3, %d" % NW)
        A("  v_lshrrev_b32 v4, 9, v0"); A("  v_lshlrev_b32 v4, 13, v4"); A("  v_and_b32 v5, 511, v0"); A("  v_add_u32 v4, v4, v5")
        A("  s_mov_b32 s16, s48"); A("  s_mov_b32 s17, s49"); A("  s_mov_b32 s18, %d" % (448*8192))
        nl = 224 // WW
        A("  s_mul_i32 s44, s53, %d" % (nl*2*8192)); A("  s_lshl_b32 s54, s52, 9"); A("  s_add_u32 s44, s44, s54")
        for i in range(nl):
            if i >= WD: A("  s_waitcnt vmcnt(%d)" % (WD-1))
            sl = i % R
            A("  buffer_load_dwordx4 v[%d:%d], v4, s[16:19], s44 offen %s" % (base+4*sl, base+4*sl+3, wflags))
            A("  s_add_u32 s44, s44, 16384")
        A("  s_waitcnt vmcnt(0)")
        A("  s_memrealtime s[38:39]"); A("  s_waitcnt lgkmcnt(0)"); A("  v_writelane_b32 v3, s38, 0")
        if wo:
            A("  s_mov_b32 s16, s50"); A("  s_mov_b32 s17, s51")
            A("  s_mul_i32 s44, s53, %d" % (nl*1024)); A("  s_mul_i32 s54, s52, %d" % (224*1024)); A("  s_add_u32 s44, s44, s54")
            for i in range(nl):
                if i >= wo: A("  s_waitcnt vmcnt(%d)" % (wo-1))
                sl = i % R
                A("  buffer_load_dwordx4 v[%d:%d], v0, s[16:19], s44 offen %s" % (base+4*sl, base+4*sl+3, wflags))
                A("  s_add_u32 s44, s44, 1024")
    A("L_fin:")
    A("  s_waitcnt vmcnt(0)")
    A("  s_memrealtime s[42:43]")
    A("  s_mul_i32 s33, s2, %d" % (NW+WW))
    A("  s_add_u32 s33, s33, s3")
    A("  s_lshl_b32 s33, s33, 9")
    A("  s_add_u32 s33, s33, 0x10000000")
    A("  s_getreg_b32 s34, hwreg(HW_REG_XCC_ID)")
    A("  s_getreg_b32 s35, hwreg(HW_REG_HW_ID)")
    A("  s_and_b32 s34, s34, 15"); A("  s_and_b32 s35, s35, 0xffff"); A("  s_lshl_b32 s35, s35, 4"); A("  s_or_b32 s34, s34, s35")
    A("  s_waitcnt lgkmcnt(0)")
    A("  v_mov_b32 v4, v3"); A("  v_mov_b32 v5, s41")
    A("  v_lshrrev_b32 v6, 1, v0"); A("  v_add_u32 v6, 16, v6")
    A("  v_cmp_gt_u32 vcc, %d, v0" % (61*16))
    A("  s_and_saveexec_b64 s[36:37], vcc")
    A("  buffer_store_dwordx2 v[4:5], v6, s[20:23], s33 offen")
    A("  s_mov_b64 exec, 1")
    A("  v_mov_b32 v8, s40"); A("  v_mov_b32 v9, s41"); A("  v_mov_b32 v10, s34"); A("  v_mov_b32 v11, 0")
    A("  v_mov_b32 v12, s42"); A("  v_mov_b32 v13, s43"); A("  v_mov_b32 v7, 0")
    A("  buffer_store_dwordx4 v[8:11], v7, s[20:23], s33 offen")
    A("  buffer_store_dwordx2 v[12:13], v7, s[20:23], s33 offen offset:504")
    A("L_end:")
    A("  s_endpgm")
    A(ftr(vg or (base + 4*R)))
    return "\n".join(L) + "\n"

if __name__ == "__main__":
    cfgs = []
    for spec in sys.argv[1:]:
        kv = dict(x.split("=") for x in spec.split(","))
        NW = int(kv.get("w", 4)); R = int(kv.get("r", 16)); D = int(kv.get("d", 8)); fl = kv.get("f", "nt").replace("+", " ")
        if fl == "def": fl = ""
        NT = NW + int(kv.get("ww", 0)); vg = int(kv.get("vg", 256 if 4 < NT <= 8 else (512 if NT == 4 else 128)))
        name = "s_" + spec.replace(",", "_").replace("=", "") + ".s"
        open(name, "w").write(gen(NW=NW, R=R, D=D, flags=fl, gran=int(kv.get("g", 1)), xmask=int(kv.get("x", "ff"), 16), vg=vg, prog=int(kv.get("prog", 1)), mapping=kv.get("m", "lin"), nwg=int(kv.get("nwg", 256)), G=int(kv.get("G", 1)), rot=int(kv.get("rot", 0)), WW=int(kv.get("ww", 0)), WD=int(kv.get("wd", 16)), wflags=kv.get("wf", "").replace("+", " "), wo=int(kv.get("wo", 0)), hmap=kv.get("hm", "x")))
        cfgs.append(name)
    print(" ".join(cfgs))
```

```python
import sys
from gen_stream2 import HDR, ftr
out=[]
for spec in sys.argv[1:]:
    nl, clean, last = map(int, spec.split("_"))
    L=[]; A=lambda s: L.append("  "+s); LB=lambda s: L.append(s+":")
    L.append("; @launch grid=(256,1,1) block=(64,1,1) lds=0"); L.append(HDR)
    A("s_load_dwordx2 s[20:21], s[0:1], 56"); A("s_mov_b32 s22, 0x20000000"); A("s_mov_b32 s23, 0x20000")
    A("s_memrealtime s[40:41]"); A("v_lshlrev_b32 v1, 4, v0"); A("s_lshl_b32 s30, s2, 12"); A("s_waitcnt lgkmcnt(0)")
    for i in range(nl): A("buffer_store_dwordx4 v[4:7], v1, s[20:23], s30 offen offset:%d" % (i*1024))
    A("s_waitcnt vmcnt(0)")
    if clean:
        A("s_mov_b32 s31, s30")
        for i in range(nl*1024//clean):
            A("s_load_dword s50, s[20:21], s31 glc"); A("s_add_u32 s31, s31, %d" % clean)
            if i % 8 == 7: A("s_waitcnt lgkmcnt(0)")
        A("s_waitcnt lgkmcnt(0)")
    A("s_mov_b32 s45, 2000")
    if last:
        A("s_and_b32 s46, s2, 7"); A("s_cmp_eq_u32 s46, 0"); A("s_cselect_b32 s45, 2200, s45")
    LB("L_w"); A("s_memrealtime s[42:43]"); A("s_waitcnt lgkmcnt(0)"); A("s_sub_u32 s44, s42, s40"); A("s_cmp_lt_u32 s44, s45"); A("s_cbranch_scc1 L_w")
    if last:
        A("s_cmp_eq_u32 s46, 0"); A("s_cbranch_scc0 L_e"); A("s_mov_b64 exec, 15"); A("s_lshl_b32 s30, s2, 3"); A("s_add_u32 s30, s30, 0x400000")
        if last == 1: A("buffer_store_dwordx4 v[4:7], v1, s[20:23], s30 offen")
        if last == 2: A("buffer_store_dwordx4 v[4:7], v1, s[20:23], s30 offen sc1")
        LB("L_e")
    A("s_endpgm"); L.append(ftr(16))
    n="dz_%s.s"%spec; open(n,"w").write("\n".join(L)+"\n"); out.append(n)
print(" ".join(out))
```
